```python
import torch

def _softmax(x, axis=-1):
    return torch.softmax(x, dim=axis)

def _gelu(x):
    return torch.nn.functional.gelu(x, approximate='tanh')

def _silu(x):
    return torch.nn.functional.silu(x)

def _sigmoid(x):
    return torch.sigmoid(x)

def _layernorm(x, axis=-1, eps=1e-05):
    m = x.mean(dim=axis, keepdim=True)
    v = x.var(dim=axis, keepdim=True, unbiased=False)
    return (x - m) / torch.sqrt(v + eps)

def _scatter_add(tgt, idx, src, axis=0):
    return tgt.clone().index_add_(axis, idx, src)

def _segment_sum(src, seg, n):
    out = torch.zeros((n,) + src.shape[1:], dtype=src.dtype)
    return out.index_add_(0, seg, src)

def _pad(x, pw):
    flat = tuple((v for pair in reversed(pw) for v in pair))
    return torch.nn.functional.pad(x, flat)
kernel_name = 'adaLN_cond__sliding_block_cached__glu_gated_glu__decode'

def setup_inputs():

    _w = lambda a: (lambda t: t.to(torch.bfloat16) if t.is_floating_point() else t)(torch.as_tensor(a))

    def _A_setup():
        B, Sq, D = (1, 1, 512)
        Hq, Hkv, Sk, Dh = (32, 8, 16384, 128)
        assert Hq % Hkv == 0, (Hq, Hkv)
        return {'x': _w((lambda *s: torch.randn(*s, dtype=torch.bfloat16) * 0.1)(B, Sq, D)), 'k_cache': _w((lambda *s: torch.randn(*s, dtype=torch.bfloat16) * 0.8)(B, Hkv, Sk, Dh)), 'v_cache': _w((lambda *s: torch.randn(*s, dtype=torch.bfloat16) * 0.8)(B, Hkv, Sk, Dh)), 'wq': _w((lambda *s: torch.randn(*s, dtype=torch.bfloat16) * 0.8)(D, Hq * Dh) * D ** (-0.5)), 'wo': _w((lambda *s: torch.randn(*s, dtype=torch.bfloat16) * 0.8)(Hq * Dh, D) * (Hq * Dh) ** (-0.5))}
    _A_in = _A_setup()

    def _B_setup():
        B, S, D, F = (1, 1, 512, 1792)
        return {'x': _w((lambda *s: torch.randn(*s, dtype=torch.bfloat16) * 0.1)(B, S, D)), 'w_gate': _w((lambda *s: torch.randn(*s, dtype=torch.bfloat16) * 0.2)(D, F)), 'w_up': _w((lambda *s: torch.randn(*s, dtype=torch.bfloat16) * 0.1)(D, F)), 'w_down': _w((lambda *s: torch.randn(*s, dtype=torch.bfloat16) * 0.1)(F, D))}
    _B_in = _B_setup()
    return {'A_x': _A_in['x'], 'A_k_cache': _A_in['k_cache'], 'A_v_cache': _A_in['v_cache'], 'A_wq': _A_in['wq'], 'A_wo': _A_in['wo'], 'B_x': _B_in['x'], 'B_w_gate': _B_in['w_gate'], 'B_w_up': _B_in['w_up'], 'B_w_down': _B_in['w_down'], 'c': _w((lambda *s: torch.randn(*s, dtype=torch.bfloat16) * 0.4)(1, 512) * 8.0), 'w_mod': _w((lambda *s: torch.randn(*s, dtype=torch.bfloat16) * 0.4)(512, 6 * 512) * 512 ** (-0.5) * 8.0)}

def reference(A_x, A_k_cache, A_v_cache, A_wq, A_wo, B_x, B_w_gate, B_w_up, B_w_down, c, w_mod):

    def _A_ref(x, k_cache, v_cache, wq, wo):
        B, Sq, D = x.shape
        Hq, Dh = (32, 128)
        Hkv, Sk = (k_cache.shape[1], k_cache.shape[2])
        W = min(4096, max(256, Sk // 4))
        rep = Hq // Hkv
        q = (lambda x, *d: x.permute(*d))((x @ wq).reshape(B, Sq, Hq, Dh), 0, 2, 1, 3)
        k = (lambda x, n, axis: torch.repeat_interleave(x, n, dim=axis))(k_cache[:, :, Sk - W:, :], rep, axis=1)
        v = (lambda x, n, axis: torch.repeat_interleave(x, n, dim=axis))(v_cache[:, :, Sk - W:, :], rep, axis=1)
        scores = torch.einsum('bhqd,bhkd->bhqk', q, k) * Dh ** (-0.5)
        p = _softmax(scores, axis=-1)
        o = torch.einsum('bhqk,bhkd->bhqd', p, v)
        return (lambda x, *d: x.permute(*d))(o, 0, 2, 1, 3).reshape(B, Sq, Hq * Dh) @ wo

    def _B_ref(x, w_gate, w_up, w_down):
        g = torch.einsum('bsd,df->bsf', x, w_gate)
        u = torch.einsum('bsd,df->bsf', x, w_up)
        h = _sigmoid(g) * u
        return torch.einsum('bsf,fd->bsd', h, w_down)
    x = A_x
    mod = (_silu(c) @ w_mod).reshape(c.shape[0], 6, 1, -1)
    sa, ca, ga, sb, cb, gb = (mod[:, 0].clone(), mod[:, 1].clone(), mod[:, 2].clone(), mod[:, 3].clone(), mod[:, 4].clone(), mod[:, 5].clone())
    h = _layernorm(x, axis=-1) * (1 + ca) + sa
    x = x + ga * _A_ref(h, A_k_cache, A_v_cache, A_wq, A_wo)
    h = _layernorm(x, axis=-1) * (1 + cb) + sb
    x = x + gb * _B_ref(h, B_w_gate, B_w_up, B_w_down)
    return x
```

```python
NAME = 'adaLN_cond__sliding_block_cached__glu_gated_glu__decode_kernel'
KOFF = dict(x=0, k=8, v=16, wq=24, wo=32, bx=40, wg=48, wu=56, wd=64, c=72, wmod=80, out=88, dbg=96, ws=104)
class Asm:
    def __init__(self): self.L = []; self.n = 0
    def __call__(self, s):
        for l in s.strip('\n').split('\n'): self.L.append('    ' + l.strip() if not l.strip().endswith(':') else l.strip())
    def label(self, p='L'):
        self.n += 1; return '%s_%d' % (p, self.n)
    def text(self): return '\n'.join(self.L) + '\n'
def wrap(body, grid, block, lds, vgpr, sgpr=102, name=NAME, header=''):
    acc = (vgpr + 3) // 4 * 4
    return f'''{header}; @launch grid=({grid},1,1) block=({block},1,1) lds={lds}
.amdgcn_target "amdgcn-amd-amdhsa--gfx950"
.text
.globl {name}
.p2align 8
.type {name},@function
{name}:
{body}
.section .rodata,"a"
.p2align 6
.amdhsa_kernel {name}
  .amdhsa_next_free_vgpr {vgpr}
  .amdhsa_next_free_sgpr {sgpr}
  .amdhsa_accum_offset {acc}
  .amdhsa_group_segment_fixed_size 0
  .amdhsa_kernarg_size 112
  .amdhsa_user_sgpr_count 2
  .amdhsa_user_sgpr_kernarg_segment_ptr 1
  .amdhsa_system_sgpr_workgroup_id_x 1
.end_amdhsa_kernel
'''
```

```python
import re
def regs(tok):
    tok = tok.strip()
    tok = tok.lstrip('-').replace('abs(', '').replace(')', '').replace('|', '')
    m = re.fullmatch(r'([vsa])\[(\d+):(\d+)\]', tok)
    if m: return {(m.group(1), i) for i in range(int(m.group(2)), int(m.group(3)) + 1)}
    m = re.fullmatch(r'([vsa])(\d+)', tok)
    if m: return {(m.group(1), int(m.group(2)))}
    if tok == 'vcc': return {('s', 'vcc')}
    if tok == 'exec': return {('s', 'exec')}
    if tok == 'm0': return {('s', 'm0')}
    return set()
TRANS = ('v_exp_f32', 'v_log_f32', 'v_rcp_f32', 'v_rsq_f32', 'v_sqrt_f32')
def parse(line):
    line = line.split(';')[0].strip()
    if not line or line.endswith(':') or line.startswith('.'): return None
    p = line.split(None, 1); mn = p[0]; rest = p[1] if len(p) > 1 else ''
    ops = [o.strip() for o in re.split(r',(?![^\[]*\])', rest)] if rest else []
    mods = ''
    if ops:
        q = ops[-1].split(None, 1)
        ops[-1] = q[0]; mods = q[1] if len(q) > 1 else ''
    d = set(); s = set()
    base = mn.replace('_e32', '').replace('_e64', '').replace('_dpp', '')
    if mn.startswith('v_'):
        if base.startswith('v_cmp'):
            d = regs(ops[0]); [s.update(regs(o)) for o in ops[1:]]
        elif base in ('v_permlane16_swap_b32', 'v_permlane32_swap_b32'):
            d = regs(ops[0]) | regs(ops[1]); s = set(d)
        else:
            d = regs(ops[0]); [s.update(regs(o)) for o in ops[1:]]
            if base in ('v_fmac_f32', 'v_writelane_b32') or 'dpp' in mn: s |= d
            if base == 'v_cndmask_b32' and len(ops) == 3: s |= {('s', 'vcc')}
    elif mn.startswith('buffer_load') or mn.startswith('global_load') or mn.startswith('ds_read'):
        if 'lds' in mods.split():
            [s.update(regs(o)) for o in ops]; s.add(('s', 'm0'))
        else:
            d = regs(ops[0]); [s.update(regs(o)) for o in ops[1:]]
    elif mn.startswith('buffer_store') or mn.startswith('global_store') or mn.startswith('ds_write') or mn.startswith('buffer_atomic'):
        [s.update(regs(o)) for o in ops]
    elif mn.startswith('s_'):
        if mn.startswith(('s_cmp', 's_cbranch', 's_branch', 's_waitcnt', 's_nop', 's_barrier', 's_endpgm', 's_setprio', 's_sleep')):
            [s.update(regs(o)) for o in ops]
        else:
            d = regs(ops[0]); [s.update(regs(o)) for o in ops[1:]]
            if 'saveexec' in mn: d |= {('s', 'exec')}
    return dict(mn=mn, base=base, ops=ops, mods=mods, d=d, s=s, line=line)
def lint(text):
    ins = [(n, parse(l)) for n, l in enumerate(text.split('\n'), 1)]
    ins = [(n, i) for n, i in ins if i]
    errs = []
    for k, (n, c) in enumerate(ins):
        dist = 0
        for kk in range(k - 1, max(-1, k - 24), -1):
            pn, p = ins[kk]
            if p['mn'] in ('s_branch', 's_endpgm'): break
            need = 0; why = ''
            pv = p['mn'].startswith('v_'); pm = p['mn'].startswith('v_mfma'); cm = c['mn'].startswith('v_mfma'); cv = c['mn'].startswith('v_')
            cmem = c['mn'].startswith(('buffer_', 'global_', 'ds_'))
            vd = {r for r in p['d'] if r[0] in 'va'}; sd = {r for r in p['d'] if r[0] == 's'}
            if pv and not pm:
                if cm and vd & c['s']: need, why = 2, 'VALU->MFMA'
                if ('dpp' in c['mn'] or 'row_' in c['mods'] or 'quad_perm' in c['mods']) and vd & regs(c['ops'][1]): need, why = max(need, 2), 'VALU->DPP'
                if c['base'].startswith('v_permlane') and vd & c['s']: need, why = max(need, 2), 'VALU->permlane'
                if c['base'] in ('v_readfirstlane_b32', 'v_readlane_b32') and vd & c['s']: need, why = max(need, 1), 'VALU->readlane'
                if p['base'] in TRANS and cv and c['base'] not in TRANS and vd & c['s']: need, why = max(need, 1), 'trans->VALU'
                if sd & c['s']:
                    if c['mn'].startswith(('buffer_', 'global_')): need, why = max(need, 5), 'VALU sgpr->VMEM'
                    elif cv: need, why = max(need, 4 if c['base'] in ('v_readlane_b32','v_writelane_b32') else 2), 'VALU sgpr->VALU'
                    elif c['mn'].startswith('s_') and not c['mn'].startswith('s_cbranch') and not c['mn'].startswith('s_and_saveexec'): need, why = max(need, 1), 'VALU sgpr->SALU(pad)'
            if pm:
                if cm:
                    srcc = regs(c['ops'][3]); ab = regs(c['ops'][1]) | regs(c['ops'][2])
                    if vd & ab: need, why = 8, 'MFMA D->A/B'
                    elif vd & srcc and srcc != vd: need, why = 6, 'MFMA D->C overlap'
                    elif vd & c['d'] and not (srcc == vd): need, why = 8, 'MFMA WAW'
                elif (cv or cmem) and vd & (c['s'] | c['d']): need, why = 8, 'MFMA D->VALU/mem'
                if cv and not cm and regs(p['ops'][3]) & c['d']: need, why = max(need, 3), 'MFMA C WAR'
            if p['mn'].startswith(('buffer_store_dwordx4', 'buffer_store_dwordx3', 'global_store_dwordx4')) and cv and regs(p['ops'][0]) & c['d']: need, why = max(need, 2), 'store data WAR'
            if p['mn'].startswith('s_') and ('s', 'm0') in p['d'] and 'lds' in c['mods'].split(): need, why = max(need, 1), 'm0->ldsdma'
            if need > dist: errs.append(f'line {n}: "{c["line"]}" needs {need} states after line {pn} "{p["line"]}" ({why}), has {dist}')
            dist += (int(p['ops'][0], 0) + 1) if p['mn'] == 's_nop' else 1
    return errs
if __name__ == '__main__':
    import sys
    e = lint(open(sys.argv[1]).read())
    print('\n'.join(e) if e else 'lint clean')
```

```python
import sys
from asmlib import Asm, KOFF, NAME
from lint import lint

EPOCH = 0; XID = 0x1000; MODP = 0x10000; QV = 0x28000; MODV = 0x2C000; OS = 0x44000; AX = 0x48000; DP = 0x50000
QP = 0x80000; OP = 0xC0000; AP = 0x100000; STAMP = 0x200000
TMASK = 0x3FF
LIMIT = 200000
LK = 0; LV = 65536; LQ = 131072; LMX = LQ + 1152; LLS = LMX + 128; LP = LLS + 128; LOF = LP + 2048; LMODE_A = LOF + 64; LDS_TOTAL = LMODE_A + 64
WCS = 0; WH = 768; WMODE = 832; WGB = 896; WX1 = 1024; WST = 3072; WH2 = 3200; WGU = 4352; WHH = 6400
SCALE = 0x3DB504F3; LOG2E = 0x3FB8AA3B; EPS = 0x3727C5AC

class G(Asm):
    def __init__(self, prof=False, opts=None):
        super().__init__(); self.prof = prof; self.o = opts or {}
    def stamp(self, slot):
        if self.prof: self(f's_memrealtime s[60:61]\ns_waitcnt lgkmcnt(0)\nv_writelane_b32 v127, s60, {slot}')
    def exit(self):
        if self.prof:
            self(f's_mov_b64 exec, 0xffff\ns_mul_i32 s60, s2, 9\ns_add_u32 s60, s60, s3\ns_lshl_b32 s60, s60, 6\ns_add_u32 s60, s60, {STAMP}')
            self('v_lshlrev_b32 v126, 2, v1\nbuffer_store_dword v127, v126, s[8:11], s60 offen')
        self('s_endpgm')
    def srd(self, s, nbytes): self(f's_mov_b32 s{s+2}, {nbytes:#x}\ns_mov_b32 s{s+3}, 0x20000')
    def rbf(self, d, s): self(f'v_cvt_pk_bf16_f32 v{d}, 0, v{s}')
    def get_tag(self):
        self(f's_load_dword s45, s[8:9], {EPOCH}\ns_mov_b32 s46, {0xFFFFFFFF ^ TMASK:#x}\ns_mov_b32 s50, 0x05040100\ns_mov_b32 s51, 0x07060302')
    def fin_tag(self):
        self(f's_waitcnt lgkmcnt(0)\ns_add_u32 s45, s45, 1\ns_and_b32 s6, s45, {TMASK}\nv_mov_b32 v2, s6')
    def poll(self, loads, regs, acc, pre=None):
        l = self.label('P')
        self('s_mov_b32 s47, 0')
        self(f'{l}:')
        for x in loads: self(x)
        self(f's_add_u32 s47, s47, 1\ns_cmp_gt_u32 s47, {LIMIT}\ns_cbranch_scc1 {l}_x')
        self('s_waitcnt vmcnt(0)')
        for r in regs: self(f'v_xor_b32 v{r}, v2, v{r}')
        rs = list(regs)
        self(f'v_or_b32 v{acc}, v{rs[0]}, v{rs[1]}'); rs = rs[2:]
        while len(rs) >= 2: self(f'v_or3_b32 v{acc}, v{acc}, v{rs[0]}, v{rs[1]}'); rs = rs[2:]
        if rs: self(f'v_or_b32 v{acc}, v{acc}, v{rs[0]}')
        self(f'v_and_b32 v{acc}, {TMASK}, v{acc}\nv_cmp_ne_u32 vcc, 0, v{acc}\ns_cbranch_vccnz {l}')
        self(f'{l}_x:\ns_waitcnt vmcnt(0)')
    def store_mode(self, ins):
        l = self.label('S')
        self(f's_cmp_eq_u32 s7, 1\ns_cbranch_scc1 {l}_f\n{ins} sc1\ns_branch {l}_e\n{l}_f:\n{ins}\n{l}_e:')
    def tree_add(self, regs):
        regs = list(regs)
        while len(regs) > 1:
            nxt = []
            for i in range(0, len(regs) - 1, 2):
                self(f'v_add_f32 v{regs[i]}, v{regs[i]}, v{regs[i+1]}'); nxt.append(regs[i])
            if len(regs) % 2: nxt.append(regs[-1])
            regs = nxt
        return regs[0]
    def swap_op(self, which, op, v, t):
        self(f'v_mov_b32 v{t}, v{v}\ns_nop 1\nv_permlane{which}_swap_b32 v{v}, v{t}\n{op} v{v}, v{v}, v{t}')
    def row_reduce(self, op, regs):
        for k in (8, 4, 2, 1):
            if len(regs) < 3: self(f's_nop {2 - len(regs) + (0 if k != 8 else 1)}')
            elif k == 8: self('s_nop 1')
            for r in regs: self(f'{op}_dpp v{r}, v{r}, v{r} row_ror:{k} row_mask:0xf bank_mask:0xf')
    def wave_reduce(self, op, regs, t):
        self.row_reduce(op, regs)
        for w in (16, 32):
            for i, r in enumerate(regs): self(f'v_mov_b32 v{t+i}, v{r}')
            self('s_nop 1')
            for i, r in enumerate(regs): self(f'v_permlane{w}_swap_b32 v{r}, v{t+i}')
            for i, r in enumerate(regs): self(f'{op} v{r}, v{r}, v{t+i}')
    def xid_publish(self):
        self('s_getreg_b32 s44, hwreg(HW_REG_XCC_ID)\ns_and_b32 s44, s44, 0xffff\ns_lshl_b32 s44, s44, 16\ns_or_b32 s44, s44, s6')
        self(f'v_mov_b32 v4, s44\nv_mov_b32 v5, s44\nv_mov_b32 v6, s44\nv_mov_b32 v7, s44\nv_mov_b32 v8, 0')
        self(f's_lshl_b32 s48, s4, 12\ns_add_u32 s48, s48, {XID}\ns_lshr_b32 s49, s2, 3\ns_lshl_b32 s49, s49, 7\ns_add_u32 s49, s49, s48')
        self('s_mov_b64 exec, 1\nbuffer_store_dwordx4 v[4:7], v8, s[8:11], s49 offen sc1\ns_mov_b64 exec, -1')
        self('v_and_b32 v3, 31, v1\nv_lshlrev_b32 v3, 7, v3')
    def xid_load(self, r): return f'buffer_load_dwordx4 v[{r}:{r+3}], v3, s[8:11], s48 offen sc1'
    def xid_mode(self, r):
        for i in range(4): self(f'v_xor_b32 v{r+i}, s44, v{r+i}')
        self(f'v_or3_b32 v{r}, v{r}, v{r+1}, v{r+2}\nv_or_b32 v{r}, v{r}, v{r+3}\nv_cmp_ne_u32 vcc, 0, v{r}\ns_nop 1\ns_cmp_eq_u64 vcc, 0\ns_cselect_b32 s7, 1, 0')
        if self.o.get('force_slow'): self('s_mov_b32 s7, 0')
    def prefetch_code(self, r):
        self(f's_getpc_b64 s[52:53]\nL_pc_{self.n}:')
        lab = f'L_pc_{self.n}'; self.n += 1
        self(f's_sub_u32 s52, s52, {lab}-{NAME}\ns_subb_u32 s53, s53, 0')
        self(f'v_lshlrev_b32 v{r}, 7, v1')
        for k in range(2):
            self(f'v_add_u32 v{r+1+k}, {k*8192}, v{r}\nv_min_u32 v{r+1+k}, L_code_end-{NAME}-4, v{r+1+k}')
            self(f'global_load_dword v{r+3+k}, v{r+1+k}, s[52:53]')
    def perm_x2(self, src, dst):
        for jj in range(4):
            for d in range(4):
                self(f'v_perm_b32 v{dst+4*jj+d}, v{src+2*(2*d+1)+(jj>>1)}, v{src+2*(2*d)+(jj>>1)}, s{50+(jj&1)}')
    def perm_x1(self, src, dst):
        for jj in range(2):
            for d in range(4):
                self(f'v_perm_b32 v{dst+4*jj+d}, v{src+2*d+1}, v{src+2*d}, s{50+jj}')
    def mv32x512(self, afrag, bfr, acc, outr):
        for jj in range(4):
            self(f'v_mfma_f32_16x16x32_bf16 v[{acc+4*jj}:{acc+4*jj+3}], v[{afrag}:{afrag+3}], v[{bfr+4*jj}:{bfr+4*jj+3}], 0')
        self('s_nop 4')
        for jj in range(4):
            if jj: self('s_nop 0')
            self(f'v_and_or_b32 v{outr+jj}, v{acc+4*jj}, s46, v2')

def gen(prof=False, opts=None):
    a = G(prof, opts); o = a.o
    a('s_cmp_ge_u32 s2, 256\ns_cbranch_scc1 L_exit')
    a(f's_load_dwordx2 s[8:9], s[0:1], {KOFF["ws"]}')
    a('s_and_b32 s4, s2, 7\ns_lshr_b32 s5, s2, 3\nv_lshrrev_b32 v2, 6, v0\nv_and_b32 v1, 63, v0')
    a('s_and_b32 s42, s5, 16\ns_and_b32 s5, s5, 15\nv_readfirstlane_b32 s3, v2')
    a.srd(8, 0x10000000)
    a('s_mov_b32 s7, 0')
    if prof: a('v_mov_b32 v127, 0')
    a('s_cmp_lg_u32 s42, 0\ns_cbranch_scc1 L_W')
    role_A(a)
    a('L_W:')
    role_W(a)
    a('L_exit:\ns_endpgm\nL_code_end:')
    return a

def role_A(a):
    a(f's_load_dwordx2 s[12:13], s[0:1], {KOFF["k"]}\ns_load_dwordx2 s[16:17], s[0:1], {KOFF["v"]}\ns_load_dwordx2 s[20:21], s[0:1], {KOFF["wo"]}')
    a.srd(12, 0x2000000); a.srd(16, 0x2000000); a.srd(20, 0x400000)
    a('s_cmp_eq_u32 s3, 8\ns_cbranch_scc1 L_A_comm')
    a('v_and_b32 v3, 15, v1\nv_lshrrev_b32 v4, 4, v1\nv_lshlrev_b32 v5, 8, v4')
    for i in range(4):
        a(f'v_add_u32 v6, {4*i}, v4\nv_xor_b32 v6, v6, v3\nv_lshl_add_u32 v{8+i}, v6, 4, v5')
    for i in range(2):
        a(f'v_add_u32 v6, {4*i}, v4\nv_lshlrev_b32 v6, 1, v6\nv_xor_b32 v6, v6, v3\nv_lshl_add_u32 v{12+i}, v6, 4, v5')
    a(f's_lshl_b32 s40, s4, 22\ns_lshl_b32 s41, s5, 16\ns_add_u32 s40, s40, s41\ns_lshl_b32 s41, s3, 13\ns_add_u32 s40, s40, s41\ns_add_u32 s40, s40, {3<<20}\ns_add_u32 s43, s40, 4096')
    a(f's_mov_b32 m0, s41')
    a('s_waitcnt lgkmcnt(0)')
    a.stamp(0)
    for h in range(2):
        if h: a('s_add_u32 m0, s41, 4096\ns_nop 0')
        for i in range(4): a(f'buffer_load_dwordx4 v{8+i}, s[12:15], s{40 if h==0 else 43} offen offset:{1024*i} nt lds')
    for h in range(2):
        a(f's_add_u32 m0, s41, {LV + 4096*h}\ns_nop 0')
        for i in range(4): a(f'buffer_load_dwordx4 v{12+(i&1)}, s[16:19], s{40 if h==0 else 43} offen offset:{1024*i} nt lds')
    a.get_tag()
    a('v_xor_b32 v6, v4, v3\nv_lshlrev_b32 v6, 4, v6\nv_lshl_add_u32 v6, v3, 8, v6\nv_add_u32 v6, s41, v6')
    for jj in range(4): a(f'v_xor_b32 v{8+jj}, {64*jj}, v6')
    a(f'v_and_b32 v7, 3, v1\nv_mul_u32_u24 v12, 272, v7\nv_lshl_add_u32 v12, v4, 4, v12\nv_add_u32 v12, {LQ}, v12')
    a(f'v_lshlrev_b32 v13, 5, v7\nv_add_u32 v13, {LMX}, v13\ns_lshl_b32 s42, s3, 2\nv_add_u32 v14, s42, v13')
    a(f'v_lshlrev_b32 v16, 6, v4\nv_add_u32 v16, {LP}, v16\nv_lshl_add_u32 v15, v3, 4, v16\ns_lshl_b32 s42, s3, 8\nv_add_u32 v15, s42, v15')
    a('v_lshrrev_b32 v6, 2, v3\nv_lshl_add_u32 v16, v6, 4, v16')
    a('v_lshrrev_b32 v6, 2, v1\nv_and_b32 v17, 7, v6\nv_lshlrev_b32 v17, 1, v17\nv_bfe_u32 v18, v1, 1, 1\ns_lshl_b32 s42, s3, 1\nv_add_u32 v18, s42, v18\nv_xor_b32 v17, v17, v18')
    a(f'v_lshlrev_b32 v17, 4, v17\nv_lshl_add_u32 v17, v6, 8, v17\nv_and_b32 v18, 1, v1\nv_lshl_add_u32 v17, v18, 3, v17\nv_add_u32 v17, {LV}, v17')
    a('v_lshlrev_b32 v18, 13, v4\nv_lshl_add_u32 v18, v3, 3, v18')
    a('s_lshl_b32 s40, s4, 19\ns_lshl_b32 s42, s5, 15\ns_add_u32 s40, s40, s42\ns_lshl_b32 s42, s3, 7\ns_add_u32 s40, s40, s42\ns_add_u32 s43, s40, 4096')
    a('s_and_b32 s42, s3, 1\ns_lshl_b32 s42, s42, 9\nv_bfe_u32 v6, v3, 2, 1\nv_lshlrev_b32 v19, 10, v6\nv_lshrrev_b32 v6, 3, v3\nv_lshl_add_u32 v19, v6, 8, v19')
    a('v_lshl_add_u32 v19, v7, 2, v19\nv_lshl_add_u32 v19, v4, 13, v19\nv_add_u32 v19, s42, v19')
    a(f's_lshl_b32 s54, s4, 4\ns_lshr_b32 s42, s3, 1\ns_add_u32 s54, s54, s42\ns_lshl_b32 s54, s54, 11\ns_lshl_b32 s42, s5, 4\ns_add_u32 s54, s54, s42\ns_add_u32 s54, s54, {OP}')
    a('v_lshrrev_b32 v6, 3, v3\nv_and_b32 v20, 7, v3\nv_lshlrev_b32 v20, 4, v20\nv_lshl_add_u32 v20, v6, 11, v20')
    a(f's_lshl_b32 s55, s4, 3\ns_add_u32 s55, s55, s3\ns_lshl_b32 s55, s55, 12\ns_lshl_b32 s42, s5, 7\ns_add_u32 s55, s55, s42\ns_add_u32 s55, s55, {AP}')
    a(f'v_lshlrev_b32 v21, 4, v4\nv_add_u32 v21, {LOF}, v21\nv_mov_b32 v22, {LMODE_A}')
    a(f's_mov_b32 s56, {SCALE:#x}\ns_mov_b32 s57, {LOG2E:#x}')
    a.fin_tag()
    a('s_waitcnt vmcnt(8)')
    a.stamp(1)
    for t in range(2):
        for jj in range(4): a(f'ds_read_b128 v[{32+16*t+4*jj}:{35+16*t+4*jj}], v{8+jj} offset:{4096*t}')
    a('s_barrier')
    a.stamp(2)
    for jj in range(4): a(f'ds_read_b128 v[{64+4*jj}:{67+4*jj}], v12 offset:{64*jj}')
    a('ds_read_b32 v23, v22')
    for i in range(8): a(f'buffer_load_dwordx2 v[{96+2*i}:{97+2*i}], v18, s[20:23], s{40 if i<4 else 43} offen offset:{1024*(i&3)} nt')
    a('s_waitcnt lgkmcnt(0)')
    for jj in range(4):
        for t in range(2):
            c = '0' if jj == 0 else f'v[{24+4*t}:{27+4*t}]'
            a(f'v_mfma_f32_16x16x32_bf16 v[{24+4*t}:{27+4*t}], v[{32+16*t+4*jj}:{35+16*t+4*jj}], v[{64+4*jj}:{67+4*jj}], {c}')
    a('v_readfirstlane_b32 s7, v23\ns_nop 5')
    for i in range(8): a.rbf(24 + i, 24 + i)
    for i in range(8): a(f'v_mul_f32 v{24+i}, s56, v{24+i}')
    for i in range(8): a.rbf(24 + i, 24 + i)
    a('v_max3_f32 v32, v24, v25, v26\nv_max3_f32 v33, v27, v28, v29\nv_max3_f32 v32, v32, v30, v31\nv_max_f32 v32, v32, v33')
    a.swap_op(16, 'v_max_f32', 32, 33); a.swap_op(32, 'v_max_f32', 32, 33)
    a('s_mov_b64 exec, 0xf\nds_write_b32 v14, v32\ns_mov_b64 exec, -1\ns_waitcnt lgkmcnt(0)\ns_barrier')
    a('ds_read_b128 v[32:35], v13\nds_read_b128 v[36:39], v13 offset:16\ns_waitcnt lgkmcnt(0)')
    a('v_max3_f32 v32, v32, v33, v34\nv_max3_f32 v36, v36, v37, v38\nv_max3_f32 v32, v32, v35, v39\nv_max_f32 v32, v32, v36')
    for i in range(8): a(f'v_sub_f32 v{24+i}, v{24+i}, v32')
    for i in range(8): a(f'v_mul_f32 v{24+i}, s57, v{24+i}')
    for i in range(8): a(f'v_exp_f32 v{24+i}, v{24+i}')
    a('s_nop 0')
    for d in range(4): a(f'v_cvt_pk_bf16_f32 v{36+d}, v{24+2*d}, v{25+2*d}')
    a('s_mov_b32 exec_lo, 0x000f000f\ns_mov_b32 exec_hi, 0x000f000f\nds_write_b128 v15, v[36:39]\ns_mov_b64 exec, -1')
    a.tree_add(range(24, 32))
    a.swap_op(16, 'v_add_f32', 24, 33); a.swap_op(32, 'v_add_f32', 24, 33)
    a(f's_mov_b64 exec, 0xf\nds_write_b32 v14, v24 offset:{LLS-LMX}\ns_mov_b64 exec, -1')
    a.stamp(3)
    a('s_waitcnt vmcnt(8) lgkmcnt(0)')
    a.stamp(4)
    a('s_barrier')
    for half in range(2):
        for kk in range(4*half, 4*half+4):
            a(f'ds_read_b128 v[{32+4*kk}:{35+4*kk}], v16 offset:{256*kk}')
            a(f'ds_read_b64_tr_b16 v[{64+4*kk}:{65+4*kk}], v17 offset:{8192*kk}')
            a(f'ds_read_b64_tr_b16 v[{66+4*kk}:{67+4*kk}], v17 offset:{8192*kk+4096}')
        if half == 1:
            pass
    for kk in range(8):
        a(f's_waitcnt lgkmcnt({min(15, 3*(7-kk))})')
        c = '0' if kk == 0 else 'v[24:27]'
        a(f'v_mfma_f32_16x16x32_bf16 v[24:27], v[{32+4*kk}:{35+4*kk}], v[{64+4*kk}:{67+4*kk}], {c}')
    a('s_nop 7')
    a('v_and_or_b32 v28, v24, s46, v2')
    a.store_mode('buffer_store_dword v28, v19, s[8:11], s54 offen')
    a.stamp(5)
    a('s_waitcnt vmcnt(1)')
    a.perm_x2(96, 64)
    a.stamp(6)
    a('s_barrier')
    a('ds_read_b128 v[32:35], v21\ns_waitcnt lgkmcnt(0)')
    a.mv32x512(32, 64, 36, 28)
    a('s_mov_b64 exec, 0xffff')
    a.store_mode('buffer_store_dwordx4 v[28:31], v20, s[8:11], s55 offen')
    a.stamp(7)
    if a.prof: a('s_mov_b64 exec, -1')
    a.exit()
    a('L_A_comm:')
    a('s_setprio 3')
    a.prefetch_code(20)
    a('s_waitcnt lgkmcnt(0)')
    a.stamp(0)
    a.get_tag(); a.fin_tag()
    a.xid_publish()
    a(f'v_lshlrev_b32 v9, 4, v1\ns_lshl_b32 s40, s4, 11\ns_add_u32 s40, s40, {QV}')
    a(f'v_lshrrev_b32 v10, 5, v1\nv_mul_u32_u24 v10, 272, v10\nv_and_b32 v11, 31, v1\nv_lshl_add_u32 v10, v11, 3, v10\nv_add_u32 v10, {LQ}, v10\nv_mov_b32 v12, {LMODE_A}')
    a.poll(['buffer_load_dwordx4 v[32:35], v9, s[8:11], s40 offen sc1', 'buffer_load_dwordx4 v[36:39], v9, s[8:11], s40 offen offset:1024 sc1', a.xid_load(40)], range(32, 40), 30)
    a.stamp(1)
    for i in range(2):
        a(f'v_perm_b32 v{44+2*i}, v{33+4*i}, v{32+4*i}, s51\nv_perm_b32 v{45+2*i}, v{35+4*i}, v{34+4*i}, s51')
        a(f'ds_write_b64 v10, v[{44+2*i}:{45+2*i}] offset:{544*i}')
    a.xid_mode(40)
    a('v_mov_b32 v13, s7\nds_write_b32 v12, v13\ns_waitcnt lgkmcnt(0)\ns_barrier')
    a(f'v_and_b32 v14, 3, v1\nv_lshlrev_b32 v13, 5, v14\nv_add_u32 v13, {LMX}, v13\nv_lshlrev_b32 v14, 8, v14')
    a(f's_lshl_b32 s41, s4, 10\ns_lshl_b32 s42, s5, 4\ns_add_u32 s43, s41, s42\ns_add_u32 s43, s43, {OS}')
    a(f's_lshr_b32 s42, s5, 2\ns_lshl_b32 s42, s42, 8\ns_add_u32 s41, s41, s42\ns_add_u32 s41, s41, {OS}')
    a(f's_lshl_b32 s40, s4, 4\ns_add_u32 s40, s40, s5\ns_lshl_b32 s40, s40, 11\ns_add_u32 s54, s40, {AP}\ns_add_u32 s40, s40, {OP}')
    a(f'v_and_b32 v15, 15, v1\nv_lshlrev_b32 v15, 4, v15\nv_lshrrev_b32 v16, 4, v1\nv_lshlrev_b32 v16, 4, v16\nv_add_u32 v16, {LOF}, v16\nv_lshlrev_b32 v17, 2, v1')
    a(f's_lshl_b32 s55, s4, 11\ns_lshl_b32 s42, s5, 7\ns_add_u32 s55, s55, s42\ns_add_u32 s55, s55, {AX}\ns_mov_b32 s57, {LOG2E:#x}')
    a('s_barrier')
    a('s_barrier')
    a(f'ds_read_b128 v[32:35], v13\nds_read_b128 v[36:39], v13 offset:16\nds_read_b128 v[40:43], v13 offset:{LLS-LMX}\nds_read_b128 v[44:47], v13 offset:{LLS-LMX+16}\ns_waitcnt lgkmcnt(0)')
    a('v_max3_f32 v32, v32, v33, v34\nv_max3_f32 v36, v36, v37, v38\nv_max3_f32 v32, v32, v35, v39\nv_max_f32 v32, v32, v36')
    a.tree_add(range(40, 48))
    a('v_or_b32 v32, v2, v32\nv_and_or_b32 v33, v40, s46, v2\nv_mov_b32 v34, v32\nv_mov_b32 v35, v33\ns_mov_b64 exec, 0xf')
    a.store_mode('buffer_store_dwordx4 v[32:35], v14, s[8:11], s43 offen')
    a('s_mov_b64 exec, -1')
    a.stamp(2)
    a.poll(['buffer_load_dwordx4 v[48:51], v9, s[8:11], s40 offen sc1', 'buffer_load_dwordx4 v[52:55], v9, s[8:11], s40 offen offset:1024 sc1',
            'buffer_load_dwordx4 v[56:59], v15, s[8:11], s41 offen sc1'], range(48, 60), 30)
    a.stamp(3)
    a('v_mov_b32 v58, v56')
    a.row_reduce('v_max_f32', [58])
    a('v_sub_f32 v56, v56, v58\nv_mul_f32 v56, s57, v56\nv_exp_f32 v56, v56\ns_nop 0')
    for r in [57] + list(range(48, 56)): a(f'v_mul_f32 v{r}, v56, v{r}')
    a.row_reduce('v_add_f32', [57] + list(range(48, 56)))
    a('v_rcp_f32 v57, v57\ns_nop 0')
    for r in range(48, 56): a(f'v_mul_f32 v{r}, v57, v{r}')
    for d in range(4): a(f'v_cvt_pk_bf16_f32 v{32+d}, v{48+2*d}, v{49+2*d}')
    a('s_mov_b32 exec_lo, 0x00010001\ns_mov_b32 exec_hi, 0x00010001\nds_write_b128 v16, v[32:35]\ns_mov_b64 exec, -1\ns_waitcnt lgkmcnt(0)\ns_barrier')
    a.stamp(4)
    a.poll([f'buffer_load_dword v{32+i}, v17, s[8:11], s54 offen offset:{256*i} sc1' for i in range(8)], range(32, 40), 30)
    a.stamp(5)
    a.tree_add(range(32, 40))
    a.swap_op(32, 'v_add_f32', 32, 33)
    a('v_and_or_b32 v32, v32, s46, v2\ns_mov_b32 exec_hi, 0\nbuffer_store_dword v32, v17, s[8:11], s55 offen sc1')
    a.stamp(6)
    if a.prof: a('s_mov_b64 exec, -1')
    a.exit()

def role_W(a):
    for s, k in ((12, 'wmod'), (16, 'wq'), (20, 'c'), (24, 'x'), (28, 'wg'), (32, 'wu'), (36, 'wd')):
        a(f's_load_dwordx2 s[{s}:{s+1}], s[0:1], {KOFF[k]}')
    for s, n in ((12, 0x300000), (16, 0x400000), (20, 1024), (24, 1024), (28, 0x1C0000), (32, 0x1C0000), (36, 0x1C0000)): a.srd(s, n)
    a('s_lshl_b32 s58, s4, 1\ns_sub_u32 s58, s5, s58\ns_and_b32 s58, s58, 15\ns_mul_i32 s59, s4, 7\ns_add_u32 s59, s59, s58')
    a('s_cmp_eq_u32 s3, 8\ns_cbranch_scc1 L_W_comm')
    a('v_and_b32 v3, 15, v1\nv_lshrrev_b32 v4, 4, v1')
    a('v_mul_u32_u24 v5, 49152, v4\nv_lshl_add_u32 v5, v3, 2, v5')
    a('v_lshlrev_b32 v6, 16, v4\nv_lshl_add_u32 v6, v3, 3, v6')
    a('v_lshlrev_b32 v7, 1, v1\ns_lshl_b32 s40, s4, 7')
    a('s_mul_i32 s41, s4, 393216\ns_lshl_b32 s42, s3, 10\ns_add_u32 s41, s41, s42\ns_lshl_b32 s42, s5, 6\ns_add_u32 s41, s41, s42')
    a('s_lshl_b32 s43, s5, 18\ns_lshl_b32 s42, s4, 10\ns_add_u32 s43, s43, s42\ns_lshl_b32 s42, s3, 7\ns_add_u32 s43, s43, s42')
    a('s_waitcnt lgkmcnt(0)')
    a.stamp(0)
    a('s_cmp_ge_u32 s3, 6\ns_cbranch_scc1 L_W_nomod')
    a('buffer_load_ushort v8, v7, s[20:23], s40 offen')
    for r in range(16):
        a(f'buffer_load_dword v{32+r}, v5, s[12:15], s41 offen nt')
        a(f's_add_u32 s41, s41, {6144 if r != 7 else 6144*25}')
    a('L_W_nomod:')
    for i in range(8):
        a(f'buffer_load_dwordx2 v[{64+2*i}:{65+2*i}], v6, s[16:19], s43 offen nt')
        if i < 7: a('s_add_u32 s43, s43, 8192')
    a.get_tag()
    a(f's_mov_b32 s57, {LOG2E:#x}')
    a(f'v_lshlrev_b32 v9, 4, v4\nv_add_u32 v10, {WH}, v9\nv_mov_b32 v11, {WMODE}')
    a('v_lshrrev_b32 v13, 3, v3\nv_and_b32 v12, 7, v3\nv_lshlrev_b32 v12, 4, v12\nv_lshl_add_u32 v12, v13, 11, v12')
    a(f's_lshl_b32 s54, s4, 3\ns_add_u32 s54, s54, s3\ns_lshl_b32 s54, s54, 12\ns_lshl_b32 s42, s5, 7\ns_add_u32 s54, s54, s42\ns_add_u32 s54, s54, {QP}')
    a(f's_mul_i32 s55, s5, 6\ns_add_u32 s55, s55, s3\ns_lshl_b32 s55, s55, 10\ns_add_u32 s55, s55, {MODP}')
    a('v_lshlrev_b32 v17, 2, v1')
    a.fin_tag()
    a('s_cmp_ge_u32 s3, 6\ns_cbranch_scc1 L_W_nomod2')
    a('s_lshl_b32 s42, s3, 7\nv_add_u32 v13, s42, v7\nv_add_u32 v14, s42, v9')
    a('s_waitcnt vmcnt(24)')
    a('v_lshlrev_b32 v8, 16, v8\nv_mul_f32 v15, s57, v8\nv_exp_f32 v15, -v15\ns_nop 0\nv_add_f32 v15, 1.0, v15\nv_rcp_f32 v15, v15\ns_nop 0\nv_mul_f32 v15, v8, v15')
    a.rbf(15, 15)
    a('ds_write_b16_d16_hi v13, v15\ns_waitcnt lgkmcnt(0)\nds_read_b128 v[20:23], v14\nds_read_b128 v[24:27], v14 offset:64')
    a('s_waitcnt vmcnt(8)')
    a.stamp(1)
    a.perm_x1(32, 48); a.perm_x1(40, 56)
    a('s_waitcnt lgkmcnt(0)')
    for t in range(2):
        for jj in range(2):
            c = '0' if t == 0 else f'v[{32+4*jj}:{35+4*jj}]'
            a(f'v_mfma_f32_16x16x32_bf16 v[{32+4*jj}:{35+4*jj}], v[{20+4*t}:{23+4*t}], v[{48+8*t+4*jj}:{51+8*t+4*jj}], {c}')
    a('v_lshlrev_b32 v15, 3, v3\ns_lshl_b32 s42, s4, 7\ns_add_u32 s42, s42, s55\ns_nop 3')
    a('v_and_or_b32 v28, v32, s46, v2\ns_nop 0\nv_and_or_b32 v29, v36, s46, v2')
    a('s_mov_b64 exec, 0xffff\nbuffer_store_dwordx2 v[28:29], v15, s[8:11], s42 offen sc1\ns_mov_b64 exec, -1')
    a.stamp(2)
    a('s_waitcnt vmcnt(1)\ns_branch L_W_wq')
    a('L_W_nomod2:\ns_waitcnt vmcnt(0)')
    a('L_W_wq:')
    a.perm_x2(64, 80)
    a.stamp(3)
    a('s_barrier')
    a('ds_read_b128 v[20:23], v10\nds_read_b32 v24, v11\ns_waitcnt lgkmcnt(0)\nv_readfirstlane_b32 s7, v24')
    a.mv32x512(20, 80, 32, 28)
    a('s_mov_b64 exec, 0xffff')
    a.store_mode('buffer_store_dwordx4 v[28:31], v12, s[8:11], s54 offen')
    a('s_mov_b64 exec, -1')
    a.stamp(4)
    a('s_sub_u32 s42, s3, 2\ns_cmp_ge_u32 s42, 4\ns_cbranch_scc1 L_W_b1')
    a.poll([f'buffer_load_dword v{32+i}, v17, s[8:11], s55 offen offset:{256*i} sc1' for i in range(4)], range(32, 36), 30)
    a.tree_add(range(32, 36))
    a.swap_op(32, 'v_add_f32', 32, 33)
    a.rbf(32, 32)
    a(f's_mul_i32 s42, s4, 6\ns_add_u32 s42, s42, s3\ns_lshl_b32 s42, s42, 11\ns_lshl_b32 s43, s5, 7\ns_add_u32 s42, s42, s43\ns_add_u32 s42, s42, {MODV}')
    a('v_or_b32 v33, v2, v32\ns_mov_b32 exec_hi, 0')
    a.store_mode('buffer_store_dword v33, v17, s[8:11], s42 offen')
    a(f's_cmp_lg_u32 s3, 5\ns_cbranch_scc1 L_W_nogb\nds_write_b32 v17, v32 offset:{WGB}\ns_waitcnt lgkmcnt(0)\nL_W_nogb:\ns_mov_b64 exec, -1')
    a('L_W_b1:')
    a.stamp(5)
    a('s_barrier')
    a('s_cmp_ge_u32 s58, 7\ns_cbranch_scc1 L_W_done')
    a('v_mul_u32_u24 v5, 28672, v4\nv_lshl_add_u32 v5, v3, 2, v5')
    a('s_mul_i32 s41, s3, 229376\ns_lshl_b32 s42, s59, 6\ns_add_u32 s41, s41, s42')
    a('s_lshl_b32 s40, s3, 7\nbuffer_load_ushort v8, v7, s[24:27], s40 offen')
    for r in range(16):
        a(f'buffer_load_dword v{32+r}, v5, s[28:31], s41 offen nt\nbuffer_load_dword v{48+r}, v5, s[32:35], s41 offen nt')
        a(f's_add_u32 s41, s41, {3584 if r != 7 else 3584*25}')
    a('v_lshlrev_b32 v6, 13, v4\nv_lshl_add_u32 v6, v3, 3, v6\ns_lshl_b32 s43, s59, 15\ns_add_u32 s43, s43, s40\ns_add_u32 s41, s43, 4096')
    for i in range(8): a(f'buffer_load_dwordx2 v[{64+2*i}:{65+2*i}], v6, s[36:39], s{43 if i<4 else 41} offen offset:{1024*(i&3)} nt')
    a(f's_lshl_b32 s42, s3, 8\ns_add_u32 s54, s42, {AX}\ns_mul_i32 s55, s4, 12288\ns_add_u32 s55, s55, s42\ns_add_u32 s55, s55, {MODV + 2*2048}\ns_add_u32 s56, s55, 4096')
    a(f'v_add_u32 v13, s42, v17\nv_add_u32 v13, {WX1}, v13')
    a(f's_lshl_b32 s43, s3, 3\ns_add_u32 s43, s43, {WST}\nv_mov_b32 v14, s43\nv_mov_b32 v15, {WST}')
    a(f's_add_u32 s43, s40, {WH2}\nv_add_u32 v16, s43, v7\nv_add_u32 v18, s43, v9')
    a(f's_add_u32 s43, s42, {WGU}\nv_lshlrev_b32 v19, 3, v3\nv_add_u32 v19, s43, v19')
    a(f's_lshl_b32 s43, s3, 6\ns_add_u32 s43, s43, {WHH}\nv_and_b32 v10, 31, v1\nv_lshlrev_b32 v10, 1, v10\nv_add_u32 v10, s43, v10\nv_add_u32 v11, s43, v9')
    a(f'v_lshrrev_b32 v12, 3, v3\nv_mul_u32_u24 v12, 7168, v12\nv_and_b32 v20, 7, v3\nv_lshl_add_u32 v12, v20, 4, v12')
    a(f's_mul_i32 s62, s3, 112\ns_add_u32 s62, s62, s59\ns_lshl_b32 s62, s62, 7\ns_add_u32 s62, s62, {DP}')
    a('s_waitcnt vmcnt(8)')
    a.stamp(6)
    a.perm_x1(32, 80); a.perm_x1(40, 88); a.perm_x1(48, 96); a.perm_x1(56, 104)
    a('s_waitcnt vmcnt(0)')
    a.perm_x2(64, 32)
    a('v_lshlrev_b32 v8, 16, v8')
    a.stamp(7)
    a('s_add_u32 s40, s54, 4096\ns_add_u32 s41, s54, 8192\ns_add_u32 s43, s54, 12288')
    lds = [f'buffer_load_dword v{48+i}, v17, s[8:11], s{(54,40,41,43)[i>>1]} offen offset:{2048*(i&1)} sc1' for i in range(8)]
    lds += ['buffer_load_dword v56, v17, s[8:11], s55 offen sc1', 'buffer_load_dword v57, v17, s[8:11], s55 offen offset:2048 sc1', 'buffer_load_dword v58, v17, s[8:11], s56 offen sc1']
    a.poll(lds, range(48, 59), 30)
    a.stamp(8)
    a.tree_add(range(48, 56))
    a.rbf(48, 48)
    a('v_mul_f32 v48, v56, v48'); a.rbf(48, 48)
    a('v_add_f32 v48, v8, v48'); a.rbf(48, 48)
    a('ds_write_b32 v13, v48\nv_readfirstlane_b32 s40, v48\nv_add_f32 v58, 1.0, v58\ns_nop 0')
    a('v_subrev_f32 v49, s40, v48\nv_mul_f32 v50, v49, v49')
    a.rbf(58, 58)
    a.wave_reduce('v_add_f32', [49, 50], 52)
    a('v_mul_f32 v51, 0x3c800000, v49\nv_fma_f32 v53, -v51, v49, v50\nv_add_f32 v52, s40, v51')
    a('s_mov_b64 exec, 1\nds_write_b64 v14, v[52:53]\ns_mov_b64 exec, -1\ns_waitcnt lgkmcnt(0)\ns_barrier')
    for i in range(4): a(f'ds_read_b128 v[{60+4*i}:{63+4*i}], v15 offset:{16*i}')
    a('s_waitcnt lgkmcnt(0)')
    a('v_add_f32 v49, v60, v62\nv_add_f32 v50, v64, v66\nv_add_f32 v51, v68, v70\nv_add_f32 v52, v72, v74\nv_add_f32 v49, v49, v50\nv_add_f32 v51, v51, v52\nv_add_f32 v49, v49, v51\nv_mul_f32 v49, 0x3e000000, v49')
    for i in range(8): a(f'v_sub_f32 v{60+2*i}, v{60+2*i}, v49')
    for i in range(8): a(f'v_mul_f32 v{60+2*i}, v{60+2*i}, v{60+2*i}')
    a('s_mov_b32 s40, 0x42800000')
    for i in range(8): a(f'v_fma_f32 v{61+2*i}, v{60+2*i}, s40, v{61+2*i}')
    a.tree_add(range(61, 76, 2))
    a('v_mul_f32 v61, 0x3b000000, v61')
    a.rbf(49, 49); a.rbf(61, 61)
    a(f'v_add_f32 v61, {EPS:#x}, v61'); a.rbf(61, 61)
    a('v_sqrt_f32 v61, v61\nv_sub_f32 v48, v48, v49'); a.rbf(61, 61); a.rbf(48, 48)
    a('v_rcp_f32 v61, v61\ns_nop 0\nv_mul_f32 v48, v48, v61'); a.rbf(48, 48)
    a('v_mul_f32 v48, v48, v58'); a.rbf(48, 48)
    a('v_add_f32 v48, v48, v57'); a.rbf(48, 48)
    a('ds_write_b16_d16_hi v16, v48\ns_waitcnt lgkmcnt(0)\nds_read_b128 v[20:23], v18\nds_read_b128 v[24:27], v18 offset:64\ns_waitcnt lgkmcnt(0)')
    for t in range(2):
        for m in range(4):
            b = 80 + 16*(m >> 1) + 8*t + 4*(m & 1)
            c = '0' if t == 0 else f'v[{48+4*m}:{51+4*m}]'
            a(f'v_mfma_f32_16x16x32_bf16 v[{48+4*m}:{51+4*m}], v[{20+4*t}:{23+4*t}], v[{b}:{b+3}], {c}')
    a('s_nop 5\nv_mov_b32 v49, v52\ns_nop 1\nv_mov_b32 v57, v60')
    a('s_mov_b64 exec, 0xffff\nds_write_b64 v19, v[48:49]\nds_write_b64 v19, v[56:57] offset:128\ns_mov_b64 exec, -1\ns_waitcnt lgkmcnt(0)\ns_barrier')
    a.stamp(9)
    for i in range(8): a(f'ds_read_b32 v{48+i}, v17 offset:{WGU+256*i}')
    a('s_waitcnt lgkmcnt(0)')
    a.tree_add(range(48, 56))
    a.rbf(48, 48)
    a('v_mov_b32 v49, v48\ns_nop 1\nv_permlane32_swap_b32 v48, v49')
    a('v_mul_f32 v48, s57, v48\nv_exp_f32 v48, -v48\ns_nop 0\nv_add_f32 v48, 1.0, v48\nv_rcp_f32 v48, v48\ns_nop 0')
    a.rbf(48, 48)
    a('v_mul_f32 v48, v48, v49'); a.rbf(48, 48)
    a('ds_write_b16_d16_hi v10, v48\ns_waitcnt lgkmcnt(0)\nds_read_b128 v[20:23], v11\ns_waitcnt lgkmcnt(0)')
    a.mv32x512(20, 32, 48, 28)
    a('s_mov_b64 exec, 0xffff\nbuffer_store_dwordx4 v[28:31], v12, s[8:11], s62 offen sc1')
    a.stamp(10)
    if a.prof: a('s_mov_b64 exec, -1')
    a('L_W_done:')
    a.exit()
    a('L_W_comm:')
    a('s_setprio 3')
    a(f's_load_dwordx2 s[64:65], s[0:1], {KOFF["out"]}')
    a.prefetch_code(20)
    a('v_lshlrev_b32 v9, 4, v1\nv_and_b32 v10, 31, v1\nv_lshlrev_b32 v11, 1, v10\ns_lshl_b32 s40, s5, 6')
    a('s_waitcnt lgkmcnt(0)')
    a.srd(64, 1024)
    a.stamp(0)
    a('buffer_load_dwordx4 v[32:35], v9, s[24:27], 0 offen\nbuffer_load_ushort v36, v11, s[24:27], s40 offen')
    a.get_tag(); a.fin_tag()
    a.xid_publish()
    a('s_waitcnt vmcnt(1)')
    for d in range(4): a(f'v_lshlrev_b32 v{40+2*d}, 16, v{32+d}\nv_and_b32 v{41+2*d}, 0xffff0000, v{32+d}')
    a('v_add_f32 v32, v40, v41\nv_add_f32 v33, v42, v43\nv_add_f32 v34, v44, v45\nv_add_f32 v35, v46, v47')
    a.tree_add(range(32, 36))
    a.wave_reduce('v_add_f32', [32], 33)
    a('v_mul_f32 v32, 0x3b000000, v32')
    for i in range(8): a(f'v_sub_f32 v{40+i}, v{40+i}, v32')
    for i in range(8): a(f'v_mul_f32 v{40+i}, v{40+i}, v{40+i}')
    a.tree_add(range(40, 48))
    a.wave_reduce('v_add_f32', [40], 33)
    a('v_mul_f32 v40, 0x3b000000, v40')
    a.rbf(32, 32); a.rbf(40, 40)
    a(f'v_add_f32 v40, {EPS:#x}, v40'); a.rbf(40, 40)
    a('v_sqrt_f32 v40, v40\nv_lshlrev_b32 v36, 16, v36'); a.rbf(40, 40)
    a('v_sub_f32 v36, v36, v32\nv_rcp_f32 v40, v40'); a.rbf(36, 36)
    a('v_mul_f32 v36, v36, v40'); a.rbf(28, 36)
    a(f'v_lshrrev_b32 v12, 5, v1\nv_lshlrev_b32 v12, 10, v12\nv_lshl_add_u32 v12, v10, 2, v12\ns_mul_i32 s41, s5, 6144\ns_add_u32 s41, s41, {MODP}')
    a(f'v_add_u32 v13, {WH}, v11\nv_mov_b32 v14, {WMODE}\nv_lshlrev_b32 v17, 2, v1')
    a(f's_lshl_b32 s54, s4, 4\ns_add_u32 s54, s54, s5\ns_lshl_b32 s55, s54, 7\ns_add_u32 s55, s55, {QV}\ns_lshl_b32 s54, s54, 11\ns_add_u32 s54, s54, {QP}')
    a.stamp(1)
    a.poll([f'buffer_load_dword v{32+i}, v12, s[8:11], s41 offen offset:{128*i} sc1' for i in range(8)] + [a.xid_load(40)], range(32, 40), 30)
    a.stamp(2)
    a.tree_add(range(32, 40))
    a.rbf(32, 32)
    a('v_mov_b32 v33, v32\ns_nop 1\nv_permlane32_swap_b32 v32, v33')
    a('v_add_f32 v33, 1.0, v33'); a.rbf(33, 33)
    a('v_mul_f32 v33, v28, v33'); a.rbf(33, 33)
    a('v_add_f32 v33, v33, v32'); a.rbf(33, 33)
    a('ds_write_b16_d16_hi v13, v33')
    a.xid_mode(40)
    a('v_mov_b32 v15, s7\nds_write_b32 v14, v15\ns_waitcnt lgkmcnt(0)\ns_barrier')
    a.stamp(3)
    a.poll([f'buffer_load_dword v{32+i}, v17, s[8:11], s54 offen offset:{256*i} sc1' for i in range(8)], range(32, 40), 30)
    a.stamp(4)
    a.tree_add(range(32, 40))
    a.swap_op(32, 'v_add_f32', 32, 33)
    a.rbf(32, 32)
    a('v_or_b32 v32, v2, v32\ns_mov_b32 exec_hi, 0')
    a.store_mode('buffer_store_dword v32, v17, s[8:11], s55 offen')
    a('s_mov_b64 exec, -1')
    a.stamp(5)
    a('s_barrier')
    a('s_cmp_ge_u32 s58, 2\ns_cbranch_scc1 L_W_cdone')
    a(f's_lshl_b32 s42, s5, 7\nv_lshlrev_b32 v12, 2, v10\nv_add_u32 v13, s42, v12\ns_mul_i32 s54, s5, 7168\ns_add_u32 s54, s54, {DP}\ns_add_u32 s55, s54, 4096')
    a('s_barrier')
    a(f'ds_read_b32 v28, v13 offset:{WX1}\nds_read_b32 v29, v12 offset:{WGB}\ns_waitcnt lgkmcnt(0)')
    a('s_barrier')
    a.stamp(6)
    a.poll([f'buffer_load_dword v{32+i}, v17, s[8:11], s{54 if i<16 else 55} offen offset:{256*(i&15)} sc1' for i in range(28)], range(32, 60), 30)
    a.stamp(7)
    a.tree_add(range(32, 60))
    a.swap_op(32, 'v_add_f32', 32, 33)
    a.rbf(32, 32)
    a('v_mul_f32 v32, v29, v32'); a.rbf(32, 32)
    a('v_add_f32 v32, v28, v32'); a.rbf(32, 32)
    a('s_mov_b32 exec_hi, 0\nbuffer_store_short_d16_hi v32, v11, s[64:67], s40 offen')
    a(f's_cmp_lg_u32 s5, 0\ns_cbranch_scc1 L_W_noep\ns_mov_b64 exec, 1\nv_mov_b32 v33, s45\nv_mov_b32 v34, {EPOCH}\nbuffer_store_dword v33, v34, s[8:11], 0 offen sc1\nL_W_noep:')
    a.stamp(8)
    if a.prof: a('s_mov_b64 exec, -1')
    a('L_W_cdone:')
    a.exit()

HEADER = open('adaLN_cond__sliding_block_cached__glu_gated_glu__decode.s.ref').read().split('; Override launch')[0]
def emit(fn, prof=False, opts=None):
    a = gen(prof, opts)
    body = a.text()
    errs = lint(body)
    if errs: print('\n'.join(errs)); raise SystemExit('lint errors')
    vg = 128
    txt = f'''{HEADER}; @launch grid=(256,1,1) block=(576,1,1) lds={LDS_TOTAL}
.amdgcn_target "amdgcn-amd-amdhsa--gfx950"
.text
.globl {NAME}
.p2align 8
.type {NAME},@function
{NAME}:
{body}.section .rodata,"a"
.p2align 6
.amdhsa_kernel {NAME}
  .amdhsa_next_free_vgpr {vg}
  .amdhsa_next_free_sgpr 72
  .amdhsa_accum_offset {vg}
  .amdhsa_group_segment_fixed_size 0
  .amdhsa_kernarg_size 112
  .amdhsa_user_sgpr_count 2
  .amdhsa_user_sgpr_kernarg_segment_ptr 1
  .amdhsa_system_sgpr_workgroup_id_x 1
.end_amdhsa_kernel
'''
    open(fn, 'w').write(txt)
if __name__ == '__main__':
    emit('k1.s'); emit('k1p.s', prof=True); emit('k1slow.s', opts=dict(force_slow=True))
```

```python
import sys
from asmlib import Asm, KOFF, NAME
from lint import lint

BLK = 131072
EPOCH = 0; XID = 0x400; AX = 0x1000; DP = 0x4000; MODP = 0x8000; PROBE = 0x10000; COPY = 8192
QV = 0x200000; MODV = 0x204000; OS = 0x21C000; QF = 0x220000; AL = 0x230000; QP = 0x240000; OP = 0x280000; AP = 0x2C0000; STAMP = 0x400000
TMASK = 0x3FF; LIMIT = 200000
LK = 0; LV = 65536; LQ = 131072; LMX = LQ + 1152; LLS = LMX + 128; LP = LLS + 128; LOF = LP + 2048; LZ = LOF + 64; LMODE_A = LZ + 64; LRED = (LMODE_A + 64 + 255) // 256 * 256; LDS_TOTAL = LRED + 2048
WCS = 0; WH = 1024; WMODE = 1152; WZ = 1280; WX1 = 2048; WST = 4096; WH2 = 4224; WGU = 5376; WHH = 7424; WQL = 8192
SCALE = 0x3DB504F3; LOG2E = 0x3FB8AA3B; EPS = 0x3727C5AC
DPP = 'row_mask:0xf bank_mask:0xf'

class G(Asm):
    def __init__(self, prof=False, opts=None):
        super().__init__(); self.prof = prof; self.o = opts or {}
    role = ''
    def stamp(self, slot):
        if self.o.get('hs') == (self.role, slot): self('s_memrealtime s[94:95]\ns_waitcnt lgkmcnt(0)')
        if self.prof: self(f's_memrealtime s[60:61]\ns_waitcnt lgkmcnt(0)\nv_writelane_b32 v127, s60, {slot}')
    def exit(self):
        if self.o.get('hs') and self.o['hs'][0] == self.role:
            l = self.label('H')
            self('s_waitcnt lgkmcnt(0)\ns_sub_u32 s97, s94, s96\ns_mul_i32 s97, s97, 10\ns_add_u32 s97, s97, 1500')
            self(f'{l}:\ns_memrealtime s[98:99]\ns_waitcnt lgkmcnt(0)\ns_sub_u32 s98, s98, s96\ns_cmp_lt_u32 s98, s97\ns_cbranch_scc1 {l}')
        if self.prof:
            self('v_writelane_b32 v127, s96, 13')
            self(f's_mov_b64 exec, 0xffff\ns_mul_i32 s60, s2, 9\ns_add_u32 s60, s60, s3\ns_lshl_b32 s60, s60, 6\ns_add_u32 s60, s60, {STAMP}')
            self('v_lshlrev_b32 v126, 2, v1\nbuffer_store_dword v127, v126, s[8:11], s60 offen')
        self('s_endpgm')
    def srd(self, s, nbytes): self(f's_mov_b32 s{s+2}, {nbytes:#x}\ns_mov_b32 s{s+3}, 0x20000')
    def karg(self, s, k): self(f's_load_dwordx2 s[{s}:{s+1}], s[0:1], {KOFF[k]}')
    def rbf(self, d, s): self(f'v_cvt_pk_bf16_f32 v{d}, 0, v{s}')
    def get_tag(self):
        self(f's_load_dword s45, s[8:9], {EPOCH}\ns_mov_b32 s46, {0xFFFFFFFF ^ TMASK:#x}\ns_mov_b32 s50, 0x05040100\ns_mov_b32 s51, 0x07060302')
    def fin_tag(self):
        self(f's_waitcnt lgkmcnt(0)\ns_add_u32 s45, s45, 1\ns_and_b32 s6, s45, {TMASK}\nv_mov_b32 v2, s6')
    def _loop(self, loads, check, sleep, first_issued=False):
        l = self.label('P')
        self('s_mov_b32 s47, 0')
        if first_issued: self(f's_branch {l}_w')
        self(f'{l}:')
        for x in loads: self(x)
        if first_issued: self(f'{l}_w:')
        self(f's_add_u32 s47, s47, 1\ns_cmp_gt_u32 s47, {LIMIT}\ns_cbranch_scc1 {l}_t')
        self('s_waitcnt vmcnt(0)')
        check()
        if sleep: self(f's_cbranch_vccz {l}_x\ns_sleep {sleep}\ns_branch {l}')
        else: self(f's_cbranch_vccnz {l}')
        self.tails.append(f'{l}_t:\ns_waitcnt vmcnt(0)\ns_branch {l}_x')
        self(f'{l}_x:')
    tails = None
    def poll(self, loads, regs, acc, sleep=None, first_issued=False):
        def check():
            for r in regs: self(f'v_xor_b32 v{r}, v2, v{r}')
            rs = list(regs)
            self(f'v_or_b32 v{acc}, v{rs[0]}, v{rs[1]}'); rs = rs[2:]
            while len(rs) >= 2: self(f'v_or3_b32 v{acc}, v{acc}, v{rs[0]}, v{rs[1]}'); rs = rs[2:]
            if rs: self(f'v_or_b32 v{acc}, v{acc}, v{rs[0]}')
            self(f'v_and_b32 v{acc}, {TMASK}, v{acc}\nv_cmp_ne_u32 vcc, 0, v{acc}')
        self._loop(loads, check, sleep, first_issued)
    def poll8(self, loads, tags, acc, sleep=None):
        def check():
            rs = list(tags)
            self(f'v_xor_b32 v{acc}, s45, v{rs[0]}')
            for r in rs[1:]: self(f'v_bitop3_b32 v{acc}, v{acc}, v{r}, s45 bitop3:0xf6')
            self(f'v_cmp_ne_u32 vcc, 0, v{acc}')
        self._loop(loads, check, sleep)
    def store_mode(self, ins):
        l = self.label('S')
        self(f's_cmp_eq_u32 s7, 1\ns_cbranch_scc0 {l}_s\n{ins}\n{l}_e:')
        self.tails.append(f'{l}_s:\n{ins} sc1\ns_branch {l}_e')
    def store2(self, ins, sreg, tmp):
        self(ins.format(s=sreg) + ' sc1')
        if not self.o.get('onecopy'): self(f's_add_u32 s{tmp}, s{sreg}, {COPY}\n' + ins.format(s=tmp) + ' sc1')
    def tree_add(self, regs):
        regs = list(regs)
        while len(regs) > 1:
            nxt = []
            for i in range(0, len(regs) - 1, 2):
                self(f'v_add_f32 v{regs[i]}, v{regs[i]}, v{regs[i+1]}'); nxt.append(regs[i])
            if len(regs) % 2: nxt.append(regs[-1])
            regs = nxt
    def swap_op(self, which, op, v, t):
        self(f'v_mov_b32 v{t}, v{v}\ns_nop 1\nv_permlane{which}_swap_b32 v{v}, v{t}\n{op} v{v}, v{v}, v{t}')
    def row_reduce(self, op, regs):
        for k in (8, 4, 2, 1):
            if len(regs) < 3: self(f's_nop {2 - len(regs) + (0 if k != 8 else 1)}')
            elif k == 8: self('s_nop 1')
            for r in regs: self(f'{op}_dpp v{r}, v{r}, v{r} row_ror:{k} {DPP}')
    def wave_reduce(self, op, regs, t):
        self.row_reduce(op, regs)
        for w in (16, 32):
            for i, r in enumerate(regs): self(f'v_mov_b32 v{t+i}, v{r}')
            self('s_nop 1')
            for i, r in enumerate(regs): self(f'v_permlane{w}_swap_b32 v{r}, v{t+i}')
            for i, r in enumerate(regs): self(f'{op} v{r}, v{r}, v{t+i}')
    def div(self, q, n, d, r, t):
        self(f'v_rcp_f32 v{r}, v{d}\ns_nop 0\nv_mul_f32 v{t}, v{n}, v{r}\nv_fma_f32 v{q}, -v{t}, v{d}, v{n}\nv_fma_f32 v{q}, v{q}, v{r}, v{t}')
    def xid_publish(self):
        self('s_getreg_b32 s44, hwreg(HW_REG_XCC_ID)\ns_and_b32 s44, s44, 0xffff\ns_lshl_b32 s44, s44, 16\ns_or_b32 s44, s44, s6')
        self('v_mov_b32 v4, s44\nv_mov_b32 v5, s44\nv_mov_b32 v6, s44\nv_mov_b32 v7, s44\nv_mov_b32 v8, 0')
        self(f's_lshl_b32 s48, s4, 8\ns_add_u32 s48, s48, {XID}\ns_and_b32 s49, s5, 15\ns_lshl_b32 s49, s49, 17\ns_add_u32 s49, s49, s48\ns_lshr_b32 s42, s5, 4\ns_lshl_b32 s42, s42, 7\ns_add_u32 s49, s49, s42')
        self('s_mov_b64 exec, 1\nbuffer_store_dwordx4 v[4:7], v8, s[8:11], s49 offen sc1\ns_mov_b64 exec, -1')
        self('v_and_b32 v3, 15, v1\nv_lshlrev_b32 v3, 17, v3\nv_bfe_u32 v8, v1, 4, 1\nv_lshl_add_u32 v3, v8, 7, v3')
    def xid_load(self, r): return f'buffer_load_dwordx4 v[{r}:{r+3}], v3, s[8:11], s48 offen sc1'
    def xid_mode(self, r):
        for i in range(4): self(f'v_xor_b32 v{r+i}, s44, v{r+i}')
        self(f'v_or3_b32 v{r}, v{r}, v{r+1}, v{r+2}\nv_or_b32 v{r}, v{r}, v{r+3}\nv_cmp_ne_u32 vcc, 0, v{r}\ns_nop 1\ns_cmp_eq_u64 vcc, 0\ns_cselect_b32 s7, 1, 0')
        if self.o.get('force_slow'): self('s_mov_b32 s7, 0')
    def probe(self, rounds):
        if self.o.get('onecopy') or self.o.get('noprobe'):
            self(f's_mov_b32 s76, {COPY if self.o.get("noprobe") == 2 else 0}'); return
        self(f's_and_b32 s42, s5, 15\ns_lshl_b32 s42, s42, 17\ns_lshl_b32 s43, s4, 10\ns_add_u32 s42, s42, s43\ns_add_u32 s42, s42, {PROBE}\ns_add_u32 s78, s8, s42\ns_addc_u32 s79, s9, 0')
        self('s_mov_b32 s76, -1\ns_mov_b32 s77, -1\ns_load_dword s42, s[78:79], 896 glc\ns_waitcnt lgkmcnt(0)')
        for k in range(rounds):
            for side in range(2):
                self(f's_memtime s[72:73]\ns_waitcnt lgkmcnt(0)\ns_load_dword s42, s[78:79], {128*k + COPY*side} glc\ns_waitcnt lgkmcnt(0)\ns_memtime s[74:75]\ns_waitcnt lgkmcnt(0)')
                self(f's_sub_u32 s74, s74, s72\ns_min_u32 s{76+side}, s{76+side}, s74')
        if self.prof: self('v_writelane_b32 v127, s76, 14\nv_writelane_b32 v127, s77, 15')
        self(f's_cmp_lt_u32 s77, s76\ns_cselect_b32 s76, {COPY}, 0')
    def prefetch_code(self, r):
        self(f's_getpc_b64 s[52:53]\nL_pc:')
        self(f's_sub_u32 s52, s52, L_pc-{NAME}\ns_subb_u32 s53, s53, 0')
        self(f'v_lshlrev_b32 v{r}, 7, v1')
        for k in range(2):
            self(f'v_add_u32 v{r+1+k}, {k*8192}, v{r}\nv_min_u32 v{r+1+k}, L_code_end-{NAME}-4, v{r+1+k}')
            self(f'global_load_dword v{r+3+k}, v{r+1+k}, s[52:53]')
    def perm_x2(self, src, dst):
        for jj in range(4):
            for d in range(4): self(f'v_perm_b32 v{dst+4*jj+d}, v{src+2*(2*d+1)+(jj>>1)}, v{src+2*(2*d)+(jj>>1)}, s{50+(jj&1)}')
    def perm_x1(self, src, dst):
        for jj in range(2):
            for d in range(4): self(f'v_perm_b32 v{dst+4*jj+d}, v{src+2*d+1}, v{src+2*d}, s{50+jj}')
    def tr_addr(self, base, dst, sh=13):
        self('v_bfe_u32 v18, v1, 1, 1\nv_and_b32 v28, 1, v1\nv_and_b32 v29, 1, v4\nv_lshl_add_u32 v29, v29, 2, v5\nv_lshlrev_b32 v29, 1, v29\nv_xor_b32 v29, v29, v18')
        self('v_lshlrev_b32 v29, 4, v29\nv_lshl_add_u32 v29, v28, 3, v29\nv_lshl_add_u32 v29, v5, 10, v29\n' + f'v_lshl_add_u32 v29, v4, {sh}, v29')
        self('s_lshl_b32 s42, s3, 7\nv_xor_b32 v29, s42, v29')
        if base: self(f'v_add_u32 v29, {base}, v29')
        for jj in range(4): self(f'v_xor_b32 v{dst+jj}, {32*jj}, v29')
    def mask_addr(self, frag, zero, dst):
        self(f'v_lshlrev_b32 v28, 4, v4\nv_add_u32 v28, {frag}, v28\nv_mov_b32 v29, {zero}')
        for jj in range(4): self(f'v_cmp_eq_u32 vcc, {jj}, v5\ns_nop 1\nv_cndmask_b32 v{dst+jj}, v29, v28, vcc')
    def modp_base(self, d, cb):
        self(f's_and_b32 s{d}, s{cb}, 15\ns_lshl_b32 s{d}, s{d}, 17\ns_bfe_u32 s42, s{cb}, 0x20004\ns_lshl_b32 s42, s42, 11\ns_add_u32 s{d}, s{d}, s42\ns_lshr_b32 s42, s{cb}, 6\ns_lshl_b32 s42, s42, 14\ns_add_u32 s{d}, s{d}, s42\ns_add_u32 s{d}, s{d}, {MODP}')
    def silu_frag(self, nvm):
        self('s_lshl_b32 s42, s3, 7\nv_add_u32 v13, s42, v7\nv_add_u32 v14, s42, v9')
        self(f's_waitcnt vmcnt({nvm})')
        self('v_lshlrev_b32 v8, 16, v8\nv_mul_f32 v15, s57, v8\nv_max_f32 v15, 0xc2fc0000, v15\nv_exp_f32 v15, -v15\ns_nop 0\nv_add_f32 v15, 1.0, v15')
        self.div(15, 8, 15, 16, 18)
        self.rbf(15, 15)
        self('ds_write_b16_d16_hi v13, v15\nds_read_b128 v[20:23], v14\nds_read_b128 v[24:27], v14 offset:64')
    def mod_loads(self):
        for r in range(16):
            self(f'buffer_load_dword v{32+r}, v5, s[12:15], s41 offen FPOL')
            if r < 15: self(f's_add_u32 s41, s41, {6144 if r != 7 else 6144*25}')
    def mod_partial(self, two=False):
        self.perm_x1(32, 48); self.perm_x1(40, 56)
        self('s_waitcnt lgkmcnt(0)')
        for t in range(2):
            for jj in range(2):
                c = '0' if t == 0 else f'v[{32+4*jj}:{35+4*jj}]'
                self(f'v_mfma_f32_16x16x32_bf16 v[{32+4*jj}:{35+4*jj}], v[{20+4*t}:{23+4*t}], v[{48+8*t+4*jj}:{51+8*t+4*jj}], {c}')
        self('v_lshlrev_b32 v15, 4, v3\ns_lshl_b32 s42, s4, 8\ns_add_u32 s42, s42, s55\nv_mov_b32 v29, s45\nv_mov_b32 v31, s45\ns_mov_b64 exec, 0xffff\ns_nop 0')
        self('v_mov_b32 v28, v32\nv_mov_b32 v30, v36')
        if self.o.get('fprobe') or two: self.store2('buffer_store_dwordx4 v[28:31], v15, s[8:11], s{s} offen', 42, 43)
        else: self('buffer_store_dwordx4 v[28:31], v15, s[8:11], s42 offen sc1')
        self('s_mov_b64 exec, -1')
    def trigger(self, kind):
        if kind == 'os':
            self(f'v_lshlrev_b32 v9, 4, v1\ns_lshl_b32 s40, s4, 10\ns_add_u32 s40, s40, {OS}')
            self.poll(['buffer_load_dwordx4 v[32:35], v9, s[8:11], s40 offen sc1'], range(32, 36), 30, sleep=2)
        elif kind == 'h1':
            self(f'v_and_b32 v9, 7, v1\nv_lshlrev_b32 v9, 8, v9\ns_lshl_b32 s40, s58, 18\ns_add_u32 s40, s40, {MODP}')
            self.poll8(['buffer_load_dwordx2 v[32:33], v9, s[8:11], s40 offen sc1'], [33], 30, sleep=2)
        elif kind == 'own':
            self(f'v_mov_b32 v9, 0\ns_lshl_b32 s40, s58, 18\ns_lshl_b32 s42, s4, 8\ns_add_u32 s40, s40, s42\ns_add_u32 s40, s40, {MODP}')
            self.poll8(['buffer_load_dwordx2 v[32:33], v9, s[8:11], s40 offen sc1'], [33], 30, sleep=2)
        elif kind == 'q':
            self(f'v_lshlrev_b32 v9, 4, v1\ns_lshl_b32 s40, s4, 11\ns_add_u32 s40, s40, {QV}')
            self.poll(['buffer_load_dwordx4 v[32:35], v9, s[8:11], s40 offen sc1', 'buffer_load_dwordx4 v[36:39], v9, s[8:11], s40 offen offset:1024 sc1'], range(32, 40), 30, sleep=2)
    def mark(self, name):
        if self.o.get('hold') == name: self('s_memrealtime s[96:97]\ns_waitcnt lgkmcnt(0)')
    def hold(self):
        if self.o.get('hold'): self('L_hold:\ns_memrealtime s[98:99]\ns_waitcnt lgkmcnt(0)\ns_sub_u32 s98, s98, s96\ns_cmp_lt_u32 s98, 2000\ns_cbranch_scc1 L_hold')
    def wo_row(self, r):
        if self.o.get('hc'):
            self(f'buffer_load_dwordx4 v{108+(r&1)}, s[20:23], s58 offen offset:{1024*r} OPOL lds' + ('\ns_add_u32 s58, s58, 7168' if r < 3 else ''))
        else: self(f'buffer_load_dwordx4 v{108+r}, s[20:23], s58 offen offset:{1024*r} OPOL lds')
    def combine(self, vs, vd, ss, sd, pre=None):
        D = [f'buffer_load_dwordx4 v[48:51], v{vd}, s[8:11], s{sd} offen sc1', f'buffer_load_dwordx4 v[52:55], v{vd}, s[8:11], s{sd} offen offset:1024 sc1']
        self.poll([f'buffer_load_dwordx4 v[56:59], v{vs}, s[8:11], s{ss} offen sc1'], range(56, 60), 30)
        self('\n'.join(D))
        if pre: pre()
        self(f'v_max_f32_dpp v58, v56, v56 row_ror:8 {DPP}')
        for k in (4, 2, 1): self(f's_nop 1\nv_max_f32_dpp v58, v58, v58 row_ror:{k} {DPP}')
        self('v_sub_f32 v56, v56, v58\nv_mul_f32 v56, s57, v56\nv_exp_f32 v56, v56\ns_nop 0\nv_mul_f32 v57, v56, v57')
        for k in (8, 4, 2, 1): self(f's_nop 1\nv_add_f32_dpp v57, v57, v57 row_ror:{k} {DPP}')
        self('v_rcp_f32 v57, v57\ns_nop 0\nv_mul_f32 v56, v56, v57')
        self.poll(D, range(48, 56), 30, first_issued=True)
        self.stamp(3 if self.role == 'Ac' else 6)
        for r in range(48, 56, 2): self(f'v_pk_mul_f32 v[{r}:{r+1}], v[{r}:{r+1}], v[56:57] op_sel_hi:[1,0]')
        for k in (8, 4, 2, 1):
            for r in range(48, 56): self(f'v_add_f32_dpp v{r}, v{r}, v{r} row_ror:{k} {DPP}')
        for d in range(4): self(f'v_cvt_pk_bf16_f32 v{32+d}, v{48+2*d}, v{49+2*d}')
    def flush_tails(self):
        for t in self.tails: self(t)
        self.tails = []

def gen_all(prof=False, opts=None):
    a = G(prof, opts); a.tails = []
    a('s_cmp_ge_u32 s2, 256\ns_cbranch_scc1 L_exit')
    a.mark('entry')
    if a.o.get('hs') or a.o.get('amp'): a('s_memrealtime s[96:97]\ns_memrealtime s[94:95]')
    if prof: a('s_memrealtime s[96:97]')
    a.karg(8, 'ws')
    if not a.o.get('nokt'): a('s_load_dword s62, s[0:1], 0')
    a('s_and_b32 s4, s2, 7\ns_lshr_b32 s5, s2, 3\nv_lshrrev_b32 v2, 6, v0\nv_and_b32 v1, 63, v0')
    a('s_mov_b32 s7, 0\nv_readfirstlane_b32 s3, v2')
    a.srd(8, 0x10000000)
    if prof: a('v_mov_b32 v127, 0')
    a('v_and_b32 v3, 15, v1\nv_lshrrev_b32 v4, 4, v1')
    a('s_cmp_lg_u32 s3, 8\ns_cbranch_scc1 L_work')
    if a.o.get('tlb0'):
        a('s_load_dwordx4 s[24:27], s[0:1], 24\ns_load_dwordx8 s[28:35], s[0:1], 48\ns_load_dwordx4 s[36:39], s[0:1], 80')
    if not a.o.get('nocpf'): a.prefetch_code(20)
    a('s_setprio 3')
    if a.o.get('tlb0'):
        a('s_lshl_b32 s42, s4, 19\nv_mov_b32 v26, 0\nv_mov_b32 v27, 0x200000\nv_mov_b32 v28, s42\ns_mov_b64 exec, 1\ns_waitcnt lgkmcnt(0)')
        for i, (p, v) in enumerate(((8, 26), (8, 27), (26, 28), (28, 26), (30, 26), (32, 26), (38, 26), (24, 26), (24, 27))):
            a(f'global_load_dword v{108+i}, v{v}, s[{p}:{p+1}]')
        a('s_mov_b64 exec, -1')
    a('s_cmp_ge_u32 s5, 24\ns_cbranch_scc1 L_M_comm')
    a('s_cmp_lt_u32 s5, 16\ns_cbranch_scc1 L_A_comm')
    a('s_branch L_F_comm')
    a('L_work:')
    a('s_cmp_lt_u32 s5, 16\ns_cbranch_scc1 L_Ai')
    FM_issue(a)
    F_early(a)
    a('s_branch L_F_j')
    a('L_Ai:')
    A_issue(a)
    a('s_branch L_A')
    M_early(a)
    for f in (F_body, F_comm, A_comm, A_body, M_body, M_comm):
        f(a); a.flush_tails()
    a('L_exit:\ns_endpgm\nL_code_end:')
    return a

def A_issue(a):
    a.role = 'A'
    a.karg(20, 'wq'); a.karg(12, 'k'); a.karg(16, 'v')
    a.srd(12, 0x2000000); a.srd(16, 0x2000000); a.srd(20, 0x400000)
    a('v_bfe_u32 v14, v1, 3, 1\nv_lshlrev_b32 v14, 13, v14\nv_and_b32 v6, 7, v1\nv_lshl_add_u32 v14, v6, 7, v14\nv_lshl_add_u32 v14, v4, 5, v14')
    a('s_lshr_b32 s44, s5, 1\ns_lshl_b32 s44, s44, 5\ns_and_b32 s41, s5, 1\ns_lshl_b32 s41, s41, 3\ns_add_u32 s44, s44, s41\ns_add_u32 s44, s44, s3\ns_lshl_b32 s44, s44, 14\ns_lshl_b32 s41, s4, 10\ns_add_u32 s44, s44, s41')
    a('v_lshlrev_b32 v5, 8, v4')
    for i in range(4): a(f'v_add_u32 v6, {4*i}, v4\nv_xor_b32 v6, v6, v3\nv_lshl_add_u32 v{8+i}, v6, 4, v5')
    for i in range(2): a(f'v_add_u32 v6, {4*i}, v4\nv_lshlrev_b32 v6, 1, v6\nv_xor_b32 v6, v6, v3\nv_lshl_add_u32 v{12+i}, v6, 4, v5')
    a(f's_lshl_b32 s40, s4, 22\ns_lshl_b32 s41, s5, 16\ns_add_u32 s40, s40, s41\ns_lshl_b32 s41, s3, 13\ns_add_u32 s40, s40, s41\ns_add_u32 s40, s40, {3<<20}\ns_add_u32 s43, s40, 4096\ns_mov_b32 m0, s41')
    a('s_waitcnt lgkmcnt(0)')
    a.stamp(0)
    a.get_tag()
    if a.o.get('kvt0'): a('s_mov_b64 exec, 1\nbuffer_load_dword v105, v8, s[12:15], s40 offen KPOL\nbuffer_load_dword v106, v8, s[16:19], s40 offen KPOL\nbuffer_load_dword v107, v14, s[20:23], s44 offen FPOL\ns_mov_b64 exec, -1')
    if a.o.get('a_tagw'): a.fin_tag()
    if a.o.get('early'):
        a(f's_lshr_b32 s42, {a.o["early"]}, s3\ns_and_b32 s42, s42, 1\ns_cbranch_scc1 L_A_early')
    if not a.o.get('noapf'): a('buffer_load_dword v104, v14, s[20:23], s44 offen FPOL')
    if a.o.get('early_gu') or a.o.get('apf2'): a('s_add_u32 s44, s44, 262144\nbuffer_load_dword v120, v14, s[20:23], s44 offen FPOL')
    if a.o.get('kvt'): a('s_mov_b64 exec, 1\nbuffer_load_dword v105, v8, s[12:15], s40 offen KPOL\nbuffer_load_dword v106, v8, s[16:19], s40 offen KPOL\ns_mov_b64 exec, -1')
    if a.o.get('a_pfw'): a(f's_waitcnt vmcnt({2 if a.o.get("kvt") == 2 else 0})')
    if a.o.get('early'):
        a('s_branch L_A_go\nL_A_early:\nbuffer_load_dword v104, v14, s[20:23], s44 offen FPOL\nL_A_go:')
    a.stamp(8)
    for kv in range(2):
        if kv == 1 and a.o.get('kv_bar'): a('s_barrier')
        for i in range(8):
            if i == 4 or (kv == 1 and i == 0): a(f's_add_u32 m0, s41, {LV*kv + 4096*(i>>2)}\ns_nop 0')
            vo = 8 + (i & 3) if kv == 0 else 12 + (i & 1)
            a(f'buffer_load_dwordx4 v{vo}, s[{12+4*kv}:{15+4*kv}], s{40 if i < 4 else 43} offen offset:{1024*(i&3)} KPOL lds')

def A_body(a):
    a.role = 'A'
    a('L_A:')
    a.stamp(10)
    a('v_xor_b32 v6, v4, v3\nv_lshlrev_b32 v6, 4, v6\nv_lshl_add_u32 v6, v3, 8, v6\nv_add_u32 v6, s41, v6')
    for jj in range(4): a(f'v_xor_b32 v{8+jj}, {64*jj}, v6')
    a(f'v_and_b32 v7, 3, v1\nv_mul_u32_u24 v12, 272, v7\nv_lshl_add_u32 v12, v4, 4, v12\nv_add_u32 v12, {LQ}, v12')
    a(f'v_lshlrev_b32 v13, 5, v7\nv_add_u32 v13, {LMX}, v13\ns_lshl_b32 s42, s3, 2\nv_add_u32 v14, s42, v13')
    a(f'v_lshlrev_b32 v16, 6, v4\nv_add_u32 v16, {LP}, v16\nv_lshl_add_u32 v15, v3, 4, v16\ns_lshl_b32 s42, s3, 8\nv_add_u32 v15, s42, v15')
    a('v_lshrrev_b32 v5, 2, v3\nv_lshl_add_u32 v16, v5, 4, v16')
    a('v_lshrrev_b32 v6, 2, v1\nv_and_b32 v17, 7, v6\nv_lshlrev_b32 v17, 1, v17\nv_bfe_u32 v18, v1, 1, 1\ns_lshl_b32 s42, s3, 1\nv_add_u32 v21, s42, v18\nv_xor_b32 v17, v17, v21')
    a(f'v_lshlrev_b32 v17, 4, v17\nv_lshl_add_u32 v17, v6, 8, v17\nv_and_b32 v21, 1, v1\nv_lshl_add_u32 v17, v21, 3, v17\nv_add_u32 v17, {LV}, v17')
    hc = a.o.get('hc')
    if hc:
        a('v_bfe_u32 v18, v1, 1, 1\nv_bfe_u32 v28, v1, 3, 1\nv_and_b32 v29, 1, v4\nv_lshl_add_u32 v28, v29, 1, v28\nv_lshlrev_b32 v28, 1, v28\nv_xor_b32 v28, v28, v18\nv_lshlrev_b32 v28, 4, v28')
        a('v_and_b32 v29, 1, v1\nv_lshl_add_u32 v28, v29, 3, v28\nv_lshl_add_u32 v28, v5, 7, v28\nv_lshl_add_u32 v28, v4, 10, v28\nv_add_u32 v28, s41, v28')
        for jj in range(4): a(f'v_xor_b32 v{96+jj}, {32*jj}, v28')
        a(f'v_lshlrev_b32 v100, 4, v1\nv_lshlrev_b32 v101, 4, v3\nv_lshlrev_b32 v102, 2, v3\ns_lshl_b32 s42, s3, 8\ns_add_u32 s42, s42, {LRED}\nv_add_u32 v102, s42, v102')
        a(f's_and_b32 s42, s5, 1\ns_lshl_b32 s42, s42, 3\ns_add_u32 s42, s42, s3\ns_lshl_b32 s48, s4, 4\ns_add_u32 s48, s48, s42\ns_lshl_b32 s48, s48, 11\ns_add_u32 s48, s48, {OP}')
        a(f's_lshr_b32 s42, s42, 2\ns_lshl_b32 s49, s4, 2\ns_add_u32 s49, s49, s42\ns_lshl_b32 s49, s49, 8\ns_add_u32 s49, s49, {OS}')
    else:
        a.tr_addr(LK, 96, 14 if a.o.get('cwo') is not None else 13); a.mask_addr(LOF, LZ, 100)
    a('s_and_b32 s42, s3, 1\ns_lshl_b32 s42, s42, 9\nv_bfe_u32 v6, v3, 2, 1\nv_lshlrev_b32 v19, 10, v6\nv_lshrrev_b32 v6, 3, v3\nv_lshl_add_u32 v19, v6, 8, v19')
    a('v_lshl_add_u32 v19, v7, 2, v19\nv_lshl_add_u32 v19, v4, 13, v19\nv_add_u32 v19, s42, v19')
    a(f's_lshl_b32 s54, s4, 4\ns_lshr_b32 s42, s3, 1\ns_add_u32 s54, s54, s42\ns_lshl_b32 s54, s54, 11\ns_lshl_b32 s42, s5, 4\ns_add_u32 s54, s54, s42\ns_add_u32 s54, s54, {OP}')
    a('v_lshrrev_b32 v6, 5, v1\nv_and_b32 v20, 31, v1\nv_lshlrev_b32 v20, 2, v20\nv_lshl_add_u32 v20, v6, 11, v20')
    a(f's_lshl_b32 s55, s4, 3\ns_add_u32 s55, s55, s3\ns_lshl_b32 s55, s55, 12\ns_lshl_b32 s42, s5, 7\ns_add_u32 s55, s55, s42\ns_add_u32 s55, s55, {AP}')
    a(f'v_mov_b32 v22, {LMODE_A}\nv_lshlrev_b32 v21, 5, v4\nv_add_u32 v21, {LMX}, v21')
    if a.o.get('cwo') is not None:
        a.karg(20, 'wo')
    if hc:
        a('v_and_b32 v6, 7, v1\nv_bfe_u32 v28, v1, 4, 1\nv_lshlrev_b32 v28, 1, v28\nv_xor_b32 v6, v6, v28\nv_lshlrev_b32 v6, 4, v6\nv_lshrrev_b32 v28, 3, v1\nv_lshl_add_u32 v108, v28, 10, v6\nv_xor_b32 v109, 64, v108')
        a('s_lshl_b32 s58, s4, 1\ns_and_b32 s42, s5, 1\ns_add_u32 s58, s58, s42\ns_lshl_b32 s58, s58, 3\ns_add_u32 s58, s58, s3\ns_lshl_b32 s58, s58, 15\ns_lshr_b32 s42, s5, 1\ns_lshl_b32 s42, s42, 7\ns_add_u32 s58, s58, s42\ns_mov_b32 s59, s41\ns_waitcnt lgkmcnt(0)')
    elif a.o.get('cwo') is not None:
        a('s_and_b32 s42, s3, 2\ns_lshl_b32 s42, s42, 2\nv_xor_b32 v6, s42, v1')
        for r in range(4): a(f'v_xor_b32 v{108+r}, {2*r}, v6\nv_lshlrev_b32 v{108+r}, 4, v{108+r}')
        a('s_lshl_b32 s58, s4, 19\ns_lshl_b32 s42, s5, 15\ns_add_u32 s58, s58, s42\ns_lshl_b32 s59, s3, 12\ns_add_u32 s58, s58, s59\ns_lshl_b32 s59, s3, 13\ns_waitcnt lgkmcnt(0)')
    a(f's_mov_b32 s56, {SCALE:#x}\ns_mov_b32 s57, {LOG2E:#x}')
    if not a.o.get('a_tagw'): a.fin_tag()
    if a.o.get('sq'):
        a(f's_lshl_b32 s58, s4, 11\ns_lshl_b32 s59, s3, 8\ns_add_u32 s58, s58, s59\ns_add_u32 s58, s58, {QV}\ns_add_u32 s58, s8, s58\ns_addc_u32 s59, s9, 0')
        a(f's_lshr_b32 s42, s3, 1\ns_mul_i32 s42, s42, 272\ns_and_b32 s43, s3, 1\ns_lshl_b32 s43, s43, 7\ns_add_u32 s42, s42, s43\ns_add_u32 s42, s42, {LQ}\nv_lshlrev_b32 v105, 1, v1\nv_add_u32 v105, s42, v105')
        QR = (12, 28, 64, 80)
        a('s_barrier\ns_barrier')
        for i, r in enumerate(QR): a(f's_load_dwordx16 s[{r}:{r+15}], s[58:59], {64*i}')
        a('s_mov_b32 s47, 0\nL_q:\ns_waitcnt lgkmcnt(0)')
        for i, r in enumerate(QR):
            for k in range(16): a(f'v_writelane_b32 v106, s{r+k}, {16*i+k}')
        a(f'v_xor_b32 v106, v2, v106\nv_and_b32 v107, {TMASK}, v106\nv_cmp_ne_u32 vcc, 0, v107\ns_cbranch_vccnz L_q_retry\nL_q_ok:')
        a.tails.append(f'L_q_retry:\ns_add_u32 s47, s47, 1\ns_cmp_gt_u32 s47, {LIMIT}\ns_cbranch_scc1 L_q_ok\n' + '\n'.join(f's_load_dwordx16 s[{r}:{r+15}], s[58:59], {64*i} glc' for i, r in enumerate(QR)) + '\ns_branch L_q')
        a('ds_write_b16_d16_hi v105, v106')
        a.stamp(11)
    a('s_waitcnt vmcnt(8)')
    a.stamp(1)
    for t in range(2):
        for jj in range(4): a(f'ds_read_b128 v[{32+16*t+4*jj}:{35+16*t+4*jj}], v{8+jj} offset:{4096*t}')
    if a.o.get('vstamp'): a('s_waitcnt vmcnt(0)'); a.stamp(9)
    ne = a.o.get('wo_early', 0)
    a('s_waitcnt lgkmcnt(0)')
    if ne:
        a('s_mov_b32 m0, s59\ns_nop 0')
        for r in range(ne): a.wo_row(r)
    a('s_barrier')
    a.stamp(2)
    def wo_dma(pos):
        if a.o.get('cwo') == pos:
            a('s_mov_b32 m0, s59\ns_nop 0')
            for r in range(ne, 4): a.wo_row(r)
    for jj in range(4): a(f'ds_read_b128 v[{64+4*jj}:{67+4*jj}], v12 offset:{64*jj}')
    wo_dma(0)
    for jj in range(4):
        a(f's_waitcnt lgkmcnt({3-jj})')
        for t in range(2):
            c = '0' if jj == 0 else f'v[{24+4*t}:{27+4*t}]'
            a(f'v_mfma_f32_16x16x32_bf16 v[{24+4*t}:{27+4*t}], v[{32+16*t+4*jj}:{35+16*t+4*jj}], v[{64+4*jj}:{67+4*jj}], {c}')
    wo_dma(1)
    a('s_nop 6' if a.o.get('cwo') != 1 else 's_nop 0')
    for i in range(8): a.rbf(24 + i, 24 + i)
    for i in range(0, 8, 2): a(f'v_pk_mul_f32 v[{24+i}:{25+i}], v[{24+i}:{25+i}], s[56:57] op_sel_hi:[1,0]')
    for i in range(8): a.rbf(24 + i, 24 + i)
    a('v_max3_f32 v32, v24, v25, v26\nv_max3_f32 v33, v27, v28, v29\nv_max3_f32 v32, v32, v30, v31\nv_max_f32 v32, v32, v33')
    a.swap_op(16, 'v_max_f32', 32, 33); a.swap_op(32, 'v_max_f32', 32, 33)
    wmax = a.o.get('wmax')
    if not wmax:
        a('s_mov_b64 exec, 0xf\nds_write_b32 v14, v32\ns_mov_b64 exec, -1\ns_waitcnt lgkmcnt(0)\ns_barrier')
        a('ds_read_b128 v[32:35], v13\nds_read_b128 v[36:39], v13 offset:16\ns_waitcnt lgkmcnt(0)')
        a('v_max3_f32 v32, v32, v33, v34\nv_max3_f32 v36, v36, v37, v38\nv_max3_f32 v32, v32, v35, v39\nv_max_f32 v32, v32, v36')
    for i in range(0, 8, 2): a(f'v_pk_add_f32 v[{24+i}:{25+i}], v[{24+i}:{25+i}], v[32:33] op_sel_hi:[1,0] neg_lo:[0,1] neg_hi:[0,1]')
    for i in range(0, 8, 2): a(f'v_pk_mul_f32 v[{24+i}:{25+i}], v[{24+i}:{25+i}], s[56:57] op_sel:[0,1] op_sel_hi:[1,1]')
    for i in range(8): a(f'v_exp_f32 v{24+i}, v{24+i}')
    a('s_nop 0')
    for d in range(4): a(f'v_cvt_pk_bf16_f32 v{36+d}, v{24+2*d}, v{25+2*d}')
    a('s_mov_b32 exec_lo, 0x000f000f\ns_mov_b32 exec_hi, 0x000f000f\nds_write_b128 v15, v[36:39]\ns_mov_b64 exec, -1')
    a.tree_add(range(24, 32))
    a.swap_op(16, 'v_add_f32', 24, 33); a.swap_op(32, 'v_add_f32', 24, 33)
    a(f's_mov_b64 exec, 0xf\nds_write_b32 v14, v24 offset:{LLS-LMX}' + ('\nds_write_b32 v14, v32' if wmax else '') + '\ns_mov_b64 exec, -1')
    wo_dma(2)
    a.stamp(3)
    if a.o.get('sq') or a.o.get('split'):
        a('s_waitcnt lgkmcnt(0)\ns_barrier')
        for kk in range(8): a(f'ds_read_b128 v[{32+4*kk}:{35+4*kk}], v16 offset:{256*kk}')
        a(f's_waitcnt vmcnt({4 if a.o.get("cwo") is not None else 0}) lgkmcnt(0)')
        a.stamp(4)
        a('s_barrier')
        a('ds_read_b32 v23, v22')
        for kk in range(8):
            a(f'ds_read_b64_tr_b16 v[{64+4*kk}:{65+4*kk}], v17 offset:{8192*kk}\nds_read_b64_tr_b16 v[{66+4*kk}:{67+4*kk}], v17 offset:{8192*kk+4096}')
        for kk in range(8):
            a(f's_waitcnt lgkmcnt({2*(7-kk)})')
            if kk == 1: a('v_readfirstlane_b32 s7, v23')
            a(f'v_mfma_f32_16x16x32_bf16 v[24:27], v[{32+4*kk}:{35+4*kk}], v[{64+4*kk}:{67+4*kk}], {"0" if kk == 0 else "v[24:27]"}')
        a('s_nop 7')
    else: PV_old(a, wmax)
    a('v_and_or_b32 v28, v24, s46, v2')
    a.store_mode('buffer_store_dword v28, v19, s[8:11], s54 offen')
    A_tail(a)

def PV_old(a, wmax):
    a('s_waitcnt vmcnt(0) lgkmcnt(0)')
    a.stamp(4)
    a('s_barrier')
    if wmax: a('ds_read_b128 v[108:111], v21\nds_read_b128 v[112:115], v21 offset:16')
    a('ds_read_b32 v23, v22')
    order = []
    for kk in range(8):
        a(f'ds_read_b128 v[{32+4*kk}:{35+4*kk}], v16 offset:{256*kk}')
        a(f'ds_read_b64_tr_b16 v[{64+4*kk}:{65+4*kk}], v17 offset:{8192*kk}')
        a(f'ds_read_b64_tr_b16 v[{66+4*kk}:{67+4*kk}], v17 offset:{8192*kk+4096}')
        if kk == 4:
            a('s_waitcnt lgkmcnt(15)\nv_readfirstlane_b32 s7, v23')
            if wmax:
                a('v_max3_f32 v116, v108, v109, v110\nv_max3_f32 v117, v111, v112, v113\nv_max3_f32 v116, v116, v114, v115\nv_max_f32 v116, v116, v117')
                for i in range(8): a(f'v_sub_f32 v{108+i}, v{108+i}, v116')
                for i in range(8): a(f'v_mul_f32 v{108+i}, s57, v{108+i}')
                for i in range(8): a(f'v_exp_f32 v{108+i}, v{108+i}')
    for kk in range(8):
        a(f's_waitcnt lgkmcnt({min(15, 3*(7-kk))})')
        if wmax: a(f'v_mfma_f32_16x16x32_bf16 v[{32+4*kk}:{35+4*kk}], v[{32+4*kk}:{35+4*kk}], v[{64+4*kk}:{67+4*kk}], 0')
        else: a(f'v_mfma_f32_16x16x32_bf16 v[24:27], v[{32+4*kk}:{35+4*kk}], v[{64+4*kk}:{67+4*kk}], {"0" if kk == 0 else "v[24:27]"}')
    if wmax:
        a('v_mul_f32 v24, v108, v32\nv_mul_f32 v25, v109, v36')
        for kk in range(2, 8):
            if kk >= 5: a('s_nop 1')
            a(f'v_fmac_f32 v{24+(kk&1)}, v{108+kk}, v{32+4*kk}')
        a('v_add_f32 v24, v24, v25')
    else: a('s_nop 7')

def A_tail(a):
    a.stamp(5)
    if a.o.get('hc'):
        def pre():
            for jj in range(4): a(f'ds_read_b64_tr_b16 v[{64+4*jj}:{65+4*jj}], v{96+jj}\nds_read_b64_tr_b16 v[{66+4*jj}:{67+4*jj}], v{96+jj} offset:512')
        a.combine(101, 100, 49, 48, pre)
        a('s_waitcnt lgkmcnt(0)\ns_nop 0')
        for jj in range(4): a(f'v_mfma_f32_16x16x32_bf16 v[{36+4*jj}:{39+4*jj}], v[32:35], v[{64+4*jj}:{67+4*jj}], 0')
        a('s_mov_b64 exec, 0xffff\ns_nop 4\nds_write2_b32 v102, v36, v40 offset1:16\ns_nop 0\nds_write2_b32 v102, v44, v48 offset0:32 offset1:48\ns_waitcnt lgkmcnt(0)')
        a.stamp(7)
        a('s_barrier')
        a.exit()
        return
    if a.o.get('cwo') is not None: a('s_waitcnt vmcnt(1)')
    cwo = a.o.get('cwo') is not None
    if not cwo:
        a('s_barrier')
        for jj in range(4):
            a(f'ds_read_b64_tr_b16 v[{64+4*jj}:{65+4*jj}], v{96+jj}\nds_read_b64_tr_b16 v[{66+4*jj}:{67+4*jj}], v{96+jj} offset:4096')
    a.stamp(6)
    a('s_barrier')
    for jj in range(4):
        a(f'ds_read_b128 v[{32+4*jj}:{35+4*jj}], v{100+jj}')
        if cwo: a(f'ds_read_b64_tr_b16 v[{64+4*jj}:{65+4*jj}], v{96+jj}\nds_read_b64_tr_b16 v[{66+4*jj}:{67+4*jj}], v{96+jj} offset:8192')
    for jj in range(4):
        a(f's_waitcnt lgkmcnt({(3-jj)*(3 if cwo else 1)})')
        a(f'v_mfma_f32_16x16x32_bf16 v[24:27], v[{32+4*jj}:{35+4*jj}], v[{64+4*jj}:{67+4*jj}], {"0" if jj == 0 else "v[24:27]"}')
    a('s_nop 7')
    a('v_and_or_b32 v28, v24, s46, v2')
    a.store_mode('buffer_store_dword v28, v20, s[8:11], s55 offen')
    a.stamp(7)
    a.exit()

def A_comm(a):
    a.role = 'Ac'
    a('L_A_comm:')
    a.karg(20, 'wo'); a.srd(20, 0x400000)
    a('s_waitcnt lgkmcnt(0)')
    a.stamp(0)
    a.get_tag()
    a(f'v_mov_b32 v4, 0\nv_mov_b32 v5, 0\nv_mov_b32 v6, 0\nv_mov_b32 v7, 0\nv_mov_b32 v8, {LZ}\nds_write_b128 v8, v[4:7]')
    for k in range(8): a(f'v_xor_b32 v{64+k}, {2*k}, v1\nv_lshlrev_b32 v{64+k}, 4, v{64+k}')
    a.fin_tag()
    a.xid_publish()
    if a.o.get('kv_bar'): a('s_barrier')
    if a.o.get('wot'): a('s_lshl_b32 s42, s4, 19\ns_mov_b64 exec, 1\nbuffer_load_dword v108, v1, s[20:23], s42 offen nt\ns_mov_b64 exec, -1')
    a(f'v_lshlrev_b32 v9, 4, v1\ns_lshl_b32 s40, s4, 11\ns_add_u32 s62, s40, {QV}')
    a(f'v_lshrrev_b32 v10, 5, v1\nv_mul_u32_u24 v10, 272, v10\nv_and_b32 v11, 31, v1\nv_lshl_add_u32 v10, v11, 3, v10\nv_add_u32 v10, {LQ}, v10\nv_mov_b32 v12, {LMODE_A}')
    a('s_lshl_b32 s56, s4, 19\ns_lshl_b32 s42, s5, 15\ns_add_u32 s56, s56, s42')
    a(f'v_and_b32 v14, 3, v1\nv_lshlrev_b32 v13, 5, v14\nv_add_u32 v13, {LMX}, v13\nv_lshlrev_b32 v14, 8, v14')
    a(f's_lshl_b32 s41, s4, 10\ns_lshl_b32 s42, s5, 4\ns_add_u32 s63, s41, s42\ns_add_u32 s63, s63, {OS}')
    a(f's_lshr_b32 s42, s5, 2\ns_lshl_b32 s42, s42, 8\ns_add_u32 s41, s41, s42\ns_add_u32 s41, s41, {OS}')
    a(f's_lshl_b32 s40, s4, 4\ns_add_u32 s40, s40, s5\ns_lshl_b32 s40, s40, 11\ns_add_u32 s54, s40, {AP}\ns_add_u32 s40, s40, {OP}')
    a(f'v_and_b32 v15, 15, v1\nv_lshlrev_b32 v15, 4, v15\nv_lshrrev_b32 v16, 4, v1\nv_lshlrev_b32 v16, 4, v16\nv_add_u32 v16, {LOF}, v16\nv_lshlrev_b32 v17, 2, v1')
    a(f's_lshl_b32 s42, s4, 3\ns_lshr_b32 s55, s5, 1\ns_add_u32 s42, s42, s55\ns_and_b32 s55, s42, 15\ns_lshl_b32 s55, s55, 17\ns_lshr_b32 s42, s42, 4\ns_lshl_b32 s42, s42, 8\ns_add_u32 s55, s55, s42')
    a(f's_and_b32 s42, s5, 1\ns_lshl_b32 s42, s42, 7\ns_add_u32 s55, s55, s42\ns_add_u32 s55, s55, {AX}\ns_mov_b32 s57, {LOG2E:#x}')
    if a.o.get('hc'):
        a(f's_and_b32 s55, s5, 1\ns_lshl_b32 s55, s55, 3\ns_lshr_b32 s42, s5, 1\ns_add_u32 s55, s55, s42\ns_lshl_b32 s55, s55, 17\ns_lshl_b32 s42, s4, 8\ns_add_u32 s55, s55, s42\ns_add_u32 s55, s55, {AX}\nv_add_u32 v19, {LRED}, v17')
    if a.o.get('sq'):
        a('s_waitcnt lgkmcnt(0)\ns_barrier')
        a(f's_lshl_b32 s58, s4, 12\ns_add_u32 s58, s58, {QF}\ns_add_u32 s58, s8, s58\ns_addc_u32 s59, s9, 0\ns_mov_b32 s47, 0')
        a('L_qd:\ns_load_dwordx8 s[64:71], s[58:59], s47\ns_add_u32 s47, s47, 64\ns_waitcnt lgkmcnt(0)')
        a('s_xor_b32 s64, s64, s45')
        for k in range(65, 72): a(f's_xor_b32 s{k}, s{k}, s45\ns_or_b32 s64, s64, s{k}')
        a(f's_cbranch_scc0 L_qe\ns_sleep {a.o.get("qsleep", 3)}\ns_cmp_lt_u32 s47, 4096\ns_cbranch_scc1 L_qd')
        a.poll(['buffer_load_dwordx4 v[32:35], v9, s[8:11], s62 offen sc1', 'buffer_load_dwordx4 v[36:39], v9, s[8:11], s62 offen offset:1024 sc1'], range(32, 40), 30)
        a('L_qe:')
        a.stamp(1)
        a('s_barrier')
        a(f's_add_u32 s58, s8, s48\ns_addc_u32 s59, s9, 0\ns_add_u32 s60, s58, {8*BLK}\ns_addc_u32 s61, s59, 0')
        for i in range(32): a(f's_load_dword s{64+i}, s[{58 + 2*((i>>3)&1)}:{59 + 2*((i>>3)&1)}], {(i&7)*BLK + (i>>4)*128}')
        a('s_waitcnt lgkmcnt(0)\ns_xor_b32 s64, s64, s44')
        for k in range(65, 96): a(f's_xor_b32 s{k}, s{k}, s44\ns_or_b32 s64, s64, s{k}')
        a('s_cselect_b32 s7, 0, 1')
        if a.o.get('force_slow'): a('s_mov_b32 s7, 0')
        a('v_mov_b32 v18, s7\nds_write_b32 v12, v18\ns_waitcnt lgkmcnt(0)')
        if a.prof: a('v_writelane_b32 v127, s7, 12')
        if not a.o.get('mode_late'): a('s_barrier')
    else:
        Q = lambda r: [f'buffer_load_dwordx4 v[{r}:{r+3}], v9, s[8:11], s62 offen sc1', f'buffer_load_dwordx4 v[{r+4}:{r+7}], v9, s[8:11], s62 offen offset:1024 sc1']
        if not a.o.get('q1'):
            a('v_and_b32 v18, 7, v1\nv_lshlrev_b32 v18, 4, v18\ns_mov_b64 exec, 0xff')
            a.poll(['buffer_load_dwordx4 v[32:35], v18, s[8:11], s62 offen sc1'], range(32, 36), 30)
            a('s_mov_b64 exec, -1')
        if a.o.get('q1') == 2:
            def chk(r):
                for k in range(r, r+8): a(f'v_xor_b32 v{k}, v2, v{k}')
                a(f'v_or3_b32 v30, v{r}, v{r+1}, v{r+2}\nv_or3_b32 v30, v30, v{r+3}, v{r+4}\nv_or3_b32 v30, v30, v{r+5}, v{r+6}\nv_or_b32 v30, v30, v{r+7}\nv_and_b32 v30, {TMASK}, v30\nv_cmp_ne_u32 vcc, 0, v30')
            a('\n'.join(Q(48)) + f'\ns_sleep {a.o.get("qgap", 16)}\ns_mov_b32 s47, 0\nL_q2:\n' + '\n'.join(Q(32)) + '\ns_waitcnt vmcnt(2)')
            chk(48)
            a('s_cbranch_vccz L_q2b\n' + '\n'.join(Q(48)) + '\ns_waitcnt vmcnt(2)')
            chk(32)
            a(f's_cbranch_vccz L_q2a\ns_add_u32 s47, s47, 1\ns_cmp_lt_u32 s47, {LIMIT}\ns_cbranch_scc1 L_q2\ns_branch L_q2a')
            a('L_q2b:')
            for k in range(8): a(f'v_mov_b32 v{80+k}, v{48+k}')
            a('s_branch L_q2c\nL_q2a:')
            for k in range(8): a(f'v_mov_b32 v{80+k}, v{32+k}')
            a('L_q2c:')
        else: a.poll(Q(32), range(32, 40), 30)
        a.stamp(1)
        for i in range(2):
            qb = 80 if a.o.get('q1') == 2 else 32
            a(f'v_perm_b32 v{44+2*i}, v{qb+1+4*i}, v{qb+4*i}, s51\nv_perm_b32 v{45+2*i}, v{qb+3+4*i}, v{qb+2+4*i}, s51')
            a(f'ds_write_b64 v10, v[{44+2*i}:{45+2*i}] offset:{544*i}')
        if a.o.get('cwo') is not None: a(a.xid_load(40))
        a('s_waitcnt lgkmcnt(0)\ns_barrier')
    if a.o.get('sq'): A_comm_sq(a); return
    if a.o.get('split'): A_comm_split(a); return
    a(a.xid_load(40))
    for b in range(8):
        a(f's_mov_b32 m0, {LK + 4096*b}' + ('\ns_add_u32 s56, s56, 4096' if b else '\ns_nop 0'))
        for r in range(4): a(f'buffer_load_dwordx4 v{64 + r + 4*((b>>1)&1)}, s[20:23], s56 offen offset:{1024*r} OPOL lds')
    a('s_waitcnt vmcnt(32)')
    a.xid_mode(40)
    a('v_mov_b32 v18, s7\nds_write_b32 v12, v18\ns_waitcnt lgkmcnt(0)')
    if not a.o.get('wmax') and not a.o.get('sq'): a('s_barrier')
    if not a.o.get('sq'): a('s_barrier')
    a(f'ds_read_b128 v[32:35], v13\nds_read_b128 v[36:39], v13 offset:16\nds_read_b128 v[40:43], v13 offset:{LLS-LMX}\nds_read_b128 v[44:47], v13 offset:{LLS-LMX+16}\ns_waitcnt lgkmcnt(2)')
    a('v_max3_f32 v48, v32, v33, v34\nv_max3_f32 v49, v36, v37, v38\nv_max3_f32 v48, v48, v35, v39\nv_max_f32 v48, v48, v49')
    if a.o.get('wmax'):
        for i in range(8): a(f'v_sub_f32 v{32+i}, v{32+i}, v48')
        for i in range(8): a(f'v_mul_f32 v{32+i}, s57, v{32+i}')
        for i in range(8): a(f'v_exp_f32 v{32+i}, v{32+i}')
        a('s_waitcnt lgkmcnt(0)')
        for i in range(8): a(f'v_mul_f32 v{40+i}, v{32+i}, v{40+i}')
    a('s_waitcnt lgkmcnt(0)')
    a.tree_add(range(40, 48))
    a('v_or_b32 v32, v2, v48\nv_and_or_b32 v33, v40, s46, v2\nv_mov_b32 v34, v32\nv_mov_b32 v35, v33\ns_mov_b64 exec, 0xf')
    a.store_mode('buffer_store_dwordx4 v[32:35], v14, s[8:11], s63 offen')
    a('s_mov_b64 exec, -1')
    a('s_waitcnt vmcnt(1)')
    A_comm_tail(a)

def A_comm_sq(a):
    for b in range(8):
        a(f's_mov_b32 m0, {LK + 4096*b}' + ('\ns_add_u32 s56, s56, 4096' if b else '\ns_nop 0'))
        for r in range(4): a(f'buffer_load_dwordx4 v{64 + r + 4*((b>>1)&1)}, s[20:23], s56 offen offset:{1024*r} OPOL lds')
        if b == 0: a('s_barrier')
        if b == a.o.get('wo_b2', 1): a('s_barrier')
    a('s_barrier')
    a(f'ds_read_b128 v[32:35], v13\nds_read_b128 v[36:39], v13 offset:16\nds_read_b128 v[40:43], v13 offset:{LLS-LMX}\nds_read_b128 v[44:47], v13 offset:{LLS-LMX+16}\ns_waitcnt lgkmcnt(0)')
    a('v_max3_f32 v48, v32, v33, v34\nv_max3_f32 v49, v36, v37, v38\nv_max3_f32 v48, v48, v35, v39\nv_max_f32 v48, v48, v49')
    a.tree_add(range(40, 48))
    a('v_or_b32 v32, v2, v48\nv_and_or_b32 v33, v40, s46, v2\nv_mov_b32 v34, v32\nv_mov_b32 v35, v33\ns_mov_b64 exec, 0xf')
    a.store_mode('buffer_store_dwordx4 v[32:35], v14, s[8:11], s63 offen')
    a('s_mov_b64 exec, -1')
    a('s_waitcnt vmcnt(1)')
    A_comm_tail(a)

def A_comm_split(a):
    cwo = a.o.get('cwo') is not None
    if not cwo:
        a(a.xid_load(40))
        for b in range(8):
            a(f's_mov_b32 m0, {LK + 4096*b}' + ('\ns_add_u32 s56, s56, 4096' if b else '\ns_nop 0'))
            for r in range(4): a(f'buffer_load_dwordx4 v{64 + r + 4*((b>>1)&1)}, s[20:23], s56 offen offset:{1024*r} OPOL lds')
            if b == a.o.get('wo_b1', 3): a('s_barrier')
            if b == a.o.get('wo_b2', 5): a('s_barrier')
        a('s_waitcnt vmcnt(32)')
    else: a('s_barrier\ns_waitcnt vmcnt(0)')
    a.xid_mode(40)
    if a.prof: a('v_writelane_b32 v127, s7, 12')
    a('v_mov_b32 v18, s7\nds_write_b32 v12, v18\ns_waitcnt lgkmcnt(0)')
    a('s_barrier')
    a(f'ds_read_b128 v[32:35], v13\nds_read_b128 v[36:39], v13 offset:16\nds_read_b128 v[40:43], v13 offset:{LLS-LMX}\nds_read_b128 v[44:47], v13 offset:{LLS-LMX+16}\ns_waitcnt lgkmcnt(0)')
    a('v_max3_f32 v48, v32, v33, v34\nv_max3_f32 v49, v36, v37, v38\nv_max3_f32 v48, v48, v35, v39\nv_max_f32 v48, v48, v49')
    a.tree_add(range(40, 48))
    a('v_or_b32 v32, v2, v48\nv_and_or_b32 v33, v40, s46, v2\nv_mov_b32 v34, v32\nv_mov_b32 v35, v33\ns_mov_b64 exec, 0xf')
    a.store_mode('buffer_store_dwordx4 v[32:35], v14, s[8:11], s63 offen')
    a('s_mov_b64 exec, -1')
    if cwo: a('s_barrier')
    else: a('s_waitcnt vmcnt(1)')
    A_comm_tail(a)

def A_comm_tail(a):
    a.stamp(2)
    if a.o.get('cwo') is None: a('s_barrier')
    if a.o.get('hc'):
        a('s_barrier')
        for i in range(4): a(f'ds_read2st64_b32 v[{32+2*i}:{33+2*i}], v17 offset0:{2*i} offset1:{2*i+1}'.replace('v17', 'v19'))
        a('s_waitcnt lgkmcnt(0)')
        a.stamp(5)
        a.tree_add(range(32, 40))
        a('v_and_or_b32 v32, v32, s46, v2')
        A_comm_end(a)
        return
    a.combine(15, 9, 41, 40)
    a('s_mov_b32 exec_lo, 0x00010001\ns_mov_b32 exec_hi, 0x00010001\nds_write_b128 v16, v[32:35]\ns_mov_b64 exec, -1\ns_waitcnt lgkmcnt(0)\ns_barrier')
    a.stamp(4)
    a.poll([f'buffer_load_dword v{32+i}, v17, s[8:11], s54 offen offset:{256*i} sc1' for i in range(8)], range(32, 40), 30)
    a.stamp(5)
    a.tree_add(range(32, 40))
    a.swap_op(32, 'v_add_f32', 32, 33)
    a('v_and_or_b32 v32, v32, s46, v2\ns_mov_b32 exec_hi, 0')
    A_comm_end(a)

def A_comm_end(a):
    a.store2('buffer_store_dword v32, v17, s[8:11], s{s} offen', 55, 42)
    if a.o.get('axgate'):
        a(f's_lshl_b32 s42, s4, 4\ns_add_u32 s42, s42, s5\ns_lshl_b32 s42, s42, 4\ns_add_u32 s42, s42, {AL}\ns_mov_b64 exec, 0xf')
        a.store_mode('buffer_store_dword v32, v17, s[8:11], s42 offen')
    a.stamp(6)
    a.exit()

def FM_issue(a):
    a.role = 'F'
    for s, k in ((12, 'wmod'), (20, 'c'), (16, 'wq')): a.karg(s, k)
    for s, n in ((12, 0x300000), (20, 1024), (16, 0x400000)): a.srd(s, n)
    a('v_lshlrev_b32 v7, 1, v1\nv_lshlrev_b32 v9, 4, v4\nv_lshlrev_b32 v17, 2, v1')
    a(f's_mov_b32 s57, {LOG2E:#x}\ns_and_b32 s58, s5, 7')
    a('s_cmp_ge_u32 s5, 24\ns_cbranch_scc1 L_M')
    a('v_mul_u32_u24 v5, 49152, v4\nv_lshl_add_u32 v5, v3, 2, v5\ns_lshl_b32 s40, s4, 7\ns_mul_i32 s56, s4, 393216')
    fl = a.o.get('fl')
    if fl: a('v_lshl_add_u32 v5, v3, 2, v5\ns_lshl_b32 s59, s58, 1\ns_add_u32 s59, s59, s3\ns_lshl_b32 s59, s59, 1\ns_lshl_b32 s42, s59, 6\ns_add_u32 s41, s56, s42')
    else: a('s_lshl_b32 s59, s58, 2\ns_add_u32 s59, s59, s3\ns_lshl_b32 s42, s59, 6\ns_add_u32 s41, s56, s42')
    a('s_waitcnt lgkmcnt(0)')
    a.stamp(0)
    a('buffer_load_ushort v8, v7, s[20:23], s40 offen')
    a.get_tag()
    a('s_cmp_ge_u32 s3, 4\ns_cbranch_scc1 L_F_wq')
    if fl:
        a('s_cmp_ge_u32 s3, 2\ns_cbranch_scc1 L_F_idle')
        for r in range(16):
            a(f'buffer_load_dwordx2 v[{32+2*r}:{33+2*r}], v5, s[12:15], s41 offen FPOL')
            if r < 15: a(f's_add_u32 s41, s41, {6144 if r != 7 else 6144*25}')
    else: a.mod_loads()

def F_early(a):
    a.role = 'F'
    a.modp_base(55, 59)
    a.fin_tag()
    a.silu_frag(16)
    if a.o.get('fl'):
        a('v_lshrrev_b32 v15, 3, v3\nv_lshlrev_b32 v15, 17, v15\nv_and_b32 v16, 7, v3\nv_lshl_add_u32 v15, v16, 5, v15\ns_lshl_b32 s42, s4, 8\ns_add_u32 s42, s42, s55')
        for r in (97, 99, 101, 103): a(f'v_mov_b32 v{r}, s45')
        a('s_waitcnt vmcnt(8)')
        a.perm_x2(32, 64)
        a('s_waitcnt vmcnt(0) lgkmcnt(0)')
        a.stamp(1)
        for jj in range(4): a(f'v_mfma_f32_16x16x32_bf16 v[{104+4*jj}:{107+4*jj}], v[20:23], v[{64+4*jj}:{67+4*jj}], 0')
        a.perm_x2(48, 80)
        a('s_nop 0')
        for jj in range(4): a(f'v_mfma_f32_16x16x32_bf16 v[{104+4*jj}:{107+4*jj}], v[24:27], v[{80+4*jj}:{83+4*jj}], v[{104+4*jj}:{107+4*jj}]')
        a('s_mov_b64 exec, 0xffff\ns_nop 3')
        for jj in range(4): a(f'v_mov_b32 v{96+2*jj}, v{104+4*jj}')
        a('buffer_store_dwordx4 v[96:99], v15, s[8:11], s42 offen sc1\nbuffer_store_dwordx4 v[100:103], v15, s[8:11], s42 offen offset:16 sc1\ns_mov_b64 exec, -1')
    else:
        a('s_waitcnt vmcnt(0)')
        a.stamp(1)
        a.mod_partial()
    a.stamp(2)
    if a.o.get('tlb_f'): a(f's_mov_b32 s42, {QP}\ns_mov_b64 exec, 1\nbuffer_load_dword v116, v7, s[8:11], s42 offen sc1\ns_mov_b64 exec, -1')
    a('s_branch L_F_j')
    if a.o.get('fl'):
        a('L_F_idle:')
        a.fin_tag()
        a.silu_frag(0)
        a('s_branch L_F_j')
    a('L_F_wq:')
    for k in range(8): a(f'v_xor_b32 v{64+k}, {2*k}, v1\nv_lshlrev_b32 v{64+k}, 4, v{64+k}')
    a('s_and_b32 s42, s3, 3\ns_lshl_b32 s44, s42, 14\ns_lshl_b32 s42, s42, 17\ns_lshl_b32 s62, s58, 19\ns_add_u32 s62, s62, s42\ns_lshl_b32 s42, s4, 10\ns_add_u32 s62, s62, s42')
    if a.o.get('f_tagw'): a.fin_tag()
    for b in range(4):
        a(f's_add_u32 m0, s44, {WQL + 4096*b}')
        for r in range(4):
            if b or r: a(f's_add_u32 s62, s62, {7168 if r else 11264}')
            else: a('s_nop 0')
            a(f'buffer_load_dwordx4 v{64 + r + 4*((b>>1)&1)}, s[16:19], s62 offen offset:{1024*r} FPOL lds')

def F_body(a):
    a.role = 'F'
    a('L_F_j:')
    a.karg(36, 'wd'); a.srd(36, 0x1C0000)
    a('s_cmp_lt_u32 s3, 4\ns_cbranch_scc1 L_F_j2')
    if not a.o.get('f_tagw'): a.fin_tag()
    a.silu_frag(16)
    a('L_F_j2:')
    a('v_lshrrev_b32 v5, 2, v3')
    a(f'v_mov_b32 v28, 0\nv_add_u32 v29, {WZ}, v7\nds_write_b16 v29, v28')
    a.tr_addr(WQL, 96); a.mask_addr(WH, WZ, 100)
    a(f'v_mov_b32 v11, {WMODE}\nv_lshlrev_b32 v18, 3, v1\nv_mov_b32 v31, s45')
    a(f's_lshl_b32 s54, s4, 3\ns_add_u32 s54, s54, s3\ns_lshl_b32 s54, s54, 3\ns_add_u32 s54, s54, s58\ns_lshl_b32 s54, s54, 9\ns_add_u32 s54, s54, {QP}')
    a('s_cmp_lt_u32 s3, 4\ns_cbranch_scc1 L_F_k\ns_waitcnt vmcnt(0)\nL_F_k:\ns_waitcnt lgkmcnt(0)')
    a.stamp(3)
    a('s_barrier')
    for t2 in range(2):
        for jj in range(4):
            b = 32 + 16*t2 + 4*jj
            a(f'ds_read_b64_tr_b16 v[{b}:{b+1}], v{96+jj} offset:{32768*t2}\nds_read_b64_tr_b16 v[{b+2}:{b+3}], v{96+jj} offset:{32768*t2+4096}')
    a('s_waitcnt lgkmcnt(0)\ns_barrier')
    a('ds_read_b64 v[28:29], v11')
    for t2 in range(2):
        for jj in range(4): a(f'ds_read_b128 v[{64+16*t2+4*jj}:{67+16*t2+4*jj}], v{100+jj} offset:{64*t2}')
    for k in range(8):
        a(f's_waitcnt lgkmcnt({7-k})')
        c = '0' if k < 2 else f'v[{108+4*(k&1)}:{111+4*(k&1)}]'
        a(f'v_mfma_f32_16x16x32_bf16 v[{108+4*(k&1)}:{111+4*(k&1)}], v[{64+4*k}:{67+4*k}], v[{32+4*k}:{35+4*k}], {c}')
        if k == 0: a('v_readfirstlane_b32 s7, v28\nv_readfirstlane_b32 s76, v29')
    a('s_nop 7')
    a('v_add_f32 v30, v108, v112')
    a.store_mode('buffer_store_dwordx2 v[30:31], v18, s[8:11], s54 offen')
    a.stamp(4)
    a('v_mul_u32_u24 v5, 49152, v4\nv_lshl_add_u32 v5, v3, 2, v5')
    a('s_lshl_b32 s59, s58, 3\ns_add_u32 s59, s59, s3\ns_add_u32 s59, s59, 32\ns_lshl_b32 s42, s59, 6\ns_add_u32 s41, s56, s42')
    a.modp_base(55, 59)
    a('v_lshlrev_b32 v6, 7, v1\ns_mul_i32 s40, s4, 229376\ns_mul_i32 s42, s58, 28672\ns_add_u32 s40, s40, s42\ns_lshl_b32 s42, s3, 13\ns_add_u32 s40, s40, s42')
    if not a.o.get('rq'): a('s_barrier')
    if a.o.get('rq') == 2: a('s_waitcnt vmcnt(0)\ns_barrier')
    a.mod_loads()
    a('s_waitcnt vmcnt(0)')
    a.stamp(5)
    if a.o.get('fp2'): a('ds_read_b32 v29, v11 offset:4\ns_waitcnt lgkmcnt(0)\nv_readfirstlane_b32 s76, v29')
    a.mod_partial(two=a.o.get('fp2'))
    if a.o.get('fgate'): a('s_waitcnt vmcnt(0)')
    if a.o.get('dpf'): a('s_cmp_ge_u32 s3, 4\ns_cbranch_scc1 L_F_nopf\nbuffer_load_dword v8, v6, s[36:39], s40 offen MPOL\nL_F_nopf:')
    a('s_add_u32 s55, s55, s76')
    a.poll8([f'buffer_load_dwordx2 v[{32+2*i}:{33+2*i}], v18, s[8:11], s55 offen offset:{512*i} sc1' for i in range(4)], range(33, 40, 2), 30)
    a.tree_add(range(32, 40, 2))
    a.swap_op(32, 'v_add_f32', 32, 33)
    a.rbf(32, 32)
    a(f's_mul_i32 s42, s4, 12288\ns_lshl_b32 s43, s59, 7\ns_add_u32 s42, s42, s43\ns_add_u32 s42, s42, {MODV}')
    a('v_or_b32 v33, v2, v32\ns_mov_b32 exec_hi, 0')
    a.store_mode('buffer_store_dword v33, v17, s[8:11], s42 offen')
    a.stamp(6)
    a.exit()

def F_comm(a):
    a.role = 'Fc'
    a('L_F_comm:')
    a.karg(24, 'x'); a.srd(24, 1024)
    a('s_and_b32 s58, s5, 7\nv_lshlrev_b32 v9, 4, v1\nv_lshlrev_b32 v11, 1, v1\ns_lshl_b32 s40, s58, 7')
    a('s_waitcnt lgkmcnt(0)')
    a.stamp(0)
    a('buffer_load_dwordx4 v[32:35], v9, s[24:27], 0 offen\nbuffer_load_ushort v36, v11, s[24:27], s40 offen')
    a.get_tag(); a.fin_tag()
    a.xid_publish()
    if a.o.get('fprobe'): a.probe(a.o['fprobe'])
    else: a('s_mov_b32 s76, 0')
    a('s_waitcnt vmcnt(1)')
    for d in range(4): a(f'v_lshlrev_b32 v{40+2*d}, 16, v{32+d}\nv_and_b32 v{41+2*d}, 0xffff0000, v{32+d}')
    a('v_add_f32 v32, v40, v41\nv_add_f32 v33, v42, v43\nv_add_f32 v34, v44, v45\nv_add_f32 v35, v46, v47')
    a.tree_add(range(32, 36))
    a.wave_reduce('v_add_f32', [32], 33)
    a('v_mul_f32 v32, 0x3b000000, v32')
    for i in range(8): a(f'v_sub_f32 v{40+i}, v{40+i}, v32')
    for i in range(8): a(f'v_mul_f32 v{40+i}, v{40+i}, v{40+i}')
    a.tree_add(range(40, 48))
    a.wave_reduce('v_add_f32', [40], 33)
    a('v_mul_f32 v40, 0x3b000000, v40')
    a.rbf(32, 32); a.rbf(40, 40)
    a(f'v_add_f32 v40, {EPS:#x}, v40'); a.rbf(40, 40)
    a('v_sqrt_f32 v40, v40\nv_lshlrev_b32 v36, 16, v36'); a.rbf(40, 40)
    a('v_sub_f32 v36, v36, v32'); a.rbf(36, 36)
    a.div(40, 36, 40, 41, 42); a.rbf(28, 40)
    a(f'v_lshrrev_b32 v12, 5, v1\nv_lshlrev_b32 v12, 17, v12\nv_and_b32 v10, 31, v1\nv_lshl_add_u32 v12, v10, 3, v12\ns_lshl_b32 s41, s58, 18\ns_add_u32 s41, s41, {MODP}\ns_add_u32 s41, s41, s76')
    a(f'v_add_u32 v13, {WH}, v11\nv_mov_b32 v14, {WMODE}\nv_lshlrev_b32 v17, 2, v1\nv_lshlrev_b32 v18, 3, v1')
    a(f's_lshl_b32 s54, s4, 3\ns_add_u32 s54, s54, s58\ns_lshl_b32 s55, s54, 8\ns_add_u32 s55, s55, {QV}\ns_lshl_b32 s54, s54, 12\ns_add_u32 s54, s54, {QP}')
    a(f'v_lshlrev_b32 v19, 6, v1\nv_mov_b32 v20, s45\ns_lshl_b32 s56, s4, 12\ns_lshl_b32 s42, s58, 2\ns_add_u32 s56, s56, s42\ns_add_u32 s56, s56, {QF}')
    if a.o.get('sq'): a('buffer_load_dword v21, v19, s[8:11], s56 offen sc1')
    a.stamp(1)
    a('s_barrier')
    H1 = [f'buffer_load_dwordx2 v[{32+2*i}:{33+2*i}], v12, s[8:11], s41 offen offset:{256*i} sc1' for i in range(16)]
    a(a.xid_load(64))
    a.poll8(H1, range(33, 64, 2), 30)
    a.stamp(2)
    for k in (1, 2, 4):
        for b in (48, 32):
            for i in range(0, 8, 2*k): a(f'v_add_f32 v{b+2*i}, v{b+2*i}, v{b+2*(i+k)}')
    a.rbf(48, 48); a.rbf(32, 32)
    a('v_add_f32 v48, 1.0, v48'); a.rbf(48, 48)
    a('v_mul_f32 v48, v28, v48'); a.rbf(48, 48)
    a('v_add_f32 v48, v48, v32'); a.rbf(48, 48)
    a('ds_write_b16_d16_hi v13, v48')
    a.xid_mode(64)
    a('v_mov_b32 v64, s7\nv_mov_b32 v65, s76\nds_write_b64 v14, v[64:65]\ns_waitcnt lgkmcnt(0)\ns_barrier')
    a.stamp(3)
    if a.o.get('rq'):
        if a.o.get('rq') == 2: a('s_barrier')
        if a.o.get('fp2'):
            a.probe(3)
            a('v_mov_b32 v65, s76\nds_write_b32 v14, v65 offset:4\ns_waitcnt lgkmcnt(0)')
        a.exit()
        return
    a.poll8([f'buffer_load_dwordx2 v[{32+2*i}:{33+2*i}], v18, s[8:11], s54 offen offset:{512*i} sc1' for i in range(8)], range(33, 48, 2), 30)
    a.stamp(4)
    a.tree_add(range(32, 48, 2))
    a.rbf(32, 32)
    a('v_or_b32 v32, v2, v32')
    a.store_mode('buffer_store_dword v32, v17, s[8:11], s55 offen')
    if a.o.get('sq'): a.store_mode('buffer_store_dword v20, v19, s[8:11], s56 offen')
    a.stamp(5)
    a.trigger(a.o.get('ftrig'))
    a('s_barrier')
    if a.o.get('fp2'):
        a.probe(3)
        a('v_mov_b32 v65, s76\nds_write_b32 v14, v65 offset:4\ns_waitcnt lgkmcnt(0)')
    a.exit()

def M_early(a):
    a.role = 'M'
    a('L_M:')
    for s, k in ((24, 'x'), (28, 'wg'), (32, 'wu'), (36, 'wd')): a.karg(s, k)
    a.srd(24, 1024)
    for s in (28, 32, 36): a.srd(s, 0x1C0000)
    a('v_bfe_u32 v10, v1, 3, 2\nv_lshlrev_b32 v10, 13, v10\nv_and_b32 v6, 7, v1\nv_lshl_add_u32 v10, v6, 7, v10\nv_lshrrev_b32 v6, 5, v1\nv_lshl_add_u32 v10, v6, 6, v10')
    a('s_lshl_b32 s43, s58, 4\ns_add_u32 s43, s43, s3\ns_add_u32 s43, s43, 8\ns_lshl_b32 s43, s43, 15\ns_lshl_b32 s42, s4, 10\ns_add_u32 s43, s43, s42')
    a('v_and_b32 v11, 31, v1')
    a('s_waitcnt lgkmcnt(0)')
    a.stamp(0)
    a.get_tag()
    if a.o.get('a_tagw'): a.fin_tag()
    if not a.o.get('early_gu') and a.o.get('apf2') != 1: a('buffer_load_dword v112, v10, s[16:19], s43 offen FPOL')
    if not a.o.get('a_tagw'): a.fin_tag()
    if a.o.get('rpf'):
        a('v_bfe_u32 v13, v1, 2, 3\nv_mul_u32_u24 v13, 6144, v13\nv_and_b32 v14, 3, v1\nv_lshl_add_u32 v13, v14, 7, v13\nv_lshl_add_u32 v13, v6, 6, v13')
        a('s_lshl_b32 s42, s4, 3\ns_add_u32 s42, s42, s3\ns_mul_i32 s42, s42, 49152\ns_lshl_b32 s44, s58, 9\ns_add_u32 s42, s42, s44\ns_add_u32 s42, s42, 2048')
        if a.o.get('rpf') == 2: a('s_waitcnt vmcnt(0)')
        if a.o.get('rpf') != 3: a('buffer_load_dword v22, v13, s[12:15], s42 offen FPOL')
        else: a('s_mov_b32 s62, s42')
    a('s_branch L_M2')

def M_body(a):
    a.role = 'M'
    a('L_M2:')
    a('s_mul_i32 s59, s4, 7\ns_add_u32 s59, s59, s58')
    a('s_cmp_eq_u32 s58, 7\ns_cbranch_scc1 L_R')
    a('v_mul_u32_u24 v5, 28672, v4\nv_lshl_add_u32 v5, v3, 2, v5')
    a(f's_and_b32 s42, s59, 1\ns_cselect_b32 s44, {39*3584}, 0\ns_cselect_b32 s48, -1, 1\ns_cselect_b32 s63, 78, 0\ns_cselect_b32 s42, 7, 0\ns_xor_b32 s3, s3, s42\ns_mul_i32 s49, s48, {3584*25}\ns_mul_i32 s48, s48, 3584')
    a('s_mul_i32 s41, s3, 229376\ns_lshl_b32 s42, s59, 6\ns_add_u32 s41, s41, s42\ns_add_u32 s41, s41, s44')
    a('s_lshl_b32 s40, s3, 7')
    eg = a.o.get('early_gu')
    def gu():
        for r in range(16):
            a(f'buffer_load_dword v{32+r}, v5, s[28:31], s41 offen MPOL\nbuffer_load_dword v{48+r}, v5, s[32:35], s41 offen MPOL')
            if r < 15: a(f's_add_u32 s41, s41, s{48 if r != 7 else 49}')
    if eg:
        gu()
        a('s_waitcnt vmcnt(0)')
        a.stamp(4)
        a.perm_x1(32, 80); a.perm_x1(40, 88); a.perm_x1(48, 96); a.perm_x1(56, 104)
    if a.o.get('m_pfw'): a('s_waitcnt vmcnt(0)')
    if a.o.get('tlb_m'):
        a.karg(68, 'wo'); a.srd(68, 0x400000)
        a('s_lshl_b32 s42, s4, 19\ns_mov_b64 exec, 1\nbuffer_load_dword v113, v5, s[28:31], s41 offen nt\nbuffer_load_dword v114, v5, s[32:35], s41 offen nt\nbuffer_load_dword v115, v5, s[36:39], 0 offen nt\nbuffer_load_dword v116, v5, s[24:27], 0 offen')
        a(f's_mov_b32 s44, {MODV}\nbuffer_load_dword v117, v5, s[8:11], s44 offen sc1\ns_waitcnt lgkmcnt(0)\nbuffer_load_dword v118, v5, s[68:71], s42 offen nt\ns_mov_b64 exec, -1')
    a.stamp(1)
    a('s_barrier')
    a.stamp(3)
    if a.o.get('rpf') == 3: a('buffer_load_dword v22, v13, s[12:15], s62 offen FPOL')
    a('buffer_load_ushort v8, v7, s[24:27], s40 offen')
    if not eg: gu()
    a('v_lshlrev_b32 v6, 13, v4\nv_lshl_add_u32 v6, v3, 3, v6\ns_lshl_b32 s43, s59, 15\ns_add_u32 s43, s43, s40\ns_add_u32 s41, s43, 4096')
    for i in range(8): a(f'buffer_load_dwordx2 v[{64+2*i}:{65+2*i}], v6, s[36:39], s{43 if i<4 else 41} offen offset:{1024*(i&3)} MPOL')
    a(f's_lshl_b32 s42, s3, 8\ns_lshl_b32 s54, s3, 17\ns_add_u32 s54, s54, {AX}\ns_mul_i32 s55, s4, 12288\ns_add_u32 s55, s55, s42\ns_add_u32 s55, s55, {MODV + 2*2048}\ns_add_u32 s56, s55, 4096')
    a(f'v_add_u32 v13, s42, v17\nv_add_u32 v13, {WX1}, v13')
    a(f's_lshl_b32 s43, s3, 3\ns_add_u32 s43, s43, {WST}\nv_mov_b32 v14, s43\nv_and_b32 v15, 7, v1\nv_lshlrev_b32 v15, 3, v15\nv_add_u32 v15, {WST}, v15')
    a(f's_add_u32 s43, s40, {WH2}\nv_xor_b32 v16, s63, v7\nv_add_u32 v16, s43, v16\nv_add_u32 v18, s43, v9')
    a(f's_add_u32 s43, s42, {WGU}\nv_lshlrev_b32 v19, 3, v3\nv_add_u32 v19, s43, v19')
    a(f's_lshl_b32 s43, s3, 6\ns_add_u32 s43, s43, {WHH}\nv_lshlrev_b32 v10, 1, v11\nv_add_u32 v10, s43, v10\nv_add_u32 v11, s43, v9')
    a('v_lshrrev_b32 v12, 3, v3\nv_lshlrev_b32 v12, 9, v12\nv_and_b32 v20, 7, v3\nv_lshl_add_u32 v12, v20, 4, v12')
    a(f's_bfe_u32 s62, s59, 0x40001\ns_lshl_b32 s62, s62, 17\ns_lshr_b32 s42, s59, 5\ns_lshl_b32 s42, s42, 8\ns_add_u32 s62, s62, s42\ns_and_b32 s42, s59, 1\ns_lshl_b32 s42, s42, 7\ns_add_u32 s62, s62, s42\ns_lshl_b32 s42, s3, 10\ns_add_u32 s62, s62, s42\ns_add_u32 s62, s62, {DP}')
    a(f'v_mov_b32 v21, {WMODE}')
    if not eg:
        a('s_waitcnt vmcnt(8)')
        a.stamp(4)
        a.perm_x1(32, 80); a.perm_x1(40, 88); a.perm_x1(48, 96); a.perm_x1(56, 104)
    a('s_waitcnt vmcnt(0)')
    a.perm_x2(64, 32)
    a('v_lshlrev_b32 v8, 16, v8')
    a.stamp(5)
    a.poll(['buffer_load_dword v56, v17, s[8:11], s55 offen sc1', 'buffer_load_dword v57, v17, s[8:11], s55 offen offset:2048 sc1', 'buffer_load_dword v58, v17, s[8:11], s56 offen sc1'], range(56, 59), 30)
    a('ds_read_b32 v21, v21\nv_add_f32 v58, 1.0, v58'); a.rbf(58, 58)
    a('s_waitcnt lgkmcnt(0)\nv_readfirstlane_b32 s76, v21\ns_mov_b32 s63, 0x42800000\ns_nop 2')
    a(f's_add_u32 s54, s54, s76\ns_add_u32 s40, s54, {8*BLK}')
    if a.o.get('axgate'):
        a(f's_lshl_b32 s41, s4, 8\ns_add_u32 s41, s41, {AL}')
        a.poll(['buffer_load_dword v48, v17, s[8:11], s41 offen sc1', 'buffer_load_dword v49, v17, s[8:11], s41 offen sc1'], [48, 49], 30)
        if a.o['axgate'] > 1: a(f's_sleep {a.o["axgate"]}')
    a.stamp(6)
    R = list(range(48, 56)) + (list(range(60, 68)) if a.o.get('hc') else [])
    a.poll([f'buffer_load_dword v{r}, v17, s[8:11], s{40 if i & 1 else 54} offen offset:{256*(i>>1)} sc1' for i, r in enumerate(R)], R, 30)
    a.stamp(7)
    a.tree_add(R)
    a.rbf(48, 48)
    a('v_mul_f32 v48, v56, v48'); a.rbf(48, 48)
    a('v_add_f32 v48, v8, v48'); a.rbf(48, 48)
    a('ds_write_b32 v13, v48\nv_readfirstlane_b32 s40, v48\ns_nop 1')
    a('v_subrev_f32 v49, s40, v48\nv_mul_f32 v50, v49, v49\ns_nop 0')
    for m in ('row_shr:1', 'row_shr:2', 'row_shr:4', 'row_shr:8'):
        a(f'v_add_f32_dpp v49, v49, v49 {m} {DPP} bound_ctrl:0\nv_add_f32_dpp v50, v50, v50 {m} {DPP} bound_ctrl:0\ns_nop 0')
    for m, rm in (('row_bcast:15', '0xa'), ('row_bcast:31', '0xc')):
        a(f'v_add_f32_dpp v49, v49, v49 {m} row_mask:{rm} bank_mask:0xf\nv_add_f32_dpp v50, v50, v50 {m} row_mask:{rm} bank_mask:0xf' + ('\ns_nop 0' if rm == '0xa' else ''))
    a('v_mul_f32 v51, 0x3c800000, v49\ns_mov_b32 exec_lo, 0\nv_fma_f32 v53, -v51, v49, v50\nv_add_f32 v52, s40, v51\ns_mov_b32 exec_hi, 0x80000000')
    a('ds_write_b64 v14, v[52:53]\ns_mov_b64 exec, -1\ns_waitcnt lgkmcnt(0)\ns_barrier')
    a('ds_read_b64 v[60:61], v15\ns_waitcnt lgkmcnt(0)')
    a(f'v_add_f32_dpp v49, v60, v60 row_ror:4 {DPP}')
    for k in (2, 1): a(f's_nop 1\nv_add_f32_dpp v49, v49, v49 row_ror:{k} {DPP}')
    a('v_mul_f32 v49, 0x3e000000, v49\nv_sub_f32 v60, v60, v49\nv_mul_f32 v60, v60, v60\nv_fma_f32 v61, v60, s63, v61')
    a.rbf(49, 49)
    a('v_sub_f32 v48, v48, v49')
    a(f'v_add_f32_dpp v61, v61, v61 row_ror:4 {DPP}'); a.rbf(48, 48); a('s_nop 0')
    a(f'v_add_f32_dpp v61, v61, v61 row_ror:2 {DPP}\ns_nop 1\nv_add_f32_dpp v61, v61, v61 row_ror:1 {DPP}')
    a('v_mul_f32 v61, 0x3b000000, v61'); a.rbf(61, 61)
    a(f'v_add_f32 v61, {EPS:#x}, v61'); a.rbf(61, 61)
    a('v_sqrt_f32 v61, v61\ns_nop 0'); a.rbf(61, 61)
    a.div(61, 48, 61, 62, 63); a.rbf(48, 61)
    a('v_mul_f32 v48, v48, v58'); a.rbf(48, 48)
    a('v_add_f32 v48, v48, v57'); a.rbf(48, 48)
    a('ds_write_b16_d16_hi v16, v48\nds_read_b128 v[20:23], v18\nds_read_b128 v[24:27], v18 offset:64')
    for t in range(2):
        a(f's_waitcnt lgkmcnt({1-t})')
        for m in range(4):
            b = 80 + 16*(m >> 1) + 8*t + 4*(m & 1)
            c = '0' if t == 0 else f'v[{48+4*m}:{51+4*m}]'
            a(f'v_mfma_f32_16x16x32_bf16 v[{48+4*m}:{51+4*m}], v[{20+4*t}:{23+4*t}], v[{b}:{b+3}], {c}')
    a('s_mov_b64 exec, 0xffff\ns_nop 4\nds_write2_b32 v19, v48, v52 offset1:1\ns_nop 0\nds_write2_b32 v19, v56, v60 offset0:32 offset1:33\ns_mov_b64 exec, -1\ns_waitcnt lgkmcnt(0)\ns_barrier')
    a.stamp(8)
    for i in range(4): a(f'ds_read2st64_b32 v[{48+2*i}:{49+2*i}], v17 offset0:{(WGU+512*i)//256} offset1:{(WGU+512*i+256)//256}')
    a('s_waitcnt lgkmcnt(0)')
    a.tree_add(range(48, 56))
    a.rbf(48, 48)
    a('v_mov_b32 v49, v48\ns_nop 1\nv_permlane32_swap_b32 v48, v49')
    a('v_mul_f32 v48, s57, v48\nv_max_f32 v48, 0xc2fc0000, v48\nv_exp_f32 v48, -v48\ns_nop 0\nv_add_f32 v48, 1.0, v48\nv_rcp_f32 v50, v48\ns_nop 0\nv_fma_f32 v48, -v48, v50, 1.0\nv_fma_f32 v48, v48, v50, v50')
    a.rbf(48, 48)
    a('v_mul_f32 v48, v48, v49'); a.rbf(48, 48)
    a('ds_write_b16_d16_hi v10, v48\nds_read_b128 v[20:23], v11\ns_waitcnt lgkmcnt(0)')
    for jj in range(4): a(f'v_mfma_f32_16x16x32_bf16 v[{48+4*jj}:{51+4*jj}], v[20:23], v[{32+4*jj}:{35+4*jj}], 0')
    a('s_mov_b64 exec, 0xffff\ns_nop 3')
    for jj in range(4): a(f'v_and_or_b32 v{28+jj}, v{48+4*jj}, s46, v2')
    a.store2('buffer_store_dwordx4 v[28:31], v12, s[8:11], s{s} offen', 62, 42)
    a.stamp(9)
    if a.o.get('dpgate'): a(f's_waitcnt vmcnt({a.o["dpgate"]-1})\ns_barrier')
    a.exit()
    a('L_R:')
    if a.o.get('rq'):
        a(f'v_lshlrev_b32 v18, 3, v1\ns_lshl_b32 s54, s4, 3\ns_add_u32 s54, s54, s3\ns_lshl_b32 s55, s54, 8\ns_add_u32 s55, s55, {QV}\ns_lshl_b32 s54, s54, 12\ns_add_u32 s54, s54, {QP}\nv_mov_b32 v21, {WMODE}')
        a('s_barrier\nds_read_b32 v21, v21 offset:4\ns_waitcnt lgkmcnt(0)\nv_readfirstlane_b32 s7, v21')
        a.poll8([f'buffer_load_dwordx2 v[{32+2*i}:{33+2*i}], v18, s[8:11], s54 offen offset:{512*i} sc1' for i in range(8)], range(33, 48, 2), 30)
        a.stamp(11)
        a.tree_add(range(32, 48, 2))
        a.rbf(32, 32)
        a('v_or_b32 v32, v2, v32')
        a.store_mode('buffer_store_dword v32, v17, s[8:11], s55 offen')
        a.stamp(12)
        a.exit()
        return
    a('s_and_b32 s42, s4, 1\ns_cselect_b32 s40, 7, 1\ns_cselect_b32 s41, 0, 256\ns_sub_u32 s40, s59, s40\ns_lshl_b32 s40, s40, 6\ns_and_b32 s40, s40, 0xffffff80')
    a('s_and_b32 s42, s3, 3\ns_lshl_b32 s42, s42, 6\ns_add_u32 s41, s41, s42\ns_mul_i32 s41, s41, 3584\ns_add_u32 s40, s40, s41')
    a('v_mul_u32_u24 v5, 3584, v1')
    if not a.o.get('early_gu'): a('s_barrier')
    if a.o.get('rpf') == 3: a('buffer_load_dword v22, v13, s[12:15], s62 offen FPOL')
    a('s_cmp_ge_u32 s3, 4\ns_cbranch_scc1 L_R_up\nbuffer_load_dword v8, v5, s[28:31], s40 offen MPOL\ns_branch L_R_done\nL_R_up:\nbuffer_load_dword v8, v5, s[32:35], s40 offen MPOL\nL_R_done:\ns_waitcnt vmcnt(0)')
    a.exit()

def M_comm(a):
    a.role = 'Mc'
    a('L_M_comm:')
    a.karg(64, 'out'); a.srd(64, 1024)
    a(f's_and_b32 s58, s5, 7\nv_mov_b32 v14, {WMODE}\nv_mov_b32 v15, 0\nds_write_b32 v14, v15\ns_waitcnt lgkmcnt(0)')
    a.stamp(0)
    a.mark('karg')
    a.get_tag(); a.fin_tag()
    a.mark('tag')
    a.xid_publish()
    a.trigger(a.o.get('trig'))
    a.mark('trig')
    if a.o.get('rq'):
        a('s_cmp_lg_u32 s58, 7\ns_cbranch_scc1 L_M_c1')
        a.poll([a.xid_load(40)], range(40, 44), 30, sleep=4)
        for i in range(4): a(f'v_xor_b32 v{40+i}, v2, v{40+i}')
        a.xid_mode(40)
        a('v_mov_b32 v15, s7\nds_write_b32 v14, v15 offset:4\ns_waitcnt lgkmcnt(0)\nL_M_c1:')
    a('s_barrier')
    a.stamp(1)
    if a.o.get('cpf2'): a('global_load_dword v23, v21, s[52:53]\nglobal_load_dword v24, v22, s[52:53]')
    if a.o.get('tlb_out'): a('v_mov_b32 v108, 0\ns_mov_b64 exec, 1\nbuffer_load_dword v109, v108, s[64:67], 0 offen\ns_mov_b64 exec, -1')
    a('s_cmp_eq_u32 s58, 7\ns_cbranch_scc1 L_M_cdone')
    a.probe(4)
    a('v_mov_b32 v15, s76\nds_write_b32 v14, v15')
    a('s_cmp_ge_u32 s58, 2\ns_cbranch_scc1 L_M_cdone')
    a('s_lshl_b32 s59, s4, 1\ns_add_u32 s59, s59, s58\nv_and_b32 v10, 31, v1\nv_lshlrev_b32 v11, 1, v10\nv_lshlrev_b32 v12, 2, v10\nv_lshlrev_b32 v17, 2, v1')
    a(f's_lshl_b32 s40, s59, 6\ns_lshl_b32 s42, s59, 7\nv_add_u32 v13, s42, v12\ns_lshl_b32 s54, s59, 9\ns_add_u32 s54, s54, {DP}\ns_add_u32 s54, s54, s76')
    a(f's_mul_i32 s41, s4, 12288\ns_add_u32 s41, s41, s42\ns_add_u32 s41, s41, {MODV + 5*2048}')
    for i in range(1, 16): a(f'v_add_u32 v{64+i}, {i*BLK}, v17')
    a('v_mov_b32 v64, v17')
    a('s_barrier')
    a.mark('mb1')
    a(f'ds_read_b32 v28, v13 offset:{WX1}')
    a.poll(['buffer_load_dword v29, v12, s[8:11], s41 offen sc1', 'buffer_load_dword v31, v12, s[8:11], s41 offen sc1'], [29, 31], 30)
    a('s_waitcnt lgkmcnt(0)\ns_barrier')
    a.stamp(2)
    if a.o.get('dpdelay'): a(f's_sleep {a.o["dpdelay"]}')
    if a.o.get('dpgate'): a('s_barrier')
    a.poll([f'buffer_load_dword v{32+i}, v{64+(i&15)}, s[8:11], s54 offen offset:{256*(i>>4)} sc1' for i in range(28)], range(32, 60), 30)
    a.stamp(3)
    a.tree_add(range(32, 60))
    a.swap_op(32, 'v_add_f32', 32, 33)
    a.rbf(32, 32)
    a('v_mul_f32 v32, v29, v32'); a.rbf(32, 32)
    a('v_add_f32 v32, v28, v32'); a.rbf(32, 32)
    a.mark('end'); a.hold()
    a('s_mov_b32 exec_hi, 0\nbuffer_store_short_d16_hi v32, v11, s[64:67], s40 offen')
    a(f's_cmp_lg_u32 s59, 0\ns_cbranch_scc1 L_M_noep\ns_mov_b64 exec, 1\nv_mov_b32 v33, s45\nv_mov_b32 v34, {EPOCH}\nbuffer_store_dword v33, v34, s[8:11], 0 offen sc1\nL_M_noep:')
    a.stamp(4)
    if a.o.get('amp'):
        a('s_waitcnt vmcnt(0)\ns_memrealtime s[98:99]\ns_waitcnt lgkmcnt(0)\ns_sub_u32 s97, s98, s96\ns_mul_i32 s97, s97, 11')
        a('L_amp:\ns_memrealtime s[98:99]\ns_waitcnt lgkmcnt(0)\ns_sub_u32 s98, s98, s96\ns_cmp_lt_u32 s98, s97\ns_cbranch_scc1 L_amp')
    a('L_M_cdone:')
    a.exit()

HEADER = open('adaLN_cond__sliding_block_cached__glu_gated_glu__decode.s.ref').read().split('; Override launch')[0]
def emit(fn, prof=False, opts=None):
    a = gen_all(prof, opts)
    body = a.text()
    for p in ('MPOL', 'FPOL', 'OPOL', 'KPOL'): body = body.replace(' ' + p, (' ' + a.o.get(p, 'nt')).rstrip())
    errs = lint(body)
    if errs: print('\n'.join(errs)); raise SystemExit('lint errors')
    vg = 128
    txt = f'''{HEADER}; @launch grid=(256,1,1) block=(576,1,1) lds={LDS_TOTAL}
.amdgcn_target "amdgcn-amd-amdhsa--gfx950"
.text
.globl {NAME}
.p2align 8
.type {NAME},@function
{NAME}:
{body}.section .rodata,"a"
.p2align 6
.amdhsa_kernel {NAME}
  .amdhsa_next_free_vgpr {vg}
  .amdhsa_next_free_sgpr 100
  .amdhsa_accum_offset {vg}
  .amdhsa_group_segment_fixed_size 0
  .amdhsa_kernarg_size 112
  .amdhsa_user_sgpr_count 2
  .amdhsa_user_sgpr_kernarg_segment_ptr 1
  .amdhsa_system_sgpr_workgroup_id_x 1
.end_amdhsa_kernel
'''
    open(fn, 'w').write(txt)
BEST = dict(kvt0=1, apf2=1, wo_early=2, a_pfw=1, tlb_out=1, trig='own', q1=1, split=1, kv_bar=1, dpgate=1, cwo=0, fp2=1, fgate=1, hc=1)
if __name__ == '__main__':
    emit('best.s', opts=BEST); emit('bestp.s', prof=True, opts=BEST); emit('best_amp.s', opts=dict(BEST, amp=1)); emit('best_slow.s', opts=dict(BEST, force_slow=1))
```

```python
import sys
from asmlib import Asm, KOFF, NAME
from lint import lint

BLK = 131072
EPOCH = 0; XID = 0x400; AX = 0x1000; DP = 0x4000; MODP = 0x8000; PROBE = 0x10000; COPY = 8192
QV = 0x200000; MODV = 0x204000; OS = 0x21C000; QF = 0x220000; AL = 0x230000; HV = 0x238000; VD = 0x23C000; QP = 0x240000; OP = 0x2C0000; AP = 0x300000; STAMP = 0x400000
TMASK = 0x3FF; LIMIT = 1000000
LK = 0; LV = 65536; LQ = 131072; LMX = LQ + 1152; LLS = LMX + 128; LP = LLS + 512; LOF = LP + 2048; LZ = LOF + 64; LMODE_A = LZ + 64; LRED = (LMODE_A + 64 + 255) // 256 * 256; LDS_TOTAL = LRED + 2048
WCS = 0; WH = 1024; WMODE = 1152; WZ = 1280; WX1 = 2048; WST = 4096; WH2 = 4224; WGU = 5376; WHH = 7424; WQL = 8192
SCALE = 0x3DB504F3; LOG2E = 0x3FB8AA3B; EPS = 0x3727C5AC
DPP = 'row_mask:0xf bank_mask:0xf'

class G(Asm):
    def __init__(self, prof=False, opts=None):
        super().__init__(); self.prof = prof; self.o = opts or {}
    role = ''
    def stamp(self, slot):
        if self.o.get('hs') == (self.role, slot): self('s_memrealtime s[94:95]\ns_waitcnt lgkmcnt(0)')
        if self.prof: self(f's_memrealtime s[60:61]\ns_waitcnt lgkmcnt(0)\nv_writelane_b32 v127, s60, {slot}')
    def exit(self):
        if self.o.get('hs') and self.o['hs'][0] == self.role:
            l = self.label('H')
            self('s_waitcnt lgkmcnt(0)\ns_sub_u32 s97, s94, s96\ns_mul_i32 s97, s97, 10\ns_add_u32 s97, s97, 1500')
            self(f'{l}:\ns_memrealtime s[98:99]\ns_waitcnt lgkmcnt(0)\ns_sub_u32 s98, s98, s96\ns_cmp_lt_u32 s98, s97\ns_cbranch_scc1 {l}')
        if self.prof:
            self('v_writelane_b32 v127, s96, 13')
            self(f's_mov_b64 exec, 0xffff\ns_lshl_b32 s60, s5, 3\ns_add_u32 s60, s60, s4\ns_mul_i32 s60, s60, 9\ns_add_u32 s60, s60, s3\ns_lshl_b32 s60, s60, 6\ns_add_u32 s60, s60, {STAMP}')
            self('v_lshlrev_b32 v126, 2, v1\nbuffer_store_dword v127, v126, s[8:11], s60 offen')
        self('s_endpgm')
    def srd(self, s, nbytes): self(f's_mov_b32 s{s+2}, {nbytes:#x}\ns_mov_b32 s{s+3}, 0x20000')
    def karg(self, s, k): self(f's_load_dwordx2 s[{s}:{s+1}], s[0:1], {KOFF[k]}')
    def rbf(self, d, s): self(f'v_cvt_pk_bf16_f32 v{d}, 0, v{s}')
    def get_tag(self):
        self(f's_load_dword s45, s[8:9], {EPOCH}\ns_mov_b32 s46, {0xFFFFFFFF ^ TMASK:#x}\ns_mov_b32 s50, 0x05040100\ns_mov_b32 s51, 0x07060302')
    def fin_tag(self):
        self(f's_waitcnt lgkmcnt(0)\ns_add_u32 s45, s45, 1\ns_and_b32 s6, s45, {TMASK}\nv_mov_b32 v2, s6')
    def _loop(self, loads, check, sleep, first_issued=False):
        l = self.label('P')
        self('s_mov_b32 s47, 0')
        if first_issued: self(f's_branch {l}_w')
        self(f'{l}:')
        for x in loads: self(x)
        if first_issued: self(f'{l}_w:')
        self(f's_add_u32 s47, s47, 1\ns_cmp_gt_u32 s47, {LIMIT}\ns_cbranch_scc1 {l}_t')
        self('s_waitcnt vmcnt(0)')
        check()
        if sleep: self(f's_cbranch_vccz {l}_x\ns_sleep {sleep}\ns_branch {l}')
        else: self(f's_cbranch_vccnz {l}')
        self.tails.append(f'{l}_t:\ns_waitcnt vmcnt(0)\ns_branch {l}_x')
        self(f'{l}_x:')
    tails = None
    def poll(self, loads, regs, acc, sleep=None, first_issued=False):
        def check():
            for r in regs: self(f'v_xor_b32 v{r}, v2, v{r}')
            rs = list(regs)
            self(f'v_or_b32 v{acc}, v{rs[0]}, v{rs[1]}'); rs = rs[2:]
            while len(rs) >= 2: self(f'v_or3_b32 v{acc}, v{acc}, v{rs[0]}, v{rs[1]}'); rs = rs[2:]
            if rs: self(f'v_or_b32 v{acc}, v{acc}, v{rs[0]}')
            self(f'v_and_b32 v{acc}, {TMASK}, v{acc}\nv_cmp_ne_u32 vcc, 0, v{acc}')
        self._loop(loads, check, sleep, first_issued)
    def poll8(self, loads, tags, acc, sleep=None):
        def check():
            rs = list(tags)
            self(f'v_xor_b32 v{acc}, s45, v{rs[0]}')
            for r in rs[1:]: self(f'v_bitop3_b32 v{acc}, v{acc}, v{r}, s45 bitop3:0xf6')
            self(f'v_cmp_ne_u32 vcc, 0, v{acc}')
        self._loop(loads, check, sleep)
    def store_mode(self, ins):
        l = self.label('S')
        self(f's_cmp_eq_u32 s7, 1\ns_cbranch_scc0 {l}_s\n{ins}\n{l}_e:')
        self.tails.append(f'{l}_s:\n{ins} sc1\ns_branch {l}_e')
    def store2(self, ins, sreg, tmp):
        self(ins.format(s=sreg) + ' sc1')
        if not self.o.get('onecopy'): self(f's_add_u32 s{tmp}, s{sreg}, {COPY}\n' + ins.format(s=tmp) + ' sc1')
    def tree_add(self, regs):
        regs = list(regs)
        while len(regs) > 1:
            nxt = []
            for i in range(0, len(regs) - 1, 2):
                self(f'v_add_f32 v{regs[i]}, v{regs[i]}, v{regs[i+1]}'); nxt.append(regs[i])
            if len(regs) % 2: nxt.append(regs[-1])
            regs = nxt
    def swap_op(self, which, op, v, t):
        self(f'v_mov_b32 v{t}, v{v}\ns_nop 1\nv_permlane{which}_swap_b32 v{v}, v{t}\n{op} v{v}, v{v}, v{t}')
    def row_reduce(self, op, regs):
        for k in (8, 4, 2, 1):
            if len(regs) < 3: self(f's_nop {2 - len(regs) + (0 if k != 8 else 1)}')
            elif k == 8: self('s_nop 1')
            for r in regs: self(f'{op}_dpp v{r}, v{r}, v{r} row_ror:{k} {DPP}')
    def wave_reduce(self, op, regs, t):
        self.row_reduce(op, regs)
        for w in (16, 32):
            for i, r in enumerate(regs): self(f'v_mov_b32 v{t+i}, v{r}')
            self('s_nop 1')
            for i, r in enumerate(regs): self(f'v_permlane{w}_swap_b32 v{r}, v{t+i}')
            for i, r in enumerate(regs): self(f'{op} v{r}, v{r}, v{t+i}')
    def div(self, q, n, d, r, t):
        self(f'v_rcp_f32 v{r}, v{d}\ns_nop 0\nv_mul_f32 v{t}, v{n}, v{r}\nv_fma_f32 v{q}, -v{t}, v{d}, v{n}\nv_fma_f32 v{q}, v{q}, v{r}, v{t}')
    def xid_publish(self):
        self('s_getreg_b32 s44, hwreg(HW_REG_XCC_ID)\ns_and_b32 s44, s44, 0xffff\ns_lshl_b32 s44, s44, 16\ns_or_b32 s44, s44, s6')
        self('v_mov_b32 v4, s44\nv_mov_b32 v5, s44\nv_mov_b32 v6, s44\nv_mov_b32 v7, s44\nv_mov_b32 v8, 0')
        self(f's_lshl_b32 s48, s4, 8\ns_add_u32 s48, s48, {XID}\ns_and_b32 s49, s5, 15\ns_lshl_b32 s49, s49, 17\ns_add_u32 s49, s49, s48\ns_lshr_b32 s42, s5, 4\ns_lshl_b32 s42, s42, 7\ns_add_u32 s49, s49, s42')
        self('s_mov_b64 exec, 1\nbuffer_store_dwordx4 v[4:7], v8, s[8:11], s49 offen sc1\ns_mov_b64 exec, -1')
        self('v_and_b32 v3, 15, v1\nv_lshlrev_b32 v3, 17, v3\nv_bfe_u32 v8, v1, 4, 1\nv_lshl_add_u32 v3, v8, 7, v3')
        if self.o.get('vd'): self(f's_lshl_b32 s49, s4, 7\ns_add_u32 s49, s49, {VD}')
    def xid_load(self, r, full=False):
        if self.o.get('vd') and not full: return f'buffer_load_dwordx4 v[{r}:{r+3}], off, s[8:11], s49 sc1'
        return f'buffer_load_dwordx4 v[{r}:{r+3}], v3, s[8:11], s48 offen sc1'
    def xid_mode(self, r, full=False):
        if self.o.get('vd') and not full:
            self(f's_or_b32 s44, s6, 0x400')
        for i in range(4): self(f'v_xor_b32 v{r+i}, s44, v{r+i}')
        self(f'v_or3_b32 v{r}, v{r}, v{r+1}, v{r+2}\nv_or_b32 v{r}, v{r}, v{r+3}\nv_cmp_ne_u32 vcc, 0, v{r}\ns_nop 1\ns_cmp_eq_u64 vcc, 0\ns_cselect_b32 s7, 1, 0')
        if self.o.get('force_slow'): self('s_mov_b32 s7, 0')
    def probe(self, rounds):
        if self.o.get('onecopy') or self.o.get('noprobe'):
            self(f's_mov_b32 s76, {COPY if self.o.get("noprobe") == 2 else 0}'); return
        self(f's_and_b32 s42, s5, 15\ns_lshl_b32 s42, s42, 17\ns_lshl_b32 s43, s4, 10\ns_add_u32 s42, s42, s43\ns_add_u32 s42, s42, {PROBE}\ns_add_u32 s78, s8, s42\ns_addc_u32 s79, s9, 0')
        same = self.o.get('psame')
        if same: self(f's_mov_b32 s76, -1\ns_mov_b32 s77, -1\ns_load_dword s42, s[78:79], 0 glc\ns_load_dword s43, s[78:79], {COPY} glc\ns_waitcnt lgkmcnt(0)')
        else: self('s_mov_b32 s76, -1\ns_mov_b32 s77, -1\ns_load_dword s42, s[78:79], 896 glc\ns_waitcnt lgkmcnt(0)')
        for k in range(rounds):
            for side in range(2):
                self(f's_memtime s[72:73]\ns_waitcnt lgkmcnt(0)\ns_load_dword s42, s[78:79], {(0 if same else 128*k) + COPY*side} glc\ns_waitcnt lgkmcnt(0)\ns_memtime s[74:75]\ns_waitcnt lgkmcnt(0)')
                self(f's_sub_u32 s74, s74, s72\ns_min_u32 s{76+side}, s{76+side}, s74')
        if self.prof: self('v_writelane_b32 v127, s76, 14\nv_writelane_b32 v127, s77, 15')
        self(f's_cmp_lt_u32 s77, s76\ns_cselect_b32 s76, {COPY}, 0')
    def prefetch_code(self, r):
        self(f's_getpc_b64 s[52:53]\nL_pc:')
        self(f's_sub_u32 s52, s52, L_pc-{NAME}\ns_subb_u32 s53, s53, 0')
        self(f'v_lshlrev_b32 v{r}, 7, v1')
        for k in range(2):
            self(f'v_add_u32 v{r+1+k}, {k*8192}, v{r}\nv_min_u32 v{r+1+k}, L_code_end-{NAME}-4, v{r+1+k}')
            self(f'global_load_dword v{r+3+k}, v{r+1+k}, s[52:53]')
    def perm_x2(self, src, dst):
        for jj in range(4):
            for d in range(4): self(f'v_perm_b32 v{dst+4*jj+d}, v{src+2*(2*d+1)+(jj>>1)}, v{src+2*(2*d)+(jj>>1)}, s{50+(jj&1)}')
    def perm_x1(self, src, dst):
        for jj in range(2):
            for d in range(4): self(f'v_perm_b32 v{dst+4*jj+d}, v{src+2*d+1}, v{src+2*d}, s{50+jj}')
    def tr_addr(self, base, dst, sh=13):
        self('v_bfe_u32 v18, v1, 1, 1\nv_and_b32 v28, 1, v1\nv_and_b32 v29, 1, v4\nv_lshl_add_u32 v29, v29, 2, v5\nv_lshlrev_b32 v29, 1, v29\nv_xor_b32 v29, v29, v18')
        self('v_lshlrev_b32 v29, 4, v29\nv_lshl_add_u32 v29, v28, 3, v29\nv_lshl_add_u32 v29, v5, 10, v29\n' + f'v_lshl_add_u32 v29, v4, {sh}, v29')
        self('s_lshl_b32 s42, s3, 7\nv_xor_b32 v29, s42, v29')
        if base: self(f'v_add_u32 v29, {base}, v29')
        for jj in range(4): self(f'v_xor_b32 v{dst+jj}, {32*jj}, v29')
    def mask_addr(self, frag, zero, dst):
        self(f'v_lshlrev_b32 v28, 4, v4\nv_add_u32 v28, {frag}, v28\nv_mov_b32 v29, {zero}')
        for jj in range(4): self(f'v_cmp_eq_u32 vcc, {jj}, v5\ns_nop 1\nv_cndmask_b32 v{dst+jj}, v29, v28, vcc')
    def modp_base(self, d, cb):
        self(f's_and_b32 s{d}, s{cb}, 15\ns_lshl_b32 s{d}, s{d}, 17\ns_bfe_u32 s42, s{cb}, 0x20004\ns_lshl_b32 s42, s42, 11\ns_add_u32 s{d}, s{d}, s42\ns_lshr_b32 s42, s{cb}, 6\ns_lshl_b32 s42, s42, 14\ns_add_u32 s{d}, s{d}, s42\ns_add_u32 s{d}, s{d}, {MODP}')
    def silu_frag(self, nvm):
        self('s_lshl_b32 s42, s3, 7\nv_add_u32 v13, s42, v7\nv_add_u32 v14, s42, v9')
        self(f's_waitcnt vmcnt({nvm})')
        self('v_lshlrev_b32 v8, 16, v8\nv_mul_f32 v15, s57, v8\nv_max_f32 v15, 0xc2fc0000, v15\nv_exp_f32 v15, -v15\ns_nop 0\nv_add_f32 v15, 1.0, v15')
        self.div(15, 8, 15, 16, 18)
        self.rbf(15, 15)
        self('ds_write_b16_d16_hi v13, v15\nds_read_b128 v[20:23], v14\nds_read_b128 v[24:27], v14 offset:64')
    def mod_loads(self, pol='FPOL'):
        for r in range(16):
            self(f'buffer_load_dword v{32+r}, v5, s[12:15], s41 offen {pol}')
            if r < 15: self(f's_add_u32 s41, s41, {6144 if r != 7 else 6144*25}')
    def mod_partial(self, two=False):
        self.perm_x1(32, 48); self.perm_x1(40, 56)
        self('s_waitcnt lgkmcnt(0)')
        for t in range(2):
            for jj in range(2):
                c = '0' if t == 0 else f'v[{32+4*jj}:{35+4*jj}]'
                self(f'v_mfma_f32_16x16x32_bf16 v[{32+4*jj}:{35+4*jj}], v[{20+4*t}:{23+4*t}], v[{48+8*t+4*jj}:{51+8*t+4*jj}], {c}')
        self('v_lshlrev_b32 v15, 4, v3\ns_lshl_b32 s42, s4, 8\ns_add_u32 s42, s42, s55\nv_mov_b32 v29, s45\nv_mov_b32 v31, s45\ns_mov_b64 exec, 0xffff\ns_nop 0')
        self('v_mov_b32 v28, v32\nv_mov_b32 v30, v36')
        if self.o.get('fprobe') or two: self.store2('buffer_store_dwordx4 v[28:31], v15, s[8:11], s{s} offen', 42, 43)
        else: self('buffer_store_dwordx4 v[28:31], v15, s[8:11], s42 offen sc1')
        self('s_mov_b64 exec, -1')
    def trigger(self, kind):
        if kind == 'os':
            self(f'v_lshlrev_b32 v9, 4, v1\ns_lshl_b32 s40, s4, 10\ns_add_u32 s40, s40, {OS}')
            self.poll(['buffer_load_dwordx4 v[32:35], v9, s[8:11], s40 offen sc1'], range(32, 36), 30, sleep=2)
        elif kind == 'h1':
            self(f'v_and_b32 v9, 7, v1\nv_lshlrev_b32 v9, 8, v9\ns_lshl_b32 s40, s58, 18\ns_add_u32 s40, s40, {MODP}')
            self.poll8(['buffer_load_dwordx2 v[32:33], v9, s[8:11], s40 offen sc1'], [33], 30, sleep=2)
        elif kind == 'qp':
            self(f'v_and_b32 v9, 7, v1\nv_lshlrev_b32 v9, 9, v9\ns_lshl_b32 s40, s4, 3\ns_add_u32 s40, s40, s58\ns_lshl_b32 s40, s40, 12\ns_add_u32 s40, s40, {QP}')
            self.poll8(['buffer_load_dwordx2 v[32:33], v9, s[8:11], s40 offen sc1'], [33], 30, sleep=2)
        elif kind == 'own':
            self(f'v_mov_b32 v9, 0\ns_lshl_b32 s40, s58, 18\ns_lshl_b32 s42, s4, 8\ns_add_u32 s40, s40, s42\ns_add_u32 s40, s40, {MODP}')
            self.poll8(['buffer_load_dwordx2 v[32:33], v9, s[8:11], s40 offen sc1'], [33], 30, sleep=2)
        elif kind == 'q':
            self(f'v_lshlrev_b32 v9, 4, v1\ns_lshl_b32 s40, s4, 11\ns_add_u32 s40, s40, {QV}')
            self.poll(['buffer_load_dwordx4 v[32:35], v9, s[8:11], s40 offen sc1', 'buffer_load_dwordx4 v[36:39], v9, s[8:11], s40 offen offset:1024 sc1'], range(32, 40), 30, sleep=2)
    def mark(self, name):
        if self.o.get('hold') == name: self('s_memrealtime s[96:97]\ns_waitcnt lgkmcnt(0)')
    def hold(self):
        if self.o.get('hold'): self('L_hold:\ns_memrealtime s[98:99]\ns_waitcnt lgkmcnt(0)\ns_sub_u32 s98, s98, s96\ns_cmp_lt_u32 s98, 2000\ns_cbranch_scc1 L_hold')
    def wo_row(self, r):
        if self.o.get('hc'):
            self(f'buffer_load_dwordx4 v{108+(r&1)}, s[20:23], s58 offen offset:{1024*r} OPOL lds' + ('\ns_add_u32 s58, s58, 7168' if r < 3 else ''))
        else: self(f'buffer_load_dwordx4 v{108+r}, s[20:23], s58 offen offset:{1024*r} OPOL lds')
    def combine(self, vs, vd, ss, sd, pre=None):
        D = [f'buffer_load_dwordx4 v[48:51], v{vd}, s[8:11], s{sd} offen sc1', f'buffer_load_dwordx4 v[52:55], v{vd}, s[8:11], s{sd} offen offset:1024 sc1']
        S = f'buffer_load_dwordx4 v[56:59], v{vs}, s[8:11], s{ss} offen sc1'
        if self.o.get('se'):
            l = self.label('P')
            self(f's_mov_b32 s47, 0\n{l}:\n{S}\n' + '\n'.join(D) + f'\ns_add_u32 s47, s47, 1\ns_cmp_gt_u32 s47, {LIMIT}\ns_cbranch_scc1 {l}_x\ns_waitcnt vmcnt(2)')
            for r in range(56, 60): self(f'v_xor_b32 v{r}, v2, v{r}')
            self(f'v_or3_b32 v30, v56, v57, v58\nv_or_b32 v30, v30, v59\nv_and_b32 v30, {TMASK}, v30\nv_cmp_ne_u32 vcc, 0, v30\ns_cbranch_vccnz {l}\n{l}_x:')
        else:
            self.poll([S], range(56, 60), 30, sleep=self.o.get('ssleep'))
            self('\n'.join(D))
        if pre: pre()
        self(f'v_max_f32_dpp v58, v56, v56 row_ror:8 {DPP}')
        for k in (4, 2, 1): self(f's_nop 1\nv_max_f32_dpp v58, v58, v58 row_ror:{k} {DPP}')
        self('v_sub_f32 v56, v56, v58\nv_mul_f32 v56, s57, v56\nv_exp_f32 v56, v56\ns_nop 0\nv_mul_f32 v57, v56, v57')
        for k in (8, 4, 2, 1): self(f's_nop 1\nv_add_f32_dpp v57, v57, v57 row_ror:{k} {DPP}')
        self('v_rcp_f32 v57, v57\ns_nop 0\nv_mul_f32 v56, v56, v57')
        self.poll(D, range(48, 56), 30, first_issued=True)
        self.stamp(3 if self.role == 'Ac' else 6)
        for r in range(48, 56, 2): self(f'v_pk_mul_f32 v[{r}:{r+1}], v[{r}:{r+1}], v[56:57] op_sel_hi:[1,0]')
        for k in (8, 4, 2, 1):
            for r in range(48, 56): self(f'v_add_f32_dpp v{r}, v{r}, v{r} row_ror:{k} {DPP}')
        for d in range(4): self(f'v_cvt_pk_bf16_f32 v{32+d}, v{48+2*d}, v{49+2*d}')
    def flush_tails(self):
        for t in self.tails: self(t)
        self.tails = []

def gen_all(prof=False, opts=None):
    a = G(prof, opts); a.tails = []
    a('s_cmp_ge_u32 s2, 256\ns_cbranch_scc1 L_exit')
    a.mark('entry')
    if a.o.get('hs') or a.o.get('amp'): a('s_memrealtime s[96:97]\ns_memrealtime s[94:95]')
    if prof: a('s_memrealtime s[96:97]')
    a.karg(8, 'ws')
    if not a.o.get('nokt'): a('s_load_dword s62, s[0:1], 0')
    a('s_and_b32 s4, s2, 7\ns_lshr_b32 s5, s2, 3\nv_lshrrev_b32 v2, 6, v0\nv_and_b32 v1, 63, v0')
    if a.o.get('ffirst'): a('s_add_u32 s7, s5, 16\ns_sub_u32 s42, s5, 8\ns_cmp_lt_u32 s5, 8\ns_cselect_b32 s42, s7, s42\ns_cmp_lt_u32 s5, 24\ns_cselect_b32 s5, s42, s5')
    a('s_mov_b32 s7, 0\nv_readfirstlane_b32 s3, v2')
    a.srd(8, 0x10000000)
    if prof: a('v_mov_b32 v127, 0')
    a('v_and_b32 v3, 15, v1\nv_lshrrev_b32 v4, 4, v1')
    a('s_cmp_lg_u32 s3, 8\ns_cbranch_scc1 L_work')
    if a.o.get('tlb0'):
        a('s_load_dwordx4 s[24:27], s[0:1], 24\ns_load_dwordx8 s[28:35], s[0:1], 48\ns_load_dwordx4 s[36:39], s[0:1], 80')
    if not a.o.get('nocpf'): a.prefetch_code(20)
    a('s_setprio 3')
    if a.o.get('tlb0'):
        a('s_lshl_b32 s42, s4, 19\nv_mov_b32 v26, 0\nv_mov_b32 v27, 0x200000\nv_mov_b32 v28, s42\ns_mov_b64 exec, 1\ns_waitcnt lgkmcnt(0)')
        for i, (p, v) in enumerate(((8, 26), (8, 27), (26, 28), (28, 26), (30, 26), (32, 26), (38, 26), (24, 26), (24, 27))):
            a(f'global_load_dword v{108+i}, v{v}, s[{p}:{p+1}]')
        a('s_mov_b64 exec, -1')
    if a.o.get('mh'): a('s_cmp_lt_u32 s5, 16\ns_cbranch_scc1 L_A_comm\ns_cmp_lt_u32 s5, 24\ns_cbranch_scc1 L_F_comm2')
    elif not a.o.get('p16'): a('s_cmp_ge_u32 s5, 24\ns_cbranch_scc1 L_M_comm')
    if not a.o.get('mh'): a('s_cmp_lt_u32 s5, 16\ns_cbranch_scc1 L_A_comm')
    a('s_branch L_F_comm')
    a('L_work:')
    a('s_cmp_lt_u32 s5, 16\ns_cbranch_scc1 L_Ai')
    FM_issue(a)
    F_early(a)
    a('s_branch L_F_j')
    a('L_Ai:')
    A_issue(a)
    a('s_branch L_A')
    if not a.o.get('p16'): M_early(a)
    for f in (F_body, F_comm, A_comm, A_body, M_body, M_comm):
        f(a); a.flush_tails()
    a('L_exit:\ns_endpgm\nL_code_end:')
    return a

def A_issue(a):
    a.role = 'A'
    a.karg(20, 'wq'); a.karg(12, 'k'); a.karg(16, 'v')
    a.srd(12, 0x2000000); a.srd(16, 0x2000000); a.srd(20, 0x400000)
    a('v_bfe_u32 v14, v1, 3, 1\nv_lshlrev_b32 v14, 13, v14\nv_and_b32 v6, 7, v1\nv_lshl_add_u32 v14, v6, 7, v14\nv_lshl_add_u32 v14, v4, 5, v14')
    a('s_lshr_b32 s44, s5, 1\ns_lshl_b32 s44, s44, 5\ns_and_b32 s41, s5, 1\ns_lshl_b32 s41, s41, 3\ns_add_u32 s44, s44, s41\ns_add_u32 s44, s44, s3\ns_lshl_b32 s44, s44, 14\ns_lshl_b32 s41, s4, 10\ns_add_u32 s44, s44, s41')
    a('v_lshlrev_b32 v5, 8, v4')
    for i in range(4): a(f'v_add_u32 v6, {4*i}, v4\nv_xor_b32 v6, v6, v3\nv_lshl_add_u32 v{8+i}, v6, 4, v5')
    for i in range(2): a(f'v_add_u32 v6, {4*i}, v4\nv_lshlrev_b32 v6, 1, v6\nv_xor_b32 v6, v6, v3\nv_lshl_add_u32 v{12+i}, v6, 4, v5')
    a(f's_lshl_b32 s40, s4, 22\ns_lshl_b32 s41, s5, 16\ns_add_u32 s40, s40, s41\ns_lshl_b32 s41, s3, 13\ns_add_u32 s40, s40, s41\ns_add_u32 s40, s40, {3<<20}\ns_add_u32 s43, s40, 4096\ns_mov_b32 m0, s41')
    a('s_waitcnt lgkmcnt(0)')
    a.stamp(0)
    a.get_tag()
    if a.o.get('kvt0'): a('s_mov_b64 exec, 1\nbuffer_load_dword v105, v8, s[12:15], s40 offen KPOL\nbuffer_load_dword v106, v8, s[16:19], s40 offen KPOL\nbuffer_load_dword v107, v14, s[20:23], s44 offen FPOL\ns_mov_b64 exec, -1')
    if a.o.get('a_tagw'): a.fin_tag()
    if a.o.get('a_tw'): a('s_waitcnt vmcnt(0)')
    if a.o.get('early'):
        a(f's_lshr_b32 s42, {a.o["early"]}, s3\ns_and_b32 s42, s42, 1\ns_cbranch_scc1 L_A_early')
    if not a.o.get('noapf'): a('buffer_load_dword v104, v14, s[20:23], s44 offen FPOL')
    if a.o.get('early_gu') or a.o.get('apf2'): a('s_add_u32 s44, s44, 262144\nbuffer_load_dword v120, v14, s[20:23], s44 offen FPOL')
    if a.o.get('kvt'): a('s_mov_b64 exec, 1\nbuffer_load_dword v105, v8, s[12:15], s40 offen KPOL\nbuffer_load_dword v106, v8, s[16:19], s40 offen KPOL\ns_mov_b64 exec, -1')
    if a.o.get('a_pfw'): a(f's_waitcnt vmcnt({2 if a.o.get("kvt") == 2 else 0})')
    for k in range(a.o.get('a_dly', 0)): a('s_mov_b64 exec, 1\nbuffer_load_dword v104, v14, s[20:23], s44 offen sc1\ns_mov_b64 exec, -1\ns_waitcnt vmcnt(0)')
    if a.o.get('early'):
        a('s_branch L_A_go\nL_A_early:\nbuffer_load_dword v104, v14, s[20:23], s44 offen FPOL\nL_A_go:')
    a.stamp(8)
    for kv in range(2):
        if kv == 1 and a.o.get('kv_bar'): a('s_barrier')
        for i in range(8):
            if i == 4 or (kv == 1 and i == 0): a(f's_add_u32 m0, s41, {LV*kv + 4096*(i>>2)}\ns_nop 0')
            vo = 8 + (i & 3) if kv == 0 else 12 + (i & 1)
            a(f'buffer_load_dwordx4 v{vo}, s[{12+4*kv}:{15+4*kv}], s{40 if i < 4 else 43} offen offset:{1024*(i&3)} {"KPOL" if kv == 0 else ("VPOL" if i < 4 else "WPOL")} lds')

def A_body(a):
    a.role = 'A'
    a('L_A:')
    a.stamp(10)
    a('v_xor_b32 v6, v4, v3\nv_lshlrev_b32 v6, 4, v6\nv_lshl_add_u32 v6, v3, 8, v6\nv_add_u32 v6, s41, v6')
    for jj in range(4): a(f'v_xor_b32 v{8+jj}, {64*jj}, v6')
    a(f'v_and_b32 v7, 3, v1\nv_mul_u32_u24 v12, 272, v7\nv_lshl_add_u32 v12, v4, 4, v12\nv_add_u32 v12, {LQ}, v12')
    a(f'v_lshlrev_b32 v13, 5, v7\nv_add_u32 v13, {LMX}, v13\ns_lshl_b32 s42, s3, 2\nv_add_u32 v14, s42, v13')
    a(f'v_lshlrev_b32 v16, 6, v4\nv_add_u32 v16, {LP}, v16\nv_lshl_add_u32 v15, v3, 4, v16\ns_lshl_b32 s42, s3, 8\nv_add_u32 v15, s42, v15')
    a('v_lshrrev_b32 v5, 2, v3\nv_lshl_add_u32 v16, v5, 4, v16')
    a('v_lshrrev_b32 v6, 2, v1\nv_and_b32 v17, 7, v6\nv_lshlrev_b32 v17, 1, v17\nv_bfe_u32 v18, v1, 1, 1\ns_lshl_b32 s42, s3, 1\nv_add_u32 v21, s42, v18\nv_xor_b32 v17, v17, v21')
    a(f'v_lshlrev_b32 v17, 4, v17\nv_lshl_add_u32 v17, v6, 8, v17\nv_and_b32 v21, 1, v1\nv_lshl_add_u32 v17, v21, 3, v17\nv_add_u32 v17, {LV}, v17')
    hc = a.o.get('hc')
    if hc:
        a('v_bfe_u32 v18, v1, 1, 1\nv_bfe_u32 v28, v1, 3, 1\nv_and_b32 v29, 1, v4\nv_lshl_add_u32 v28, v29, 1, v28\nv_lshlrev_b32 v28, 1, v28\nv_xor_b32 v28, v28, v18\nv_lshlrev_b32 v28, 4, v28')
        a('v_and_b32 v29, 1, v1\nv_lshl_add_u32 v28, v29, 3, v28\nv_lshl_add_u32 v28, v5, 7, v28\nv_lshl_add_u32 v28, v4, 10, v28\nv_add_u32 v28, s41, v28')
        for jj in range(4): a(f'v_xor_b32 v{96+jj}, {32*jj}, v28')
        a(f'v_lshlrev_b32 v100, 4, v1\nv_lshlrev_b32 v101, 4, v3\nv_lshlrev_b32 v102, 2, v3\ns_lshl_b32 s42, s3, 8\ns_add_u32 s42, s42, {LRED}\nv_add_u32 v102, s42, v102')
        a(f's_and_b32 s42, s5, 1\ns_lshl_b32 s42, s42, 3\ns_add_u32 s42, s42, s3\ns_lshl_b32 s48, s4, 4\ns_add_u32 s48, s48, s42\ns_lshl_b32 s48, s48, 11\ns_add_u32 s48, s48, {OP}')
        a(f's_lshr_b32 s42, s42, 2\ns_lshl_b32 s49, s4, 2\ns_add_u32 s49, s49, s42\ns_lshl_b32 s49, s49, 8\ns_add_u32 s49, s49, {OS}')
    else:
        a.tr_addr(LK, 96, 14 if a.o.get('cwo') is not None else 13); a.mask_addr(LOF, LZ, 100)
    a('s_and_b32 s42, s3, 1\ns_lshl_b32 s42, s42, 9\nv_bfe_u32 v6, v3, 2, 1\nv_lshlrev_b32 v19, 10, v6\nv_lshrrev_b32 v6, 3, v3\nv_lshl_add_u32 v19, v6, 8, v19')
    a('v_lshl_add_u32 v19, v7, 2, v19\nv_lshl_add_u32 v19, v4, 13, v19\nv_add_u32 v19, s42, v19')
    a(f's_lshl_b32 s54, s4, 4\ns_lshr_b32 s42, s3, 1\ns_add_u32 s54, s54, s42\ns_lshl_b32 s54, s54, 11\ns_lshl_b32 s42, s5, 4\ns_add_u32 s54, s54, s42\ns_add_u32 s54, s54, {OP}')
    a('v_lshrrev_b32 v6, 5, v1\nv_and_b32 v20, 31, v1\nv_lshlrev_b32 v20, 2, v20\nv_lshl_add_u32 v20, v6, 11, v20')
    a(f's_lshl_b32 s55, s4, 3\ns_add_u32 s55, s55, s3\ns_lshl_b32 s55, s55, 12\ns_lshl_b32 s42, s5, 7\ns_add_u32 s55, s55, s42\ns_add_u32 s55, s55, {AP}')
    a(f'v_mov_b32 v22, {LMODE_A}\nv_lshlrev_b32 v21, 5, v4\nv_add_u32 v21, {LMX}, v21')
    if a.o.get('cwo') is not None:
        a.karg(20, 'wo')
    if hc:
        a('v_and_b32 v6, 7, v1\nv_bfe_u32 v28, v1, 4, 1\nv_lshlrev_b32 v28, 1, v28\nv_xor_b32 v6, v6, v28\nv_lshlrev_b32 v6, 4, v6\nv_lshrrev_b32 v28, 3, v1\nv_lshl_add_u32 v108, v28, 10, v6\nv_xor_b32 v109, 64, v108')
        a('s_lshl_b32 s58, s4, 1\ns_and_b32 s42, s5, 1\ns_add_u32 s58, s58, s42\ns_lshl_b32 s58, s58, 3\ns_add_u32 s58, s58, s3\ns_lshl_b32 s58, s58, 15\ns_lshr_b32 s42, s5, 1\ns_lshl_b32 s42, s42, 7\ns_add_u32 s58, s58, s42\ns_mov_b32 s59, s41\ns_waitcnt lgkmcnt(0)')
    elif a.o.get('cwo') is not None:
        a('s_and_b32 s42, s3, 2\ns_lshl_b32 s42, s42, 2\nv_xor_b32 v6, s42, v1')
        for r in range(4): a(f'v_xor_b32 v{108+r}, {2*r}, v6\nv_lshlrev_b32 v{108+r}, 4, v{108+r}')
        a('s_lshl_b32 s58, s4, 19\ns_lshl_b32 s42, s5, 15\ns_add_u32 s58, s58, s42\ns_lshl_b32 s59, s3, 12\ns_add_u32 s58, s58, s59\ns_lshl_b32 s59, s3, 13\ns_waitcnt lgkmcnt(0)')
    a(f'v_lshlrev_b32 v110, 7, v7\nv_lshl_add_u32 v110, v4, 2, v110\ns_lshl_b32 s42, s3, 4\ns_add_u32 s42, s42, {LLS}\nv_add_u32 v110, s42, v110')
    a(f's_mov_b32 s56, {SCALE:#x}\ns_mov_b32 s57, {LOG2E:#x}')
    if not a.o.get('a_tagw'): a.fin_tag()
    if a.o.get('sq'):
        a(f's_lshl_b32 s62, s4, 11\ns_lshl_b32 s63, s3, 8\ns_add_u32 s62, s62, s63\ns_add_u32 s62, s62, {QV}\ns_add_u32 s62, s8, s62\ns_addc_u32 s63, s9, 0')
        a(f's_lshr_b32 s42, s3, 1\ns_mul_i32 s42, s42, 272\ns_and_b32 s43, s3, 1\ns_lshl_b32 s43, s43, 7\ns_add_u32 s42, s42, s43\ns_add_u32 s42, s42, {LQ}\nv_lshlrev_b32 v105, 1, v1\nv_add_u32 v105, s42, v105')
        QR = (24, 64, 80)
        a('s_barrier\ns_barrier')
        LD = lambda g: '\n'.join([f's_load_dwordx16 s[{r}:{r+15}], s[62:63], {64*i}{g}' for i, r in enumerate(QR)] + [f's_load_dwordx8 s[12:19], s[62:63], 192{g}', f's_load_dwordx4 s[40:43], s[62:63], 224{g}', f's_load_dwordx2 s[52:53], s[62:63], 240{g}', f's_load_dwordx2 s[50:51], s[62:63], 248{g}'])
        REGS = [r + k for r in QR for k in range(16)] + list(range(12, 20)) + [40, 41, 42, 43, 52, 53, 50, 51]
        a(LD(''))
        a('s_mov_b32 s47, 0\nL_q:\ns_waitcnt lgkmcnt(0)')
        for i, r in enumerate(REGS): a(f'v_writelane_b32 v106, s{r}, {i}')
        a(f'v_xor_b32 v106, v2, v106\nv_and_b32 v107, {TMASK}, v106\nv_cmp_ne_u32 vcc, 0, v107\ns_cbranch_vccnz L_q_retry\nL_q_ok:')
        a.tails.append(f'L_q_retry:\ns_add_u32 s47, s47, 1\ns_cmp_gt_u32 s47, {LIMIT}\ns_cbranch_scc1 L_q_ok\n' + LD(' glc') + '\ns_branch L_q')
        a('ds_write_b16_d16_hi v105, v106')
        a.stamp(11)
    a('s_waitcnt vmcnt(8)')
    a.stamp(1)
    for t in range(2):
        for jj in range(4): a(f'ds_read_b128 v[{32+16*t+4*jj}:{35+16*t+4*jj}], v{8+jj} offset:{4096*t}')
    if a.o.get('vstamp'): a('s_waitcnt vmcnt(0)'); a.stamp(9)
    ne = a.o.get('wo_early', 0)
    a('s_waitcnt lgkmcnt(0)')
    if ne:
        a('s_mov_b32 m0, s59\ns_nop 0')
        for r in range(ne): a.wo_row(r)
    ve = a.o.get('ve')
    if ve: a(f's_waitcnt vmcnt({ne})'); a.stamp(4)
    a('s_barrier')
    a.stamp(2)
    def wo_dma(pos):
        if a.o.get('cwo') == pos:
            a('s_mov_b32 m0, s59\ns_nop 0')
            for r in range(ne, 4): a.wo_row(r)
    for jj in range(4): a(f'ds_read_b128 v[{64+4*jj}:{67+4*jj}], v12 offset:{64*jj}')
    wo_dma(0)
    for jj in range(4):
        a(f's_waitcnt lgkmcnt({3-jj})')
        for t in range(2):
            c = '0' if jj == 0 else f'v[{24+4*t}:{27+4*t}]'
            a(f'v_mfma_f32_16x16x32_bf16 v[{24+4*t}:{27+4*t}], v[{32+16*t+4*jj}:{35+16*t+4*jj}], v[{64+4*jj}:{67+4*jj}], {c}')
    wo_dma(1)
    if ve:
        for kk in range(8):
            a(f'ds_read_b64_tr_b16 v[{64+4*kk}:{65+4*kk}], v17 offset:{8192*kk}\nds_read_b64_tr_b16 v[{66+4*kk}:{67+4*kk}], v17 offset:{8192*kk+4096}')
    else: a('s_nop 6' if a.o.get('cwo') != 1 else 's_nop 0')
    for i in range(8): a.rbf(24 + i, 24 + i)
    for i in range(0, 8, 2): a(f'v_pk_mul_f32 v[{24+i}:{25+i}], v[{24+i}:{25+i}], s[56:57] op_sel_hi:[1,0]')
    for i in range(8): a.rbf(24 + i, 24 + i)
    a('v_max3_f32 v32, v24, v25, v26\nv_max3_f32 v33, v27, v28, v29\nv_max3_f32 v32, v32, v30, v31\nv_max_f32 v32, v32, v33')
    a.swap_op(16, 'v_max_f32', 32, 33); a.swap_op(32, 'v_max_f32', 32, 33)
    wmax = a.o.get('wmax')
    if not wmax:
        a('s_mov_b64 exec, 0xf\nds_write_b32 v14, v32\ns_mov_b64 exec, -1\ns_waitcnt lgkmcnt(0)\ns_barrier')
        a('ds_read_b128 v[32:35], v13\nds_read_b128 v[36:39], v13 offset:16\ns_waitcnt lgkmcnt(0)')
        a('v_max3_f32 v32, v32, v33, v34\nv_max3_f32 v36, v36, v37, v38\nv_max3_f32 v32, v32, v35, v39\nv_max_f32 v32, v32, v36')
    for i in range(0, 8, 2): a(f'v_pk_add_f32 v[{24+i}:{25+i}], v[{24+i}:{25+i}], v[32:33] op_sel_hi:[1,0] neg_lo:[0,1] neg_hi:[0,1]')
    for i in range(0, 8, 2): a(f'v_pk_mul_f32 v[{24+i}:{25+i}], v[{24+i}:{25+i}], s[56:57] op_sel:[0,1] op_sel_hi:[1,1]')
    for i in range(8): a(f'v_exp_f32 v{24+i}, v{24+i}')
    a('s_nop 0')
    for d in range(4): a(f'v_cvt_pk_bf16_f32 v{36+d}, v{24+2*d}, v{25+2*d}')
    a('s_mov_b32 exec_lo, 0x000f000f\ns_mov_b32 exec_hi, 0x000f000f\nds_write_b128 v15, v[36:39]')
    if wmax: a('ds_write_b32 v14, v32')
    a('v_pk_add_f32 v[24:25], v[24:25], v[26:27]\nv_pk_add_f32 v[28:29], v[28:29], v[30:31]\nv_pk_add_f32 v[24:25], v[24:25], v[28:29]\nv_add_f32 v24, v24, v25')
    a('ds_write_b32 v110, v24\ns_mov_b64 exec, -1')
    wo_dma(2)
    a.stamp(3)
    if ve:
        a('s_waitcnt lgkmcnt(0)\ns_barrier')
        if wmax: a('ds_read_b128 v[112:115], v21\nds_read_b128 v[116:119], v21 offset:16')
        a('ds_read_b32 v23, v22')
        for kk in range(8): a(f'ds_read_b128 v[{32+4*kk}:{35+4*kk}], v16 offset:{256*kk}')
        if wmax:
            a('s_waitcnt lgkmcnt(8)\nv_max3_f32 v120, v112, v113, v114\nv_max3_f32 v121, v115, v116, v117\nv_max3_f32 v120, v120, v118, v119\nv_max_f32 v120, v120, v121')
            for i in range(0, 8, 2): a(f'v_pk_add_f32 v[{112+i}:{113+i}], v[{112+i}:{113+i}], v[120:121] op_sel_hi:[1,0] neg_lo:[0,1] neg_hi:[0,1]')
            for i in range(0, 8, 2): a(f'v_pk_mul_f32 v[{112+i}:{113+i}], v[{112+i}:{113+i}], s[56:57] op_sel:[0,1] op_sel_hi:[1,1]')
        for kk in range(8):
            a(f's_waitcnt lgkmcnt({7-kk})')
            if kk == 1: a('v_readfirstlane_b32 s7, v23')
            if wmax: a(f'v_mfma_f32_16x16x32_bf16 v[{32+4*kk}:{35+4*kk}], v[{32+4*kk}:{35+4*kk}], v[{64+4*kk}:{67+4*kk}], 0\nv_exp_f32 v{112+kk}, v{112+kk}')
            else: a(f'v_mfma_f32_16x16x32_bf16 v[{24+4*(kk&1)}:{27+4*(kk&1)}], v[{32+4*kk}:{35+4*kk}], v[{64+4*kk}:{67+4*kk}], {"0" if kk < 2 else f"v[{24+4*(kk&1)}:{27+4*(kk&1)}]"}')
        if wmax:
            a('v_mul_f32 v24, v112, v32\nv_mul_f32 v25, v113, v36')
            for kk in range(2, 8):
                if kk == 6: a('s_nop 0')
                if kk == 7: a('s_nop 0')
                a(f'v_fmac_f32 v{24+(kk&1)}, v{112+kk}, v{32+4*kk}')
            a('v_add_f32 v24, v24, v25')
        else: a('s_nop 7\nv_add_f32 v24, v24, v28')
    elif a.o.get('sq') or a.o.get('split'):
        a('s_waitcnt lgkmcnt(0)\ns_barrier')
        for kk in range(8): a(f'ds_read_b128 v[{32+4*kk}:{35+4*kk}], v16 offset:{256*kk}')
        a(f's_waitcnt vmcnt({4 if a.o.get("cwo") is not None else 0}) lgkmcnt(0)')
        a.stamp(4)
        a('s_barrier')
        a('ds_read_b32 v23, v22')
        for kk in range(8):
            a(f'ds_read_b64_tr_b16 v[{64+4*kk}:{65+4*kk}], v17 offset:{8192*kk}\nds_read_b64_tr_b16 v[{66+4*kk}:{67+4*kk}], v17 offset:{8192*kk+4096}')
        for kk in range(8):
            a(f's_waitcnt lgkmcnt({2*(7-kk)})')
            if kk == 1: a('v_readfirstlane_b32 s7, v23')
            a(f'v_mfma_f32_16x16x32_bf16 v[24:27], v[{32+4*kk}:{35+4*kk}], v[{64+4*kk}:{67+4*kk}], {"0" if kk == 0 else "v[24:27]"}')
        a('s_nop 7')
    else: PV_old(a, wmax)
    a('v_and_or_b32 v28, v24, s46, v2')
    a.store_mode('buffer_store_dword v28, v19, s[8:11], s54 offen')
    A_tail(a)

def PV_old(a, wmax):
    a('s_waitcnt vmcnt(0) lgkmcnt(0)')
    a.stamp(4)
    a('s_barrier')
    if wmax: a('ds_read_b128 v[108:111], v21\nds_read_b128 v[112:115], v21 offset:16')
    a('ds_read_b32 v23, v22')
    order = []
    for kk in range(8):
        a(f'ds_read_b128 v[{32+4*kk}:{35+4*kk}], v16 offset:{256*kk}')
        a(f'ds_read_b64_tr_b16 v[{64+4*kk}:{65+4*kk}], v17 offset:{8192*kk}')
        a(f'ds_read_b64_tr_b16 v[{66+4*kk}:{67+4*kk}], v17 offset:{8192*kk+4096}')
        if kk == 4:
            a('s_waitcnt lgkmcnt(15)\nv_readfirstlane_b32 s7, v23')
            if wmax:
                a('v_max3_f32 v116, v108, v109, v110\nv_max3_f32 v117, v111, v112, v113\nv_max3_f32 v116, v116, v114, v115\nv_max_f32 v116, v116, v117')
                for i in range(8): a(f'v_sub_f32 v{108+i}, v{108+i}, v116')
                for i in range(8): a(f'v_mul_f32 v{108+i}, s57, v{108+i}')
                for i in range(8): a(f'v_exp_f32 v{108+i}, v{108+i}')
    for kk in range(8):
        a(f's_waitcnt lgkmcnt({min(15, 3*(7-kk))})')
        if wmax: a(f'v_mfma_f32_16x16x32_bf16 v[{32+4*kk}:{35+4*kk}], v[{32+4*kk}:{35+4*kk}], v[{64+4*kk}:{67+4*kk}], 0')
        else: a(f'v_mfma_f32_16x16x32_bf16 v[24:27], v[{32+4*kk}:{35+4*kk}], v[{64+4*kk}:{67+4*kk}], {"0" if kk == 0 else "v[24:27]"}')
    if wmax:
        a('v_mul_f32 v24, v108, v32\nv_mul_f32 v25, v109, v36')
        for kk in range(2, 8):
            if kk >= 5: a('s_nop 1')
            a(f'v_fmac_f32 v{24+(kk&1)}, v{108+kk}, v{32+4*kk}')
        a('v_add_f32 v24, v24, v25')
    else: a('s_nop 7')

def A_tail(a):
    a.stamp(5)
    if a.o.get('hc'):
        def pre():
            for jj in range(4): a(f'ds_read_b64_tr_b16 v[{64+4*jj}:{65+4*jj}], v{96+jj}\nds_read_b64_tr_b16 v[{66+4*jj}:{67+4*jj}], v{96+jj} offset:512')
        a.combine(101, 100, 49, 48, pre)
        a('s_waitcnt lgkmcnt(0)\ns_nop 0')
        for jj in range(4): a(f'v_mfma_f32_16x16x32_bf16 v[{36+4*jj}:{39+4*jj}], v[32:35], v[{64+4*jj}:{67+4*jj}], 0')
        a('s_mov_b64 exec, 0xffff\ns_nop 4\nds_write2_b32 v102, v36, v40 offset1:16\ns_nop 0\nds_write2_b32 v102, v44, v48 offset0:32 offset1:48\ns_waitcnt lgkmcnt(0)')
        a.stamp(7)
        a('s_barrier')
        a.exit()
        return
    if a.o.get('cwo') is not None: a('s_waitcnt vmcnt(1)')
    cwo = a.o.get('cwo') is not None
    if not cwo:
        a('s_barrier')
        for jj in range(4):
            a(f'ds_read_b64_tr_b16 v[{64+4*jj}:{65+4*jj}], v{96+jj}\nds_read_b64_tr_b16 v[{66+4*jj}:{67+4*jj}], v{96+jj} offset:4096')
    a.stamp(6)
    a('s_barrier')
    for jj in range(4):
        a(f'ds_read_b128 v[{32+4*jj}:{35+4*jj}], v{100+jj}')
        if cwo: a(f'ds_read_b64_tr_b16 v[{64+4*jj}:{65+4*jj}], v{96+jj}\nds_read_b64_tr_b16 v[{66+4*jj}:{67+4*jj}], v{96+jj} offset:8192')
    for jj in range(4):
        a(f's_waitcnt lgkmcnt({(3-jj)*(3 if cwo else 1)})')
        a(f'v_mfma_f32_16x16x32_bf16 v[24:27], v[{32+4*jj}:{35+4*jj}], v[{64+4*jj}:{67+4*jj}], {"0" if jj == 0 else "v[24:27]"}')
    a('s_nop 7')
    a('v_and_or_b32 v28, v24, s46, v2')
    a.store_mode('buffer_store_dword v28, v20, s[8:11], s55 offen')
    a.stamp(7)
    a.exit()

def A_comm(a):
    a.role = 'Ac'
    a('L_A_comm:')
    a.karg(20, 'wo'); a.srd(20, 0x400000)
    a('s_waitcnt lgkmcnt(0)')
    a.stamp(0)
    a.get_tag()
    a(f'v_mov_b32 v4, 0\nv_mov_b32 v5, 0\nv_mov_b32 v6, 0\nv_mov_b32 v7, 0\nv_mov_b32 v8, {LZ}\nds_write_b128 v8, v[4:7]')
    for k in range(8): a(f'v_xor_b32 v{64+k}, {2*k}, v1\nv_lshlrev_b32 v{64+k}, 4, v{64+k}')
    a.fin_tag()
    a.xid_publish()
    if a.o.get('kv_bar'): a('s_barrier')
    if a.o.get('wot'): a('s_lshl_b32 s42, s4, 19\ns_mov_b64 exec, 1\nbuffer_load_dword v108, v1, s[20:23], s42 offen nt\ns_mov_b64 exec, -1')
    a(f'v_lshlrev_b32 v9, 4, v1\ns_lshl_b32 s40, s4, 11\ns_add_u32 s62, s40, {QV}')
    a(f'v_lshrrev_b32 v10, 5, v1\nv_mul_u32_u24 v10, 272, v10\nv_and_b32 v11, 31, v1\nv_lshl_add_u32 v10, v11, 3, v10\nv_add_u32 v10, {LQ}, v10\nv_mov_b32 v12, {LMODE_A}')
    a('s_lshl_b32 s56, s4, 19\ns_lshl_b32 s42, s5, 15\ns_add_u32 s56, s56, s42')
    a(f'v_and_b32 v14, 3, v1\nv_lshlrev_b32 v13, 5, v14\nv_add_u32 v13, {LMX}, v13\nv_lshlrev_b32 v14, 8, v14')
    a(f's_lshl_b32 s41, s4, 10\ns_lshl_b32 s42, s5, 4\ns_add_u32 s63, s41, s42\ns_add_u32 s63, s63, {OS}')
    a(f's_lshr_b32 s42, s5, 2\ns_lshl_b32 s42, s42, 8\ns_add_u32 s41, s41, s42\ns_add_u32 s41, s41, {OS}')
    a(f's_lshl_b32 s40, s4, 4\ns_add_u32 s40, s40, s5\ns_lshl_b32 s40, s40, 11\ns_add_u32 s54, s40, {AP}\ns_add_u32 s40, s40, {OP}')
    a(f'v_and_b32 v15, 15, v1\nv_lshlrev_b32 v15, 4, v15\nv_lshrrev_b32 v16, 4, v1\nv_lshlrev_b32 v16, 4, v16\nv_add_u32 v16, {LOF}, v16\nv_lshlrev_b32 v17, 2, v1')
    a(f's_lshl_b32 s42, s4, 3\ns_lshr_b32 s55, s5, 1\ns_add_u32 s42, s42, s55\ns_and_b32 s55, s42, 15\ns_lshl_b32 s55, s55, 17\ns_lshr_b32 s42, s42, 4\ns_lshl_b32 s42, s42, 8\ns_add_u32 s55, s55, s42')
    a(f's_and_b32 s42, s5, 1\ns_lshl_b32 s42, s42, 7\ns_add_u32 s55, s55, s42\ns_add_u32 s55, s55, {AX}\ns_mov_b32 s57, {LOG2E:#x}')
    if a.o.get('hc'):
        a(f's_and_b32 s55, s5, 1\ns_lshl_b32 s55, s55, 3\ns_lshr_b32 s42, s5, 1\ns_add_u32 s55, s55, s42\ns_lshl_b32 s55, s55, 17\ns_lshl_b32 s42, s4, 8\ns_add_u32 s55, s55, s42\ns_add_u32 s55, s55, {AX}\nv_add_u32 v19, {LRED}, v17')
    if a.o.get('pt_o'): a('v_lshlrev_b32 v22, 5, v1\nbuffer_load_dword v108, v22, s[8:11], s40 offen sc1\nbuffer_load_dword v109, v15, s[8:11], s41 offen sc1')
    if a.o.get('pw_a'):
        a('v_xor_b32 v22, 1, v2'); a.store2('buffer_store_dword v22, v17, s[8:11], s{s} offen', 55, 42)
    if a.o.get('sq'):
        a('s_waitcnt lgkmcnt(0)\ns_barrier')
        a(a.xid_load(40))
        a(f's_lshl_b32 s58, s4, 12\ns_add_u32 s58, s58, {QF}\ns_add_u32 s58, s8, s58\ns_addc_u32 s59, s9, 0\ns_mov_b32 s47, 0')
        a('L_qd:\ns_load_dwordx8 s[64:71], s[58:59], s47\ns_add_u32 s47, s47, 64\ns_waitcnt lgkmcnt(0)')
        a('s_xor_b32 s64, s64, s45')
        for k in range(65, 72): a(f's_xor_b32 s{k}, s{k}, s45\ns_or_b32 s64, s64, s{k}')
        a(f's_cbranch_scc0 L_qe\ns_sleep {a.o.get("qsleep", 3)}\ns_cmp_lt_u32 s47, 4096\ns_cbranch_scc1 L_qd')
        a.poll(['buffer_load_dwordx4 v[32:35], v9, s[8:11], s62 offen sc1', 'buffer_load_dwordx4 v[36:39], v9, s[8:11], s62 offen offset:1024 sc1'], range(32, 40), 30)
        a('L_qe:')
        a.stamp(1)
        a('s_barrier\ns_barrier')
    else:
        Q = lambda r: [f'buffer_load_dwordx4 v[{r}:{r+3}], v9, s[8:11], s62 offen sc1', f'buffer_load_dwordx4 v[{r+4}:{r+7}], v9, s[8:11], s62 offen offset:1024 sc1']
        if not a.o.get('q1'):
            a('v_and_b32 v18, 7, v1\nv_lshlrev_b32 v18, 4, v18\ns_mov_b64 exec, 0xff')
            a.poll(['buffer_load_dwordx4 v[32:35], v18, s[8:11], s62 offen sc1'], range(32, 36), 30)
            a('s_mov_b64 exec, -1')
        if a.o.get('q1') == 2:
            def chk(r):
                for k in range(r, r+8): a(f'v_xor_b32 v{k}, v2, v{k}')
                a(f'v_or3_b32 v30, v{r}, v{r+1}, v{r+2}\nv_or3_b32 v30, v30, v{r+3}, v{r+4}\nv_or3_b32 v30, v30, v{r+5}, v{r+6}\nv_or_b32 v30, v30, v{r+7}\nv_and_b32 v30, {TMASK}, v30\nv_cmp_ne_u32 vcc, 0, v30')
            a('\n'.join(Q(48)) + f'\ns_sleep {a.o.get("qgap", 16)}\ns_mov_b32 s47, 0\nL_q2:\n' + '\n'.join(Q(32)) + '\ns_waitcnt vmcnt(2)')
            chk(48)
            a('s_cbranch_vccz L_q2b\n' + '\n'.join(Q(48)) + '\ns_waitcnt vmcnt(2)')
            chk(32)
            a(f's_cbranch_vccz L_q2a\ns_add_u32 s47, s47, 1\ns_cmp_lt_u32 s47, {LIMIT}\ns_cbranch_scc1 L_q2\ns_branch L_q2a')
            a('L_q2b:')
            for k in range(8): a(f'v_mov_b32 v{80+k}, v{48+k}')
            a('s_branch L_q2c\nL_q2a:')
            for k in range(8): a(f'v_mov_b32 v{80+k}, v{32+k}')
            a('L_q2c:')
        else: a.poll(Q(32), range(32, 40), 30)
        a.stamp(1)
        for i in range(2):
            qb = 80 if a.o.get('q1') == 2 else 32
            a(f'v_perm_b32 v{44+2*i}, v{qb+1+4*i}, v{qb+4*i}, s51\nv_perm_b32 v{45+2*i}, v{qb+3+4*i}, v{qb+2+4*i}, s51')
            a(f'ds_write_b64 v10, v[{44+2*i}:{45+2*i}] offset:{544*i}')
        if a.o.get('qmode'): a('v_bfe_u32 v18, v32, 10, 1\nds_write_b32 v12, v18\nv_readfirstlane_b32 s7, v18')
        elif a.o.get('cwo') is not None: a(a.xid_load(40))
        a('s_waitcnt lgkmcnt(0)\ns_barrier')
    if a.o.get('sq'): A_comm_sq2(a); return
    if a.o.get('split'): A_comm_split(a); return
    a(a.xid_load(40))
    for b in range(8):
        a(f's_mov_b32 m0, {LK + 4096*b}' + ('\ns_add_u32 s56, s56, 4096' if b else '\ns_nop 0'))
        for r in range(4): a(f'buffer_load_dwordx4 v{64 + r + 4*((b>>1)&1)}, s[20:23], s56 offen offset:{1024*r} OPOL lds')
    a('s_waitcnt vmcnt(32)')
    a.xid_mode(40)
    a('v_mov_b32 v18, s7\nds_write_b32 v12, v18\ns_waitcnt lgkmcnt(0)')
    if not a.o.get('wmax') and not a.o.get('sq'): a('s_barrier')
    if not a.o.get('sq'): a('s_barrier')
    a(f'ds_read_b128 v[32:35], v13\nds_read_b128 v[36:39], v13 offset:16\nds_read_b128 v[40:43], v13 offset:{LLS-LMX}\nds_read_b128 v[44:47], v13 offset:{LLS-LMX+16}\ns_waitcnt lgkmcnt(2)')
    a('v_max3_f32 v48, v32, v33, v34\nv_max3_f32 v49, v36, v37, v38\nv_max3_f32 v48, v48, v35, v39\nv_max_f32 v48, v48, v49')
    if a.o.get('wmax'):
        for i in range(8): a(f'v_sub_f32 v{32+i}, v{32+i}, v48')
        for i in range(8): a(f'v_mul_f32 v{32+i}, s57, v{32+i}')
        for i in range(8): a(f'v_exp_f32 v{32+i}, v{32+i}')
        a('s_waitcnt lgkmcnt(0)')
        for i in range(8): a(f'v_mul_f32 v{40+i}, v{32+i}, v{40+i}')
    a('s_waitcnt lgkmcnt(0)')
    a.tree_add(range(40, 48))
    a('v_or_b32 v32, v2, v48\nv_and_or_b32 v33, v40, s46, v2\nv_mov_b32 v34, v32\nv_mov_b32 v35, v33\ns_mov_b64 exec, 0xf')
    a.store_mode('buffer_store_dwordx4 v[32:35], v14, s[8:11], s63 offen')
    a('s_mov_b64 exec, -1')
    a('s_waitcnt vmcnt(1)')
    A_comm_tail(a)

def A_comm_sq(a):
    for b in range(8):
        a(f's_mov_b32 m0, {LK + 4096*b}' + ('\ns_add_u32 s56, s56, 4096' if b else '\ns_nop 0'))
        for r in range(4): a(f'buffer_load_dwordx4 v{64 + r + 4*((b>>1)&1)}, s[20:23], s56 offen offset:{1024*r} OPOL lds')
        if b == 0: a('s_barrier')
        if b == a.o.get('wo_b2', 1): a('s_barrier')
    a('s_barrier')
    a(f'ds_read_b128 v[32:35], v13\nds_read_b128 v[36:39], v13 offset:16\nds_read_b128 v[40:43], v13 offset:{LLS-LMX}\nds_read_b128 v[44:47], v13 offset:{LLS-LMX+16}\ns_waitcnt lgkmcnt(0)')
    a('v_max3_f32 v48, v32, v33, v34\nv_max3_f32 v49, v36, v37, v38\nv_max3_f32 v48, v48, v35, v39\nv_max_f32 v48, v48, v49')
    a.tree_add(range(40, 48))
    a('v_or_b32 v32, v2, v48\nv_and_or_b32 v33, v40, s46, v2\nv_mov_b32 v34, v32\nv_mov_b32 v35, v33\ns_mov_b64 exec, 0xf')
    a.store_mode('buffer_store_dwordx4 v[32:35], v14, s[8:11], s63 offen')
    a('s_mov_b64 exec, -1')
    a('s_waitcnt vmcnt(1)')
    A_comm_tail(a)

def A_comm_sq2(a):
    a(f'v_lshrrev_b32 v20, 1, v14\nv_add_u32 v20, {LLS}, v20\ns_barrier\ns_barrier')
    a('ds_read_b128 v[32:35], v13\nds_read_b128 v[36:39], v13 offset:16')
    for w in range(8): a(f'ds_read_b128 v[{72+4*w}:{75+4*w}], v20 offset:{16*w}')
    a('s_waitcnt lgkmcnt(8)')
    a('v_max3_f32 v48, v32, v33, v34\nv_max3_f32 v49, v36, v37, v38\nv_max3_f32 v48, v48, v35, v39\nv_max_f32 v48, v48, v49')
    a('s_waitcnt lgkmcnt(0)')
    for w in range(8): a(f'v_pk_add_f32 v[{72+4*w}:{73+4*w}], v[{72+4*w}:{73+4*w}], v[{74+4*w}:{75+4*w}]')
    for w in range(8): a(f'v_add_f32 v{56+w}, v{72+4*w}, v{73+4*w}')
    a.tree_add(range(56, 64))
    a('v_or_b32 v32, v2, v48\nv_and_or_b32 v33, v56, s46, v2\nv_mov_b32 v34, v32\nv_mov_b32 v35, v33\ns_waitcnt vmcnt(0)')
    a.xid_mode(40)
    if a.prof: a('v_writelane_b32 v127, s7, 12')
    a('v_mov_b32 v18, s7\nds_write_b32 v12, v18\ns_mov_b64 exec, 0xf')
    a.store_mode('buffer_store_dwordx4 v[32:35], v14, s[8:11], s63 offen')
    a('s_mov_b64 exec, -1\ns_waitcnt lgkmcnt(0)\ns_barrier')
    A_comm_tail(a)

def A_comm_split(a):
    cwo = a.o.get('cwo') is not None
    if not cwo:
        a(a.xid_load(40))
        for b in range(8):
            a(f's_mov_b32 m0, {LK + 4096*b}' + ('\ns_add_u32 s56, s56, 4096' if b else '\ns_nop 0'))
            for r in range(4): a(f'buffer_load_dwordx4 v{64 + r + 4*((b>>1)&1)}, s[20:23], s56 offen offset:{1024*r} OPOL lds')
            if b == a.o.get('wo_b1', 3): a('s_barrier')
            if b == a.o.get('wo_b2', 5): a('s_barrier')
        a('s_waitcnt vmcnt(32)')
    else: a(('' if a.o.get('wmax') else 's_barrier\n') + 's_waitcnt vmcnt(0)')
    if not a.o.get('qmode'): a.xid_mode(40)
    if a.prof: a('v_writelane_b32 v127, s7, 12')
    a(f'v_mov_b32 v18, s7\nds_write_b32 v12, v18\nv_lshrrev_b32 v20, 1, v14\nv_add_u32 v20, {LLS}, v20\ns_waitcnt lgkmcnt(0)')
    a('s_barrier')
    a('ds_read_b128 v[32:35], v13\nds_read_b128 v[36:39], v13 offset:16')
    for w in range(8): a(f'ds_read_b128 v[{72+4*w}:{75+4*w}], v20 offset:{16*w}')
    a('s_waitcnt lgkmcnt(8)')
    a('v_max3_f32 v48, v32, v33, v34\nv_max3_f32 v49, v36, v37, v38\nv_max3_f32 v48, v48, v35, v39\nv_max_f32 v48, v48, v49')
    if a.o.get('wmax'):
        for i in range(8): a(f'v_sub_f32 v{32+i}, v{32+i}, v48')
        for i in range(8): a(f'v_mul_f32 v{32+i}, s57, v{32+i}')
        for i in range(8): a(f'v_exp_f32 v{32+i}, v{32+i}')
    a('s_waitcnt lgkmcnt(0)')
    for w in range(8): a(f'v_pk_add_f32 v[{72+4*w}:{73+4*w}], v[{72+4*w}:{73+4*w}], v[{74+4*w}:{75+4*w}]')
    for w in range(8): a(f'v_add_f32 v{40+w}, v{72+4*w}, v{73+4*w}')
    if a.o.get('wmax'):
        for i in range(8): a(f'v_mul_f32 v{40+i}, v{32+i}, v{40+i}')
    a.tree_add(range(40, 48))
    a('v_or_b32 v32, v2, v48\nv_and_or_b32 v33, v40, s46, v2\nv_mov_b32 v34, v32\nv_mov_b32 v35, v33\ns_mov_b64 exec, 0xf')
    a.store_mode('buffer_store_dwordx4 v[32:35], v14, s[8:11], s63 offen')
    a('s_mov_b64 exec, -1')
    if cwo and not a.o.get('ve'): a('s_barrier')
    if not cwo: a('s_waitcnt vmcnt(1)')
    A_comm_tail(a)

def A_comm_tail(a):
    a.stamp(2)
    if a.o.get('cwo') is None: a('s_barrier')
    if a.o.get('hc'):
        a('s_barrier')
        for i in range(4): a(f'ds_read2st64_b32 v[{32+2*i}:{33+2*i}], v17 offset0:{2*i} offset1:{2*i+1}'.replace('v17', 'v19'))
        a('s_waitcnt lgkmcnt(0)')
        a.stamp(5)
        a.tree_add(range(32, 40))
        a('v_and_or_b32 v32, v32, s46, v2')
        A_comm_end(a)
        return
    a.combine(15, 9, 41, 40)
    a('s_mov_b32 exec_lo, 0x00010001\ns_mov_b32 exec_hi, 0x00010001\nds_write_b128 v16, v[32:35]\ns_mov_b64 exec, -1\ns_waitcnt lgkmcnt(0)\ns_barrier')
    a.stamp(4)
    a.poll([f'buffer_load_dword v{32+i}, v17, s[8:11], s54 offen offset:{256*i} sc1' for i in range(8)], range(32, 40), 30)
    a.stamp(5)
    a.tree_add(range(32, 40))
    a.swap_op(32, 'v_add_f32', 32, 33)
    a('v_and_or_b32 v32, v32, s46, v2\ns_mov_b32 exec_hi, 0')
    A_comm_end(a)

def A_comm_end(a):
    a.store2('buffer_store_dword v32, v17, s[8:11], s{s} offen', 55, 42)
    if a.o.get('axgate'):
        a(f's_lshl_b32 s42, s4, 4\ns_add_u32 s42, s42, s5\ns_lshl_b32 s42, s42, 4\ns_add_u32 s42, s42, {AL}\ns_mov_b64 exec, 0xf')
        a.store_mode('buffer_store_dword v32, v17, s[8:11], s42 offen')
    a.stamp(6)
    a.exit()

def FM_issue(a):
    a.role = 'F'
    for s, k in ((12, 'wmod'), (20, 'c'), (16, 'wq')): a.karg(s, k)
    for s, n in ((12, 0x300000), (20, 1024), (16, 0x400000)): a.srd(s, n)
    a('v_lshlrev_b32 v7, 1, v1\nv_lshlrev_b32 v9, 4, v4\nv_lshlrev_b32 v17, 2, v1')
    a(f's_mov_b32 s57, {LOG2E:#x}\ns_and_b32 s58, s5, 7')
    p16 = a.o.get('p16')
    if not p16: a('s_cmp_ge_u32 s5, 24\ns_cbranch_scc1 L_M')
    a('v_mul_u32_u24 v5, 49152, v4\nv_lshl_add_u32 v5, v3, 2, v5\ns_lshl_b32 s40, s4, 7\ns_mul_i32 s56, s4, 393216')
    fl = a.o.get('fl')
    if fl: a('v_lshl_add_u32 v5, v3, 2, v5\ns_lshl_b32 s59, s58, 1\ns_add_u32 s59, s59, s3\ns_lshl_b32 s59, s59, 1\ns_lshl_b32 s42, s59, 6\ns_add_u32 s41, s56, s42')
    else: a('s_lshl_b32 s59, s58, 2\ns_add_u32 s59, s59, s3\ns_lshl_b32 s42, s59, 6\ns_add_u32 s41, s56, s42')
    a('s_waitcnt lgkmcnt(0)')
    a.stamp(0)
    a('buffer_load_ushort v8, v7, s[20:23], s40 offen')
    a.get_tag()
    a('s_cmp_ge_u32 s3, 4\ns_cbranch_scc1 L_F_wq')
    if p16: a('s_cmp_ge_u32 s5, 24\ns_cbranch_scc1 L_F_j')
    if fl:
        a('s_cmp_ge_u32 s3, 2\ns_cbranch_scc1 L_F_idle')
        for r in range(16):
            a(f'buffer_load_dwordx2 v[{32+2*r}:{33+2*r}], v5, s[12:15], s41 offen FPOL')
            if r < 15: a(f's_add_u32 s41, s41, {6144 if r != 7 else 6144*25}')
    else: a.mod_loads()

def F_early(a):
    a.role = 'F'
    a.modp_base(55, 59)
    if a.o.get('pw_h'): a('s_lshl_b32 s42, s4, 8\ns_add_u32 s42, s42, s55\nv_mov_b32 v28, 0\nbuffer_store_dword v28, v17, s[8:11], s42 offen sc1')
    a.fin_tag()
    a.silu_frag(17 if a.o.get('pw_h') else 16)
    if a.o.get('fl'):
        a('v_lshrrev_b32 v15, 3, v3\nv_lshlrev_b32 v15, 17, v15\nv_and_b32 v16, 7, v3\nv_lshl_add_u32 v15, v16, 5, v15\ns_lshl_b32 s42, s4, 8\ns_add_u32 s42, s42, s55')
        for r in (97, 99, 101, 103): a(f'v_mov_b32 v{r}, s45')
        a('s_waitcnt vmcnt(8)')
        a.perm_x2(32, 64)
        a('s_waitcnt vmcnt(0) lgkmcnt(0)')
        a.stamp(1)
        for jj in range(4): a(f'v_mfma_f32_16x16x32_bf16 v[{104+4*jj}:{107+4*jj}], v[20:23], v[{64+4*jj}:{67+4*jj}], 0')
        a.perm_x2(48, 80)
        a('s_nop 0')
        for jj in range(4): a(f'v_mfma_f32_16x16x32_bf16 v[{104+4*jj}:{107+4*jj}], v[24:27], v[{80+4*jj}:{83+4*jj}], v[{104+4*jj}:{107+4*jj}]')
        a('s_mov_b64 exec, 0xffff\ns_nop 3')
        for jj in range(4): a(f'v_mov_b32 v{96+2*jj}, v{104+4*jj}')
        a('buffer_store_dwordx4 v[96:99], v15, s[8:11], s42 offen sc1\nbuffer_store_dwordx4 v[100:103], v15, s[8:11], s42 offen offset:16 sc1\ns_mov_b64 exec, -1')
    else:
        a('s_waitcnt vmcnt(0)')
        a.stamp(1)
        a.mod_partial()
    a.stamp(2)
    if a.o.get('tlb_f'): a(f's_mov_b32 s42, {QP}\ns_mov_b64 exec, 1\nbuffer_load_dword v116, v7, s[8:11], s42 offen sc1\ns_mov_b64 exec, -1')
    a('s_branch L_F_j')
    if a.o.get('fl'):
        a('L_F_idle:')
        a.fin_tag()
        a.silu_frag(0)
        a('s_branch L_F_j')
    a('L_F_wq:')
    if a.o.get('p16'):
        a('s_and_b32 s42, s3, 1\ns_lshl_b32 s42, s42, 3\nv_xor_b32 v6, s42, v1')
        for r in range(4): a(f'v_xor_b32 v{64+r}, {2*r}, v6\nv_lshlrev_b32 v{64+r}, 4, v{64+r}')
        a('s_and_b32 s42, s3, 3\ns_lshl_b32 s44, s42, 13\ns_lshl_b32 s42, s42, 16\ns_and_b32 s62, s5, 15\ns_lshl_b32 s62, s62, 18\ns_add_u32 s62, s62, s42\ns_lshl_b32 s42, s4, 10\ns_add_u32 s62, s62, s42')
        if a.o.get('f_tagw'): a.fin_tag()
        for b in range(2):
            a(f's_add_u32 m0, s44, {WQL + 4096*b}')
            for r in range(4):
                if b or r: a(f's_add_u32 s62, s62, {7168 if r else 11264}')
                else: a('s_nop 0')
                a(f'buffer_load_dwordx4 v{64 + r}, s[16:19], s62 offen offset:{1024*r} FPOL lds')
        return
    for k in range(8): a(f'v_xor_b32 v{64+k}, {2*k}, v1\nv_lshlrev_b32 v{64+k}, 4, v{64+k}')
    a('s_and_b32 s42, s3, 3\ns_lshl_b32 s44, s42, 14\ns_lshl_b32 s42, s42, 17\ns_lshl_b32 s62, s58, 19\ns_add_u32 s62, s62, s42\ns_lshl_b32 s42, s4, 10\ns_add_u32 s62, s62, s42')
    if a.o.get('f_tagw'): a.fin_tag()
    for b in range(4):
        a(f's_add_u32 m0, s44, {WQL + 4096*b}')
        for r in range(4):
            if b or r: a(f's_add_u32 s62, s62, {7168 if r else 11264}')
            else: a('s_nop 0')
            a(f'buffer_load_dwordx4 v{64 + r + 4*((b>>1)&1)}, s[16:19], s62 offen offset:{1024*r} FPOL lds')

def F_body(a):
    a.role = 'F'
    a('L_F_j:')
    if a.o.get('p16'): return P_body(a)
    a.karg(36, 'wd'); a.srd(36, 0x1C0000)
    a('s_cmp_lt_u32 s3, 4\ns_cbranch_scc1 L_F_j2')
    if not a.o.get('f_tagw'): a.fin_tag()
    a.silu_frag(16)
    a('L_F_j2:')
    a('v_lshrrev_b32 v5, 2, v3')
    a(f'v_mov_b32 v28, 0\nv_add_u32 v29, {WZ}, v7\nds_write_b16 v29, v28')
    a.tr_addr(WQL, 96); a.mask_addr(WH, WZ, 100)
    a(f'v_mov_b32 v11, {WMODE}\nv_lshlrev_b32 v18, 3, v1\nv_mov_b32 v31, s45')
    a(f's_lshl_b32 s54, s4, 3\ns_add_u32 s54, s54, s3\ns_lshl_b32 s54, s54, 3\ns_add_u32 s54, s54, s58\ns_lshl_b32 s54, s54, 9\ns_add_u32 s54, s54, {QP}')
    a('s_cmp_lt_u32 s3, 4\ns_cbranch_scc1 L_F_k\ns_waitcnt vmcnt(0)\nL_F_k:\ns_waitcnt lgkmcnt(0)')
    a.stamp(3)
    a('s_barrier')
    for t2 in range(2):
        for jj in range(4):
            b = 32 + 16*t2 + 4*jj
            a(f'ds_read_b64_tr_b16 v[{b}:{b+1}], v{96+jj} offset:{32768*t2}\nds_read_b64_tr_b16 v[{b+2}:{b+3}], v{96+jj} offset:{32768*t2+4096}')
    a('s_waitcnt lgkmcnt(0)\ns_barrier')
    a('ds_read_b64 v[28:29], v11')
    for t2 in range(2):
        for jj in range(4): a(f'ds_read_b128 v[{64+16*t2+4*jj}:{67+16*t2+4*jj}], v{100+jj} offset:{64*t2}')
    for k in range(8):
        a(f's_waitcnt lgkmcnt({7-k})')
        c = '0' if k < 2 else f'v[{108+4*(k&1)}:{111+4*(k&1)}]'
        a(f'v_mfma_f32_16x16x32_bf16 v[{108+4*(k&1)}:{111+4*(k&1)}], v[{64+4*k}:{67+4*k}], v[{32+4*k}:{35+4*k}], {c}')
        if k == 0: a('v_readfirstlane_b32 s7, v28\nv_readfirstlane_b32 s76, v29')
    a('s_nop 7')
    a('v_add_f32 v30, v108, v112')
    a.store_mode('buffer_store_dwordx2 v[30:31], v18, s[8:11], s54 offen')
    a.stamp(4)
    F_rest(a)

def P_body(a):
    for s, k in ((24, 'x'), (28, 'wg'), (32, 'wu'), (36, 'wd')): a.karg(s, k)
    a.srd(24, 1024)
    for s in (28, 32, 36): a.srd(s, 0x1C0000)
    a('s_cmp_lt_u32 s3, 4\ns_cselect_b32 s42, 1, 0\ns_cmp_lt_u32 s5, 24\ns_cselect_b32 s43, 1, 0\ns_and_b32 s42, s42, s43\ns_cbranch_scc1 L_F_j2')
    a('s_cmp_lt_u32 s3, 4\ns_cbranch_scc1 L_F_j1')
    if not a.o.get('f_tagw'): a.fin_tag()
    a.silu_frag(8)
    a('s_branch L_F_j2\nL_F_j1:')
    a.fin_tag()
    a('L_F_j2:')
    a('v_lshrrev_b32 v5, 2, v3')
    a(f'v_mov_b32 v28, 0\nv_add_u32 v29, {WZ}, v7\nds_write_b16 v29, v28')
    a.tr_addr(WQL, 96); a.mask_addr(WH, WZ, 100)
    a(f'v_mov_b32 v11, {WMODE}\nv_lshlrev_b32 v18, 3, v1\nv_mov_b32 v31, s45')
    a(f's_lshl_b32 s54, s4, 3\ns_add_u32 s54, s54, s3\ns_lshl_b32 s54, s54, 4\ns_and_b32 s42, s5, 15\ns_add_u32 s54, s54, s42\ns_lshl_b32 s54, s54, 9\ns_add_u32 s54, s54, {QP}')
    a('s_cmp_lt_u32 s3, 4\ns_cbranch_scc1 L_F_k\ns_waitcnt vmcnt(0)\nL_F_k:\ns_waitcnt lgkmcnt(0)')
    a.stamp(3)
    a('s_barrier')
    for jj in range(4): a(f'ds_read_b64_tr_b16 v[{32+4*jj}:{33+4*jj}], v{96+jj}\nds_read_b64_tr_b16 v[{34+4*jj}:{35+4*jj}], v{96+jj} offset:4096')
    a('s_waitcnt lgkmcnt(0)\ns_barrier')
    a('ds_read_b64 v[28:29], v11')
    for jj in range(4): a(f'ds_read_b128 v[{64+4*jj}:{67+4*jj}], v{100+jj}')
    for k in range(4):
        a(f's_waitcnt lgkmcnt({3-k})')
        a(f'v_mfma_f32_16x16x32_bf16 v[108:111], v[{64+4*k}:{67+4*k}], v[{32+4*k}:{35+4*k}], {"0" if k == 0 else "v[108:111]"}')
        if k == 0: a('v_readfirstlane_b32 s7, v28\nv_readfirstlane_b32 s76, v29')
    a('s_nop 7')
    a('v_mov_b32 v30, v108')
    a.store_mode('buffer_store_dwordx2 v[30:31], v18, s[8:11], s54 offen')
    a.stamp(4)
    a('s_cmp_ge_u32 s5, 24\ns_cbranch_scc1 L_M2')
    F_rest(a)

def F_rest(a):
    a('v_mul_u32_u24 v5, 49152, v4\nv_lshl_add_u32 v5, v3, 2, v5')
    a('s_lshl_b32 s59, s58, 3\ns_add_u32 s59, s59, s3\ns_add_u32 s59, s59, 32\ns_lshl_b32 s42, s59, 6\ns_add_u32 s41, s56, s42')
    a.modp_base(55, 59)
    a('v_lshlrev_b32 v6, 7, v1\ns_mul_i32 s40, s4, 229376\ns_mul_i32 s42, s58, 28672\ns_add_u32 s40, s40, s42\ns_lshl_b32 s42, s3, 13\ns_add_u32 s40, s40, s42')
    if not a.o.get('rq'): a('s_barrier')
    if a.o.get('rq') == 2: a('s_waitcnt vmcnt(0)\ns_barrier')
    a.mod_loads('RPOL')
    if a.o.get('dpf') == 3:
        a('s_cmp_ge_u32 s3, 4\ns_cbranch_scc1 L_F_nopf\nbuffer_load_dword v117, v6, s[36:39], s40 offen MPOL\ns_waitcnt vmcnt(1)\ns_branch L_F_pf\nL_F_nopf:\ns_waitcnt vmcnt(0)\nL_F_pf:')
    else: a('s_waitcnt vmcnt(0)')
    a.stamp(5)
    if a.o.get('dpf') == 5: a('s_cmp_ge_u32 s3, 4\ns_cbranch_scc1 L_F_nopf\nbuffer_load_dword v117, v6, s[36:39], s40 offen MPOL\nL_F_nopf:')
    if a.o.get('fp2'): a('ds_read_b32 v29, v11 offset:4\ns_waitcnt lgkmcnt(0)\nv_readfirstlane_b32 s76, v29')
    a.mod_partial(two=a.o.get('fp2'))
    if a.o.get('fgate'): a('s_waitcnt vmcnt(0)')
    if a.o.get('dpf') == 1: a('s_cmp_ge_u32 s3, 4\ns_cbranch_scc1 L_F_nopf\nbuffer_load_dword v8, v6, s[36:39], s40 offen MPOL\nL_F_nopf:')
    a('s_add_u32 s55, s55, s76')
    a.poll8([f'buffer_load_dwordx2 v[{32+2*i}:{33+2*i}], v18, s[8:11], s55 offen offset:{512*i} sc1' for i in range(4)], range(33, 40, 2), 30)
    a.tree_add(range(32, 40, 2))
    a.swap_op(32, 'v_add_f32', 32, 33)
    a.rbf(32, 32)
    a(f's_mul_i32 s42, s4, 12288\ns_lshl_b32 s43, s59, 7\ns_add_u32 s42, s42, s43\ns_add_u32 s42, s42, {MODV}')
    a('v_or_b32 v33, v2, v32\ns_mov_b32 exec_hi, 0')
    a.store_mode('buffer_store_dword v33, v17, s[8:11], s42 offen')
    a.stamp(6)
    if a.o.get('dpf') == 4: a('s_mov_b64 exec, -1\ns_cmp_ge_u32 s3, 4\ns_cbranch_scc1 L_F_nopf\nbuffer_load_dword v117, v6, s[36:39], s40 offen MPOL\ns_waitcnt vmcnt(0)\nL_F_nopf:')
    a.exit()

def F_comm(a):
    a.role = 'Fc'
    a('L_F_comm:')
    a.karg(24, 'x'); a.srd(24, 1024)
    p16 = a.o.get('p16')
    if p16: a('s_and_b32 s58, s5, 7\nv_lshlrev_b32 v9, 4, v1\nv_and_b32 v11, 31, v1\nv_lshlrev_b32 v11, 1, v11\ns_and_b32 s40, s5, 15\ns_lshl_b32 s40, s40, 6')
    else: a('s_and_b32 s58, s5, 7\nv_lshlrev_b32 v9, 4, v1\nv_lshlrev_b32 v11, 1, v1\ns_lshl_b32 s40, s58, 7')
    a('s_waitcnt lgkmcnt(0)')
    a.stamp(0)
    a('buffer_load_dwordx4 v[32:35], v9, s[24:27], 0 offen\nbuffer_load_ushort v36, v11, s[24:27], s40 offen')
    a.get_tag(); a.fin_tag()
    a.xid_publish()
    if a.o.get('fprobe'): a.probe(a.o['fprobe'])
    else: a('s_mov_b32 s76, 0')
    a('s_waitcnt vmcnt(1)')
    for d in range(4): a(f'v_lshlrev_b32 v{40+2*d}, 16, v{32+d}\nv_and_b32 v{41+2*d}, 0xffff0000, v{32+d}')
    a('v_add_f32 v32, v40, v41\nv_add_f32 v33, v42, v43\nv_add_f32 v34, v44, v45\nv_add_f32 v35, v46, v47')
    a.tree_add(range(32, 36))
    a.wave_reduce('v_add_f32', [32], 33)
    a('v_mul_f32 v32, 0x3b000000, v32')
    for i in range(8): a(f'v_sub_f32 v{40+i}, v{40+i}, v32')
    for i in range(8): a(f'v_mul_f32 v{40+i}, v{40+i}, v{40+i}')
    a.tree_add(range(40, 48))
    a.wave_reduce('v_add_f32', [40], 33)
    a('v_mul_f32 v40, 0x3b000000, v40')
    a.rbf(32, 32); a.rbf(40, 40)
    a(f'v_add_f32 v40, {EPS:#x}, v40'); a.rbf(40, 40)
    a('v_sqrt_f32 v40, v40\nv_lshlrev_b32 v36, 16, v36'); a.rbf(40, 40)
    a('v_sub_f32 v36, v36, v32'); a.rbf(36, 36)
    a.div(40, 36, 40, 41, 42); a.rbf(28, 40)
    if p16:
        a(f'v_lshrrev_b32 v12, 5, v1\nv_lshlrev_b32 v12, 11, v12\nv_lshl_add_u32 v12, v11, 2, v12\ns_and_b32 s41, s5, 15\ns_lshl_b32 s41, s41, 17\ns_add_u32 s41, s41, {MODP}')
        a(f'v_add_u32 v13, {WH}, v11\nv_mov_b32 v14, {WMODE}\nv_lshlrev_b32 v17, 2, v1\nv_lshlrev_b32 v18, 3, v1')
        a(f's_lshl_b32 s54, s4, 3\ns_add_u32 s54, s54, s58\ns_lshl_b32 s55, s54, 8\ns_add_u32 s55, s55, {QV}\ns_lshl_b32 s54, s54, 13\ns_add_u32 s54, s54, {QP}\ns_add_u32 s56, s54, 4096')
        a.stamp(1)
        a('s_barrier')
        a(a.xid_load(64))
        a.poll8([f'buffer_load_dwordx2 v[{32+2*i}:{33+2*i}], v12, s[8:11], s41 offen offset:{256*i} sc1' for i in range(8)], range(33, 48, 2), 30)
        a.stamp(2)
        a.tree_add(range(32, 48, 2))
        a.rbf(32, 32)
        a('v_mov_b32 v48, v32\ns_nop 1\nv_permlane32_swap_b32 v32, v48')
        a('v_add_f32 v48, 1.0, v48'); a.rbf(48, 48)
        a('v_mul_f32 v48, v28, v48'); a.rbf(48, 48)
        a('v_add_f32 v48, v48, v32'); a.rbf(48, 48)
    else:
        a(f'v_lshrrev_b32 v12, 5, v1\nv_lshlrev_b32 v12, 17, v12\nv_and_b32 v10, 31, v1\nv_lshl_add_u32 v12, v10, 3, v12\ns_lshl_b32 s41, s58, 18\ns_add_u32 s41, s41, {MODP}\ns_add_u32 s41, s41, s76')
        a(f'v_add_u32 v13, {WH}, v11\nv_mov_b32 v14, {WMODE}\nv_lshlrev_b32 v17, 2, v1\nv_lshlrev_b32 v18, 3, v1')
        a(f's_lshl_b32 s54, s4, 3\ns_add_u32 s54, s54, s58\ns_lshl_b32 s55, s54, 8\ns_add_u32 s55, s55, {QV}\ns_lshl_b32 s54, s54, 12\ns_add_u32 s54, s54, {QP}')
        a(f'v_lshlrev_b32 v19, 6, v1\nv_mov_b32 v20, s45\ns_lshl_b32 s56, s4, 12\ns_lshl_b32 s42, s58, 2\ns_add_u32 s56, s56, s42\ns_add_u32 s56, s56, {QF}')
        if a.o.get('pt_q') == 1: a('v_lshlrev_b32 v22, 6, v1\nbuffer_load_dword v108, v22, s[8:11], s54 offen sc1')
        if a.o.get('pt_h'):
            a(f'v_and_b32 v22, 31, v1\nv_lshlrev_b32 v22, 7, v22\nv_lshrrev_b32 v23, 5, v1\nv_lshl_add_u32 v22, v23, 17, v22\nbuffer_load_dword v109, v22, s[8:11], s41 offen {a.o["pt_h"]}')
        a.stamp(1)
        if not a.o.get('mh'): a('s_barrier')
        H1 = [f'buffer_load_dwordx2 v[{32+2*i}:{33+2*i}], v12, s[8:11], s41 offen offset:{256*i} sc1' for i in range(16)]
        if a.o.get('mh'):
            if a.o.get('mown', 1): a.trigger('own')
            H1 = H1 + [a.xid_load(64)]
        else: a(a.xid_load(64))
        if a.o.get('pt_q') == 2: a('v_lshlrev_b32 v22, 6, v1\nbuffer_load_dword v108, v22, s[8:11], s54 offen sc1')
        a.poll8(H1, range(33, 64, 2), 30)
        a.stamp(2)
        for k in (1, 2, 4):
            for b in (48, 32):
                for i in range(0, 8, 2*k): a(f'v_add_f32 v{b+2*i}, v{b+2*i}, v{b+2*(i+k)}')
        a.rbf(48, 48); a.rbf(32, 32)
        a('v_add_f32 v48, 1.0, v48'); a.rbf(48, 48)
        a('v_mul_f32 v48, v28, v48'); a.rbf(48, 48)
        a('v_add_f32 v48, v48, v32'); a.rbf(48, 48)
    if a.o.get('mh'):
        a.xid_mode(64)
        a(f's_lshl_b32 s42, s7, 10\ns_or_b32 s42, s42, s6\nv_or_b32 v48, s42, v48\ns_lshl_b32 s42, s4, 3\ns_add_u32 s42, s42, s58\ns_lshl_b32 s42, s42, 8\ns_add_u32 s42, s42, {HV}')
        a.store_mode('buffer_store_dword v48, v17, s[8:11], s42 offen')
        a.stamp(3)
        a('v_mov_b32 v15, 0\nds_write_b32 v14, v15\ns_branch L_M_comm')
        a('L_F_comm2:')
        a('s_and_b32 s58, s5, 7\ns_waitcnt lgkmcnt(0)')
        a.get_tag(); a.fin_tag()
        a.xid_publish()
        a(f'v_lshlrev_b32 v13, 1, v1\nv_add_u32 v13, {WH}, v13\nv_mov_b32 v14, {WMODE}\nv_lshlrev_b32 v17, 2, v1\nv_lshlrev_b32 v18, 3, v1\ns_mov_b32 s76, 0')
        a(f's_lshl_b32 s54, s4, 3\ns_add_u32 s54, s54, s58\ns_lshl_b32 s55, s54, 8\ns_add_u32 s41, s55, {HV}\ns_add_u32 s55, s55, {QV}\ns_lshl_b32 s54, s54, 12\ns_add_u32 s54, s54, {QP}')
        if a.o['mh'] == 2: a('s_barrier')
        l = a.label('P')
        a(f's_mov_b32 s47, 0\n{l}:\nbuffer_load_dword v48, v17, s[8:11], s41 offen sc1\ns_add_u32 s47, s47, 1\ns_cmp_gt_u32 s47, {LIMIT}\ns_cbranch_scc1 {l}_t\ns_waitcnt vmcnt(0)')
        a(f'v_xor_b32 v48, v2, v48\nv_and_b32 v30, {TMASK}, v48\nv_cmp_ne_u32 vcc, 0, v30\ns_cbranch_vccnz {l}\n{l}_x:')
        a.tails.append(f'{l}_t:\ns_waitcnt vmcnt(0)\ns_branch {l}_x')
        a.stamp(2)
        a('ds_write_b16_d16_hi v13, v48\nv_bfe_u32 v64, v48, 10, 1\nv_mov_b32 v65, 0\nds_write_b64 v14, v[64:65]\nv_readfirstlane_b32 s7, v64')
        if a.o['mh'] == 1: a('s_barrier')
        a('s_waitcnt lgkmcnt(0)\ns_barrier')
        F_comm_tail(a, False)
        return
    a('ds_write_b16_d16_hi v13, v48')
    a.xid_mode(64)
    a('v_mov_b32 v64, s7\nv_mov_b32 v65, s76\nds_write_b64 v14, v[64:65]\ns_waitcnt lgkmcnt(0)\ns_barrier')
    F_comm_tail(a, p16)

def F_comm_tail(a, p16):
    a.stamp(3)
    if p16: a('s_cmp_ge_u32 s5, 24\ns_cbranch_scc1 L_M_comm')
    if a.o.get('rq'):
        if a.o.get('rq') == 2: a('s_barrier')
        if a.o.get('fp2'):
            a.probe(3)
            a('v_mov_b32 v65, s76\nds_write_b32 v14, v65 offset:4\ns_waitcnt lgkmcnt(0)')
        a.exit()
        return
    if a.o.get('qmode'): a('s_lshl_b32 s43, s7, 10\ns_or_b32 s43, s43, s6')
    nq = 16 if p16 else 8
    a.poll8([f'buffer_load_dwordx2 v[{32+2*i}:{33+2*i}], v18, s[8:11], s{54 if i < 8 else 56} offen offset:{512*(i&7)} sc1' for i in range(nq)], range(33, 32+2*nq, 2), 30)
    a.stamp(4)
    a.tree_add(range(32, 32+2*nq, 2))
    a.rbf(32, 32)
    if a.o.get('qmode'): a('v_or_b32 v32, s43, v32')
    else: a('v_or_b32 v32, v2, v32')
    a.store_mode('buffer_store_dword v32, v17, s[8:11], s55 offen')
    if a.o.get('sq'): a.store_mode('buffer_store_dword v20, v19, s[8:11], s56 offen')
    a.stamp(5)
    a.trigger(a.o.get('ftrig'))
    a('s_barrier')
    if a.o.get('fp2'):
        a.probe(3)
        a('v_mov_b32 v65, s76\nds_write_b32 v14, v65 offset:4\ns_waitcnt lgkmcnt(0)')
    a.exit()

def M_early(a):
    a.role = 'M'
    a('L_M:')
    for s, k in ((24, 'x'), (28, 'wg'), (32, 'wu'), (36, 'wd')): a.karg(s, k)
    a.srd(24, 1024)
    for s in (28, 32, 36): a.srd(s, 0x1C0000)
    a('v_bfe_u32 v10, v1, 3, 2\nv_lshlrev_b32 v10, 13, v10\nv_and_b32 v6, 7, v1\nv_lshl_add_u32 v10, v6, 7, v10\nv_lshrrev_b32 v6, 5, v1\nv_lshl_add_u32 v10, v6, 6, v10')
    a('s_lshl_b32 s43, s58, 4\ns_add_u32 s43, s43, s3\ns_add_u32 s43, s43, 8\ns_lshl_b32 s43, s43, 15\ns_lshl_b32 s42, s4, 10\ns_add_u32 s43, s43, s42')
    a('v_and_b32 v11, 31, v1')
    a('s_waitcnt lgkmcnt(0)')
    a.stamp(0)
    a.get_tag()
    if a.o.get('a_tagw'): a.fin_tag()
    if not a.o.get('early_gu') and a.o.get('apf2') != 1: a('buffer_load_dword v112, v10, s[16:19], s43 offen FPOL')
    if not a.o.get('a_tagw'): a.fin_tag()
    if a.o.get('vpf'):
        a.karg(68, 'v'); a.srd(68, 0x2000000)
        a(f'v_lshrrev_b32 v12, 5, v1\nv_lshlrev_b32 v12, 13, v12\nv_lshl_add_u32 v12, v11, 7, v12\ns_lshl_b32 s40, s4, 22\ns_lshl_b32 s41, s58, 17\ns_add_u32 s40, s40, s41\ns_lshl_b32 s41, s3, 14\ns_add_u32 s40, s40, s41\ns_add_u32 s40, s40, {(3<<20) + 4096}\ns_waitcnt lgkmcnt(0)')
        if a.o['vpf'] == 2: a('s_barrier')
        a('buffer_load_dword v113, v12, s[68:71], s40 offen UPOL')
    if a.o.get('rpf'):
        a('v_bfe_u32 v13, v1, 2, 3\nv_mul_u32_u24 v13, 6144, v13\nv_and_b32 v14, 3, v1\nv_lshl_add_u32 v13, v14, 7, v13\nv_lshl_add_u32 v13, v6, 6, v13')
        a('s_lshl_b32 s42, s4, 3\ns_add_u32 s42, s42, s3\ns_mul_i32 s42, s42, 49152\ns_lshl_b32 s44, s58, 9\ns_add_u32 s42, s42, s44\ns_add_u32 s42, s42, 2048')
        if a.o.get('rpf') == 2: a('s_waitcnt vmcnt(0)')
        if a.o.get('rpf') != 3: a('buffer_load_dword v22, v13, s[12:15], s42 offen FPOL')
        else: a('s_mov_b32 s62, s42')
    a('s_branch L_M2')

def M_body(a):
    a.role = 'M'
    a('L_M2:')
    if a.o.get('p16'): a('v_and_b32 v11, 31, v1\nv_lshrrev_b32 v6, 5, v1')
    a('s_mul_i32 s59, s4, 7\ns_add_u32 s59, s59, s58')
    a('s_cmp_eq_u32 s58, 7\ns_cbranch_scc1 L_R')
    if a.o.get('mearly'): a('s_mov_b32 s66, s3')
    a('v_mul_u32_u24 v5, 28672, v4\nv_lshl_add_u32 v5, v3, 2, v5')
    a(f's_and_b32 s42, s59, 1\ns_cselect_b32 s44, {39*3584}, 0\ns_cselect_b32 s48, -1, 1\ns_cselect_b32 s63, 78, 0\ns_cselect_b32 s42, 7, 0\ns_xor_b32 s3, s3, s42\ns_mul_i32 s49, s48, {3584*25}\ns_mul_i32 s48, s48, 3584')
    a('s_mul_i32 s41, s3, 229376\ns_lshl_b32 s42, s59, 6\ns_add_u32 s41, s41, s42\ns_add_u32 s41, s41, s44')
    a('s_lshl_b32 s40, s3, 7')
    eg = a.o.get('early_gu')
    def gu():
        for r in range(16):
            a(f'buffer_load_dword v{32+r}, v5, s[28:31], s41 offen MPOL\nbuffer_load_dword v{48+r}, v5, s[32:35], s41 offen MPOL')
            if r < 15: a(f's_add_u32 s41, s41, s{48 if r != 7 else 49}')
    if eg:
        gu()
        a('s_waitcnt vmcnt(0)')
        a.stamp(4)
        a.perm_x1(32, 80); a.perm_x1(40, 88); a.perm_x1(48, 96); a.perm_x1(56, 104)
    if a.o.get('m_pfw') or a.o.get('p16'): a('s_waitcnt vmcnt(0)')
    if a.o.get('tlb_m'):
        a.karg(68, 'wo'); a.srd(68, 0x400000)
        a('s_lshl_b32 s42, s4, 19\ns_mov_b64 exec, 1\nbuffer_load_dword v113, v5, s[28:31], s41 offen nt\nbuffer_load_dword v114, v5, s[32:35], s41 offen nt\nbuffer_load_dword v115, v5, s[36:39], 0 offen nt\nbuffer_load_dword v116, v5, s[24:27], 0 offen')
        a(f's_mov_b32 s44, {MODV}\nbuffer_load_dword v117, v5, s[8:11], s44 offen sc1\ns_waitcnt lgkmcnt(0)\nbuffer_load_dword v118, v5, s[68:71], s42 offen nt\ns_mov_b64 exec, -1')
    if a.o.get('dfirst'):
        a('v_lshlrev_b32 v6, 13, v4\nv_lshl_add_u32 v6, v3, 3, v6\ns_lshl_b32 s43, s59, 15\ns_add_u32 s43, s43, s40\ns_add_u32 s42, s43, 4096')
        if a.o['dfirst'] != 'none': a('s_barrier')
        for i in range(8): a(f'buffer_load_dwordx2 v[{64+2*i}:{65+2*i}], v6, s[36:39], s{43 if i<4 else 42} offen offset:{1024*(i&3)} MPOL')
    a.stamp(1)
    if a.o.get('mearly'):
        a(f's_cmp_lt_u32 s66, {a.o["mearly"]}\ns_cbranch_scc0 L_M_w')
        gu()
        a('s_barrier\nbuffer_load_ushort v8, v7, s[24:27], s40 offen\ns_branch L_M_x\nL_M_w:')
    a('s_barrier')
    a.stamp(3)
    if a.o.get('rpf') == 3: a('buffer_load_dword v22, v13, s[12:15], s62 offen FPOL')
    a('buffer_load_ushort v8, v7, s[24:27], s40 offen')
    if not eg: gu()
    if a.o.get('mearly'): a('L_M_x:')
    a('v_lshlrev_b32 v6, 13, v4\nv_lshl_add_u32 v6, v3, 3, v6\ns_lshl_b32 s43, s59, 15\ns_add_u32 s43, s43, s40\ns_add_u32 s41, s43, 4096' + ('\ns_mov_b32 s64, s43\ns_mov_b32 s65, s41' if a.o.get('dl') else ''))
    dl = a.o.get('dl')
    MV = ['buffer_load_dword v112, v17, s[8:11], s55 offen sc1', 'buffer_load_dword v113, v17, s[8:11], s55 offen offset:2048 sc1', 'buffer_load_dword v114, v17, s[8:11], s56 offen sc1']
    if not dl and not a.o.get('dfirst'):
        for i in range(8): a(f'buffer_load_dwordx2 v[{64+2*i}:{65+2*i}], v6, s[36:39], s{43 if i<4 else 41} offen offset:{1024*(i&3)} MPOL')
    a(f's_lshl_b32 s42, s3, 8\ns_lshl_b32 s54, s3, 17\ns_add_u32 s54, s54, {AX}\ns_mul_i32 s55, s4, 12288\ns_add_u32 s55, s55, s42\ns_add_u32 s55, s55, {MODV + 2*2048}\ns_add_u32 s56, s55, 4096')
    if a.o.get('mv') or a.o.get('pt_m'): a('\n'.join(MV))
    a(f'v_add_u32 v13, s42, v17\nv_add_u32 v13, {WX1}, v13')
    a(f's_lshl_b32 s43, s3, 3\ns_add_u32 s43, s43, {WST}\nv_mov_b32 v14, s43\nv_and_b32 v15, 7, v1\nv_lshlrev_b32 v15, 3, v15\nv_add_u32 v15, {WST}, v15')
    a(f's_add_u32 s43, s40, {WH2}\nv_xor_b32 v16, s63, v7\nv_add_u32 v16, s43, v16\nv_add_u32 v18, s43, v9')
    a(f's_add_u32 s43, s42, {WGU}\nv_lshlrev_b32 v19, 3, v3\nv_add_u32 v19, s43, v19')
    a(f's_lshl_b32 s43, s3, 6\ns_add_u32 s43, s43, {WHH}\nv_lshlrev_b32 v10, 1, v11\nv_add_u32 v10, s43, v10\nv_add_u32 v11, s43, v9')
    a('v_lshrrev_b32 v12, 3, v3\nv_lshlrev_b32 v12, 9, v12\nv_and_b32 v20, 7, v3\nv_lshl_add_u32 v12, v20, 4, v12')
    a(f's_bfe_u32 s62, s59, 0x40001\ns_lshl_b32 s62, s62, 17\ns_lshr_b32 s42, s59, 5\ns_lshl_b32 s42, s42, 8\ns_add_u32 s62, s62, s42\ns_and_b32 s42, s59, 1\ns_lshl_b32 s42, s42, 7\ns_add_u32 s62, s62, s42\ns_lshl_b32 s42, s3, 10\ns_add_u32 s62, s62, s42\ns_add_u32 s62, s62, {DP}')
    if a.o.get('pw_d'):
        a('v_xor_b32 v28, 1, v2\nv_mov_b32 v29, v28\nv_mov_b32 v30, v28\nv_mov_b32 v31, v28\ns_mov_b64 exec, 0xffff')
        a.store2('buffer_store_dwordx4 v[28:31], v12, s[8:11], s{s} offen', 62, 42)
        a('s_mov_b64 exec, -1')
    a(f'v_mov_b32 v21, {WMODE + (4 if a.o.get("p16") else 0)}')
    if not eg:
        a(f's_waitcnt vmcnt({(0 if dl or a.o.get("dfirst") else 8) + (3 if a.o.get("mv") or a.o.get("pt_m") else 0) + (2 if a.o.get("pw_d") else 0)})')
        a.stamp(4)
        a.perm_x1(32, 80); a.perm_x1(40, 88); a.perm_x1(48, 96); a.perm_x1(56, 104)
    if not dl:
        a(f's_waitcnt vmcnt({(3 if a.o.get("mv") or a.o.get("pt_m") else 0) + (2 if a.o.get("pw_d") else 0)})')
        a.perm_x2(64, 32)
    if dl == 3:
        a('s_barrier')
        for i in range(8): a(f'buffer_load_dwordx2 v[{32+2*i}:{33+2*i}], v6, s[36:39], s{64 if i<4 else 65} offen offset:{1024*(i&3)} MPOL')
        a('s_waitcnt vmcnt(0)')
    a('v_lshlrev_b32 v8, 16, v8')
    a.stamp(5)
    a.poll(MV, range(112, 115), 30, first_issued=bool(a.o.get('mv')), sleep=a.o.get('msleep'))
    a('ds_read_b32 v21, v21\nv_add_f32 v114, 1.0, v114'); a.rbf(114, 114)
    a('s_waitcnt lgkmcnt(0)\nv_readfirstlane_b32 s76, v21\ns_mov_b32 s63, 0x42800000\ns_nop 2')
    a(f's_add_u32 s54, s54, s76\ns_add_u32 s40, s54, {8*BLK}')
    if a.o.get('axgate'):
        a(f's_lshl_b32 s41, s4, 8\ns_add_u32 s41, s41, {AL}')
        a.poll(['buffer_load_dword v48, v17, s[8:11], s41 offen sc1', 'buffer_load_dword v49, v17, s[8:11], s41 offen sc1'], [48, 49], 30)
        if a.o['axgate'] > 1: a(f's_sleep {a.o["axgate"]}')
    a.stamp(6)
    if a.o.get('axl'):
        a('s_lshl_b32 s41, s4, 8\ns_add_u32 s43, s41, s40\ns_add_u32 s41, s41, s54')
        a.poll(['buffer_load_dword v48, v17, s[8:11], s41 offen sc1', 'buffer_load_dword v49, v17, s[8:11], s43 offen sc1'], [48, 49], 30, sleep=a.o.get('asleep'))
    R = list(range(48, 56)) + (list(range(60, 68)) if a.o.get('hc') else [])
    LDS_ = [f'buffer_load_dword v{r}, v17, s[8:11], s{40 if i & 1 else 54} offen offset:{256*(i>>1)} sc1' for i, r in enumerate(R)]
    if a.o.get('sel'):
        n = a.o['sel']; ng = len(R) // n
        a(f's_mov_b32 s42, {(1 << ng) - 1}\ns_mov_b32 s47, 0\nL_ax:')
        for g in range(ng):
            a(f's_bitcmp1_b32 s42, {g}\ns_cbranch_scc0 L_ax_i{g}\n' + '\n'.join(LDS_[n*g:n*g+n]) + f'\nL_ax_i{g}:')
        a(f's_add_u32 s47, s47, 1\ns_cmp_gt_u32 s47, {LIMIT}\ns_cselect_b32 s43, 0, -1')
        for g in range(ng):
            rs = R[n*g:n*g+n]
            a(f's_bitcmp1_b32 s42, {g}\ns_cbranch_scc0 L_ax_c{g}' + ('\ns_waitcnt vmcnt(0)'))
            for r in rs: a(f'v_xor_b32 v{r}, v2, v{r}')
            if n == 2: a(f'v_or_b32 v30, v{rs[0]}, v{rs[1]}')
            else: a(f'v_or3_b32 v30, v{rs[0]}, v{rs[1]}, v{rs[2]}\nv_or_b32 v30, v30, v{rs[3]}')
            a(f'v_and_b32 v30, {TMASK}, v30\nv_cmp_ne_u32 vcc, 0, v30\ns_cbranch_vccnz L_ax_c{g}\ns_bitset0_b32 s42, {g}\nL_ax_c{g}:')
        a('s_and_b32 s42, s42, s43\ns_cbranch_scc1 L_ax')
    else: a.poll(LDS_, R, 30, sleep=(None if a.o.get('axl') else a.o.get('asleep')))
    a.stamp(7)
    def dn_loads():
        for i in range(8): a(f'buffer_load_dwordx2 v[{32+2*i}:{33+2*i}], v6, s[36:39], s{64 if i<4 else 65} offen offset:{1024*(i&3)} MPOL')
    if dl == 1: dn_loads()
    a.tree_add(R)
    a.rbf(48, 48)
    a('v_mul_f32 v48, v112, v48'); a.rbf(48, 48)
    a('v_add_f32 v48, v8, v48'); a.rbf(48, 48)
    a('ds_write_b32 v13, v48\nv_readfirstlane_b32 s40, v48\ns_nop 1')
    a('v_subrev_f32 v49, s40, v48\nv_mul_f32 v50, v49, v49\ns_nop 0')
    for m in ('row_shr:1', 'row_shr:2', 'row_shr:4', 'row_shr:8'):
        a(f'v_add_f32_dpp v49, v49, v49 {m} {DPP} bound_ctrl:0\nv_add_f32_dpp v50, v50, v50 {m} {DPP} bound_ctrl:0\ns_nop 0')
    for m, rm in (('row_bcast:15', '0xa'), ('row_bcast:31', '0xc')):
        a(f'v_add_f32_dpp v49, v49, v49 {m} row_mask:{rm} bank_mask:0xf\nv_add_f32_dpp v50, v50, v50 {m} row_mask:{rm} bank_mask:0xf' + ('\ns_nop 0' if rm == '0xa' else ''))
    a('v_mul_f32 v51, 0x3c800000, v49\ns_mov_b32 exec_lo, 0\nv_fma_f32 v53, -v51, v49, v50\nv_add_f32 v52, s40, v51\ns_mov_b32 exec_hi, 0x80000000')
    a('ds_write_b64 v14, v[52:53]\ns_mov_b64 exec, -1\ns_waitcnt lgkmcnt(0)\ns_barrier')
    a('ds_read_b64 v[60:61], v15')
    if dl == 2: dn_loads()
    a('s_waitcnt lgkmcnt(0)')
    a(f'v_add_f32_dpp v49, v60, v60 row_ror:4 {DPP}')
    for k in (2, 1): a(f's_nop 1\nv_add_f32_dpp v49, v49, v49 row_ror:{k} {DPP}')
    a('v_mul_f32 v49, 0x3e000000, v49\nv_sub_f32 v60, v60, v49\nv_mul_f32 v60, v60, v60\nv_fma_f32 v61, v60, s63, v61')
    a.rbf(49, 49)
    a('v_sub_f32 v48, v48, v49')
    a(f'v_add_f32_dpp v61, v61, v61 row_ror:4 {DPP}'); a.rbf(48, 48); a('s_nop 0')
    a(f'v_add_f32_dpp v61, v61, v61 row_ror:2 {DPP}\ns_nop 1\nv_add_f32_dpp v61, v61, v61 row_ror:1 {DPP}')
    a('v_mul_f32 v61, 0x3b000000, v61'); a.rbf(61, 61)
    a(f'v_add_f32 v61, {EPS:#x}, v61'); a.rbf(61, 61)
    a('v_sqrt_f32 v61, v61\ns_nop 0'); a.rbf(61, 61)
    a.div(61, 48, 61, 62, 63); a.rbf(48, 61)
    a('v_mul_f32 v48, v48, v114'); a.rbf(48, 48)
    a('v_add_f32 v48, v48, v113'); a.rbf(48, 48)
    a('ds_write_b16_d16_hi v16, v48\nds_read_b128 v[20:23], v18\nds_read_b128 v[24:27], v18 offset:64')
    for t in range(2):
        a(f's_waitcnt lgkmcnt({1-t})')
        for m in range(4):
            b = 80 + 16*(m >> 1) + 8*t + 4*(m & 1)
            c = '0' if t == 0 else f'v[{48+4*m}:{51+4*m}]'
            a(f'v_mfma_f32_16x16x32_bf16 v[{48+4*m}:{51+4*m}], v[{20+4*t}:{23+4*t}], v[{b}:{b+3}], {c}')
    a('s_mov_b64 exec, 0xffff\ns_nop 4\nds_write2_b32 v19, v48, v52 offset1:1\ns_nop 0\nds_write2_b32 v19, v56, v60 offset0:32 offset1:33\ns_mov_b64 exec, -1\ns_waitcnt lgkmcnt(0)\ns_barrier')
    a.stamp(8)
    for i in range(4): a(f'ds_read2st64_b32 v[{48+2*i}:{49+2*i}], v17 offset0:{(WGU+512*i)//256} offset1:{(WGU+512*i+256)//256}')
    if dl:
        a('s_waitcnt vmcnt(0)')
        a.perm_x2(32, 64)
    a('s_waitcnt lgkmcnt(0)')
    a.tree_add(range(48, 56))
    a.rbf(48, 48)
    a('v_mov_b32 v49, v48\ns_nop 1\nv_permlane32_swap_b32 v48, v49')
    a('v_mul_f32 v48, s57, v48\nv_max_f32 v48, 0xc2fc0000, v48\nv_exp_f32 v48, -v48\ns_nop 0\nv_add_f32 v48, 1.0, v48\nv_rcp_f32 v50, v48\ns_nop 0\nv_fma_f32 v48, -v48, v50, 1.0\nv_fma_f32 v48, v48, v50, v50')
    a.rbf(48, 48)
    a('v_mul_f32 v48, v48, v49'); a.rbf(48, 48)
    a('ds_write_b16_d16_hi v10, v48\nds_read_b128 v[20:23], v11\ns_waitcnt lgkmcnt(0)')
    for jj in range(4): a(f'v_mfma_f32_16x16x32_bf16 v[{48+4*jj}:{51+4*jj}], v[20:23], v[{(64 if dl else 32)+4*jj}:{(67 if dl else 35)+4*jj}], 0')
    a('s_mov_b64 exec, 0xffff\ns_nop 3')
    for jj in range(4): a(f'v_and_or_b32 v{28+jj}, v{48+4*jj}, s46, v2')
    a.store2('buffer_store_dwordx4 v[28:31], v12, s[8:11], s{s} offen', 62, 42)
    a.stamp(9)
    if a.o.get('dpgate'): a(f's_waitcnt vmcnt({a.o["dpgate"]-1})\ns_barrier')
    a.exit()
    a('L_R:')
    if a.o.get('rq'):
        a(f'v_lshlrev_b32 v18, 3, v1\ns_lshl_b32 s54, s4, 3\ns_add_u32 s54, s54, s3\ns_lshl_b32 s55, s54, 8\ns_add_u32 s55, s55, {QV}\ns_lshl_b32 s54, s54, 12\ns_add_u32 s54, s54, {QP}\nv_mov_b32 v21, {WMODE}')
        a('s_barrier\nds_read_b32 v21, v21 offset:4\ns_waitcnt lgkmcnt(0)\nv_readfirstlane_b32 s7, v21')
        a.poll8([f'buffer_load_dwordx2 v[{32+2*i}:{33+2*i}], v18, s[8:11], s54 offen offset:{512*i} sc1' for i in range(8)], range(33, 48, 2), 30)
        a.stamp(11)
        a.tree_add(range(32, 48, 2))
        a.rbf(32, 32)
        a('v_or_b32 v32, v2, v32')
        a.store_mode('buffer_store_dword v32, v17, s[8:11], s55 offen')
        a.stamp(12)
        a.exit()
        return
    a('s_and_b32 s42, s4, 1\ns_cselect_b32 s40, 7, 1\ns_cselect_b32 s41, 0, 256\ns_sub_u32 s40, s59, s40\ns_lshl_b32 s40, s40, 6\ns_and_b32 s40, s40, 0xffffff80')
    a('s_and_b32 s42, s3, 3\ns_lshl_b32 s42, s42, 6\ns_add_u32 s41, s41, s42\ns_mul_i32 s41, s41, 3584\ns_add_u32 s40, s40, s41')
    a('v_mul_u32_u24 v5, 3584, v1')
    if a.o.get('p16'): a('s_waitcnt vmcnt(0)')
    if a.o.get('dfirst') not in (None, 'none'): a('s_barrier')
    if not a.o.get('early_gu'): a('s_barrier')
    if a.o.get('rpf') == 3: a('buffer_load_dword v22, v13, s[12:15], s62 offen FPOL')
    a('s_cmp_ge_u32 s3, 4\ns_cbranch_scc1 L_R_up\nbuffer_load_dword v8, v5, s[28:31], s40 offen MPOL\ns_branch L_R_done\nL_R_up:\nbuffer_load_dword v8, v5, s[32:35], s40 offen MPOL\nL_R_done:\ns_waitcnt vmcnt(0)')
    a.exit()

def M_comm(a):
    a.role = 'Mc'
    a('L_M_comm:')
    a.karg(64, 'out'); a.srd(64, 1024)
    if a.o.get('p16') or a.o.get('mh'):
        a('s_waitcnt lgkmcnt(0)')
        a.trigger(a.o.get('trig2'))
    else:
        a(f's_and_b32 s58, s5, 7\nv_mov_b32 v14, {WMODE}\nv_mov_b32 v15, 0\nds_write_b32 v14, v15\ns_waitcnt lgkmcnt(0)')
        a.stamp(0)
        a.mark('karg')
        a.get_tag(); a.fin_tag()
        a.mark('tag')
        a.xid_publish()
        if a.o.get('pt_q') == 3: a(f'v_lshlrev_b32 v22, 6, v1\ns_lshl_b32 s42, s4, 3\ns_add_u32 s42, s42, s58\ns_lshl_b32 s42, s42, 12\ns_add_u32 s42, s42, {QP}\nbuffer_load_dword v108, v22, s[8:11], s42 offen sc1')
        if a.o.get('sq'): a(f'v_lshlrev_b32 v22, 6, v1\ns_lshl_b32 s42, s4, 12\ns_add_u32 s42, s42, {QF}\nbuffer_load_dword v113, v22, s[8:11], s42 offen sc1')
        if a.o.get('pt_a'):
            a(f's_lshl_b32 s42, s4, 3\ns_add_u32 s42, s42, s58\ns_and_b32 s43, s42, 15\ns_lshl_b32 s43, s43, 17\ns_bfe_u32 s40, s42, 0x10004\ns_lshl_b32 s40, s40, 13\ns_add_u32 s43, s43, s40\ns_lshr_b32 s40, s42, 5\ns_lshl_b32 s40, s40, 10\ns_add_u32 s43, s43, s40\ns_add_u32 s43, s43, {AX}')
            a(f'v_and_b32 v22, 7, v1\nv_lshlrev_b32 v22, 7, v22\nbuffer_load_dword v110, v22, s[8:11], s43 offen {a.o["pt_a"]}'.replace(' plain', ''))
        if a.o.get('pt_p'):
            a(f's_lshl_b32 s42, s4, 3\ns_add_u32 s42, s42, s58\ns_and_b32 s43, s42, 15\ns_lshl_b32 s43, s43, 17\ns_lshr_b32 s40, s42, 4\ns_lshl_b32 s40, s40, 13\ns_add_u32 s43, s43, s40\ns_add_u32 s43, s43, {MODP}')
            a(f'v_lshlrev_b32 v22, 7, v1\nbuffer_load_dword v111, v22, s[8:11], s43 offen {a.o["pt_p"]}'.replace(' plain', ''))
        if a.o.get('pt_dd'):
            a(f's_lshl_b32 s42, s4, 3\ns_add_u32 s42, s42, s58\ns_and_b32 s43, s42, 15\ns_lshl_b32 s43, s43, 17\ns_lshr_b32 s40, s42, 4\ns_lshl_b32 s40, s40, 12\ns_add_u32 s43, s43, s40\ns_add_u32 s43, s43, {DP}')
            a(f'v_and_b32 v22, 31, v1\nv_lshlrev_b32 v22, 7, v22\nbuffer_load_dword v112, v22, s[8:11], s43 offen')
        if a.o.get('vd'):
            a('s_cmp_lg_u32 s58, 7\ns_cbranch_scc1 L_M_c0')
            a(a.xid_load(44))
            a.poll([a.xid_load(40, True)], range(40, 44), 30, sleep=2)
            for i in range(4): a(f'v_xor_b32 v{40+i}, v2, v{40+i}')
            a.xid_mode(40, True)
            a('s_lshl_b32 s42, s7, 10\ns_or_b32 s42, s42, s6\nv_mov_b32 v40, s42\nv_mov_b32 v41, s42\nv_mov_b32 v42, s42\nv_mov_b32 v43, s42\ns_mov_b64 exec, 1')
            a.store_mode('buffer_store_dwordx4 v[40:43], off, s[8:11], s49')
            a('s_mov_b64 exec, -1\nL_M_c0:')
        if a.o.get('vpf') == 2:
            a.trigger(a.o.get('vtrig', 'own')); a('s_barrier')
        if a.o.get('dfirst') not in (None, 'none'):
            a.trigger(a.o['dfirst']); a('s_barrier')
        a.trigger(a.o.get('trig'))
    a.mark('trig')
    if a.o.get('rq'):
        a('s_cmp_lg_u32 s58, 7\ns_cbranch_scc1 L_M_c1')
        a.poll([a.xid_load(40)], range(40, 44), 30, sleep=4)
        for i in range(4): a(f'v_xor_b32 v{40+i}, v2, v{40+i}')
        a.xid_mode(40)
        a('v_mov_b32 v15, s7\nds_write_b32 v14, v15 offset:4\ns_waitcnt lgkmcnt(0)\nL_M_c1:')
    a('s_barrier')
    a.stamp(1)
    if a.o.get('cpf2'): a('global_load_dword v23, v21, s[52:53]\nglobal_load_dword v24, v22, s[52:53]')
    if a.o.get('tlb_out'): a('v_mov_b32 v108, 0\ns_mov_b64 exec, 1\nbuffer_load_dword v109, v108, s[64:67], 0 offen\ns_mov_b64 exec, -1')
    a('s_cmp_eq_u32 s58, 7\ns_cbranch_scc1 L_M_cdone')
    a.probe(4)
    a('v_mov_b32 v15, s76\nds_write_b32 v14, v15' + (' offset:4' if a.o.get('p16') else ''))
    a('s_cmp_ge_u32 s58, 2\ns_cbranch_scc1 L_M_cdone')
    a('s_lshl_b32 s59, s4, 1\ns_add_u32 s59, s59, s58\nv_and_b32 v10, 31, v1\nv_lshlrev_b32 v11, 1, v10\nv_lshlrev_b32 v12, 2, v10\nv_lshlrev_b32 v17, 2, v1')
    a(f's_lshl_b32 s40, s59, 6\ns_lshl_b32 s42, s59, 7\nv_add_u32 v13, s42, v12\ns_lshl_b32 s54, s59, 9\ns_add_u32 s54, s54, {DP}\ns_add_u32 s54, s54, s76')
    a(f's_mul_i32 s41, s4, 12288\ns_add_u32 s41, s41, s42\ns_add_u32 s41, s41, {MODV + 5*2048}')
    for i in range(1, 16): a(f'v_add_u32 v{64+i}, {i*BLK}, v17')
    a('v_mov_b32 v64, v17')
    if a.o.get('pt_d'):
        for i in range(28): a(f'buffer_load_dword v{32+i}, v{64+(i&15)}, s[8:11], s54 offen offset:{256*(i>>4)} {a.o["pt_d"]}')
    if a.o.get('dl') == 3: a('s_barrier')
    a('s_barrier')
    a.mark('mb1')
    a(f'ds_read_b32 v28, v13 offset:{WX1}')
    a.poll(['buffer_load_dword v29, v12, s[8:11], s41 offen sc1', 'buffer_load_dword v31, v12, s[8:11], s41 offen sc1'], [29, 31], 30)
    a('s_waitcnt lgkmcnt(0)\ns_barrier')
    a.stamp(2)
    if a.o.get('dpdelay'): a(f's_sleep {a.o["dpdelay"]}')
    if a.o.get('dpgate'): a('s_barrier')
    a.poll([f'buffer_load_dword v{32+i}, v{64+(i&15)}, s[8:11], s54 offen offset:{256*(i>>4)} sc1' for i in range(28)], range(32, 60), 30)
    a.stamp(3)
    a.tree_add(range(32, 60))
    a.swap_op(32, 'v_add_f32', 32, 33)
    a.rbf(32, 32)
    a('v_mul_f32 v32, v29, v32'); a.rbf(32, 32)
    a('v_add_f32 v32, v28, v32'); a.rbf(32, 32)
    a.mark('end'); a.hold()
    a('s_mov_b32 exec_hi, 0\nbuffer_store_short_d16_hi v32, v11, s[64:67], s40 offen')
    a(f's_cmp_lg_u32 s59, 0\ns_cbranch_scc1 L_M_noep\ns_mov_b64 exec, 1\nv_mov_b32 v33, s45\nv_mov_b32 v34, {EPOCH}\nbuffer_store_dword v33, v34, s[8:11], 0 offen sc1\nL_M_noep:')
    a.stamp(4)
    if a.o.get('amp'):
        a('s_waitcnt vmcnt(0)\ns_memrealtime s[98:99]\ns_waitcnt lgkmcnt(0)\ns_sub_u32 s97, s98, s96\ns_mul_i32 s97, s97, 11')
        a('L_amp:\ns_memrealtime s[98:99]\ns_waitcnt lgkmcnt(0)\ns_sub_u32 s98, s98, s96\ns_cmp_lt_u32 s98, s97\ns_cbranch_scc1 L_amp')
    a('L_M_cdone:')
    a.exit()

DOC = '; ---------------------------------------------------------------------------------------------------------------\n; One persistent launch: 256 workgroups (one per CU) x 9 waves (8 work waves + 1 communication wave).\n; group g = wg & 7 owns kv head g; idx = wg >> 3 picks the role:\n;   idx 24..30  M: LN2, 32 columns of gate/up, sigmoid(g)*u, 32 rows of w_down; slots 0,1 also reduce the output\n; Hand-offs go through d_ws; every word (or 8-byte granule) carries the launch tag = (word at d_ws[0] on entry) + 1,\n; which the last reducer writes back.  Readers poll with sc1 loads until all tags match.  Hand-offs inside a group use\n; plain stores only when all 32 workgroups of the group reported the same XCC id, else write-through (sc1) stores.\n; Cross-group hand-offs are written twice (address bit 13 clear/set); a reader picks the copy that answers faster.\n; All intermediate values are rounded to bf16 where the reference rounds them.\n; ---------------------------------------------------------------------------------------------------------------\n'
HEADER = open('adaLN_cond__sliding_block_cached__glu_gated_glu__decode.s.ref').read().split('; Override launch')[0]
def emit(fn, prof=False, opts=None):
    a = gen_all(prof, opts)
    body = a.text()
    for p in ('MPOL', 'FPOL', 'OPOL', 'KPOL', 'VPOL', 'WPOL', 'RPOL', 'UPOL'): body = body.replace(' ' + p, (' ' + a.o.get(p, 'nt')).rstrip())
    errs = lint(body)
    if errs: print('\n'.join(errs)); raise SystemExit('lint errors')
    vg = 128
    txt = f'''{HEADER}; @launch grid=(256,1,1) block=(576,1,1) lds={LDS_TOTAL}
{DOC}.amdgcn_target "amdgcn-amd-amdhsa--gfx950"
.text
.globl {NAME}
.p2align 8
.type {NAME},@function
{NAME}:
{body}.section .rodata,"a"
.p2align 6
.amdhsa_kernel {NAME}
  .amdhsa_next_free_vgpr {vg}
  .amdhsa_next_free_sgpr 100
  .amdhsa_accum_offset {vg}
  .amdhsa_group_segment_fixed_size 0
  .amdhsa_kernarg_size 112
  .amdhsa_user_sgpr_count 2
  .amdhsa_user_sgpr_kernarg_segment_ptr 1
  .amdhsa_system_sgpr_workgroup_id_x 1
.end_amdhsa_kernel
'''
    open(fn, 'w').write(txt)
BEST = dict(psame=1, pt_m=1, pt_o=1, pw_d=1, pt_q=3, RPOL='', FPOL='', MPOL='', OPOL='', kvt0=1, apf2=1, a_pfw=1, trig='h1', q1=1, split=1, kv_bar=1, dpgate=1, cwo=0, fp2=1, fgate=1, hc=1)
if __name__ == '__main__':
    emit('best.s', opts=BEST); emit('bestp.s', prof=True, opts=BEST); emit('best_amp.s', opts=dict(BEST, amp=1)); emit('best_slow.s', opts=dict(BEST, force_slow=1))
```

```python
import sys
from asmlib import Asm, KOFF, NAME
from lint import lint

BLK = 131072
EPOCH = 0; XID = 0x400; AX = 0x1000; DP = 0x4000; MODP = 0x8000; PROBE = 0x10000; COPY = 8192
QV = 0x200000; MODV = 0x204000; OS = 0x21C000; QF = 0x220000; AL = 0x230000; HV = 0x238000; VD = 0x23C000; QP = 0x240000; OP = 0x2C0000; AP = 0x300000; STAMP = 0x400000
TMASK = 0x3FF; LIMIT = 1000000
LK = 0; LV = 65536; LQ = 131072; LMX = LQ + 1152; LLS = LMX + 128; LP = LLS + 512; LOF = LP + 2048; LZ = LOF + 64; LMODE_A = LZ + 64; LRED = (LMODE_A + 64 + 255) // 256 * 256; LDS_TOTAL = LRED + 2048
WCS = 0; WH = 1024; WMODE = 1152; WZ = 1280; WX1 = 2048; WST = 4096; WH2 = 4224; WGU = 5376; WHH = 7424; WQL = 8192
SCALE = 0x3DB504F3; LOG2E = 0x3FB8AA3B; EPS = 0x3727C5AC
DPP = 'row_mask:0xf bank_mask:0xf'

class G(Asm):
    def __init__(self, prof=False, opts=None):
        super().__init__(); self.prof = prof; self.o = opts or {}
    role = ''
    def stamp(self, slot):
        if self.o.get('hs') == (self.role, slot): self('s_memrealtime s[94:95]\ns_waitcnt lgkmcnt(0)')
        if self.prof: self(f's_memrealtime s[60:61]\ns_waitcnt lgkmcnt(0)\nv_writelane_b32 v127, s60, {slot}')
    def exit(self):
        if self.o.get('hs') and self.o['hs'][0] == self.role:
            l = self.label('H')
            self('s_waitcnt lgkmcnt(0)\ns_sub_u32 s97, s94, s96\ns_mul_i32 s97, s97, 10\ns_add_u32 s97, s97, 1500')
            self(f'{l}:\ns_memrealtime s[98:99]\ns_waitcnt lgkmcnt(0)\ns_sub_u32 s98, s98, s96\ns_cmp_lt_u32 s98, s97\ns_cbranch_scc1 {l}')
        if self.prof:
            self('v_writelane_b32 v127, s96, 13')
            self(f's_mov_b64 exec, 0xffff\ns_lshl_b32 s60, s5, 3\ns_add_u32 s60, s60, s4\ns_mul_i32 s60, s60, 9\ns_add_u32 s60, s60, s3\ns_lshl_b32 s60, s60, 6\ns_add_u32 s60, s60, {STAMP}')
            self('v_lshlrev_b32 v126, 2, v1\nbuffer_store_dword v127, v126, s[8:11], s60 offen')
        self('s_endpgm')
    def srd(self, s, nbytes): self(f's_mov_b32 s{s+2}, {nbytes:#x}\ns_mov_b32 s{s+3}, 0x20000')
    def karg(self, s, k): self(f's_load_dwordx2 s[{s}:{s+1}], s[0:1], {KOFF[k]}')
    def rbf(self, d, s): self(f'v_cvt_pk_bf16_f32 v{d}, 0, v{s}')
    def get_tag(self):
        self(f's_load_dword s45, s[8:9], {EPOCH}\ns_mov_b32 s46, {0xFFFFFFFF ^ TMASK:#x}\ns_mov_b32 s50, 0x05040100\ns_mov_b32 s51, 0x07060302')
    def fin_tag(self):
        self(f's_waitcnt lgkmcnt(0)\ns_add_u32 s45, s45, 1\ns_and_b32 s6, s45, {TMASK}\nv_mov_b32 v2, s6')
    def _loop(self, loads, check, sleep, first_issued=False):
        l = self.label('P')
        self('s_mov_b32 s47, 0')
        if first_issued: self(f's_branch {l}_w')
        self(f'{l}:')
        for x in loads: self(x)
        if first_issued: self(f'{l}_w:')
        self(f's_add_u32 s47, s47, 1\ns_cmp_gt_u32 s47, {LIMIT}\ns_cbranch_scc1 {l}_t')
        self('s_waitcnt vmcnt(0)')
        check()
        if sleep: self(f's_cbranch_vccz {l}_x\ns_sleep {sleep}\ns_branch {l}')
        else: self(f's_cbranch_vccnz {l}')
        self.tails.append(f'{l}_t:\ns_waitcnt vmcnt(0)\ns_branch {l}_x')
        self(f'{l}_x:')
    tails = None
    def poll(self, loads, regs, acc, sleep=None, first_issued=False):
        def check():
            for r in regs: self(f'v_xor_b32 v{r}, v2, v{r}')
            rs = list(regs)
            self(f'v_or_b32 v{acc}, v{rs[0]}, v{rs[1]}'); rs = rs[2:]
            while len(rs) >= 2: self(f'v_or3_b32 v{acc}, v{acc}, v{rs[0]}, v{rs[1]}'); rs = rs[2:]
            if rs: self(f'v_or_b32 v{acc}, v{acc}, v{rs[0]}')
            self(f'v_and_b32 v{acc}, {TMASK}, v{acc}\nv_cmp_ne_u32 vcc, 0, v{acc}')
        self._loop(loads, check, sleep, first_issued)
    def poll_sum(self, loads, regs, acc, out):
        l = self.label('P'); n = len(regs)
        self(f's_mov_b32 s47, 0\n{l}:')
        for x in loads: self(x)
        self(f's_add_u32 s47, s47, 1\ns_cmp_gt_u32 s47, {LIMIT}\ns_cbranch_scc1 {l}_t')
        for k in range(0, n, 4):
            r = regs[k:k+4]
            self(f's_waitcnt vmcnt({n - k - 4})')
            for x in r: self(f'v_xor_b32 v{x}, v2, v{x}')
            if k == 0: self(f'v_or_b32 v{acc}, v{r[0]}, v{r[1]}\nv_pk_add_f32 v[{out}:{out+1}], v[{r[0]}:{r[1]}], v[{r[2]}:{r[3]}]\nv_or3_b32 v{acc}, v{acc}, v{r[2]}, v{r[3]}')
            else:
                self(f'v_or3_b32 v{acc}, v{acc}, v{r[0]}, v{r[1]}\nv_or3_b32 v{acc}, v{acc}, v{r[2]}, v{r[3]}')
                if k == n - 4: self(f'v_and_b32 v{acc}, {TMASK}, v{acc}\nv_cmp_ne_u32 vcc, 0, v{acc}')
                self(f'v_pk_add_f32 v[{r[0]}:{r[1]}], v[{r[0]}:{r[1]}], v[{r[2]}:{r[3]}]\nv_pk_add_f32 v[{out}:{out+1}], v[{out}:{out+1}], v[{r[0]}:{r[1]}]')
        self(f's_cbranch_vccnz {l}')
        self.tails.append(f'{l}_t:\ns_waitcnt vmcnt(0)\ns_branch {l}_x')
        self(f'{l}_x:')
    def poll8_sum(self, loads, base, n, acc, groups):
        l = self.label('P')
        self(f's_mov_b32 s47, 0\n{l}:')
        for x in loads: self(x)
        self(f's_add_u32 s47, s47, 1\ns_cmp_gt_u32 s47, {LIMIT}\ns_cbranch_scc1 {l}_t')
        first = {i: f for f, c in groups for i in range(f, f + c)}
        for k in range(0, n, 2):
            self(f's_waitcnt vmcnt({n - k - 2})')
            if k == 0: self(f'v_xor_b32 v{acc}, s45, v{base+1}')
            else: self(f'v_bitop3_b32 v{acc}, v{acc}, v{base+2*k+1}, s45 bitop3:0xf6')
            self(f'v_bitop3_b32 v{acc}, v{acc}, v{base+2*k+3}, s45 bitop3:0xf6')
            if k == n - 2: self(f'v_cmp_ne_u32 vcc, 0, v{acc}')
            self(f'v_add_f32 v{base+2*k}, v{base+2*k}, v{base+2*k+2}')
            if first[k] != k: self(f'v_add_f32 v{base+2*first[k]}, v{base+2*first[k]}, v{base+2*k}')
        self(f's_cbranch_vccnz {l}')
        self.tails.append(f'{l}_t:\ns_waitcnt vmcnt(0)\ns_branch {l}_x')
        self(f'{l}_x:')
    def poll8(self, loads, tags, acc, sleep=None):
        def check():
            rs = list(tags)
            self(f'v_xor_b32 v{acc}, s45, v{rs[0]}')
            for r in rs[1:]: self(f'v_bitop3_b32 v{acc}, v{acc}, v{r}, s45 bitop3:0xf6')
            self(f'v_cmp_ne_u32 vcc, 0, v{acc}')
        self._loop(loads, check, sleep)
    def store_mode(self, ins):
        l = self.label('S')
        self(f's_cmp_eq_u32 s7, 1\ns_cbranch_scc0 {l}_s\n{ins}\n{l}_e:')
        self.tails.append(f'{l}_s:\n{ins} sc1\ns_branch {l}_e')
    def store2(self, ins, sreg, tmp):
        self(ins.format(s=sreg) + ' sc1')
        if not self.o.get('onecopy'): self(f's_add_u32 s{tmp}, s{sreg}, {COPY}\n' + ins.format(s=tmp) + ' sc1')
    def tree_add(self, regs):
        regs = list(regs)
        while len(regs) > 1:
            nxt = []
            for i in range(0, len(regs) - 1, 2):
                self(f'v_add_f32 v{regs[i]}, v{regs[i]}, v{regs[i+1]}'); nxt.append(regs[i])
            if len(regs) % 2: nxt.append(regs[-1])
            regs = nxt
    def tree8(self, b):
        if self.o.get('pk'):
            self(f'v_pk_add_f32 v[{b}:{b+1}], v[{b}:{b+1}], v[{b+2}:{b+3}]\nv_pk_add_f32 v[{b+4}:{b+5}], v[{b+4}:{b+5}], v[{b+6}:{b+7}]\nv_pk_add_f32 v[{b}:{b+1}], v[{b}:{b+1}], v[{b+4}:{b+5}]\nv_add_f32 v{b}, v{b}, v{b+1}')
        else: self.tree_add(range(b, b + 8))
    def swap_op(self, which, op, v, t):
        self(f'v_mov_b32 v{t}, v{v}\ns_nop 1\nv_permlane{which}_swap_b32 v{v}, v{t}\n{op} v{v}, v{v}, v{t}')
    def row_reduce(self, op, regs):
        for k in (8, 4, 2, 1):
            if len(regs) < 3: self(f's_nop {2 - len(regs) + (0 if k != 8 else 1)}')
            elif k == 8: self('s_nop 1')
            for r in regs: self(f'{op}_dpp v{r}, v{r}, v{r} row_ror:{k} {DPP}')
    def wave_reduce(self, op, regs, t):
        self.row_reduce(op, regs)
        for w in (16, 32):
            for i, r in enumerate(regs): self(f'v_mov_b32 v{t+i}, v{r}')
            self('s_nop 1')
            for i, r in enumerate(regs): self(f'v_permlane{w}_swap_b32 v{r}, v{t+i}')
            for i, r in enumerate(regs): self(f'{op} v{r}, v{r}, v{t+i}')
    def div(self, q, n, d, r, t):
        self(f'v_rcp_f32 v{r}, v{d}\ns_nop 0\nv_mul_f32 v{t}, v{n}, v{r}\nv_fma_f32 v{q}, -v{t}, v{d}, v{n}\nv_fma_f32 v{q}, v{q}, v{r}, v{t}')
    def xid_publish(self):
        self('s_getreg_b32 s44, hwreg(HW_REG_XCC_ID)\ns_and_b32 s44, s44, 0xffff\ns_lshl_b32 s44, s44, 16\ns_or_b32 s44, s44, s6')
        self('v_mov_b32 v4, s44\nv_mov_b32 v5, s44\nv_mov_b32 v6, s44\nv_mov_b32 v7, s44\nv_mov_b32 v8, 0')
        self(f's_lshl_b32 s48, s4, 8\ns_add_u32 s48, s48, {XID}\ns_and_b32 s49, s5, 15\ns_lshl_b32 s49, s49, 17\ns_add_u32 s49, s49, s48\ns_lshr_b32 s42, s5, 4\ns_lshl_b32 s42, s42, 7\ns_add_u32 s49, s49, s42')
        self('s_mov_b64 exec, 1\nbuffer_store_dwordx4 v[4:7], v8, s[8:11], s49 offen sc1\ns_mov_b64 exec, -1')
        self('v_and_b32 v3, 15, v1\nv_lshlrev_b32 v3, 17, v3\nv_bfe_u32 v8, v1, 4, 1\nv_lshl_add_u32 v3, v8, 7, v3')
        if self.o.get('vd'): self(f's_lshl_b32 s49, s4, 7\ns_add_u32 s49, s49, {VD}')
    def xid_load(self, r, full=False):
        if self.o.get('vd') and not full: return f'buffer_load_dwordx4 v[{r}:{r+3}], off, s[8:11], s49 sc1'
        return f'buffer_load_dwordx4 v[{r}:{r+3}], v3, s[8:11], s48 offen sc1'
    def xid_mode(self, r, full=False):
        if self.o.get('vd') and not full:
            self(f's_or_b32 s44, s6, 0x400')
        for i in range(4): self(f'v_xor_b32 v{r+i}, s44, v{r+i}')
        self(f'v_or3_b32 v{r}, v{r}, v{r+1}, v{r+2}\nv_or_b32 v{r}, v{r}, v{r+3}\nv_cmp_ne_u32 vcc, 0, v{r}\ns_nop 1\ns_cmp_eq_u64 vcc, 0\ns_cselect_b32 s7, 1, 0')
        if self.o.get('force_slow'): self('s_mov_b32 s7, 0')
    def probe(self, rounds):
        if self.o.get('onecopy') or self.o.get('noprobe'):
            self(f's_mov_b32 s76, {COPY if self.o.get("noprobe") == 2 else 0}'); return
        self(f's_and_b32 s42, s5, 15\ns_lshl_b32 s42, s42, 17\ns_lshl_b32 s43, s4, 10\ns_add_u32 s42, s42, s43\ns_add_u32 s42, s42, {PROBE}\ns_add_u32 s78, s8, s42\ns_addc_u32 s79, s9, 0')
        same = self.o.get('psame')
        if same: self(f's_mov_b32 s76, -1\ns_mov_b32 s77, -1\ns_load_dword s42, s[78:79], 0 glc\ns_load_dword s43, s[78:79], {COPY} glc\ns_waitcnt lgkmcnt(0)')
        else: self('s_mov_b32 s76, -1\ns_mov_b32 s77, -1\ns_load_dword s42, s[78:79], 896 glc\ns_waitcnt lgkmcnt(0)')
        for k in range(rounds):
            for side in range(2):
                self(f's_memtime s[72:73]\ns_waitcnt lgkmcnt(0)\ns_load_dword s42, s[78:79], {(0 if same else 128*k) + COPY*side} glc\ns_waitcnt lgkmcnt(0)\ns_memtime s[74:75]\ns_waitcnt lgkmcnt(0)')
                self(f's_sub_u32 s74, s74, s72\ns_min_u32 s{76+side}, s{76+side}, s74')
        if self.prof: self('v_writelane_b32 v127, s76, 14\nv_writelane_b32 v127, s77, 15')
        self(f's_cmp_lt_u32 s77, s76\ns_cselect_b32 s76, {COPY}, 0')
    def prefetch_code(self, r):
        self(f's_getpc_b64 s[52:53]\nL_pc:')
        self(f's_sub_u32 s52, s52, L_pc-{NAME}\ns_subb_u32 s53, s53, 0')
        self(f'v_lshlrev_b32 v{r}, 7, v1')
        for k in range(2):
            self(f'v_add_u32 v{r+1+k}, {k*8192}, v{r}\nv_min_u32 v{r+1+k}, L_code_end-{NAME}-4, v{r+1+k}')
            self(f'global_load_dword v{r+3+k}, v{r+1+k}, s[52:53]')
    def perm_x2(self, src, dst):
        for jj in range(4):
            for d in range(4): self(f'v_perm_b32 v{dst+4*jj+d}, v{src+2*(2*d+1)+(jj>>1)}, v{src+2*(2*d)+(jj>>1)}, s{50+(jj&1)}')
    def perm_x1(self, src, dst):
        for jj in range(2):
            for d in range(4): self(f'v_perm_b32 v{dst+4*jj+d}, v{src+2*d+1}, v{src+2*d}, s{50+jj}')
    def tr_addr(self, base, dst, sh=13):
        self('v_bfe_u32 v18, v1, 1, 1\nv_and_b32 v28, 1, v1\nv_and_b32 v29, 1, v4\nv_lshl_add_u32 v29, v29, 2, v5\nv_lshlrev_b32 v29, 1, v29\nv_xor_b32 v29, v29, v18')
        self('v_lshlrev_b32 v29, 4, v29\nv_lshl_add_u32 v29, v28, 3, v29\nv_lshl_add_u32 v29, v5, 10, v29\n' + f'v_lshl_add_u32 v29, v4, {sh}, v29')
        self('s_lshl_b32 s42, s3, 7\nv_xor_b32 v29, s42, v29')
        if base: self(f'v_add_u32 v29, {base}, v29')
        for jj in range(4): self(f'v_xor_b32 v{dst+jj}, {32*jj}, v29')
    def mask_addr(self, frag, zero, dst):
        self(f'v_lshlrev_b32 v28, 4, v4\nv_add_u32 v28, {frag}, v28\nv_mov_b32 v29, {zero}')
        for jj in range(4): self(f'v_cmp_eq_u32 vcc, {jj}, v5\ns_nop 1\nv_cndmask_b32 v{dst+jj}, v29, v28, vcc')
    def modp_base(self, d, cb):
        self(f's_and_b32 s{d}, s{cb}, 15\ns_lshl_b32 s{d}, s{d}, 17\ns_bfe_u32 s42, s{cb}, 0x20004\ns_lshl_b32 s42, s42, 11\ns_add_u32 s{d}, s{d}, s42\ns_lshr_b32 s42, s{cb}, 6\ns_lshl_b32 s42, s42, 14\ns_add_u32 s{d}, s{d}, s42\ns_add_u32 s{d}, s{d}, {MODP}')
    def silu_frag(self, nvm):
        self('s_lshl_b32 s42, s3, 7\nv_add_u32 v13, s42, v7\nv_add_u32 v14, s42, v9')
        self(f's_waitcnt vmcnt({nvm})')
        self('v_lshlrev_b32 v8, 16, v8\nv_mul_f32 v15, s57, v8\nv_max_f32 v15, 0xc2fc0000, v15\nv_exp_f32 v15, -v15\ns_nop 0\nv_add_f32 v15, 1.0, v15')
        self.div(15, 8, 15, 16, 18)
        self.rbf(15, 15)
        self('ds_write_b16_d16_hi v13, v15\nds_read_b128 v[20:23], v14\nds_read_b128 v[24:27], v14 offset:64')
    def mod_loads(self, pol='FPOL'):
        for r in range(16):
            self(f'buffer_load_dword v{32+r}, v5, s[12:15], s41 offen {pol}')
            if r < 15: self(f's_add_u32 s41, s41, {6144 if r != 7 else 6144*25}')
    def mod_partial(self, two=False):
        self.perm_x1(32, 48); self.perm_x1(40, 56)
        self('s_waitcnt lgkmcnt(0)')
        for t in range(2):
            for jj in range(2):
                c = '0' if t == 0 else f'v[{32+4*jj}:{35+4*jj}]'
                self(f'v_mfma_f32_16x16x32_bf16 v[{32+4*jj}:{35+4*jj}], v[{20+4*t}:{23+4*t}], v[{48+8*t+4*jj}:{51+8*t+4*jj}], {c}')
        self('v_lshlrev_b32 v15, 4, v3\ns_lshl_b32 s42, s4, 8\ns_add_u32 s42, s42, s55\nv_mov_b32 v29, s45\nv_mov_b32 v31, s45\ns_mov_b64 exec, 0xffff\ns_nop 0')
        self('v_mov_b32 v28, v32\nv_mov_b32 v30, v36')
        if self.o.get('fprobe') or two: self.store2('buffer_store_dwordx4 v[28:31], v15, s[8:11], s{s} offen', 42, 43)
        else: self('buffer_store_dwordx4 v[28:31], v15, s[8:11], s42 offen sc1')
        self('s_mov_b64 exec, -1')
    def trigger(self, kind):
        if kind == 'os':
            self(f'v_lshlrev_b32 v9, 4, v1\ns_lshl_b32 s40, s4, 10\ns_add_u32 s40, s40, {OS}')
            self.poll(['buffer_load_dwordx4 v[32:35], v9, s[8:11], s40 offen sc1'], range(32, 36), 30, sleep=2)
        elif kind == 'h1':
            self(f'v_and_b32 v9, 7, v1\nv_lshlrev_b32 v9, 8, v9\ns_lshl_b32 s40, s58, 18\ns_add_u32 s40, s40, {MODP}')
            self.poll8(['buffer_load_dwordx2 v[32:33], v9, s[8:11], s40 offen sc1'], [33], 30, sleep=2)
        elif kind == 'qp':
            self(f'v_and_b32 v9, 7, v1\nv_lshlrev_b32 v9, 9, v9\ns_lshl_b32 s40, s4, 3\ns_add_u32 s40, s40, s58\ns_lshl_b32 s40, s40, 12\ns_add_u32 s40, s40, {QP}')
            self.poll8(['buffer_load_dwordx2 v[32:33], v9, s[8:11], s40 offen sc1'], [33], 30, sleep=2)
        elif kind == 'own':
            self(f'v_mov_b32 v9, 0\ns_lshl_b32 s40, s58, 18\ns_lshl_b32 s42, s4, 8\ns_add_u32 s40, s40, s42\ns_add_u32 s40, s40, {MODP}')
            self.poll8(['buffer_load_dwordx2 v[32:33], v9, s[8:11], s40 offen sc1'], [33], 30, sleep=2)
        elif kind == 'q':
            self(f'v_lshlrev_b32 v9, 4, v1\ns_lshl_b32 s40, s4, 11\ns_add_u32 s40, s40, {QV}')
            self.poll(['buffer_load_dwordx4 v[32:35], v9, s[8:11], s40 offen sc1', 'buffer_load_dwordx4 v[36:39], v9, s[8:11], s40 offen offset:1024 sc1'], range(32, 40), 30, sleep=2)
    def mark(self, name):
        if self.o.get('hold') == name: self('s_memrealtime s[96:97]\ns_waitcnt lgkmcnt(0)')
    def hold(self):
        if self.o.get('hold'): self('L_hold:\ns_memrealtime s[98:99]\ns_waitcnt lgkmcnt(0)\ns_sub_u32 s98, s98, s96\ns_cmp_lt_u32 s98, 2000\ns_cbranch_scc1 L_hold')
    def wo_row(self, r):
        if self.o.get('hc'):
            self(f'buffer_load_dwordx4 v{108+(r&1)}, s[20:23], s58 offen offset:{1024*r} OPOL lds' + ('\ns_add_u32 s58, s58, 7168' if r < 3 else ''))
        else: self(f'buffer_load_dwordx4 v{108+r}, s[20:23], s58 offen offset:{1024*r} OPOL lds')
    def combine(self, vs, vd, ss, sd, pre=None):
        D = [f'buffer_load_dwordx4 v[48:51], v{vd}, s[8:11], s{sd} offen sc1', f'buffer_load_dwordx4 v[52:55], v{vd}, s[8:11], s{sd} offen offset:1024 sc1']
        S = f'buffer_load_dwordx4 v[56:59], v{vs}, s[8:11], s{ss} offen sc1'
        if self.o.get('se'):
            l = self.label('P')
            self(f's_mov_b32 s47, 0\n{l}:\n{S}\n' + '\n'.join(D) + f'\ns_add_u32 s47, s47, 1\ns_cmp_gt_u32 s47, {LIMIT}\ns_cbranch_scc1 {l}_x\ns_waitcnt vmcnt(2)')
            for r in range(56, 60): self(f'v_xor_b32 v{r}, v2, v{r}')
            self(f'v_or3_b32 v30, v56, v57, v58\nv_or_b32 v30, v30, v59\nv_and_b32 v30, {TMASK}, v30\nv_cmp_ne_u32 vcc, 0, v30\ns_cbranch_vccnz {l}\n{l}_x:')
        else:
            self.poll([S], range(56, 60), 30, sleep=self.o.get('ssleep'))
            self('\n'.join(D))
        if pre: pre()
        self(f'v_max_f32_dpp v58, v56, v56 row_ror:8 {DPP}')
        for k in (4, 2, 1): self(f's_nop 1\nv_max_f32_dpp v58, v58, v58 row_ror:{k} {DPP}')
        self('v_sub_f32 v56, v56, v58\nv_mul_f32 v56, s57, v56\nv_exp_f32 v56, v56\ns_nop 0\nv_mul_f32 v57, v56, v57')
        for k in (8, 4, 2, 1): self(f's_nop 1\nv_add_f32_dpp v57, v57, v57 row_ror:{k} {DPP}')
        self('v_rcp_f32 v57, v57\ns_nop 0\nv_mul_f32 v56, v56, v57')
        self.poll(D, range(48, 56), 30, first_issued=True)
        self.stamp(3 if self.role == 'Ac' else 6)
        for r in range(48, 56, 2): self(f'v_pk_mul_f32 v[{r}:{r+1}], v[{r}:{r+1}], v[56:57] op_sel_hi:[1,0]')
        for k in (8, 4, 2, 1):
            for r in range(48, 56): self(f'v_add_f32_dpp v{r}, v{r}, v{r} row_ror:{k} {DPP}')
        for d in range(4): self(f'v_cvt_pk_bf16_f32 v{32+d}, v{48+2*d}, v{49+2*d}')
    def flush_tails(self):
        for t in self.tails: self(t)
        self.tails = []

def gen_all(prof=False, opts=None):
    a = G(prof, opts); a.tails = []
    a('s_cmp_ge_u32 s2, 256\ns_cbranch_scc1 L_exit')
    a.mark('entry')
    if a.o.get('hs') or a.o.get('amp'): a('s_memrealtime s[96:97]\ns_memrealtime s[94:95]')
    if prof: a('s_memrealtime s[96:97]')
    a.karg(8, 'ws')
    if not a.o.get('nokt'): a('s_load_dword s62, s[0:1], 0')
    a('s_and_b32 s4, s2, 7\ns_lshr_b32 s5, s2, 3\nv_lshrrev_b32 v2, 6, v0\nv_and_b32 v1, 63, v0')
    if a.o.get('ffirst'): a('s_add_u32 s7, s5, 16\ns_sub_u32 s42, s5, 8\ns_cmp_lt_u32 s5, 8\ns_cselect_b32 s42, s7, s42\ns_cmp_lt_u32 s5, 24\ns_cselect_b32 s5, s42, s5')
    a('s_mov_b32 s7, 0\nv_readfirstlane_b32 s3, v2')
    a.srd(8, 0x10000000)
    if prof: a('v_mov_b32 v127, 0')
    a('v_and_b32 v3, 15, v1\nv_lshrrev_b32 v4, 4, v1')
    a('s_cmp_lg_u32 s3, 8\ns_cbranch_scc1 L_work')
    if a.o.get('tlb0'):
        a('s_load_dwordx4 s[24:27], s[0:1], 24\ns_load_dwordx8 s[28:35], s[0:1], 48\ns_load_dwordx4 s[36:39], s[0:1], 80')
    if not a.o.get('nocpf'): a.prefetch_code(20)
    a('s_setprio 3')
    if a.o.get('tlb0'):
        a('s_lshl_b32 s42, s4, 19\nv_mov_b32 v26, 0\nv_mov_b32 v27, 0x200000\nv_mov_b32 v28, s42\ns_mov_b64 exec, 1\ns_waitcnt lgkmcnt(0)')
        for i, (p, v) in enumerate(((8, 26), (8, 27), (26, 28), (28, 26), (30, 26), (32, 26), (38, 26), (24, 26), (24, 27))):
            a(f'global_load_dword v{108+i}, v{v}, s[{p}:{p+1}]')
        a('s_mov_b64 exec, -1')
    if a.o.get('mh'): a('s_cmp_lt_u32 s5, 16\ns_cbranch_scc1 L_A_comm\ns_cmp_lt_u32 s5, 24\ns_cbranch_scc1 L_F_comm2')
    elif not a.o.get('p16'): a('s_cmp_ge_u32 s5, 24\ns_cbranch_scc1 L_M_comm')
    if not a.o.get('mh'): a('s_cmp_lt_u32 s5, 16\ns_cbranch_scc1 L_A_comm')
    a('s_branch L_F_comm')
    a('L_work:')
    a('s_cmp_lt_u32 s5, 16\ns_cbranch_scc1 L_Ai')
    FM_issue(a)
    F_early(a)
    a('s_branch L_F_j')
    a('L_Ai:')
    A_issue(a)
    a('s_branch L_A')
    if not a.o.get('p16'): M_early(a)
    for f in (F_body, F_comm, A_comm, A_body, M_body, M_comm):
        f(a); a.flush_tails()
    a('L_exit:\ns_endpgm\nL_code_end:')
    return a

def A_issue(a):
    a.role = 'A'
    a.karg(20, 'wq'); a.karg(12, 'k'); a.karg(16, 'v')
    a.srd(12, 0x2000000); a.srd(16, 0x2000000); a.srd(20, 0x400000)
    a('v_bfe_u32 v14, v1, 3, 1\nv_lshlrev_b32 v14, 13, v14\nv_and_b32 v6, 7, v1\nv_lshl_add_u32 v14, v6, 7, v14\nv_lshl_add_u32 v14, v4, 5, v14')
    a('s_lshr_b32 s44, s5, 1\ns_lshl_b32 s44, s44, 5\ns_and_b32 s41, s5, 1\ns_lshl_b32 s41, s41, 3\ns_add_u32 s44, s44, s41\ns_add_u32 s44, s44, s3\ns_lshl_b32 s44, s44, 14\ns_lshl_b32 s41, s4, 10\ns_add_u32 s44, s44, s41')
    a('v_lshlrev_b32 v5, 8, v4')
    for i in range(4): a(f'v_add_u32 v6, {4*i}, v4\nv_xor_b32 v6, v6, v3\nv_lshl_add_u32 v{8+i}, v6, 4, v5')
    for i in range(2): a(f'v_add_u32 v6, {4*i}, v4\nv_lshlrev_b32 v6, 1, v6\nv_xor_b32 v6, v6, v3\nv_lshl_add_u32 v{12+i}, v6, 4, v5')
    a(f's_lshl_b32 s40, s4, 22\ns_lshl_b32 s41, s5, 16\ns_add_u32 s40, s40, s41\ns_lshl_b32 s41, s3, 13\ns_add_u32 s40, s40, s41\ns_add_u32 s40, s40, {3<<20}\ns_add_u32 s43, s40, 4096\ns_mov_b32 m0, s41')
    a('s_waitcnt lgkmcnt(0)')
    a.stamp(0)
    a.get_tag()
    if a.o.get('kvt0'): a('s_mov_b64 exec, 1\nbuffer_load_dword v105, v8, s[12:15], s40 offen KPOL\nbuffer_load_dword v106, v8, s[16:19], s40 offen KPOL\nbuffer_load_dword v107, v14, s[20:23], s44 offen FPOL\ns_mov_b64 exec, -1')
    if a.o.get('a_tagw'): a.fin_tag()
    if a.o.get('a_tw'): a('s_waitcnt vmcnt(0)')
    if a.o.get('early'):
        a(f's_lshr_b32 s42, {a.o["early"]}, s3\ns_and_b32 s42, s42, 1\ns_cbranch_scc1 L_A_early')
    if not a.o.get('noapf'): a('buffer_load_dword v104, v14, s[20:23], s44 offen FPOL')
    if a.o.get('early_gu') or a.o.get('apf2'): a('s_add_u32 s44, s44, 262144\nbuffer_load_dword v120, v14, s[20:23], s44 offen FPOL')
    if a.o.get('kvt'): a('s_mov_b64 exec, 1\nbuffer_load_dword v105, v8, s[12:15], s40 offen KPOL\nbuffer_load_dword v106, v8, s[16:19], s40 offen KPOL\ns_mov_b64 exec, -1')
    if a.o.get('a_pfw'): a(f's_waitcnt vmcnt({2 if a.o.get("kvt") == 2 else 0})')
    for k in range(a.o.get('a_dly', 0)): a('s_mov_b64 exec, 1\nbuffer_load_dword v104, v14, s[20:23], s44 offen sc1\ns_mov_b64 exec, -1\ns_waitcnt vmcnt(0)')
    if a.o.get('early'):
        a('s_branch L_A_go\nL_A_early:\nbuffer_load_dword v104, v14, s[20:23], s44 offen FPOL\nL_A_go:')
    a.stamp(8)
    for kv in range(2):
        if kv == 1 and a.o.get('kv_bar'): a('s_barrier')
        for i in range(8):
            if i == 4 or (kv == 1 and i == 0): a(f's_add_u32 m0, s41, {LV*kv + 4096*(i>>2)}\ns_nop 0')
            vo = 8 + (i & 3) if kv == 0 else 12 + (i & 1)
            a(f'buffer_load_dwordx4 v{vo}, s[{12+4*kv}:{15+4*kv}], s{40 if i < 4 else 43} offen offset:{1024*(i&3)} {"KPOL" if kv == 0 else ("VPOL" if i < 4 else "WPOL")} lds')

def A_body(a):
    a.role = 'A'
    a('L_A:')
    a.stamp(10)
    a('v_xor_b32 v6, v4, v3\nv_lshlrev_b32 v6, 4, v6\nv_lshl_add_u32 v6, v3, 8, v6\nv_add_u32 v6, s41, v6')
    for jj in range(4): a(f'v_xor_b32 v{8+jj}, {64*jj}, v6')
    a(f'v_and_b32 v7, 3, v1\nv_mul_u32_u24 v12, 272, v7\nv_lshl_add_u32 v12, v4, 4, v12\nv_add_u32 v12, {LQ}, v12')
    a(f'v_lshlrev_b32 v13, 5, v7\nv_add_u32 v13, {LMX}, v13\ns_lshl_b32 s42, s3, 2\nv_add_u32 v14, s42, v13')
    a(f'v_lshlrev_b32 v16, 6, v4\nv_add_u32 v16, {LP}, v16\nv_lshl_add_u32 v15, v3, 4, v16\ns_lshl_b32 s42, s3, 8\nv_add_u32 v15, s42, v15')
    a('v_lshrrev_b32 v5, 2, v3\nv_lshl_add_u32 v16, v5, 4, v16')
    a('v_lshrrev_b32 v6, 2, v1\nv_and_b32 v17, 7, v6\nv_lshlrev_b32 v17, 1, v17\nv_bfe_u32 v18, v1, 1, 1\ns_lshl_b32 s42, s3, 1\nv_add_u32 v21, s42, v18\nv_xor_b32 v17, v17, v21')
    a(f'v_lshlrev_b32 v17, 4, v17\nv_lshl_add_u32 v17, v6, 8, v17\nv_and_b32 v21, 1, v1\nv_lshl_add_u32 v17, v21, 3, v17\nv_add_u32 v17, {LV}, v17')
    hc = a.o.get('hc')
    if hc:
        a('v_bfe_u32 v18, v1, 1, 1\nv_bfe_u32 v28, v1, 3, 1\nv_and_b32 v29, 1, v4\nv_lshl_add_u32 v28, v29, 1, v28\nv_lshlrev_b32 v28, 1, v28\nv_xor_b32 v28, v28, v18\nv_lshlrev_b32 v28, 4, v28')
        a('v_and_b32 v29, 1, v1\nv_lshl_add_u32 v28, v29, 3, v28\nv_lshl_add_u32 v28, v5, 7, v28\nv_lshl_add_u32 v28, v4, 10, v28\nv_add_u32 v28, s41, v28')
        for jj in range(4): a(f'v_xor_b32 v{96+jj}, {32*jj}, v28')
        a(f'v_lshlrev_b32 v100, 4, v1\nv_lshlrev_b32 v101, 4, v3\nv_lshlrev_b32 v102, 2, v3\ns_lshl_b32 s42, s3, 8\ns_add_u32 s42, s42, {LRED}\nv_add_u32 v102, s42, v102')
        a(f's_and_b32 s42, s5, 1\ns_lshl_b32 s42, s42, 3\ns_add_u32 s42, s42, s3\ns_lshl_b32 s48, s4, 4\ns_add_u32 s48, s48, s42\ns_lshl_b32 s48, s48, 11\ns_add_u32 s48, s48, {OP}')
        a(f's_lshr_b32 s42, s42, 2\ns_lshl_b32 s49, s4, 2\ns_add_u32 s49, s49, s42\ns_lshl_b32 s49, s49, 8\ns_add_u32 s49, s49, {OS}')
    else:
        a.tr_addr(LK, 96, 14 if a.o.get('cwo') is not None else 13); a.mask_addr(LOF, LZ, 100)
    a('s_and_b32 s42, s3, 1\ns_lshl_b32 s42, s42, 9\nv_bfe_u32 v6, v3, 2, 1\nv_lshlrev_b32 v19, 10, v6\nv_lshrrev_b32 v6, 3, v3\nv_lshl_add_u32 v19, v6, 8, v19')
    a('v_lshl_add_u32 v19, v7, 2, v19\nv_lshl_add_u32 v19, v4, 13, v19\nv_add_u32 v19, s42, v19')
    a(f's_lshl_b32 s54, s4, 4\ns_lshr_b32 s42, s3, 1\ns_add_u32 s54, s54, s42\ns_lshl_b32 s54, s54, 11\ns_lshl_b32 s42, s5, 4\ns_add_u32 s54, s54, s42\ns_add_u32 s54, s54, {OP}')
    a('v_lshrrev_b32 v6, 5, v1\nv_and_b32 v20, 31, v1\nv_lshlrev_b32 v20, 2, v20\nv_lshl_add_u32 v20, v6, 11, v20')
    a(f's_lshl_b32 s55, s4, 3\ns_add_u32 s55, s55, s3\ns_lshl_b32 s55, s55, 12\ns_lshl_b32 s42, s5, 7\ns_add_u32 s55, s55, s42\ns_add_u32 s55, s55, {AP}')
    a(f'v_mov_b32 v22, {LMODE_A}\nv_lshlrev_b32 v21, 5, v4\nv_add_u32 v21, {LMX}, v21')
    if a.o.get('cwo') is not None:
        a.karg(20, 'wo')
    if hc:
        a('v_and_b32 v6, 7, v1\nv_bfe_u32 v28, v1, 4, 1\nv_lshlrev_b32 v28, 1, v28\nv_xor_b32 v6, v6, v28\nv_lshlrev_b32 v6, 4, v6\nv_lshrrev_b32 v28, 3, v1\nv_lshl_add_u32 v108, v28, 10, v6\nv_xor_b32 v109, 64, v108')
        a('s_lshl_b32 s58, s4, 1\ns_and_b32 s42, s5, 1\ns_add_u32 s58, s58, s42\ns_lshl_b32 s58, s58, 3\ns_add_u32 s58, s58, s3\ns_lshl_b32 s58, s58, 15\ns_lshr_b32 s42, s5, 1\ns_lshl_b32 s42, s42, 7\ns_add_u32 s58, s58, s42\ns_mov_b32 s59, s41\ns_waitcnt lgkmcnt(0)')
    elif a.o.get('cwo') is not None:
        a('s_and_b32 s42, s3, 2\ns_lshl_b32 s42, s42, 2\nv_xor_b32 v6, s42, v1')
        for r in range(4): a(f'v_xor_b32 v{108+r}, {2*r}, v6\nv_lshlrev_b32 v{108+r}, 4, v{108+r}')
        a('s_lshl_b32 s58, s4, 19\ns_lshl_b32 s42, s5, 15\ns_add_u32 s58, s58, s42\ns_lshl_b32 s59, s3, 12\ns_add_u32 s58, s58, s59\ns_lshl_b32 s59, s3, 13\ns_waitcnt lgkmcnt(0)')
    a(f'v_lshlrev_b32 v110, 7, v7\nv_lshl_add_u32 v110, v4, 2, v110\ns_lshl_b32 s42, s3, 4\ns_add_u32 s42, s42, {LLS}\nv_add_u32 v110, s42, v110')
    a(f's_mov_b32 s56, {SCALE:#x}\ns_mov_b32 s57, {LOG2E:#x}')
    if not a.o.get('a_tagw'): a.fin_tag()
    if a.o.get('sq'):
        a(f's_lshl_b32 s62, s4, 11\ns_lshl_b32 s63, s3, 8\ns_add_u32 s62, s62, s63\ns_add_u32 s62, s62, {QV}\ns_add_u32 s62, s8, s62\ns_addc_u32 s63, s9, 0')
        a(f's_lshr_b32 s42, s3, 1\ns_mul_i32 s42, s42, 272\ns_and_b32 s43, s3, 1\ns_lshl_b32 s43, s43, 7\ns_add_u32 s42, s42, s43\ns_add_u32 s42, s42, {LQ}\nv_lshlrev_b32 v105, 1, v1\nv_add_u32 v105, s42, v105')
        QR = (24, 64, 80)
        a('s_barrier\ns_barrier')
        LD = lambda g: '\n'.join([f's_load_dwordx16 s[{r}:{r+15}], s[62:63], {64*i}{g}' for i, r in enumerate(QR)] + [f's_load_dwordx8 s[12:19], s[62:63], 192{g}', f's_load_dwordx4 s[40:43], s[62:63], 224{g}', f's_load_dwordx2 s[52:53], s[62:63], 240{g}', f's_load_dwordx2 s[50:51], s[62:63], 248{g}'])
        REGS = [r + k for r in QR for k in range(16)] + list(range(12, 20)) + [40, 41, 42, 43, 52, 53, 50, 51]
        a(LD(''))
        a('s_mov_b32 s47, 0\nL_q:\ns_waitcnt lgkmcnt(0)')
        for i, r in enumerate(REGS): a(f'v_writelane_b32 v106, s{r}, {i}')
        a(f'v_xor_b32 v106, v2, v106\nv_and_b32 v107, {TMASK}, v106\nv_cmp_ne_u32 vcc, 0, v107\ns_cbranch_vccnz L_q_retry\nL_q_ok:')
        a.tails.append(f'L_q_retry:\ns_add_u32 s47, s47, 1\ns_cmp_gt_u32 s47, {LIMIT}\ns_cbranch_scc1 L_q_ok\n' + LD(' glc') + '\ns_branch L_q')
        a('ds_write_b16_d16_hi v105, v106')
        a.stamp(11)
    a('s_waitcnt vmcnt(8)')
    a.stamp(1)
    for t in range(2):
        for jj in range(4): a(f'ds_read_b128 v[{32+16*t+4*jj}:{35+16*t+4*jj}], v{8+jj} offset:{4096*t}')
    if a.o.get('vstamp'): a('s_waitcnt vmcnt(0)'); a.stamp(9)
    ne = a.o.get('wo_early', 0)
    a('s_waitcnt lgkmcnt(0)')
    if ne:
        a('s_mov_b32 m0, s59\ns_nop 0')
        for r in range(ne): a.wo_row(r)
    ve = a.o.get('ve')
    if ve: a(f's_waitcnt vmcnt({ne})'); a.stamp(4)
    a('s_barrier')
    a.stamp(2)
    def wo_dma(pos):
        if a.o.get('cwo') == pos:
            a('s_mov_b32 m0, s59\ns_nop 0')
            for r in range(ne, 4): a.wo_row(r)
    for jj in range(4): a(f'ds_read_b128 v[{64+4*jj}:{67+4*jj}], v12 offset:{64*jj}')
    wo_dma(0)
    for jj in range(4):
        a(f's_waitcnt lgkmcnt({3-jj})')
        for t in range(2):
            c = '0' if jj == 0 else f'v[{24+4*t}:{27+4*t}]'
            a(f'v_mfma_f32_16x16x32_bf16 v[{24+4*t}:{27+4*t}], v[{32+16*t+4*jj}:{35+16*t+4*jj}], v[{64+4*jj}:{67+4*jj}], {c}')
    wo_dma(1)
    if ve:
        for kk in range(8):
            a(f'ds_read_b64_tr_b16 v[{64+4*kk}:{65+4*kk}], v17 offset:{8192*kk}\nds_read_b64_tr_b16 v[{66+4*kk}:{67+4*kk}], v17 offset:{8192*kk+4096}')
    else: a('s_nop 6' if a.o.get('cwo') != 1 else 's_nop 0')
    for i in range(8): a.rbf(24 + i, 24 + i)
    for i in range(0, 8, 2): a(f'v_pk_mul_f32 v[{24+i}:{25+i}], v[{24+i}:{25+i}], s[56:57] op_sel_hi:[1,0]')
    for i in range(8): a.rbf(24 + i, 24 + i)
    a('v_max3_f32 v32, v24, v25, v26\nv_max3_f32 v33, v27, v28, v29\nv_max3_f32 v32, v32, v30, v31\nv_max_f32 v32, v32, v33')
    a.swap_op(16, 'v_max_f32', 32, 33); a.swap_op(32, 'v_max_f32', 32, 33)
    wmax = a.o.get('wmax')
    if not wmax:
        a('s_mov_b64 exec, 0xf\nds_write_b32 v14, v32\ns_mov_b64 exec, -1\ns_waitcnt lgkmcnt(0)\ns_barrier')
        a('ds_read_b128 v[32:35], v13\nds_read_b128 v[36:39], v13 offset:16\ns_waitcnt lgkmcnt(0)')
        a('v_max3_f32 v32, v32, v33, v34\nv_max3_f32 v36, v36, v37, v38\nv_max3_f32 v32, v32, v35, v39\nv_max_f32 v32, v32, v36')
    for i in range(0, 8, 2): a(f'v_pk_add_f32 v[{24+i}:{25+i}], v[{24+i}:{25+i}], v[32:33] op_sel_hi:[1,0] neg_lo:[0,1] neg_hi:[0,1]')
    for i in range(0, 8, 2): a(f'v_pk_mul_f32 v[{24+i}:{25+i}], v[{24+i}:{25+i}], s[56:57] op_sel:[0,1] op_sel_hi:[1,1]')
    for i in range(8): a(f'v_exp_f32 v{24+i}, v{24+i}')
    a('s_nop 0')
    for d in range(4): a(f'v_cvt_pk_bf16_f32 v{36+d}, v{24+2*d}, v{25+2*d}')
    a('s_mov_b32 exec_lo, 0x000f000f\ns_mov_b32 exec_hi, 0x000f000f\nds_write_b128 v15, v[36:39]')
    if wmax: a('ds_write_b32 v14, v32')
    a('v_pk_add_f32 v[24:25], v[24:25], v[26:27]\nv_pk_add_f32 v[28:29], v[28:29], v[30:31]\nv_pk_add_f32 v[24:25], v[24:25], v[28:29]\nv_add_f32 v24, v24, v25')
    a('ds_write_b32 v110, v24\ns_mov_b64 exec, -1')
    wo_dma(2)
    a.stamp(3)
    if ve:
        a('s_waitcnt lgkmcnt(0)\ns_barrier')
        if wmax: a('ds_read_b128 v[112:115], v21\nds_read_b128 v[116:119], v21 offset:16')
        a('ds_read_b32 v23, v22')
        for kk in range(8): a(f'ds_read_b128 v[{32+4*kk}:{35+4*kk}], v16 offset:{256*kk}')
        if wmax:
            a('s_waitcnt lgkmcnt(8)\nv_max3_f32 v120, v112, v113, v114\nv_max3_f32 v121, v115, v116, v117\nv_max3_f32 v120, v120, v118, v119\nv_max_f32 v120, v120, v121')
            for i in range(0, 8, 2): a(f'v_pk_add_f32 v[{112+i}:{113+i}], v[{112+i}:{113+i}], v[120:121] op_sel_hi:[1,0] neg_lo:[0,1] neg_hi:[0,1]')
            for i in range(0, 8, 2): a(f'v_pk_mul_f32 v[{112+i}:{113+i}], v[{112+i}:{113+i}], s[56:57] op_sel:[0,1] op_sel_hi:[1,1]')
        for kk in range(8):
            a(f's_waitcnt lgkmcnt({7-kk})')
            if kk == 1: a('v_readfirstlane_b32 s7, v23')
            if wmax: a(f'v_mfma_f32_16x16x32_bf16 v[{32+4*kk}:{35+4*kk}], v[{32+4*kk}:{35+4*kk}], v[{64+4*kk}:{67+4*kk}], 0\nv_exp_f32 v{112+kk}, v{112+kk}')
            else: a(f'v_mfma_f32_16x16x32_bf16 v[{24+4*(kk&1)}:{27+4*(kk&1)}], v[{32+4*kk}:{35+4*kk}], v[{64+4*kk}:{67+4*kk}], {"0" if kk < 2 else f"v[{24+4*(kk&1)}:{27+4*(kk&1)}]"}')
        if wmax:
            a('v_mul_f32 v24, v112, v32\nv_mul_f32 v25, v113, v36')
            for kk in range(2, 8):
                if kk == 6: a('s_nop 0')
                if kk == 7: a('s_nop 0')
                a(f'v_fmac_f32 v{24+(kk&1)}, v{112+kk}, v{32+4*kk}')
            a('v_add_f32 v24, v24, v25')
        else: a('s_nop 7\nv_add_f32 v24, v24, v28')
    elif a.o.get('sq') or a.o.get('split'):
        a('s_waitcnt lgkmcnt(0)\ns_barrier')
        for kk in range(8): a(f'ds_read_b128 v[{32+4*kk}:{35+4*kk}], v16 offset:{256*kk}')
        a(f's_waitcnt vmcnt({4 if a.o.get("cwo") is not None else 0}) lgkmcnt(0)')
        a.stamp(4)
        a('s_barrier')
        a('ds_read_b32 v23, v22')
        for kk in range(8):
            a(f'ds_read_b64_tr_b16 v[{64+4*kk}:{65+4*kk}], v17 offset:{8192*kk}\nds_read_b64_tr_b16 v[{66+4*kk}:{67+4*kk}], v17 offset:{8192*kk+4096}')
        for kk in range(8):
            a(f's_waitcnt lgkmcnt({2*(7-kk)})')
            if kk == 1: a('v_readfirstlane_b32 s7, v23')
            a(f'v_mfma_f32_16x16x32_bf16 v[24:27], v[{32+4*kk}:{35+4*kk}], v[{64+4*kk}:{67+4*kk}], {"0" if kk == 0 else "v[24:27]"}')
        a('s_nop 7')
    else: PV_old(a, wmax)
    a('v_and_or_b32 v28, v24, s46, v2')
    a.store_mode('buffer_store_dword v28, v19, s[8:11], s54 offen')
    A_tail(a)

def PV_old(a, wmax):
    a('s_waitcnt vmcnt(0) lgkmcnt(0)')
    a.stamp(4)
    a('s_barrier')
    if wmax: a('ds_read_b128 v[108:111], v21\nds_read_b128 v[112:115], v21 offset:16')
    a('ds_read_b32 v23, v22')
    order = []
    for kk in range(8):
        a(f'ds_read_b128 v[{32+4*kk}:{35+4*kk}], v16 offset:{256*kk}')
        a(f'ds_read_b64_tr_b16 v[{64+4*kk}:{65+4*kk}], v17 offset:{8192*kk}')
        a(f'ds_read_b64_tr_b16 v[{66+4*kk}:{67+4*kk}], v17 offset:{8192*kk+4096}')
        if kk == 4:
            a('s_waitcnt lgkmcnt(15)\nv_readfirstlane_b32 s7, v23')
            if wmax:
                a('v_max3_f32 v116, v108, v109, v110\nv_max3_f32 v117, v111, v112, v113\nv_max3_f32 v116, v116, v114, v115\nv_max_f32 v116, v116, v117')
                for i in range(8): a(f'v_sub_f32 v{108+i}, v{108+i}, v116')
                for i in range(8): a(f'v_mul_f32 v{108+i}, s57, v{108+i}')
                for i in range(8): a(f'v_exp_f32 v{108+i}, v{108+i}')
    for kk in range(8):
        a(f's_waitcnt lgkmcnt({min(15, 3*(7-kk))})')
        if wmax: a(f'v_mfma_f32_16x16x32_bf16 v[{32+4*kk}:{35+4*kk}], v[{32+4*kk}:{35+4*kk}], v[{64+4*kk}:{67+4*kk}], 0')
        else: a(f'v_mfma_f32_16x16x32_bf16 v[24:27], v[{32+4*kk}:{35+4*kk}], v[{64+4*kk}:{67+4*kk}], {"0" if kk == 0 else "v[24:27]"}')
    if wmax:
        a('v_mul_f32 v24, v108, v32\nv_mul_f32 v25, v109, v36')
        for kk in range(2, 8):
            if kk >= 5: a('s_nop 1')
            a(f'v_fmac_f32 v{24+(kk&1)}, v{108+kk}, v{32+4*kk}')
        a('v_add_f32 v24, v24, v25')
    else: a('s_nop 7')

def A_tail(a):
    a.stamp(5)
    if a.o.get('hc'):
        def pre():
            for jj in range(4): a(f'ds_read_b64_tr_b16 v[{64+4*jj}:{65+4*jj}], v{96+jj}\nds_read_b64_tr_b16 v[{66+4*jj}:{67+4*jj}], v{96+jj} offset:512')
        a.combine(101, 100, 49, 48, pre)
        a('s_waitcnt lgkmcnt(0)\ns_nop 0')
        for jj in range(4): a(f'v_mfma_f32_16x16x32_bf16 v[{36+4*jj}:{39+4*jj}], v[32:35], v[{64+4*jj}:{67+4*jj}], 0')
        a('s_mov_b64 exec, 0xffff\ns_nop 4\nds_write2_b32 v102, v36, v40 offset1:16\ns_nop 0\nds_write2_b32 v102, v44, v48 offset0:32 offset1:48\ns_waitcnt lgkmcnt(0)')
        a.stamp(7)
        a('s_barrier')
        a.exit()
        return
    if a.o.get('cwo') is not None: a('s_waitcnt vmcnt(1)')
    cwo = a.o.get('cwo') is not None
    if not cwo:
        a('s_barrier')
        for jj in range(4):
            a(f'ds_read_b64_tr_b16 v[{64+4*jj}:{65+4*jj}], v{96+jj}\nds_read_b64_tr_b16 v[{66+4*jj}:{67+4*jj}], v{96+jj} offset:4096')
    a.stamp(6)
    a('s_barrier')
    for jj in range(4):
        a(f'ds_read_b128 v[{32+4*jj}:{35+4*jj}], v{100+jj}')
        if cwo: a(f'ds_read_b64_tr_b16 v[{64+4*jj}:{65+4*jj}], v{96+jj}\nds_read_b64_tr_b16 v[{66+4*jj}:{67+4*jj}], v{96+jj} offset:8192')
    for jj in range(4):
        a(f's_waitcnt lgkmcnt({(3-jj)*(3 if cwo else 1)})')
        a(f'v_mfma_f32_16x16x32_bf16 v[24:27], v[{32+4*jj}:{35+4*jj}], v[{64+4*jj}:{67+4*jj}], {"0" if jj == 0 else "v[24:27]"}')
    a('s_nop 7')
    a('v_and_or_b32 v28, v24, s46, v2')
    a.store_mode('buffer_store_dword v28, v20, s[8:11], s55 offen')
    a.stamp(7)
    a.exit()

def A_comm(a):
    a.role = 'Ac'
    a('L_A_comm:')
    a.karg(20, 'wo'); a.srd(20, 0x400000)
    a('s_waitcnt lgkmcnt(0)')
    a.stamp(0)
    a.get_tag()
    a(f'v_mov_b32 v4, 0\nv_mov_b32 v5, 0\nv_mov_b32 v6, 0\nv_mov_b32 v7, 0\nv_mov_b32 v8, {LZ}\nds_write_b128 v8, v[4:7]')
    for k in range(8): a(f'v_xor_b32 v{64+k}, {2*k}, v1\nv_lshlrev_b32 v{64+k}, 4, v{64+k}')
    a.fin_tag()
    a.xid_publish()
    if a.o.get('kv_bar'): a('s_barrier')
    if a.o.get('wot'): a('s_lshl_b32 s42, s4, 19\ns_mov_b64 exec, 1\nbuffer_load_dword v108, v1, s[20:23], s42 offen nt\ns_mov_b64 exec, -1')
    a(f'v_lshlrev_b32 v9, 4, v1\ns_lshl_b32 s40, s4, 11\ns_add_u32 s62, s40, {QV}')
    a(f'v_lshrrev_b32 v10, 5, v1\nv_mul_u32_u24 v10, 272, v10\nv_and_b32 v11, 31, v1\nv_lshl_add_u32 v10, v11, 3, v10\nv_add_u32 v10, {LQ}, v10\nv_mov_b32 v12, {LMODE_A}')
    a('s_lshl_b32 s56, s4, 19\ns_lshl_b32 s42, s5, 15\ns_add_u32 s56, s56, s42')
    a(f'v_and_b32 v14, 3, v1\nv_lshlrev_b32 v13, 5, v14\nv_add_u32 v13, {LMX}, v13\nv_lshlrev_b32 v14, 8, v14')
    a(f's_lshl_b32 s41, s4, 10\ns_lshl_b32 s42, s5, 4\ns_add_u32 s63, s41, s42\ns_add_u32 s63, s63, {OS}')
    a(f's_lshr_b32 s42, s5, 2\ns_lshl_b32 s42, s42, 8\ns_add_u32 s41, s41, s42\ns_add_u32 s41, s41, {OS}')
    a(f's_lshl_b32 s40, s4, 4\ns_add_u32 s40, s40, s5\ns_lshl_b32 s40, s40, 11\ns_add_u32 s54, s40, {AP}\ns_add_u32 s40, s40, {OP}')
    a(f'v_and_b32 v15, 15, v1\nv_lshlrev_b32 v15, 4, v15\nv_lshrrev_b32 v16, 4, v1\nv_lshlrev_b32 v16, 4, v16\nv_add_u32 v16, {LOF}, v16\nv_lshlrev_b32 v17, 2, v1')
    a(f's_lshl_b32 s42, s4, 3\ns_lshr_b32 s55, s5, 1\ns_add_u32 s42, s42, s55\ns_and_b32 s55, s42, 15\ns_lshl_b32 s55, s55, 17\ns_lshr_b32 s42, s42, 4\ns_lshl_b32 s42, s42, 8\ns_add_u32 s55, s55, s42')
    a(f's_and_b32 s42, s5, 1\ns_lshl_b32 s42, s42, 7\ns_add_u32 s55, s55, s42\ns_add_u32 s55, s55, {AX}\ns_mov_b32 s57, {LOG2E:#x}')
    if a.o.get('hc'):
        a(f's_and_b32 s55, s5, 1\ns_lshl_b32 s55, s55, 3\ns_lshr_b32 s42, s5, 1\ns_add_u32 s55, s55, s42\ns_lshl_b32 s55, s55, 17\ns_lshl_b32 s42, s4, 8\ns_add_u32 s55, s55, s42\ns_add_u32 s55, s55, {AX}\nv_add_u32 v19, {LRED}, v17')
    if a.o.get('pt_o'): a('v_lshlrev_b32 v22, 5, v1\nbuffer_load_dword v108, v22, s[8:11], s40 offen sc1\nbuffer_load_dword v109, v15, s[8:11], s41 offen sc1')
    if a.o.get('pw_a'):
        a('v_xor_b32 v22, 1, v2'); a.store2('buffer_store_dword v22, v17, s[8:11], s{s} offen', 55, 42)
    if a.o.get('sq'):
        a('s_waitcnt lgkmcnt(0)\ns_barrier')
        a(a.xid_load(40))
        a(f's_lshl_b32 s58, s4, 12\ns_add_u32 s58, s58, {QF}\ns_add_u32 s58, s8, s58\ns_addc_u32 s59, s9, 0\ns_mov_b32 s47, 0')
        a('L_qd:\ns_load_dwordx8 s[64:71], s[58:59], s47\ns_add_u32 s47, s47, 64\ns_waitcnt lgkmcnt(0)')
        a('s_xor_b32 s64, s64, s45')
        for k in range(65, 72): a(f's_xor_b32 s{k}, s{k}, s45\ns_or_b32 s64, s64, s{k}')
        a(f's_cbranch_scc0 L_qe\ns_sleep {a.o.get("qsleep", 3)}\ns_cmp_lt_u32 s47, 4096\ns_cbranch_scc1 L_qd')
        a.poll(['buffer_load_dwordx4 v[32:35], v9, s[8:11], s62 offen sc1', 'buffer_load_dwordx4 v[36:39], v9, s[8:11], s62 offen offset:1024 sc1'], range(32, 40), 30)
        a('L_qe:')
        a.stamp(1)
        a('s_barrier\ns_barrier')
    else:
        Q = lambda r: [f'buffer_load_dwordx4 v[{r}:{r+3}], v9, s[8:11], s62 offen sc1', f'buffer_load_dwordx4 v[{r+4}:{r+7}], v9, s[8:11], s62 offen offset:1024 sc1']
        if not a.o.get('q1'):
            a('v_and_b32 v18, 7, v1\nv_lshlrev_b32 v18, 4, v18\ns_mov_b64 exec, 0xff')
            a.poll(['buffer_load_dwordx4 v[32:35], v18, s[8:11], s62 offen sc1'], range(32, 36), 30)
            a('s_mov_b64 exec, -1')
        if a.o.get('q1') == 2:
            def chk(r):
                for k in range(r, r+8): a(f'v_xor_b32 v{k}, v2, v{k}')
                a(f'v_or3_b32 v30, v{r}, v{r+1}, v{r+2}\nv_or3_b32 v30, v30, v{r+3}, v{r+4}\nv_or3_b32 v30, v30, v{r+5}, v{r+6}\nv_or_b32 v30, v30, v{r+7}\nv_and_b32 v30, {TMASK}, v30\nv_cmp_ne_u32 vcc, 0, v30')
            a('\n'.join(Q(48)) + f'\ns_sleep {a.o.get("qgap", 16)}\ns_mov_b32 s47, 0\nL_q2:\n' + '\n'.join(Q(32)) + '\ns_waitcnt vmcnt(2)')
            chk(48)
            a('s_cbranch_vccz L_q2b\n' + '\n'.join(Q(48)) + '\ns_waitcnt vmcnt(2)')
            chk(32)
            a(f's_cbranch_vccz L_q2a\ns_add_u32 s47, s47, 1\ns_cmp_lt_u32 s47, {LIMIT}\ns_cbranch_scc1 L_q2\ns_branch L_q2a')
            a('L_q2b:')
            for k in range(8): a(f'v_mov_b32 v{80+k}, v{48+k}')
            a('s_branch L_q2c\nL_q2a:')
            for k in range(8): a(f'v_mov_b32 v{80+k}, v{32+k}')
            a('L_q2c:')
        else: a.poll(Q(32), range(32, 40), 30)
        a.stamp(1)
        for i in range(2):
            qb = 80 if a.o.get('q1') == 2 else 32
            a(f'v_perm_b32 v{44+2*i}, v{qb+1+4*i}, v{qb+4*i}, s51\nv_perm_b32 v{45+2*i}, v{qb+3+4*i}, v{qb+2+4*i}, s51')
            a(f'ds_write_b64 v10, v[{44+2*i}:{45+2*i}] offset:{544*i}')
        if a.o.get('qmode'): a('v_bfe_u32 v18, v32, 10, 1\nds_write_b32 v12, v18\nv_readfirstlane_b32 s7, v18')
        elif a.o.get('cwo') is not None: a(a.xid_load(40))
        a('s_waitcnt lgkmcnt(0)\ns_barrier')
    if a.o.get('sq'): A_comm_sq2(a); return
    if a.o.get('split'): A_comm_split(a); return
    a(a.xid_load(40))
    for b in range(8):
        a(f's_mov_b32 m0, {LK + 4096*b}' + ('\ns_add_u32 s56, s56, 4096' if b else '\ns_nop 0'))
        for r in range(4): a(f'buffer_load_dwordx4 v{64 + r + 4*((b>>1)&1)}, s[20:23], s56 offen offset:{1024*r} OPOL lds')
    a('s_waitcnt vmcnt(32)')
    a.xid_mode(40)
    a('v_mov_b32 v18, s7\nds_write_b32 v12, v18\ns_waitcnt lgkmcnt(0)')
    if not a.o.get('wmax') and not a.o.get('sq'): a('s_barrier')
    if not a.o.get('sq'): a('s_barrier')
    a(f'ds_read_b128 v[32:35], v13\nds_read_b128 v[36:39], v13 offset:16\nds_read_b128 v[40:43], v13 offset:{LLS-LMX}\nds_read_b128 v[44:47], v13 offset:{LLS-LMX+16}\ns_waitcnt lgkmcnt(2)')
    a('v_max3_f32 v48, v32, v33, v34\nv_max3_f32 v49, v36, v37, v38\nv_max3_f32 v48, v48, v35, v39\nv_max_f32 v48, v48, v49')
    if a.o.get('wmax'):
        for i in range(8): a(f'v_sub_f32 v{32+i}, v{32+i}, v48')
        for i in range(8): a(f'v_mul_f32 v{32+i}, s57, v{32+i}')
        for i in range(8): a(f'v_exp_f32 v{32+i}, v{32+i}')
        a('s_waitcnt lgkmcnt(0)')
        for i in range(8): a(f'v_mul_f32 v{40+i}, v{32+i}, v{40+i}')
    a('s_waitcnt lgkmcnt(0)')
    a.tree_add(range(40, 48))
    a('v_or_b32 v32, v2, v48\nv_and_or_b32 v33, v40, s46, v2\nv_mov_b32 v34, v32\nv_mov_b32 v35, v33\ns_mov_b64 exec, 0xf')
    a.store_mode('buffer_store_dwordx4 v[32:35], v14, s[8:11], s63 offen')
    a('s_mov_b64 exec, -1')
    a('s_waitcnt vmcnt(1)')
    A_comm_tail(a)

def A_comm_sq(a):
    for b in range(8):
        a(f's_mov_b32 m0, {LK + 4096*b}' + ('\ns_add_u32 s56, s56, 4096' if b else '\ns_nop 0'))
        for r in range(4): a(f'buffer_load_dwordx4 v{64 + r + 4*((b>>1)&1)}, s[20:23], s56 offen offset:{1024*r} OPOL lds')
        if b == 0: a('s_barrier')
        if b == a.o.get('wo_b2', 1): a('s_barrier')
    a('s_barrier')
    a(f'ds_read_b128 v[32:35], v13\nds_read_b128 v[36:39], v13 offset:16\nds_read_b128 v[40:43], v13 offset:{LLS-LMX}\nds_read_b128 v[44:47], v13 offset:{LLS-LMX+16}\ns_waitcnt lgkmcnt(0)')
    a('v_max3_f32 v48, v32, v33, v34\nv_max3_f32 v49, v36, v37, v38\nv_max3_f32 v48, v48, v35, v39\nv_max_f32 v48, v48, v49')
    a.tree_add(range(40, 48))
    a('v_or_b32 v32, v2, v48\nv_and_or_b32 v33, v40, s46, v2\nv_mov_b32 v34, v32\nv_mov_b32 v35, v33\ns_mov_b64 exec, 0xf')
    a.store_mode('buffer_store_dwordx4 v[32:35], v14, s[8:11], s63 offen')
    a('s_mov_b64 exec, -1')
    a('s_waitcnt vmcnt(1)')
    A_comm_tail(a)

def A_comm_sq2(a):
    a(f'v_lshrrev_b32 v20, 1, v14\nv_add_u32 v20, {LLS}, v20\ns_barrier\ns_barrier')
    a('ds_read_b128 v[32:35], v13\nds_read_b128 v[36:39], v13 offset:16')
    for w in range(8): a(f'ds_read_b128 v[{72+4*w}:{75+4*w}], v20 offset:{16*w}')
    a('s_waitcnt lgkmcnt(8)')
    a('v_max3_f32 v48, v32, v33, v34\nv_max3_f32 v49, v36, v37, v38\nv_max3_f32 v48, v48, v35, v39\nv_max_f32 v48, v48, v49')
    a('s_waitcnt lgkmcnt(0)')
    for w in range(8): a(f'v_pk_add_f32 v[{72+4*w}:{73+4*w}], v[{72+4*w}:{73+4*w}], v[{74+4*w}:{75+4*w}]')
    for w in range(8): a(f'v_add_f32 v{56+w}, v{72+4*w}, v{73+4*w}')
    a.tree_add(range(56, 64))
    a('v_or_b32 v32, v2, v48\nv_and_or_b32 v33, v56, s46, v2\nv_mov_b32 v34, v32\nv_mov_b32 v35, v33\ns_waitcnt vmcnt(0)')
    a.xid_mode(40)
    if a.prof: a('v_writelane_b32 v127, s7, 12')
    a('v_mov_b32 v18, s7\nds_write_b32 v12, v18\ns_mov_b64 exec, 0xf')
    a.store_mode('buffer_store_dwordx4 v[32:35], v14, s[8:11], s63 offen')
    a('s_mov_b64 exec, -1\ns_waitcnt lgkmcnt(0)\ns_barrier')
    A_comm_tail(a)

def A_comm_split(a):
    cwo = a.o.get('cwo') is not None
    if not cwo:
        a(a.xid_load(40))
        for b in range(8):
            a(f's_mov_b32 m0, {LK + 4096*b}' + ('\ns_add_u32 s56, s56, 4096' if b else '\ns_nop 0'))
            for r in range(4): a(f'buffer_load_dwordx4 v{64 + r + 4*((b>>1)&1)}, s[20:23], s56 offen offset:{1024*r} OPOL lds')
            if b == a.o.get('wo_b1', 3): a('s_barrier')
            if b == a.o.get('wo_b2', 5): a('s_barrier')
        a('s_waitcnt vmcnt(32)')
    else: a(('' if a.o.get('wmax') else 's_barrier\n') + 's_waitcnt vmcnt(0)')
    if not a.o.get('qmode'): a.xid_mode(40)
    if a.prof: a('v_writelane_b32 v127, s7, 12')
    a(f'v_mov_b32 v18, s7\nds_write_b32 v12, v18\nv_lshrrev_b32 v20, 1, v14\nv_add_u32 v20, {LLS}, v20\ns_waitcnt lgkmcnt(0)')
    a('s_barrier')
    a('ds_read_b128 v[32:35], v13\nds_read_b128 v[36:39], v13 offset:16')
    for w in range(8): a(f'ds_read_b128 v[{72+4*w}:{75+4*w}], v20 offset:{16*w}')
    a('s_waitcnt lgkmcnt(8)')
    a('v_max3_f32 v48, v32, v33, v34\nv_max3_f32 v49, v36, v37, v38\nv_max3_f32 v48, v48, v35, v39\nv_max_f32 v48, v48, v49')
    if a.o.get('wmax'):
        for i in range(8): a(f'v_sub_f32 v{32+i}, v{32+i}, v48')
        for i in range(8): a(f'v_mul_f32 v{32+i}, s57, v{32+i}')
        for i in range(8): a(f'v_exp_f32 v{32+i}, v{32+i}')
    a('s_waitcnt lgkmcnt(0)')
    for w in range(8): a(f'v_pk_add_f32 v[{72+4*w}:{73+4*w}], v[{72+4*w}:{73+4*w}], v[{74+4*w}:{75+4*w}]')
    for w in range(8): a(f'v_add_f32 v{40+w}, v{72+4*w}, v{73+4*w}')
    if a.o.get('wmax'):
        for i in range(8): a(f'v_mul_f32 v{40+i}, v{32+i}, v{40+i}')
    a.tree_add(range(40, 48))
    a('v_or_b32 v32, v2, v48\nv_and_or_b32 v33, v40, s46, v2\nv_mov_b32 v34, v32\nv_mov_b32 v35, v33\ns_mov_b64 exec, 0xf')
    a.store_mode('buffer_store_dwordx4 v[32:35], v14, s[8:11], s63 offen')
    a('s_mov_b64 exec, -1')
    if cwo and not a.o.get('ve'): a('s_barrier')
    if not cwo: a('s_waitcnt vmcnt(1)')
    A_comm_tail(a)

def A_comm_tail(a):
    a.stamp(2)
    if a.o.get('cwo') is None: a('s_barrier')
    if a.o.get('hc'):
        a('s_barrier')
        for i in range(4): a(f'ds_read2st64_b32 v[{32+2*i}:{33+2*i}], v17 offset0:{2*i} offset1:{2*i+1}'.replace('v17', 'v19'))
        a('s_waitcnt lgkmcnt(0)')
        a.stamp(5)
        a.tree8(32)
        a('v_and_or_b32 v32, v32, s46, v2')
        A_comm_end(a)
        return
    a.combine(15, 9, 41, 40)
    a('s_mov_b32 exec_lo, 0x00010001\ns_mov_b32 exec_hi, 0x00010001\nds_write_b128 v16, v[32:35]\ns_mov_b64 exec, -1\ns_waitcnt lgkmcnt(0)\ns_barrier')
    a.stamp(4)
    a.poll([f'buffer_load_dword v{32+i}, v17, s[8:11], s54 offen offset:{256*i} sc1' for i in range(8)], range(32, 40), 30)
    a.stamp(5)
    a.tree_add(range(32, 40))
    a.swap_op(32, 'v_add_f32', 32, 33)
    a('v_and_or_b32 v32, v32, s46, v2\ns_mov_b32 exec_hi, 0')
    A_comm_end(a)

def A_comm_end(a):
    a.store2('buffer_store_dword v32, v17, s[8:11], s{s} offen', 55, 42)
    if a.o.get('axgate'):
        a(f's_lshl_b32 s42, s4, 4\ns_add_u32 s42, s42, s5\ns_lshl_b32 s42, s42, 4\ns_add_u32 s42, s42, {AL}\ns_mov_b64 exec, 0xf')
        a.store_mode('buffer_store_dword v32, v17, s[8:11], s42 offen')
    a.stamp(6)
    a.exit()

def FM_issue(a):
    a.role = 'F'
    for s, k in ((12, 'wmod'), (20, 'c'), (16, 'wq')): a.karg(s, k)
    for s, n in ((12, 0x300000), (20, 1024), (16, 0x400000)): a.srd(s, n)
    a('v_lshlrev_b32 v7, 1, v1\nv_lshlrev_b32 v9, 4, v4\nv_lshlrev_b32 v17, 2, v1')
    a(f's_mov_b32 s57, {LOG2E:#x}\ns_and_b32 s58, s5, 7')
    p16 = a.o.get('p16')
    if not p16: a('s_cmp_ge_u32 s5, 24\ns_cbranch_scc1 L_M')
    a('v_mul_u32_u24 v5, 49152, v4\nv_lshl_add_u32 v5, v3, 2, v5\ns_lshl_b32 s40, s4, 7\ns_mul_i32 s56, s4, 393216')
    fl = a.o.get('fl')
    if fl: a('v_lshl_add_u32 v5, v3, 2, v5\ns_lshl_b32 s59, s58, 1\ns_add_u32 s59, s59, s3\ns_lshl_b32 s59, s59, 1\ns_lshl_b32 s42, s59, 6\ns_add_u32 s41, s56, s42')
    else: a('s_lshl_b32 s59, s58, 2\ns_add_u32 s59, s59, s3\ns_lshl_b32 s42, s59, 6\ns_add_u32 s41, s56, s42')
    a('s_waitcnt lgkmcnt(0)')
    a.stamp(0)
    a('buffer_load_ushort v8, v7, s[20:23], s40 offen')
    a.get_tag()
    a('s_cmp_ge_u32 s3, 4\ns_cbranch_scc1 L_F_wq')
    if p16: a('s_cmp_ge_u32 s5, 24\ns_cbranch_scc1 L_F_j')
    if fl:
        a('s_cmp_ge_u32 s3, 2\ns_cbranch_scc1 L_F_idle')
        for r in range(16):
            a(f'buffer_load_dwordx2 v[{32+2*r}:{33+2*r}], v5, s[12:15], s41 offen FPOL')
            if r < 15: a(f's_add_u32 s41, s41, {6144 if r != 7 else 6144*25}')
    else: a.mod_loads()

def F_early(a):
    a.role = 'F'
    a.modp_base(55, 59)
    if a.o.get('pw_h'): a('s_lshl_b32 s42, s4, 8\ns_add_u32 s42, s42, s55\nv_mov_b32 v28, 0\nbuffer_store_dword v28, v17, s[8:11], s42 offen sc1')
    a.fin_tag()
    a.silu_frag(17 if a.o.get('pw_h') else 16)
    if a.o.get('fl'):
        a('v_lshrrev_b32 v15, 3, v3\nv_lshlrev_b32 v15, 17, v15\nv_and_b32 v16, 7, v3\nv_lshl_add_u32 v15, v16, 5, v15\ns_lshl_b32 s42, s4, 8\ns_add_u32 s42, s42, s55')
        for r in (97, 99, 101, 103): a(f'v_mov_b32 v{r}, s45')
        a('s_waitcnt vmcnt(8)')
        a.perm_x2(32, 64)
        a('s_waitcnt vmcnt(0) lgkmcnt(0)')
        a.stamp(1)
        for jj in range(4): a(f'v_mfma_f32_16x16x32_bf16 v[{104+4*jj}:{107+4*jj}], v[20:23], v[{64+4*jj}:{67+4*jj}], 0')
        a.perm_x2(48, 80)
        a('s_nop 0')
        for jj in range(4): a(f'v_mfma_f32_16x16x32_bf16 v[{104+4*jj}:{107+4*jj}], v[24:27], v[{80+4*jj}:{83+4*jj}], v[{104+4*jj}:{107+4*jj}]')
        a('s_mov_b64 exec, 0xffff\ns_nop 3')
        for jj in range(4): a(f'v_mov_b32 v{96+2*jj}, v{104+4*jj}')
        a('buffer_store_dwordx4 v[96:99], v15, s[8:11], s42 offen sc1\nbuffer_store_dwordx4 v[100:103], v15, s[8:11], s42 offen offset:16 sc1\ns_mov_b64 exec, -1')
    else:
        a('s_waitcnt vmcnt(0)')
        a.stamp(1)
        a.mod_partial()
    a.stamp(2)
    if a.o.get('tlb_f'): a(f's_mov_b32 s42, {QP}\ns_mov_b64 exec, 1\nbuffer_load_dword v116, v7, s[8:11], s42 offen sc1\ns_mov_b64 exec, -1')
    a('s_branch L_F_j')
    if a.o.get('fl'):
        a('L_F_idle:')
        a.fin_tag()
        a.silu_frag(0)
        a('s_branch L_F_j')
    a('L_F_wq:')
    if a.o.get('p16'):
        a('s_and_b32 s42, s3, 1\ns_lshl_b32 s42, s42, 3\nv_xor_b32 v6, s42, v1')
        for r in range(4): a(f'v_xor_b32 v{64+r}, {2*r}, v6\nv_lshlrev_b32 v{64+r}, 4, v{64+r}')
        a('s_and_b32 s42, s3, 3\ns_lshl_b32 s44, s42, 13\ns_lshl_b32 s42, s42, 16\ns_and_b32 s62, s5, 15\ns_lshl_b32 s62, s62, 18\ns_add_u32 s62, s62, s42\ns_lshl_b32 s42, s4, 10\ns_add_u32 s62, s62, s42')
        if a.o.get('f_tagw'): a.fin_tag()
        for b in range(2):
            a(f's_add_u32 m0, s44, {WQL + 4096*b}')
            for r in range(4):
                if b or r: a(f's_add_u32 s62, s62, {7168 if r else 11264}')
                else: a('s_nop 0')
                a(f'buffer_load_dwordx4 v{64 + r}, s[16:19], s62 offen offset:{1024*r} FPOL lds')
        return
    for k in range(8): a(f'v_xor_b32 v{64+k}, {2*k}, v1\nv_lshlrev_b32 v{64+k}, 4, v{64+k}')
    a('s_and_b32 s42, s3, 3\ns_lshl_b32 s44, s42, 14\ns_lshl_b32 s42, s42, 17\ns_lshl_b32 s62, s58, 19\ns_add_u32 s62, s62, s42\ns_lshl_b32 s42, s4, 10\ns_add_u32 s62, s62, s42')
    if a.o.get('f_tagw'): a.fin_tag()
    for b in range(4):
        a(f's_add_u32 m0, s44, {WQL + 4096*b}')
        for r in range(4):
            if b or r: a(f's_add_u32 s62, s62, {7168 if r else 11264}')
            else: a('s_nop 0')
            a(f'buffer_load_dwordx4 v{64 + r + 4*((b>>1)&1)}, s[16:19], s62 offen offset:{1024*r} FPOL lds')

def F_body(a):
    a.role = 'F'
    a('L_F_j:')
    if a.o.get('p16'): return P_body(a)
    a.karg(36, 'wd'); a.srd(36, 0x1C0000)
    a('s_cmp_lt_u32 s3, 4\ns_cbranch_scc1 L_F_j2')
    if not a.o.get('f_tagw'): a.fin_tag()
    a.silu_frag(16)
    a('L_F_j2:')
    a('v_lshrrev_b32 v5, 2, v3')
    a(f'v_mov_b32 v28, 0\nv_add_u32 v29, {WZ}, v7\nds_write_b16 v29, v28')
    a.tr_addr(WQL, 96); a.mask_addr(WH, WZ, 100)
    a(f'v_mov_b32 v11, {WMODE}\nv_lshlrev_b32 v18, 3, v1\nv_mov_b32 v31, s45')
    a(f's_lshl_b32 s54, s4, 3\ns_add_u32 s54, s54, s3\ns_lshl_b32 s54, s54, 3\ns_add_u32 s54, s54, s58\ns_lshl_b32 s54, s54, 9\ns_add_u32 s54, s54, {QP}')
    a('s_cmp_lt_u32 s3, 4\ns_cbranch_scc1 L_F_k\ns_waitcnt vmcnt(0)\nL_F_k:\ns_waitcnt lgkmcnt(0)')
    a.stamp(3)
    a('s_barrier')
    for t2 in range(2):
        for jj in range(4):
            b = 32 + 16*t2 + 4*jj
            a(f'ds_read_b64_tr_b16 v[{b}:{b+1}], v{96+jj} offset:{32768*t2}\nds_read_b64_tr_b16 v[{b+2}:{b+3}], v{96+jj} offset:{32768*t2+4096}')
    a('s_waitcnt lgkmcnt(0)\ns_barrier')
    a('ds_read_b64 v[28:29], v11')
    for t2 in range(2):
        for jj in range(4): a(f'ds_read_b128 v[{64+16*t2+4*jj}:{67+16*t2+4*jj}], v{100+jj} offset:{64*t2}')
    for k in range(8):
        a(f's_waitcnt lgkmcnt({7-k})')
        c = '0' if k < 2 else f'v[{108+4*(k&1)}:{111+4*(k&1)}]'
        a(f'v_mfma_f32_16x16x32_bf16 v[{108+4*(k&1)}:{111+4*(k&1)}], v[{64+4*k}:{67+4*k}], v[{32+4*k}:{35+4*k}], {c}')
        if k == 0: a('v_readfirstlane_b32 s7, v28\nv_readfirstlane_b32 s76, v29')
    a('s_nop 7')
    a('v_add_f32 v30, v108, v112')
    a.store_mode('buffer_store_dwordx2 v[30:31], v18, s[8:11], s54 offen')
    a.stamp(4)
    F_rest(a)

def P_body(a):
    for s, k in ((24, 'x'), (28, 'wg'), (32, 'wu'), (36, 'wd')): a.karg(s, k)
    a.srd(24, 1024)
    for s in (28, 32, 36): a.srd(s, 0x1C0000)
    a('s_cmp_lt_u32 s3, 4\ns_cselect_b32 s42, 1, 0\ns_cmp_lt_u32 s5, 24\ns_cselect_b32 s43, 1, 0\ns_and_b32 s42, s42, s43\ns_cbranch_scc1 L_F_j2')
    a('s_cmp_lt_u32 s3, 4\ns_cbranch_scc1 L_F_j1')
    if not a.o.get('f_tagw'): a.fin_tag()
    a.silu_frag(8)
    a('s_branch L_F_j2\nL_F_j1:')
    a.fin_tag()
    a('L_F_j2:')
    a('v_lshrrev_b32 v5, 2, v3')
    a(f'v_mov_b32 v28, 0\nv_add_u32 v29, {WZ}, v7\nds_write_b16 v29, v28')
    a.tr_addr(WQL, 96); a.mask_addr(WH, WZ, 100)
    a(f'v_mov_b32 v11, {WMODE}\nv_lshlrev_b32 v18, 3, v1\nv_mov_b32 v31, s45')
    a(f's_lshl_b32 s54, s4, 3\ns_add_u32 s54, s54, s3\ns_lshl_b32 s54, s54, 4\ns_and_b32 s42, s5, 15\ns_add_u32 s54, s54, s42\ns_lshl_b32 s54, s54, 9\ns_add_u32 s54, s54, {QP}')
    a('s_cmp_lt_u32 s3, 4\ns_cbranch_scc1 L_F_k\ns_waitcnt vmcnt(0)\nL_F_k:\ns_waitcnt lgkmcnt(0)')
    a.stamp(3)
    a('s_barrier')
    for jj in range(4): a(f'ds_read_b64_tr_b16 v[{32+4*jj}:{33+4*jj}], v{96+jj}\nds_read_b64_tr_b16 v[{34+4*jj}:{35+4*jj}], v{96+jj} offset:4096')
    a('s_waitcnt lgkmcnt(0)\ns_barrier')
    a('ds_read_b64 v[28:29], v11')
    for jj in range(4): a(f'ds_read_b128 v[{64+4*jj}:{67+4*jj}], v{100+jj}')
    for k in range(4):
        a(f's_waitcnt lgkmcnt({3-k})')
        a(f'v_mfma_f32_16x16x32_bf16 v[108:111], v[{64+4*k}:{67+4*k}], v[{32+4*k}:{35+4*k}], {"0" if k == 0 else "v[108:111]"}')
        if k == 0: a('v_readfirstlane_b32 s7, v28\nv_readfirstlane_b32 s76, v29')
    a('s_nop 7')
    a('v_mov_b32 v30, v108')
    a.store_mode('buffer_store_dwordx2 v[30:31], v18, s[8:11], s54 offen')
    a.stamp(4)
    a('s_cmp_ge_u32 s5, 24\ns_cbranch_scc1 L_M2')
    F_rest(a)

def F_rest(a):
    a('v_mul_u32_u24 v5, 49152, v4\nv_lshl_add_u32 v5, v3, 2, v5')
    a('s_lshl_b32 s59, s58, 3\ns_add_u32 s59, s59, s3\ns_add_u32 s59, s59, 32\ns_lshl_b32 s42, s59, 6\ns_add_u32 s41, s56, s42')
    a.modp_base(55, 59)
    a('v_lshlrev_b32 v6, 7, v1\ns_mul_i32 s40, s4, 229376\ns_mul_i32 s42, s58, 28672\ns_add_u32 s40, s40, s42\ns_lshl_b32 s42, s3, 13\ns_add_u32 s40, s40, s42')
    if not a.o.get('rq'): a('s_barrier')
    if a.o.get('rq') == 2: a('s_waitcnt vmcnt(0)\ns_barrier')
    a.mod_loads('RPOL')
    if a.o.get('dpf') == 3:
        a('s_cmp_ge_u32 s3, 4\ns_cbranch_scc1 L_F_nopf\nbuffer_load_dword v117, v6, s[36:39], s40 offen MPOL\ns_waitcnt vmcnt(1)\ns_branch L_F_pf\nL_F_nopf:\ns_waitcnt vmcnt(0)\nL_F_pf:')
    else: a('s_waitcnt vmcnt(0)')
    a.stamp(5)
    if a.o.get('dpf') == 5: a('s_cmp_ge_u32 s3, 4\ns_cbranch_scc1 L_F_nopf\nbuffer_load_dword v117, v6, s[36:39], s40 offen MPOL\nL_F_nopf:')
    if a.o.get('fp2'): a('ds_read_b32 v29, v11 offset:4\ns_waitcnt lgkmcnt(0)\nv_readfirstlane_b32 s76, v29')
    a.mod_partial(two=a.o.get('fp2'))
    if a.o.get('fgate'): a('s_waitcnt vmcnt(0)')
    if a.o.get('dpf') == 1: a('s_cmp_ge_u32 s3, 4\ns_cbranch_scc1 L_F_nopf\nbuffer_load_dword v8, v6, s[36:39], s40 offen MPOL\nL_F_nopf:')
    a('s_add_u32 s55, s55, s76')
    a.poll8([f'buffer_load_dwordx2 v[{32+2*i}:{33+2*i}], v18, s[8:11], s55 offen offset:{512*i} sc1' for i in range(4)], range(33, 40, 2), 30)
    a.tree_add(range(32, 40, 2))
    a.swap_op(32, 'v_add_f32', 32, 33)
    a.rbf(32, 32)
    a(f's_mul_i32 s42, s4, 12288\ns_lshl_b32 s43, s59, 7\ns_add_u32 s42, s42, s43\ns_add_u32 s42, s42, {MODV}')
    a('v_or_b32 v33, v2, v32\ns_mov_b32 exec_hi, 0')
    a.store_mode('buffer_store_dword v33, v17, s[8:11], s42 offen')
    a.stamp(6)
    if a.o.get('dpf') == 4: a('s_mov_b64 exec, -1\ns_cmp_ge_u32 s3, 4\ns_cbranch_scc1 L_F_nopf\nbuffer_load_dword v117, v6, s[36:39], s40 offen MPOL\ns_waitcnt vmcnt(0)\nL_F_nopf:')
    a.exit()

def F_comm(a):
    a.role = 'Fc'
    a('L_F_comm:')
    a.karg(24, 'x'); a.srd(24, 1024)
    p16 = a.o.get('p16')
    if p16: a('s_and_b32 s58, s5, 7\nv_lshlrev_b32 v9, 4, v1\nv_and_b32 v11, 31, v1\nv_lshlrev_b32 v11, 1, v11\ns_and_b32 s40, s5, 15\ns_lshl_b32 s40, s40, 6')
    else: a('s_and_b32 s58, s5, 7\nv_lshlrev_b32 v9, 4, v1\nv_lshlrev_b32 v11, 1, v1\ns_lshl_b32 s40, s58, 7')
    a('s_waitcnt lgkmcnt(0)')
    a.stamp(0)
    a('buffer_load_dwordx4 v[32:35], v9, s[24:27], 0 offen\nbuffer_load_ushort v36, v11, s[24:27], s40 offen')
    a.get_tag(); a.fin_tag()
    a.xid_publish()
    if a.o.get('fprobe'): a.probe(a.o['fprobe'])
    else: a('s_mov_b32 s76, 0')
    a('s_waitcnt vmcnt(1)')
    for d in range(4): a(f'v_lshlrev_b32 v{40+2*d}, 16, v{32+d}\nv_and_b32 v{41+2*d}, 0xffff0000, v{32+d}')
    a('v_add_f32 v32, v40, v41\nv_add_f32 v33, v42, v43\nv_add_f32 v34, v44, v45\nv_add_f32 v35, v46, v47')
    a.tree_add(range(32, 36))
    a.wave_reduce('v_add_f32', [32], 33)
    a('v_mul_f32 v32, 0x3b000000, v32')
    for i in range(8): a(f'v_sub_f32 v{40+i}, v{40+i}, v32')
    for i in range(8): a(f'v_mul_f32 v{40+i}, v{40+i}, v{40+i}')
    a.tree_add(range(40, 48))
    a.wave_reduce('v_add_f32', [40], 33)
    a('v_mul_f32 v40, 0x3b000000, v40')
    a.rbf(32, 32); a.rbf(40, 40)
    a(f'v_add_f32 v40, {EPS:#x}, v40'); a.rbf(40, 40)
    a('v_sqrt_f32 v40, v40\nv_lshlrev_b32 v36, 16, v36'); a.rbf(40, 40)
    a('v_sub_f32 v36, v36, v32'); a.rbf(36, 36)
    a.div(40, 36, 40, 41, 42); a.rbf(28, 40)
    if p16:
        a(f'v_lshrrev_b32 v12, 5, v1\nv_lshlrev_b32 v12, 11, v12\nv_lshl_add_u32 v12, v11, 2, v12\ns_and_b32 s41, s5, 15\ns_lshl_b32 s41, s41, 17\ns_add_u32 s41, s41, {MODP}')
        a(f'v_add_u32 v13, {WH}, v11\nv_mov_b32 v14, {WMODE}\nv_lshlrev_b32 v17, 2, v1\nv_lshlrev_b32 v18, 3, v1')
        a(f's_lshl_b32 s54, s4, 3\ns_add_u32 s54, s54, s58\ns_lshl_b32 s55, s54, 8\ns_add_u32 s55, s55, {QV}\ns_lshl_b32 s54, s54, 13\ns_add_u32 s54, s54, {QP}\ns_add_u32 s56, s54, 4096')
        a.stamp(1)
        a('s_barrier')
        a(a.xid_load(64))
        a.poll8([f'buffer_load_dwordx2 v[{32+2*i}:{33+2*i}], v12, s[8:11], s41 offen offset:{256*i} sc1' for i in range(8)], range(33, 48, 2), 30)
        a.stamp(2)
        a.tree_add(range(32, 48, 2))
        a.rbf(32, 32)
        a('v_mov_b32 v48, v32\ns_nop 1\nv_permlane32_swap_b32 v32, v48')
        a('v_add_f32 v48, 1.0, v48'); a.rbf(48, 48)
        a('v_mul_f32 v48, v28, v48'); a.rbf(48, 48)
        a('v_add_f32 v48, v48, v32'); a.rbf(48, 48)
    else:
        a(f'v_lshrrev_b32 v12, 5, v1\nv_lshlrev_b32 v12, 17, v12\nv_and_b32 v10, 31, v1\nv_lshl_add_u32 v12, v10, 3, v12\ns_lshl_b32 s41, s58, 18\ns_add_u32 s41, s41, {MODP}\ns_add_u32 s41, s41, s76')
        a(f'v_add_u32 v13, {WH}, v11\nv_mov_b32 v14, {WMODE}\nv_lshlrev_b32 v17, 2, v1\nv_lshlrev_b32 v18, 3, v1')
        a(f's_lshl_b32 s54, s4, 3\ns_add_u32 s54, s54, s58\ns_lshl_b32 s55, s54, 8\ns_add_u32 s55, s55, {QV}\ns_lshl_b32 s54, s54, 12\ns_add_u32 s54, s54, {QP}')
        a(f'v_lshlrev_b32 v19, 6, v1\nv_mov_b32 v20, s45\ns_lshl_b32 s56, s4, 12\ns_lshl_b32 s42, s58, 2\ns_add_u32 s56, s56, s42\ns_add_u32 s56, s56, {QF}')
        if a.o.get('pt_q') == 1: a('v_lshlrev_b32 v22, 6, v1\nbuffer_load_dword v108, v22, s[8:11], s54 offen sc1')
        if a.o.get('pt_h'):
            a(f'v_and_b32 v22, 31, v1\nv_lshlrev_b32 v22, 7, v22\nv_lshrrev_b32 v23, 5, v1\nv_lshl_add_u32 v22, v23, 17, v22\nbuffer_load_dword v109, v22, s[8:11], s41 offen {a.o["pt_h"]}')
        a.stamp(1)
        if not a.o.get('mh'): a('s_barrier')
        H1 = [f'buffer_load_dwordx2 v[{32+2*i}:{33+2*i}], v12, s[8:11], s41 offen offset:{256*i} sc1' for i in range(16)]
        if a.o.get('mh'):
            if a.o.get('mown', 1): a.trigger('own')
            H1 = H1 + [a.xid_load(64)]
        else: a(a.xid_load(64))
        if a.o.get('pt_q') == 2: a('v_lshlrev_b32 v22, 6, v1\nbuffer_load_dword v108, v22, s[8:11], s54 offen sc1')
        ps = a.o.get('ps') and not a.o.get('mh')
        if ps: a.poll8_sum(H1, 32, 16, 30, [(0, 8), (8, 8)])
        else: a.poll8(H1, range(33, 64, 2), 30)
        a.stamp(2)
        for k in (() if ps else (1, 2, 4)):
            for b in (48, 32):
                for i in range(0, 8, 2*k): a(f'v_add_f32 v{b+2*i}, v{b+2*i}, v{b+2*(i+k)}')
        a.rbf(48, 48); a.rbf(32, 32)
        a('v_add_f32 v48, 1.0, v48'); a.rbf(48, 48)
        a('v_mul_f32 v48, v28, v48'); a.rbf(48, 48)
        a('v_add_f32 v48, v48, v32'); a.rbf(48, 48)
    if a.o.get('mh'):
        a.xid_mode(64)
        a(f's_lshl_b32 s42, s7, 10\ns_or_b32 s42, s42, s6\nv_or_b32 v48, s42, v48\ns_lshl_b32 s42, s4, 3\ns_add_u32 s42, s42, s58\ns_lshl_b32 s42, s42, 8\ns_add_u32 s42, s42, {HV}')
        a.store_mode('buffer_store_dword v48, v17, s[8:11], s42 offen')
        a.stamp(3)
        a('v_mov_b32 v15, 0\nds_write_b32 v14, v15\ns_branch L_M_comm')
        a('L_F_comm2:')
        a('s_and_b32 s58, s5, 7\ns_waitcnt lgkmcnt(0)')
        a.get_tag(); a.fin_tag()
        a.xid_publish()
        a(f'v_lshlrev_b32 v13, 1, v1\nv_add_u32 v13, {WH}, v13\nv_mov_b32 v14, {WMODE}\nv_lshlrev_b32 v17, 2, v1\nv_lshlrev_b32 v18, 3, v1\ns_mov_b32 s76, 0')
        a(f's_lshl_b32 s54, s4, 3\ns_add_u32 s54, s54, s58\ns_lshl_b32 s55, s54, 8\ns_add_u32 s41, s55, {HV}\ns_add_u32 s55, s55, {QV}\ns_lshl_b32 s54, s54, 12\ns_add_u32 s54, s54, {QP}')
        if a.o['mh'] == 2: a('s_barrier')
        l = a.label('P')
        a(f's_mov_b32 s47, 0\n{l}:\nbuffer_load_dword v48, v17, s[8:11], s41 offen sc1\ns_add_u32 s47, s47, 1\ns_cmp_gt_u32 s47, {LIMIT}\ns_cbranch_scc1 {l}_t\ns_waitcnt vmcnt(0)')
        a(f'v_xor_b32 v48, v2, v48\nv_and_b32 v30, {TMASK}, v48\nv_cmp_ne_u32 vcc, 0, v30\ns_cbranch_vccnz {l}\n{l}_x:')
        a.tails.append(f'{l}_t:\ns_waitcnt vmcnt(0)\ns_branch {l}_x')
        a.stamp(2)
        a('ds_write_b16_d16_hi v13, v48\nv_bfe_u32 v64, v48, 10, 1\nv_mov_b32 v65, 0\nds_write_b64 v14, v[64:65]\nv_readfirstlane_b32 s7, v64')
        if a.o['mh'] == 1: a('s_barrier')
        a('s_waitcnt lgkmcnt(0)\ns_barrier')
        F_comm_tail(a, False)
        return
    a('ds_write_b16_d16_hi v13, v48')
    a.xid_mode(64)
    a('v_mov_b32 v64, s7\nv_mov_b32 v65, s76\nds_write_b64 v14, v[64:65]\ns_waitcnt lgkmcnt(0)\ns_barrier')
    F_comm_tail(a, p16)

def F_comm_tail(a, p16):
    a.stamp(3)
    if p16: a('s_cmp_ge_u32 s5, 24\ns_cbranch_scc1 L_M_comm')
    if a.o.get('rq'):
        if a.o.get('rq') == 2: a('s_barrier')
        if a.o.get('fp2'):
            a.probe(3)
            a('v_mov_b32 v65, s76\nds_write_b32 v14, v65 offset:4\ns_waitcnt lgkmcnt(0)')
        a.exit()
        return
    if a.o.get('qmode'): a('s_lshl_b32 s43, s7, 10\ns_or_b32 s43, s43, s6')
    nq = 16 if p16 else 8
    QL = [f'buffer_load_dwordx2 v[{32+2*i}:{33+2*i}], v18, s[8:11], s{54 if i < 8 else 56} offen offset:{512*(i&7)} sc1' for i in range(nq)]
    if a.o.get('ps'): a.poll8_sum(QL, 32, nq, 30, [(0, nq)])
    else: a.poll8(QL, range(33, 32+2*nq, 2), 30)
    a.stamp(4)
    if not a.o.get('ps'): a.tree_add(range(32, 32+2*nq, 2))
    a.rbf(32, 32)
    if a.o.get('qmode'): a('v_or_b32 v32, s43, v32')
    else: a('v_or_b32 v32, v2, v32')
    a.store_mode('buffer_store_dword v32, v17, s[8:11], s55 offen')
    if a.o.get('sq'): a.store_mode('buffer_store_dword v20, v19, s[8:11], s56 offen')
    a.stamp(5)
    a.trigger(a.o.get('ftrig'))
    a('s_barrier')
    if a.o.get('fp2'):
        a.probe(3)
        a('v_mov_b32 v65, s76\nds_write_b32 v14, v65 offset:4\ns_waitcnt lgkmcnt(0)')
    a.exit()

def M_early(a):
    a.role = 'M'
    a('L_M:')
    for s, k in ((24, 'x'), (28, 'wg'), (32, 'wu'), (36, 'wd')): a.karg(s, k)
    a.srd(24, 1024)
    for s in (28, 32, 36): a.srd(s, 0x1C0000)
    a('v_bfe_u32 v10, v1, 3, 2\nv_lshlrev_b32 v10, 13, v10\nv_and_b32 v6, 7, v1\nv_lshl_add_u32 v10, v6, 7, v10\nv_lshrrev_b32 v6, 5, v1\nv_lshl_add_u32 v10, v6, 6, v10')
    a('s_lshl_b32 s43, s58, 4\ns_add_u32 s43, s43, s3\ns_add_u32 s43, s43, 8\ns_lshl_b32 s43, s43, 15\ns_lshl_b32 s42, s4, 10\ns_add_u32 s43, s43, s42')
    a('v_and_b32 v11, 31, v1')
    a('s_waitcnt lgkmcnt(0)')
    a.stamp(0)
    a.get_tag()
    if a.o.get('a_tagw'): a.fin_tag()
    if not a.o.get('early_gu') and a.o.get('apf2') != 1: a('buffer_load_dword v112, v10, s[16:19], s43 offen FPOL')
    if not a.o.get('a_tagw'): a.fin_tag()
    if a.o.get('vpf'):
        a.karg(68, 'v'); a.srd(68, 0x2000000)
        a(f'v_lshrrev_b32 v12, 5, v1\nv_lshlrev_b32 v12, 13, v12\nv_lshl_add_u32 v12, v11, 7, v12\ns_lshl_b32 s40, s4, 22\ns_lshl_b32 s41, s58, 17\ns_add_u32 s40, s40, s41\ns_lshl_b32 s41, s3, 14\ns_add_u32 s40, s40, s41\ns_add_u32 s40, s40, {(3<<20) + 4096}\ns_waitcnt lgkmcnt(0)')
        if a.o['vpf'] == 2: a('s_barrier')
        a('buffer_load_dword v113, v12, s[68:71], s40 offen UPOL')
    if a.o.get('rpf'):
        a('v_bfe_u32 v13, v1, 2, 3\nv_mul_u32_u24 v13, 6144, v13\nv_and_b32 v14, 3, v1\nv_lshl_add_u32 v13, v14, 7, v13\nv_lshl_add_u32 v13, v6, 6, v13')
        a('s_lshl_b32 s42, s4, 3\ns_add_u32 s42, s42, s3\ns_mul_i32 s42, s42, 49152\ns_lshl_b32 s44, s58, 9\ns_add_u32 s42, s42, s44\ns_add_u32 s42, s42, 2048')
        if a.o.get('rpf') == 2: a('s_waitcnt vmcnt(0)')
        if a.o.get('rpf') != 3: a('buffer_load_dword v22, v13, s[12:15], s42 offen FPOL')
        else: a('s_mov_b32 s62, s42')
    a('s_branch L_M2')

def M_body(a):
    a.role = 'M'
    a('L_M2:')
    if a.o.get('p16'): a('v_and_b32 v11, 31, v1\nv_lshrrev_b32 v6, 5, v1')
    a('s_mul_i32 s59, s4, 7\ns_add_u32 s59, s59, s58')
    a('s_cmp_eq_u32 s58, 7\ns_cbranch_scc1 L_R')
    if a.o.get('mearly'): a('s_mov_b32 s66, s3')
    a('v_mul_u32_u24 v5, 28672, v4\nv_lshl_add_u32 v5, v3, 2, v5')
    a(f's_and_b32 s42, s59, 1\ns_cselect_b32 s44, {39*3584}, 0\ns_cselect_b32 s48, -1, 1\ns_cselect_b32 s63, 78, 0\ns_cselect_b32 s42, 7, 0\ns_xor_b32 s3, s3, s42\ns_mul_i32 s49, s48, {3584*25}\ns_mul_i32 s48, s48, 3584')
    a('s_mul_i32 s41, s3, 229376\ns_lshl_b32 s42, s59, 6\ns_add_u32 s41, s41, s42\ns_add_u32 s41, s41, s44')
    a('s_lshl_b32 s40, s3, 7')
    eg = a.o.get('early_gu')
    def gu():
        for r in range(16):
            a(f'buffer_load_dword v{32+r}, v5, s[28:31], s41 offen MPOL\nbuffer_load_dword v{48+r}, v5, s[32:35], s41 offen MPOL')
            if r < 15: a(f's_add_u32 s41, s41, s{48 if r != 7 else 49}')
    if eg:
        gu()
        a('s_waitcnt vmcnt(0)')
        a.stamp(4)
        a.perm_x1(32, 80); a.perm_x1(40, 88); a.perm_x1(48, 96); a.perm_x1(56, 104)
    if a.o.get('m_pfw') or a.o.get('p16'): a('s_waitcnt vmcnt(0)')
    if a.o.get('tlb_m'):
        a.karg(68, 'wo'); a.srd(68, 0x400000)
        a('s_lshl_b32 s42, s4, 19\ns_mov_b64 exec, 1\nbuffer_load_dword v113, v5, s[28:31], s41 offen nt\nbuffer_load_dword v114, v5, s[32:35], s41 offen nt\nbuffer_load_dword v115, v5, s[36:39], 0 offen nt\nbuffer_load_dword v116, v5, s[24:27], 0 offen')
        a(f's_mov_b32 s44, {MODV}\nbuffer_load_dword v117, v5, s[8:11], s44 offen sc1\ns_waitcnt lgkmcnt(0)\nbuffer_load_dword v118, v5, s[68:71], s42 offen nt\ns_mov_b64 exec, -1')
    if a.o.get('dfirst'):
        a('v_lshlrev_b32 v6, 13, v4\nv_lshl_add_u32 v6, v3, 3, v6\ns_lshl_b32 s43, s59, 15\ns_add_u32 s43, s43, s40\ns_add_u32 s42, s43, 4096')
        if a.o['dfirst'] != 'none': a('s_barrier')
        for i in range(8): a(f'buffer_load_dwordx2 v[{64+2*i}:{65+2*i}], v6, s[36:39], s{43 if i<4 else 42} offen offset:{1024*(i&3)} MPOL')
    a.stamp(1)
    if a.o.get('mearly'):
        a(f's_cmp_lt_u32 s66, {a.o["mearly"]}\ns_cbranch_scc0 L_M_w')
        gu()
        a('s_barrier\nbuffer_load_ushort v8, v7, s[24:27], s40 offen\ns_branch L_M_x\nL_M_w:')
    a('s_barrier')
    a.stamp(3)
    if a.o.get('rpf') == 3: a('buffer_load_dword v22, v13, s[12:15], s62 offen FPOL')
    a('buffer_load_ushort v8, v7, s[24:27], s40 offen')
    if not eg: gu()
    if a.o.get('mearly'): a('L_M_x:')
    a('v_lshlrev_b32 v6, 13, v4\nv_lshl_add_u32 v6, v3, 3, v6\ns_lshl_b32 s43, s59, 15\ns_add_u32 s43, s43, s40\ns_add_u32 s41, s43, 4096' + ('\ns_mov_b32 s64, s43\ns_mov_b32 s65, s41' if a.o.get('dl') else ''))
    dl = a.o.get('dl')
    MV = ['buffer_load_dword v112, v17, s[8:11], s55 offen sc1', 'buffer_load_dword v113, v17, s[8:11], s55 offen offset:2048 sc1', 'buffer_load_dword v114, v17, s[8:11], s56 offen sc1']
    if not dl and not a.o.get('dfirst'):
        for i in range(8): a(f'buffer_load_dwordx2 v[{64+2*i}:{65+2*i}], v6, s[36:39], s{43 if i<4 else 41} offen offset:{1024*(i&3)} MPOL')
    a(f's_lshl_b32 s42, s3, 8\ns_lshl_b32 s54, s3, 17\ns_add_u32 s54, s54, {AX}\ns_mul_i32 s55, s4, 12288\ns_add_u32 s55, s55, s42\ns_add_u32 s55, s55, {MODV + 2*2048}\ns_add_u32 s56, s55, 4096')
    if a.o.get('mv') or a.o.get('pt_m'): a('\n'.join(MV))
    a(f'v_add_u32 v13, s42, v17\nv_add_u32 v13, {WX1}, v13')
    a(f's_lshl_b32 s43, s3, 3\ns_add_u32 s43, s43, {WST}\nv_mov_b32 v14, s43\nv_and_b32 v15, 7, v1\nv_lshlrev_b32 v15, 3, v15\nv_add_u32 v15, {WST}, v15')
    a(f's_add_u32 s43, s40, {WH2}\nv_xor_b32 v16, s63, v7\nv_add_u32 v16, s43, v16\nv_add_u32 v18, s43, v9')
    a(f's_add_u32 s43, s42, {WGU}\nv_lshlrev_b32 v19, 3, v3\nv_add_u32 v19, s43, v19')
    a(f's_lshl_b32 s43, s3, 6\ns_add_u32 s43, s43, {WHH}\nv_lshlrev_b32 v10, 1, v11\nv_add_u32 v10, s43, v10\nv_add_u32 v11, s43, v9')
    a('v_lshrrev_b32 v12, 3, v3\nv_lshlrev_b32 v12, 9, v12\nv_and_b32 v20, 7, v3\nv_lshl_add_u32 v12, v20, 4, v12')
    a(f's_bfe_u32 s62, s59, 0x40001\ns_lshl_b32 s62, s62, 17\ns_lshr_b32 s42, s59, 5\ns_lshl_b32 s42, s42, 8\ns_add_u32 s62, s62, s42\ns_and_b32 s42, s59, 1\ns_lshl_b32 s42, s42, 7\ns_add_u32 s62, s62, s42\ns_lshl_b32 s42, s3, 10\ns_add_u32 s62, s62, s42\ns_add_u32 s62, s62, {DP}')
    if a.o.get('pw_d'):
        a('v_xor_b32 v28, 1, v2\nv_mov_b32 v29, v28\nv_mov_b32 v30, v28\nv_mov_b32 v31, v28\ns_mov_b64 exec, 0xffff')
        a.store2('buffer_store_dwordx4 v[28:31], v12, s[8:11], s{s} offen', 62, 42)
        a('s_mov_b64 exec, -1')
    a(f'v_mov_b32 v21, {WMODE + (4 if a.o.get("p16") else 0)}')
    if not eg:
        a(f's_waitcnt vmcnt({(0 if dl or a.o.get("dfirst") else 8) + (3 if a.o.get("mv") or a.o.get("pt_m") else 0) + (2 if a.o.get("pw_d") else 0)})')
        a.stamp(4)
        a.perm_x1(32, 80); a.perm_x1(40, 88); a.perm_x1(48, 96); a.perm_x1(56, 104)
    if not dl:
        a(f's_waitcnt vmcnt({(3 if a.o.get("mv") or a.o.get("pt_m") else 0) + (2 if a.o.get("pw_d") else 0)})')
        a.perm_x2(64, 32)
    if dl == 3:
        a('s_barrier')
        for i in range(8): a(f'buffer_load_dwordx2 v[{32+2*i}:{33+2*i}], v6, s[36:39], s{64 if i<4 else 65} offen offset:{1024*(i&3)} MPOL')
        a('s_waitcnt vmcnt(0)')
    a('v_lshlrev_b32 v8, 16, v8')
    a.stamp(5)
    a.poll(MV, range(112, 115), 30, first_issued=bool(a.o.get('mv')), sleep=a.o.get('msleep'))
    a('ds_read_b32 v21, v21\nv_add_f32 v114, 1.0, v114'); a.rbf(114, 114)
    a('s_waitcnt lgkmcnt(0)\nv_readfirstlane_b32 s76, v21\ns_mov_b32 s63, 0x42800000\ns_nop 2')
    a(f's_add_u32 s54, s54, s76\ns_add_u32 s40, s54, {8*BLK}')
    if a.o.get('axgate'):
        a(f's_lshl_b32 s41, s4, 8\ns_add_u32 s41, s41, {AL}')
        a.poll(['buffer_load_dword v48, v17, s[8:11], s41 offen sc1', 'buffer_load_dword v49, v17, s[8:11], s41 offen sc1'], [48, 49], 30)
        if a.o['axgate'] > 1: a(f's_sleep {a.o["axgate"]}')
    a.stamp(6)
    if a.o.get('axl'):
        a('s_lshl_b32 s41, s4, 8\ns_add_u32 s43, s41, s40\ns_add_u32 s41, s41, s54')
        a.poll(['buffer_load_dword v48, v17, s[8:11], s41 offen sc1', 'buffer_load_dword v49, v17, s[8:11], s43 offen sc1'], [48, 49], 30, sleep=a.o.get('asleep'))
    R = list(range(48, 56)) + (list(range(60, 68)) if a.o.get('hc') else [])
    LDS_ = [f'buffer_load_dword v{r}, v17, s[8:11], s{40 if i & 1 else 54} offen offset:{256*(i>>1)} sc1' for i, r in enumerate(R)]
    if a.o.get('sel'):
        n = a.o['sel']; ng = len(R) // n
        a(f's_mov_b32 s42, {(1 << ng) - 1}\ns_mov_b32 s47, 0\nL_ax:')
        for g in range(ng):
            a(f's_bitcmp1_b32 s42, {g}\ns_cbranch_scc0 L_ax_i{g}\n' + '\n'.join(LDS_[n*g:n*g+n]) + f'\nL_ax_i{g}:')
        a(f's_add_u32 s47, s47, 1\ns_cmp_gt_u32 s47, {LIMIT}\ns_cselect_b32 s43, 0, -1')
        for g in range(ng):
            rs = R[n*g:n*g+n]
            a(f's_bitcmp1_b32 s42, {g}\ns_cbranch_scc0 L_ax_c{g}' + ('\ns_waitcnt vmcnt(0)'))
            for r in rs: a(f'v_xor_b32 v{r}, v2, v{r}')
            if n == 2: a(f'v_or_b32 v30, v{rs[0]}, v{rs[1]}')
            else: a(f'v_or3_b32 v30, v{rs[0]}, v{rs[1]}, v{rs[2]}\nv_or_b32 v30, v30, v{rs[3]}')
            a(f'v_and_b32 v30, {TMASK}, v30\nv_cmp_ne_u32 vcc, 0, v30\ns_cbranch_vccnz L_ax_c{g}\ns_bitset0_b32 s42, {g}\nL_ax_c{g}:')
        a('s_and_b32 s42, s42, s43\ns_cbranch_scc1 L_ax')
    elif a.o.get('ps'): a.poll_sum(LDS_, R, 30, 68)
    else: a.poll(LDS_, R, 30, sleep=(None if a.o.get('axl') else a.o.get('asleep')))
    a.stamp(7)
    def dn_loads():
        for i in range(8): a(f'buffer_load_dwordx2 v[{32+2*i}:{33+2*i}], v6, s[36:39], s{64 if i<4 else 65} offen offset:{1024*(i&3)} MPOL')
    if dl == 1: dn_loads()
    if a.o.get('ps'): a('v_add_f32 v48, v68, v69')
    elif a.o.get('pk'):
        for x, y in ((48, 60), (50, 62), (52, 64), (54, 66), (48, 52), (50, 54), (48, 50)): a(f'v_pk_add_f32 v[{x}:{x+1}], v[{x}:{x+1}], v[{y}:{y+1}]')
        a('v_add_f32 v48, v48, v49')
    else: a.tree_add(R)
    a.rbf(48, 48)
    a('v_mul_f32 v48, v112, v48'); a.rbf(48, 48)
    a('v_add_f32 v48, v8, v48'); a.rbf(48, 48)
    a('ds_write_b32 v13, v48\nv_readfirstlane_b32 s40, v48\ns_nop 1')
    a('v_subrev_f32 v49, s40, v48\nv_mul_f32 v50, v49, v49\ns_nop 0')
    for m in ('row_shr:1', 'row_shr:2', 'row_shr:4', 'row_shr:8'):
        a(f'v_add_f32_dpp v49, v49, v49 {m} {DPP} bound_ctrl:0\nv_add_f32_dpp v50, v50, v50 {m} {DPP} bound_ctrl:0\ns_nop 0')
    for m, rm in (('row_bcast:15', '0xa'), ('row_bcast:31', '0xc')):
        a(f'v_add_f32_dpp v49, v49, v49 {m} row_mask:{rm} bank_mask:0xf\nv_add_f32_dpp v50, v50, v50 {m} row_mask:{rm} bank_mask:0xf' + ('\ns_nop 0' if rm == '0xa' else ''))
    a('v_mul_f32 v51, 0x3c800000, v49\ns_mov_b32 exec_lo, 0\nv_fma_f32 v53, -v51, v49, v50\nv_add_f32 v52, s40, v51\ns_mov_b32 exec_hi, 0x80000000')
    a('ds_write_b64 v14, v[52:53]\ns_mov_b64 exec, -1\ns_waitcnt lgkmcnt(0)\ns_barrier')
    a('ds_read_b64 v[60:61], v15')
    if dl == 2: dn_loads()
    a('s_waitcnt lgkmcnt(0)')
    a(f'v_add_f32_dpp v49, v60, v60 row_ror:4 {DPP}')
    for k in (2, 1): a(f's_nop 1\nv_add_f32_dpp v49, v49, v49 row_ror:{k} {DPP}')
    a('v_mul_f32 v49, 0x3e000000, v49\nv_sub_f32 v60, v60, v49\nv_mul_f32 v60, v60, v60\nv_fma_f32 v61, v60, s63, v61')
    a.rbf(49, 49)
    a('v_sub_f32 v48, v48, v49')
    a(f'v_add_f32_dpp v61, v61, v61 row_ror:4 {DPP}'); a.rbf(48, 48); a('s_nop 0')
    a(f'v_add_f32_dpp v61, v61, v61 row_ror:2 {DPP}\ns_nop 1\nv_add_f32_dpp v61, v61, v61 row_ror:1 {DPP}')
    a('v_mul_f32 v61, 0x3b000000, v61'); a.rbf(61, 61)
    a(f'v_add_f32 v61, {EPS:#x}, v61'); a.rbf(61, 61)
    a('v_sqrt_f32 v61, v61\ns_nop 0'); a.rbf(61, 61)
    a.div(61, 48, 61, 62, 63); a.rbf(48, 61)
    a('v_mul_f32 v48, v48, v114'); a.rbf(48, 48)
    a('v_add_f32 v48, v48, v113'); a.rbf(48, 48)
    a('ds_write_b16_d16_hi v16, v48\nds_read_b128 v[20:23], v18\nds_read_b128 v[24:27], v18 offset:64')
    for t in range(2):
        a(f's_waitcnt lgkmcnt({1-t})')
        for m in range(4):
            b = 80 + 16*(m >> 1) + 8*t + 4*(m & 1)
            c = '0' if t == 0 else f'v[{48+4*m}:{51+4*m}]'
            a(f'v_mfma_f32_16x16x32_bf16 v[{48+4*m}:{51+4*m}], v[{20+4*t}:{23+4*t}], v[{b}:{b+3}], {c}')
    a('s_mov_b64 exec, 0xffff\ns_nop 4\nds_write2_b32 v19, v48, v52 offset1:1\ns_nop 0\nds_write2_b32 v19, v56, v60 offset0:32 offset1:33\ns_mov_b64 exec, -1\ns_waitcnt lgkmcnt(0)\ns_barrier')
    a.stamp(8)
    for i in range(4): a(f'ds_read2st64_b32 v[{48+2*i}:{49+2*i}], v17 offset0:{(WGU+512*i)//256} offset1:{(WGU+512*i+256)//256}')
    if dl:
        a('s_waitcnt vmcnt(0)')
        a.perm_x2(32, 64)
    a('s_waitcnt lgkmcnt(0)')
    a.tree8(48)
    a.rbf(48, 48)
    a('v_mov_b32 v49, v48\ns_nop 1\nv_permlane32_swap_b32 v48, v49')
    a('v_mul_f32 v48, s57, v48\nv_max_f32 v48, 0xc2fc0000, v48\nv_exp_f32 v48, -v48\ns_nop 0\nv_add_f32 v48, 1.0, v48\nv_rcp_f32 v50, v48\ns_nop 0\nv_fma_f32 v48, -v48, v50, 1.0\nv_fma_f32 v48, v48, v50, v50')
    a.rbf(48, 48)
    a('v_mul_f32 v48, v48, v49'); a.rbf(48, 48)
    a('ds_write_b16_d16_hi v10, v48\nds_read_b128 v[20:23], v11\ns_waitcnt lgkmcnt(0)')
    for jj in range(4): a(f'v_mfma_f32_16x16x32_bf16 v[{48+4*jj}:{51+4*jj}], v[20:23], v[{(64 if dl else 32)+4*jj}:{(67 if dl else 35)+4*jj}], 0')
    a('s_mov_b64 exec, 0xffff\ns_nop 3')
    for jj in range(4): a(f'v_and_or_b32 v{28+jj}, v{48+4*jj}, s46, v2')
    a.store2('buffer_store_dwordx4 v[28:31], v12, s[8:11], s{s} offen', 62, 42)
    a.stamp(9)
    if a.o.get('dpgate'): a(f's_waitcnt vmcnt({a.o["dpgate"]-1})\ns_barrier')
    a.exit()
    a('L_R:')
    if a.o.get('rq'):
        a(f'v_lshlrev_b32 v18, 3, v1\ns_lshl_b32 s54, s4, 3\ns_add_u32 s54, s54, s3\ns_lshl_b32 s55, s54, 8\ns_add_u32 s55, s55, {QV}\ns_lshl_b32 s54, s54, 12\ns_add_u32 s54, s54, {QP}\nv_mov_b32 v21, {WMODE}')
        a('s_barrier\nds_read_b32 v21, v21 offset:4\ns_waitcnt lgkmcnt(0)\nv_readfirstlane_b32 s7, v21')
        a.poll8([f'buffer_load_dwordx2 v[{32+2*i}:{33+2*i}], v18, s[8:11], s54 offen offset:{512*i} sc1' for i in range(8)], range(33, 48, 2), 30)
        a.stamp(11)
        a.tree_add(range(32, 48, 2))
        a.rbf(32, 32)
        a('v_or_b32 v32, v2, v32')
        a.store_mode('buffer_store_dword v32, v17, s[8:11], s55 offen')
        a.stamp(12)
        a.exit()
        return
    a('s_and_b32 s42, s4, 1\ns_cselect_b32 s40, 7, 1\ns_cselect_b32 s41, 0, 256\ns_sub_u32 s40, s59, s40\ns_lshl_b32 s40, s40, 6\ns_and_b32 s40, s40, 0xffffff80')
    a('s_and_b32 s42, s3, 3\ns_lshl_b32 s42, s42, 6\ns_add_u32 s41, s41, s42\ns_mul_i32 s41, s41, 3584\ns_add_u32 s40, s40, s41')
    a('v_mul_u32_u24 v5, 3584, v1')
    if a.o.get('p16'): a('s_waitcnt vmcnt(0)')
    if a.o.get('dfirst') not in (None, 'none'): a('s_barrier')
    if not a.o.get('early_gu'): a('s_barrier')
    if a.o.get('rpf') == 3: a('buffer_load_dword v22, v13, s[12:15], s62 offen FPOL')
    a('s_cmp_ge_u32 s3, 4\ns_cbranch_scc1 L_R_up\nbuffer_load_dword v8, v5, s[28:31], s40 offen MPOL\ns_branch L_R_done\nL_R_up:\nbuffer_load_dword v8, v5, s[32:35], s40 offen MPOL\nL_R_done:\ns_waitcnt vmcnt(0)')
    a.exit()

def M_comm(a):
    a.role = 'Mc'
    a('L_M_comm:')
    a.karg(64, 'out'); a.srd(64, 1024)
    if a.o.get('p16') or a.o.get('mh'):
        a('s_waitcnt lgkmcnt(0)')
        a.trigger(a.o.get('trig2'))
    else:
        a(f's_and_b32 s58, s5, 7\nv_mov_b32 v14, {WMODE}\nv_mov_b32 v15, 0\nds_write_b32 v14, v15\ns_waitcnt lgkmcnt(0)')
        a.stamp(0)
        a.mark('karg')
        a.get_tag(); a.fin_tag()
        a.mark('tag')
        a.xid_publish()
        if a.o.get('pt_q') == 3: a(f'v_lshlrev_b32 v22, 6, v1\ns_lshl_b32 s42, s4, 3\ns_add_u32 s42, s42, s58\ns_lshl_b32 s42, s42, 12\ns_add_u32 s42, s42, {QP}\nbuffer_load_dword v108, v22, s[8:11], s42 offen sc1')
        if a.o.get('sq'): a(f'v_lshlrev_b32 v22, 6, v1\ns_lshl_b32 s42, s4, 12\ns_add_u32 s42, s42, {QF}\nbuffer_load_dword v113, v22, s[8:11], s42 offen sc1')
        if a.o.get('pt_a'):
            a(f's_lshl_b32 s42, s4, 3\ns_add_u32 s42, s42, s58\ns_and_b32 s43, s42, 15\ns_lshl_b32 s43, s43, 17\ns_bfe_u32 s40, s42, 0x10004\ns_lshl_b32 s40, s40, 13\ns_add_u32 s43, s43, s40\ns_lshr_b32 s40, s42, 5\ns_lshl_b32 s40, s40, 10\ns_add_u32 s43, s43, s40\ns_add_u32 s43, s43, {AX}')
            a(f'v_and_b32 v22, 7, v1\nv_lshlrev_b32 v22, 7, v22\nbuffer_load_dword v110, v22, s[8:11], s43 offen {a.o["pt_a"]}'.replace(' plain', ''))
        if a.o.get('pt_p'):
            a(f's_lshl_b32 s42, s4, 3\ns_add_u32 s42, s42, s58\ns_and_b32 s43, s42, 15\ns_lshl_b32 s43, s43, 17\ns_lshr_b32 s40, s42, 4\ns_lshl_b32 s40, s40, 13\ns_add_u32 s43, s43, s40\ns_add_u32 s43, s43, {MODP}')
            a(f'v_lshlrev_b32 v22, 7, v1\nbuffer_load_dword v111, v22, s[8:11], s43 offen {a.o["pt_p"]}'.replace(' plain', ''))
        if a.o.get('pt_dd'):
            a(f's_lshl_b32 s42, s4, 3\ns_add_u32 s42, s42, s58\ns_and_b32 s43, s42, 15\ns_lshl_b32 s43, s43, 17\ns_lshr_b32 s40, s42, 4\ns_lshl_b32 s40, s40, 12\ns_add_u32 s43, s43, s40\ns_add_u32 s43, s43, {DP}')
            a(f'v_and_b32 v22, 31, v1\nv_lshlrev_b32 v22, 7, v22\nbuffer_load_dword v112, v22, s[8:11], s43 offen')
        if a.o.get('vd'):
            a('s_cmp_lg_u32 s58, 7\ns_cbranch_scc1 L_M_c0')
            a(a.xid_load(44))
            a.poll([a.xid_load(40, True)], range(40, 44), 30, sleep=2)
            for i in range(4): a(f'v_xor_b32 v{40+i}, v2, v{40+i}')
            a.xid_mode(40, True)
            a('s_lshl_b32 s42, s7, 10\ns_or_b32 s42, s42, s6\nv_mov_b32 v40, s42\nv_mov_b32 v41, s42\nv_mov_b32 v42, s42\nv_mov_b32 v43, s42\ns_mov_b64 exec, 1')
            a.store_mode('buffer_store_dwordx4 v[40:43], off, s[8:11], s49')
            a('s_mov_b64 exec, -1\nL_M_c0:')
        if a.o.get('vpf') == 2:
            a.trigger(a.o.get('vtrig', 'own')); a('s_barrier')
        if a.o.get('dfirst') not in (None, 'none'):
            a.trigger(a.o['dfirst']); a('s_barrier')
        a.trigger(a.o.get('trig'))
    a.mark('trig')
    if a.o.get('rq'):
        a('s_cmp_lg_u32 s58, 7\ns_cbranch_scc1 L_M_c1')
        a.poll([a.xid_load(40)], range(40, 44), 30, sleep=4)
        for i in range(4): a(f'v_xor_b32 v{40+i}, v2, v{40+i}')
        a.xid_mode(40)
        a('v_mov_b32 v15, s7\nds_write_b32 v14, v15 offset:4\ns_waitcnt lgkmcnt(0)\nL_M_c1:')
    a('s_barrier')
    a.stamp(1)
    if a.o.get('cpf2'): a('global_load_dword v23, v21, s[52:53]\nglobal_load_dword v24, v22, s[52:53]')
    if a.o.get('tlb_out'): a('v_mov_b32 v108, 0\ns_mov_b64 exec, 1\nbuffer_load_dword v109, v108, s[64:67], 0 offen\ns_mov_b64 exec, -1')
    a('s_cmp_eq_u32 s58, 7\ns_cbranch_scc1 L_M_cdone')
    a.probe(4)
    a('v_mov_b32 v15, s76\nds_write_b32 v14, v15' + (' offset:4' if a.o.get('p16') else ''))
    a('s_cmp_ge_u32 s58, 2\ns_cbranch_scc1 L_M_cdone')
    a('s_lshl_b32 s59, s4, 1\ns_add_u32 s59, s59, s58\nv_and_b32 v10, 31, v1\nv_lshlrev_b32 v11, 1, v10\nv_lshlrev_b32 v12, 2, v10\nv_lshlrev_b32 v17, 2, v1')
    a(f's_lshl_b32 s40, s59, 6\ns_lshl_b32 s42, s59, 7\nv_add_u32 v13, s42, v12\ns_lshl_b32 s54, s59, 9\ns_add_u32 s54, s54, {DP}\ns_add_u32 s54, s54, s76')
    a(f's_mul_i32 s41, s4, 12288\ns_add_u32 s41, s41, s42\ns_add_u32 s41, s41, {MODV + 5*2048}')
    for i in range(1, 16): a(f'v_add_u32 v{64+i}, {i*BLK}, v17')
    a('v_mov_b32 v64, v17')
    if a.o.get('pt_out'): a('buffer_load_ushort v110, v11, s[64:67], s40 offen sc1')
    if a.o.get('pt_d'):
        for i in range(28): a(f'buffer_load_dword v{32+i}, v{64+(i&15)}, s[8:11], s54 offen offset:{256*(i>>4)} {a.o["pt_d"]}')
    if a.o.get('dl') == 3: a('s_barrier')
    a('s_barrier')
    a.mark('mb1')
    a(f'ds_read_b32 v28, v13 offset:{WX1}')
    a.poll(['buffer_load_dword v29, v12, s[8:11], s41 offen sc1', 'buffer_load_dword v31, v12, s[8:11], s41 offen sc1'], [29, 31], 30)
    a('s_waitcnt lgkmcnt(0)\ns_barrier')
    a.stamp(2)
    if a.o.get('dpdelay'): a(f's_sleep {a.o["dpdelay"]}')
    if a.o.get('dpgate'): a('s_barrier')
    DPL = [f'buffer_load_dword v{32+i}, v{64+(i&15)}, s[8:11], s54 offen offset:{256*(i>>4)} sc1' for i in range(28)]
    if a.o.get('ps'): a.poll_sum(DPL, list(range(32, 60)), 30, 60)
    else: a.poll(DPL, range(32, 60), 30)
    a.stamp(3)
    if a.o.get('ps'): a('v_add_f32 v32, v60, v61')
    elif a.o.get('pk'):
        regs = list(range(32, 60, 2))
        while len(regs) > 1:
            nxt = []
            for i in range(0, len(regs) - 1, 2):
                a(f'v_pk_add_f32 v[{regs[i]}:{regs[i]+1}], v[{regs[i]}:{regs[i]+1}], v[{regs[i+1]}:{regs[i+1]+1}]'); nxt.append(regs[i])
            if len(regs) % 2: nxt.append(regs[-1])
            regs = nxt
        a('v_add_f32 v32, v32, v33')
    else: a.tree_add(range(32, 60))
    a.swap_op(32, 'v_add_f32', 32, 33)
    a.rbf(32, 32)
    a('v_mul_f32 v32, v29, v32'); a.rbf(32, 32)
    a('v_add_f32 v32, v28, v32'); a.rbf(32, 32)
    a.mark('end'); a.hold()
    a('s_mov_b32 exec_hi, 0\nbuffer_store_short_d16_hi v32, v11, s[64:67], s40 offen' + (' sc1' if a.o.get('out_wt') else ''))
    a(f's_cmp_lg_u32 s59, 0\ns_cbranch_scc1 L_M_noep\ns_mov_b64 exec, 1\nv_mov_b32 v33, s45\nv_mov_b32 v34, {EPOCH}\nbuffer_store_dword v33, v34, s[8:11], 0 offen sc1\nL_M_noep:')
    a.stamp(4)
    if a.o.get('amp'):
        a('s_waitcnt vmcnt(0)\ns_memrealtime s[98:99]\ns_waitcnt lgkmcnt(0)\ns_sub_u32 s97, s98, s96\ns_mul_i32 s97, s97, 11')
        a('L_amp:\ns_memrealtime s[98:99]\ns_waitcnt lgkmcnt(0)\ns_sub_u32 s98, s98, s96\ns_cmp_lt_u32 s98, s97\ns_cbranch_scc1 L_amp')
    a('L_M_cdone:')
    a.exit()

DOC = '; ---------------------------------------------------------------------------------------------------------------\n; One persistent launch: 256 workgroups (one per CU) x 9 waves (8 work waves + 1 communication wave).\n; group g = wg & 7 owns kv head g; idx = wg >> 3 picks the role:\n;   idx 24..30  M: LN2, 32 columns of gate/up, sigmoid(g)*u, 32 rows of w_down; slots 0,1 also reduce the output\n; Hand-offs go through d_ws; every word (or 8-byte granule) carries the launch tag = (word at d_ws[0] on entry) + 1,\n; which the last reducer writes back.  Readers poll with sc1 loads until all tags match.  Hand-offs inside a group use\n; plain stores only when all 32 workgroups of the group reported the same XCC id, else write-through (sc1) stores.\n; Cross-group hand-offs are written twice (address bit 13 clear/set); a reader picks the copy that answers faster.\n; All intermediate values are rounded to bf16 where the reference rounds them.\n; ---------------------------------------------------------------------------------------------------------------\n'
HEADER = open('adaLN_cond__sliding_block_cached__glu_gated_glu__decode.s.ref').read().split('; Override launch')[0]
def emit(fn, prof=False, opts=None):
    a = gen_all(prof, opts)
    body = a.text()
    for p in ('MPOL', 'FPOL', 'OPOL', 'KPOL', 'VPOL', 'WPOL', 'RPOL', 'UPOL'): body = body.replace(' ' + p, (' ' + a.o.get(p, 'nt')).rstrip())
    errs = lint(body)
    if errs: print('\n'.join(errs)); raise SystemExit('lint errors')
    vg = 128
    txt = f'''{HEADER}; @launch grid=(256,1,1) block=(576,1,1) lds={LDS_TOTAL}
{DOC}.amdgcn_target "amdgcn-amd-amdhsa--gfx950"
.text
.globl {NAME}
.p2align 8
.type {NAME},@function
{NAME}:
{body}.section .rodata,"a"
.p2align 6
.amdhsa_kernel {NAME}
  .amdhsa_next_free_vgpr {vg}
  .amdhsa_next_free_sgpr 100
  .amdhsa_accum_offset {vg}
  .amdhsa_group_segment_fixed_size 0
  .amdhsa_kernarg_size 112
  .amdhsa_user_sgpr_count 2
  .amdhsa_user_sgpr_kernarg_segment_ptr 1
  .amdhsa_system_sgpr_workgroup_id_x 1
.end_amdhsa_kernel
'''
    open(fn, 'w').write(txt)
BEST = dict(ps=1, pk=1, psame=1, pt_m=1, pt_o=1, pw_d=1, pt_q=3, RPOL='', FPOL='', MPOL='', OPOL='', kvt0=1, apf2=1, a_pfw=1, trig='h1', q1=1, split=1, kv_bar=1, dpgate=1, cwo=0, fp2=1, fgate=1, hc=1)
if __name__ == '__main__':
    emit('best.s', opts=BEST); emit('bestp.s', prof=True, opts=BEST); emit('best_amp.s', opts=dict(BEST, amp=1)); emit('best_slow.s', opts=dict(BEST, force_slow=1))
```

```python
import sys
from asmlib import Asm, KOFF, NAME
from lint import lint

BLK = 131072
EPOCH = 0; XID = 0x400; AX = 0x1000; DP = 0x4000; MODP = 0x8000; PROBE = 0x10000; COPY = 8192
QV = 0x200000; MODV = 0x204000; OS = 0x21C000; QF = 0x220000; AL = 0x230000; HV = 0x238000; VD = 0x23C000; QP = 0x240000; OP = 0x2C0000; AP = 0x300000; STAMP = 0x400000
TMASK = 0x3FF; LIMIT = 1000000
LK = 0; LV = 65536; LQ = 131072; LMX = LQ + 1152; LLS = LMX + 128; LP = LLS + 2048; LOF = LP + 2048; LZ = LOF + 64; LMODE_A = LZ + 64; LRED = (LMODE_A + 64 + 255) // 256 * 256; LDS_TOTAL = LRED + 2048
WCS = 0; WH = 1024; WMODE = 1152; WZ = 1280; WX1 = 2048; WST = 4096; WH2 = 4224; WGU = 5376; WHH = 7424; WQL = 8192
SCALE = 0x3DB504F3; LOG2E = 0x3FB8AA3B; EPS = 0x3727C5AC
DPP = 'row_mask:0xf bank_mask:0xf'

class G(Asm):
    def __init__(self, prof=False, opts=None):
        super().__init__(); self.prof = prof; self.o = opts or {}
    role = ''
    def stamp(self, slot):
        if self.o.get('hs') == (self.role, slot): self('s_memrealtime s[94:95]\ns_waitcnt lgkmcnt(0)')
        if self.prof: self(f's_memrealtime s[60:61]\ns_waitcnt lgkmcnt(0)\nv_writelane_b32 v127, s60, {slot}')
    def exit(self):
        if self.o.get('hs') and self.o['hs'][0] == self.role:
            l = self.label('H')
            self('s_waitcnt lgkmcnt(0)\ns_sub_u32 s97, s94, s96\ns_mul_i32 s97, s97, 10\ns_add_u32 s97, s97, 1500')
            self(f'{l}:\ns_memrealtime s[98:99]\ns_waitcnt lgkmcnt(0)\ns_sub_u32 s98, s98, s96\ns_cmp_lt_u32 s98, s97\ns_cbranch_scc1 {l}')
        if self.prof:
            self('v_writelane_b32 v127, s96, 13')
            self(f's_mov_b64 exec, 0xffff\ns_lshl_b32 s60, s5, 3\ns_add_u32 s60, s60, s4\ns_mul_i32 s60, s60, 9\ns_add_u32 s60, s60, s3\ns_lshl_b32 s60, s60, 6\ns_add_u32 s60, s60, {STAMP}')
            self('v_lshlrev_b32 v126, 2, v1\nbuffer_store_dword v127, v126, s[8:11], s60 offen')
        self('s_endpgm')
    def srd(self, s, nbytes): self(f's_mov_b32 s{s+2}, {nbytes:#x}\ns_mov_b32 s{s+3}, 0x20000')
    def karg(self, s, k): self(f's_load_dwordx2 s[{s}:{s+1}], s[0:1], {KOFF[k]}')
    def rbf(self, d, s): self(f'v_cvt_pk_bf16_f32 v{d}, 0, v{s}')
    def get_tag(self):
        self(f's_load_dword s45, s[8:9], {EPOCH}\ns_mov_b32 s46, {0xFFFFFFFF ^ TMASK:#x}\ns_mov_b32 s50, 0x05040100\ns_mov_b32 s51, 0x07060302')
    def fin_tag(self):
        self(f's_waitcnt lgkmcnt(0)\ns_add_u32 s45, s45, 1\ns_and_b32 s6, s45, {TMASK}\nv_mov_b32 v2, s6')
    def _loop(self, loads, check, sleep, first_issued=False):
        l = self.label('P')
        self('s_mov_b32 s47, 0')
        if first_issued: self(f's_branch {l}_w')
        self(f'{l}:')
        for x in loads: self(x)
        if first_issued: self(f'{l}_w:')
        self(f's_add_u32 s47, s47, 1\ns_cmp_gt_u32 s47, {LIMIT}\ns_cbranch_scc1 {l}_t')
        self('s_waitcnt vmcnt(0)')
        check()
        if sleep: self(f's_cbranch_vccz {l}_x\ns_sleep {sleep}\ns_branch {l}')
        else: self(f's_cbranch_vccnz {l}')
        self.tails.append(f'{l}_t:\ns_waitcnt vmcnt(0)\ns_branch {l}_x')
        self(f'{l}_x:')
    tails = None
    def poll(self, loads, regs, acc, sleep=None, first_issued=False):
        def check():
            for r in regs: self(f'v_xor_b32 v{r}, v2, v{r}')
            rs = list(regs)
            self(f'v_or_b32 v{acc}, v{rs[0]}, v{rs[1]}'); rs = rs[2:]
            while len(rs) >= 2: self(f'v_or3_b32 v{acc}, v{acc}, v{rs[0]}, v{rs[1]}'); rs = rs[2:]
            if rs: self(f'v_or_b32 v{acc}, v{acc}, v{rs[0]}')
            self(f'v_and_b32 v{acc}, {TMASK}, v{acc}\nv_cmp_ne_u32 vcc, 0, v{acc}')
        self._loop(loads, check, sleep, first_issued)
    def poll_sum(self, loads, regs, acc, out):
        l = self.label('P'); n = len(regs)
        self(f's_mov_b32 s47, 0\n{l}:')
        for x in loads: self(x)
        self(f's_add_u32 s47, s47, 1\ns_cmp_gt_u32 s47, {LIMIT}\ns_cbranch_scc1 {l}_t')
        for k in range(0, n, 4):
            r = regs[k:k+4]
            self(f's_waitcnt vmcnt({n - k - 4})')
            for x in r: self(f'v_xor_b32 v{x}, v2, v{x}')
            if k == 0: self(f'v_or_b32 v{acc}, v{r[0]}, v{r[1]}\nv_pk_add_f32 v[{out}:{out+1}], v[{r[0]}:{r[1]}], v[{r[2]}:{r[3]}]\nv_or3_b32 v{acc}, v{acc}, v{r[2]}, v{r[3]}')
            else:
                self(f'v_or3_b32 v{acc}, v{acc}, v{r[0]}, v{r[1]}\nv_or3_b32 v{acc}, v{acc}, v{r[2]}, v{r[3]}')
                if k == n - 4: self(f'v_and_b32 v{acc}, {TMASK}, v{acc}\nv_cmp_ne_u32 vcc, 0, v{acc}')
                self(f'v_pk_add_f32 v[{r[0]}:{r[1]}], v[{r[0]}:{r[1]}], v[{r[2]}:{r[3]}]\nv_pk_add_f32 v[{out}:{out+1}], v[{out}:{out+1}], v[{r[0]}:{r[1]}]')
        self(f's_cbranch_vccnz {l}')
        self.tails.append(f'{l}_t:\ns_waitcnt vmcnt(0)\ns_branch {l}_x')
        self(f'{l}_x:')
    def poll8_sum(self, loads, base, n, acc, groups):
        l = self.label('P')
        self(f's_mov_b32 s47, 0\n{l}:')
        for x in loads: self(x)
        self(f's_add_u32 s47, s47, 1\ns_cmp_gt_u32 s47, {LIMIT}\ns_cbranch_scc1 {l}_t')
        first = {i: f for f, c in groups for i in range(f, f + c)}
        for k in range(0, n, 2):
            self(f's_waitcnt vmcnt({n - k - 2})')
            if k == 0: self(f'v_xor_b32 v{acc}, s45, v{base+1}')
            else: self(f'v_bitop3_b32 v{acc}, v{acc}, v{base+2*k+1}, s45 bitop3:0xf6')
            self(f'v_bitop3_b32 v{acc}, v{acc}, v{base+2*k+3}, s45 bitop3:0xf6')
            if k == n - 2: self(f'v_cmp_ne_u32 vcc, 0, v{acc}')
            self(f'v_add_f32 v{base+2*k}, v{base+2*k}, v{base+2*k+2}')
            if first[k] != k: self(f'v_add_f32 v{base+2*first[k]}, v{base+2*first[k]}, v{base+2*k}')
        self(f's_cbranch_vccnz {l}')
        self.tails.append(f'{l}_t:\ns_waitcnt vmcnt(0)\ns_branch {l}_x')
        self(f'{l}_x:')
    def poll8(self, loads, tags, acc, sleep=None):
        def check():
            rs = list(tags)
            self(f'v_xor_b32 v{acc}, s45, v{rs[0]}')
            for r in rs[1:]: self(f'v_bitop3_b32 v{acc}, v{acc}, v{r}, s45 bitop3:0xf6')
            self(f'v_cmp_ne_u32 vcc, 0, v{acc}')
        self._loop(loads, check, sleep)
    def store_mode(self, ins):
        l = self.label('S')
        self(f's_cmp_eq_u32 s7, 1\ns_cbranch_scc0 {l}_s\n{ins}\n{l}_e:')
        self.tails.append(f'{l}_s:\n{ins} sc1\ns_branch {l}_e')
    def store2(self, ins, sreg, tmp):
        self(ins.format(s=sreg) + ' sc1')
        if not self.o.get('onecopy'): self(f's_add_u32 s{tmp}, s{sreg}, {COPY}\n' + ins.format(s=tmp) + ' sc1')
    def tree_add(self, regs):
        regs = list(regs)
        while len(regs) > 1:
            nxt = []
            for i in range(0, len(regs) - 1, 2):
                self(f'v_add_f32 v{regs[i]}, v{regs[i]}, v{regs[i+1]}'); nxt.append(regs[i])
            if len(regs) % 2: nxt.append(regs[-1])
            regs = nxt
    def tree8(self, b):
        if self.o.get('pk'):
            self(f'v_pk_add_f32 v[{b}:{b+1}], v[{b}:{b+1}], v[{b+2}:{b+3}]\nv_pk_add_f32 v[{b+4}:{b+5}], v[{b+4}:{b+5}], v[{b+6}:{b+7}]\nv_pk_add_f32 v[{b}:{b+1}], v[{b}:{b+1}], v[{b+4}:{b+5}]\nv_add_f32 v{b}, v{b}, v{b+1}')
        else: self.tree_add(range(b, b + 8))
    def swap_op(self, which, op, v, t):
        self(f'v_mov_b32 v{t}, v{v}\ns_nop 1\nv_permlane{which}_swap_b32 v{v}, v{t}\n{op} v{v}, v{v}, v{t}')
    def row_reduce(self, op, regs):
        for k in (8, 4, 2, 1):
            if len(regs) < 3: self(f's_nop {2 - len(regs) + (0 if k != 8 else 1)}')
            elif k == 8: self('s_nop 1')
            for r in regs: self(f'{op}_dpp v{r}, v{r}, v{r} row_ror:{k} {DPP}')
    def wave_reduce(self, op, regs, t):
        self.row_reduce(op, regs)
        for w in (16, 32):
            for i, r in enumerate(regs): self(f'v_mov_b32 v{t+i}, v{r}')
            self('s_nop 1')
            for i, r in enumerate(regs): self(f'v_permlane{w}_swap_b32 v{r}, v{t+i}')
            for i, r in enumerate(regs): self(f'{op} v{r}, v{r}, v{t+i}')
    def div(self, q, n, d, r, t):
        self(f'v_rcp_f32 v{r}, v{d}\ns_nop 0\nv_mul_f32 v{t}, v{n}, v{r}\nv_fma_f32 v{q}, -v{t}, v{d}, v{n}\nv_fma_f32 v{q}, v{q}, v{r}, v{t}')
    def xid_publish(self):
        self('s_getreg_b32 s44, hwreg(HW_REG_XCC_ID)\ns_and_b32 s44, s44, 0xffff\ns_lshl_b32 s44, s44, 16\ns_or_b32 s44, s44, s6')
        self('v_mov_b32 v4, s44\nv_mov_b32 v5, s44\nv_mov_b32 v6, s44\nv_mov_b32 v7, s44\nv_mov_b32 v8, 0')
        self(f's_lshl_b32 s48, s4, 8\ns_add_u32 s48, s48, {XID}\ns_and_b32 s49, s5, 15\ns_lshl_b32 s49, s49, 17\ns_add_u32 s49, s49, s48\ns_lshr_b32 s42, s5, 4\ns_lshl_b32 s42, s42, 7\ns_add_u32 s49, s49, s42')
        self('s_mov_b64 exec, 1\nbuffer_store_dwordx4 v[4:7], v8, s[8:11], s49 offen sc1\ns_mov_b64 exec, -1')
        self('v_and_b32 v3, 15, v1\nv_lshlrev_b32 v3, 17, v3\nv_bfe_u32 v8, v1, 4, 1\nv_lshl_add_u32 v3, v8, 7, v3')
        if self.o.get('vd'): self(f's_lshl_b32 s49, s4, 7\ns_add_u32 s49, s49, {VD}')
    def xid_load(self, r, full=False):
        if self.o.get('vd') and not full: return f'buffer_load_dwordx4 v[{r}:{r+3}], off, s[8:11], s49 sc1'
        return f'buffer_load_dwordx4 v[{r}:{r+3}], v3, s[8:11], s48 offen sc1'
    def xid_mode(self, r, full=False):
        if self.o.get('vd') and not full:
            self(f's_or_b32 s44, s6, 0x400')
        for i in range(4): self(f'v_xor_b32 v{r+i}, s44, v{r+i}')
        self(f'v_or3_b32 v{r}, v{r}, v{r+1}, v{r+2}\nv_or_b32 v{r}, v{r}, v{r+3}\nv_cmp_ne_u32 vcc, 0, v{r}\ns_nop 1\ns_cmp_eq_u64 vcc, 0\ns_cselect_b32 s7, 1, 0')
        if self.o.get('force_slow'): self('s_mov_b32 s7, 0')
    def probe(self, rounds):
        if self.o.get('onecopy') or self.o.get('noprobe'):
            self(f's_mov_b32 s76, {COPY if self.o.get("noprobe") == 2 else 0}'); return
        self(f's_and_b32 s42, s5, 15\ns_lshl_b32 s42, s42, 17\ns_lshl_b32 s43, s4, 10\ns_add_u32 s42, s42, s43\ns_add_u32 s42, s42, {PROBE}\ns_add_u32 s78, s8, s42\ns_addc_u32 s79, s9, 0')
        same = self.o.get('psame')
        if same: self(f's_mov_b32 s76, -1\ns_mov_b32 s77, -1\ns_load_dword s42, s[78:79], 0 glc\ns_load_dword s43, s[78:79], {COPY} glc\ns_waitcnt lgkmcnt(0)')
        else: self('s_mov_b32 s76, -1\ns_mov_b32 s77, -1\ns_load_dword s42, s[78:79], 896 glc\ns_waitcnt lgkmcnt(0)')
        for k in range(rounds):
            for side in range(2):
                self(f's_memtime s[72:73]\ns_waitcnt lgkmcnt(0)\ns_load_dword s42, s[78:79], {(0 if same else 128*k) + COPY*side} glc\ns_waitcnt lgkmcnt(0)\ns_memtime s[74:75]\ns_waitcnt lgkmcnt(0)')
                self(f's_sub_u32 s74, s74, s72\ns_min_u32 s{76+side}, s{76+side}, s74')
        if self.prof: self('v_writelane_b32 v127, s76, 14\nv_writelane_b32 v127, s77, 15')
        self(f's_cmp_lt_u32 s77, s76\ns_cselect_b32 s76, {COPY}, 0')
    def prefetch_code(self, r):
        self(f's_getpc_b64 s[52:53]\nL_pc:')
        self(f's_sub_u32 s52, s52, L_pc-{NAME}\ns_subb_u32 s53, s53, 0')
        self(f'v_lshlrev_b32 v{r}, 7, v1')
        for k in range(2):
            self(f'v_add_u32 v{r+1+k}, {k*8192}, v{r}\nv_min_u32 v{r+1+k}, L_code_end-{NAME}-4, v{r+1+k}')
            self(f'global_load_dword v{r+3+k}, v{r+1+k}, s[52:53]')
    def perm_x2(self, src, dst):
        for jj in range(4):
            for d in range(4): self(f'v_perm_b32 v{dst+4*jj+d}, v{src+2*(2*d+1)+(jj>>1)}, v{src+2*(2*d)+(jj>>1)}, s{50+(jj&1)}')
    def perm_x1(self, src, dst):
        for jj in range(2):
            for d in range(4): self(f'v_perm_b32 v{dst+4*jj+d}, v{src+2*d+1}, v{src+2*d}, s{50+jj}')
    def tr_addr(self, base, dst, sh=13):
        self('v_bfe_u32 v18, v1, 1, 1\nv_and_b32 v28, 1, v1\nv_and_b32 v29, 1, v4\nv_lshl_add_u32 v29, v29, 2, v5\nv_lshlrev_b32 v29, 1, v29\nv_xor_b32 v29, v29, v18')
        self('v_lshlrev_b32 v29, 4, v29\nv_lshl_add_u32 v29, v28, 3, v29\nv_lshl_add_u32 v29, v5, 10, v29\n' + f'v_lshl_add_u32 v29, v4, {sh}, v29')
        self('s_lshl_b32 s42, s3, 7\nv_xor_b32 v29, s42, v29')
        if base: self(f'v_add_u32 v29, {base}, v29')
        for jj in range(4): self(f'v_xor_b32 v{dst+jj}, {32*jj}, v29')
    def mask_addr(self, frag, zero, dst):
        self(f'v_lshlrev_b32 v28, 4, v4\nv_add_u32 v28, {frag}, v28\nv_mov_b32 v29, {zero}')
        for jj in range(4): self(f'v_cmp_eq_u32 vcc, {jj}, v5\ns_nop 1\nv_cndmask_b32 v{dst+jj}, v29, v28, vcc')
    def modp_base(self, d, cb):
        self(f's_and_b32 s{d}, s{cb}, 15\ns_lshl_b32 s{d}, s{d}, 17\ns_bfe_u32 s42, s{cb}, 0x20004\ns_lshl_b32 s42, s42, 11\ns_add_u32 s{d}, s{d}, s42\ns_lshr_b32 s42, s{cb}, 6\ns_lshl_b32 s42, s42, 14\ns_add_u32 s{d}, s{d}, s42\ns_add_u32 s{d}, s{d}, {MODP}')
    def silu_frag(self, nvm):
        self('s_lshl_b32 s42, s3, 7\nv_add_u32 v13, s42, v7\nv_add_u32 v14, s42, v9')
        self(f's_waitcnt vmcnt({nvm})')
        self('v_lshlrev_b32 v8, 16, v8\nv_mul_f32 v15, s57, v8\nv_max_f32 v15, 0xc2fc0000, v15\nv_exp_f32 v15, -v15\ns_nop 0\nv_add_f32 v15, 1.0, v15')
        self.div(15, 8, 15, 16, 18)
        self.rbf(15, 15)
        self('ds_write_b16_d16_hi v13, v15\nds_read_b128 v[20:23], v14\nds_read_b128 v[24:27], v14 offset:64')
    def mod_loads(self, pol='FPOL'):
        for r in range(16):
            self(f'buffer_load_dword v{32+r}, v5, s[12:15], s41 offen {pol}')
            if r < 15: self(f's_add_u32 s41, s41, {6144 if r != 7 else 6144*25}')
    def mod_partial(self, two=False):
        self.perm_x1(32, 48); self.perm_x1(40, 56)
        self('s_waitcnt lgkmcnt(0)')
        for t in range(2):
            for jj in range(2):
                c = '0' if t == 0 else f'v[{32+4*jj}:{35+4*jj}]'
                self(f'v_mfma_f32_16x16x32_bf16 v[{32+4*jj}:{35+4*jj}], v[{20+4*t}:{23+4*t}], v[{48+8*t+4*jj}:{51+8*t+4*jj}], {c}')
        self('v_lshlrev_b32 v15, 4, v3\ns_lshl_b32 s42, s4, 8\ns_add_u32 s42, s42, s55\nv_mov_b32 v29, s45\nv_mov_b32 v31, s45\ns_mov_b64 exec, 0xffff\ns_nop 0')
        self('v_mov_b32 v28, v32\nv_mov_b32 v30, v36')
        if self.o.get('fprobe') or two: self.store2('buffer_store_dwordx4 v[28:31], v15, s[8:11], s{s} offen', 42, 43)
        else: self('buffer_store_dwordx4 v[28:31], v15, s[8:11], s42 offen sc1')
        self('s_mov_b64 exec, -1')
    def trigger(self, kind):
        if kind == 'os':
            self(f'v_lshlrev_b32 v9, 4, v1\ns_lshl_b32 s40, s4, 10\ns_add_u32 s40, s40, {OS}')
            self.poll(['buffer_load_dwordx4 v[32:35], v9, s[8:11], s40 offen sc1'], range(32, 36), 30, sleep=2)
        elif kind == 'h1':
            self(f'v_and_b32 v9, 7, v1\nv_lshlrev_b32 v9, 8, v9\ns_lshl_b32 s40, s58, 18\ns_add_u32 s40, s40, {MODP}')
            self.poll8(['buffer_load_dwordx2 v[32:33], v9, s[8:11], s40 offen sc1'], [33], 30, sleep=2)
        elif kind == 'qp':
            self(f'v_and_b32 v9, 7, v1\nv_lshlrev_b32 v9, 9, v9\ns_lshl_b32 s40, s4, 3\ns_add_u32 s40, s40, s58\ns_lshl_b32 s40, s40, 12\ns_add_u32 s40, s40, {QP}')
            self.poll8(['buffer_load_dwordx2 v[32:33], v9, s[8:11], s40 offen sc1'], [33], 30, sleep=2)
        elif kind == 'own':
            self(f'v_mov_b32 v9, 0\ns_lshl_b32 s40, s58, 18\ns_lshl_b32 s42, s4, 8\ns_add_u32 s40, s40, s42\ns_add_u32 s40, s40, {MODP}')
            self.poll8(['buffer_load_dwordx2 v[32:33], v9, s[8:11], s40 offen sc1'], [33], 30, sleep=2)
        elif kind == 'q':
            self(f'v_lshlrev_b32 v9, 4, v1\ns_lshl_b32 s40, s4, 11\ns_add_u32 s40, s40, {QV}')
            self.poll(['buffer_load_dwordx4 v[32:35], v9, s[8:11], s40 offen sc1', 'buffer_load_dwordx4 v[36:39], v9, s[8:11], s40 offen offset:1024 sc1'], range(32, 40), 30, sleep=2)
    def mark(self, name):
        if self.o.get('hold') == name: self('s_memrealtime s[96:97]\ns_waitcnt lgkmcnt(0)')
    def hold(self):
        if self.o.get('hold'): self('L_hold:\ns_memrealtime s[98:99]\ns_waitcnt lgkmcnt(0)\ns_sub_u32 s98, s98, s96\ns_cmp_lt_u32 s98, 2000\ns_cbranch_scc1 L_hold')
    def wo_row(self, r):
        if self.o.get('hc'):
            self(f'buffer_load_dwordx4 v{108+(r&1)}, s[20:23], s58 offen offset:{1024*r} OPOL lds' + ('\ns_add_u32 s58, s58, 7168' if r < 3 else ''))
        else: self(f'buffer_load_dwordx4 v{108+r}, s[20:23], s58 offen offset:{1024*r} OPOL lds')
    def combine(self, vs, vd, ss, sd, pre=None):
        D = [f'buffer_load_dwordx4 v[48:51], v{vd}, s[8:11], s{sd} offen sc1', f'buffer_load_dwordx4 v[52:55], v{vd}, s[8:11], s{sd} offen offset:1024 sc1']
        S = f'buffer_load_dwordx4 v[56:59], v{vs}, s[8:11], s{ss} offen sc1'
        if self.o.get('se'):
            l = self.label('P')
            self(f's_mov_b32 s47, 0\n{l}:\n{S}\n' + '\n'.join(D) + f'\ns_add_u32 s47, s47, 1\ns_cmp_gt_u32 s47, {LIMIT}\ns_cbranch_scc1 {l}_x\ns_waitcnt vmcnt(2)')
            for r in range(56, 60): self(f'v_xor_b32 v{r}, v2, v{r}')
            self(f'v_or3_b32 v30, v56, v57, v58\nv_or_b32 v30, v30, v59\nv_and_b32 v30, {TMASK}, v30\nv_cmp_ne_u32 vcc, 0, v30\ns_cbranch_vccnz {l}\n{l}_x:')
        else:
            self.poll([S], range(56, 60), 30, sleep=self.o.get('ssleep'))
            self('\n'.join(D))
        if pre: pre()
        self(f'v_max_f32_dpp v58, v56, v56 row_ror:8 {DPP}')
        for k in (4, 2, 1): self(f's_nop 1\nv_max_f32_dpp v58, v58, v58 row_ror:{k} {DPP}')
        self('v_sub_f32 v56, v56, v58\nv_mul_f32 v56, s57, v56\nv_exp_f32 v56, v56\ns_nop 0\nv_mul_f32 v57, v56, v57')
        for k in (8, 4, 2, 1): self(f's_nop 1\nv_add_f32_dpp v57, v57, v57 row_ror:{k} {DPP}')
        self('v_rcp_f32 v57, v57\ns_nop 0\nv_mul_f32 v56, v56, v57')
        self.poll(D, range(48, 56), 30, first_issued=True)
        self.stamp(3 if self.role == 'Ac' else 6)
        for r in range(48, 56, 2): self(f'v_pk_mul_f32 v[{r}:{r+1}], v[{r}:{r+1}], v[56:57] op_sel_hi:[1,0]')
        for k in (8, 4, 2, 1):
            for r in range(48, 56): self(f'v_add_f32_dpp v{r}, v{r}, v{r} row_ror:{k} {DPP}')
        for d in range(4): self(f'v_cvt_pk_bf16_f32 v{32+d}, v{48+2*d}, v{49+2*d}')
    def flush_tails(self):
        for t in self.tails: self(t)
        self.tails = []

def gen_all(prof=False, opts=None):
    a = G(prof, opts); a.tails = []
    a('s_cmp_ge_u32 s2, 256\ns_cbranch_scc1 L_exit')
    a.mark('entry')
    if a.o.get('hs') or a.o.get('amp'): a('s_memrealtime s[96:97]\ns_memrealtime s[94:95]')
    if prof: a('s_memrealtime s[96:97]')
    a.karg(8, 'ws')
    if not a.o.get('nokt'): a('s_load_dword s62, s[0:1], 0')
    a('s_and_b32 s4, s2, 7\ns_lshr_b32 s5, s2, 3\nv_lshrrev_b32 v2, 6, v0\nv_and_b32 v1, 63, v0')
    if a.o.get('ffirst'): a('s_add_u32 s7, s5, 16\ns_sub_u32 s42, s5, 8\ns_cmp_lt_u32 s5, 8\ns_cselect_b32 s42, s7, s42\ns_cmp_lt_u32 s5, 24\ns_cselect_b32 s5, s42, s5')
    a('s_mov_b32 s7, 0\nv_readfirstlane_b32 s3, v2')
    a.srd(8, 0x10000000)
    if prof: a('v_mov_b32 v127, 0')
    a('v_and_b32 v3, 15, v1\nv_lshrrev_b32 v4, 4, v1')
    a('s_cmp_lg_u32 s3, 8\ns_cbranch_scc1 L_work')
    if a.o.get('tlb0'):
        a('s_load_dwordx4 s[24:27], s[0:1], 24\ns_load_dwordx8 s[28:35], s[0:1], 48\ns_load_dwordx4 s[36:39], s[0:1], 80')
    if not a.o.get('nocpf'): a.prefetch_code(20)
    a('s_setprio 3')
    if a.o.get('tlb0'):
        a('s_lshl_b32 s42, s4, 19\nv_mov_b32 v26, 0\nv_mov_b32 v27, 0x200000\nv_mov_b32 v28, s42\ns_mov_b64 exec, 1\ns_waitcnt lgkmcnt(0)')
        for i, (p, v) in enumerate(((8, 26), (8, 27), (26, 28), (28, 26), (30, 26), (32, 26), (38, 26), (24, 26), (24, 27))):
            a(f'global_load_dword v{108+i}, v{v}, s[{p}:{p+1}]')
        a('s_mov_b64 exec, -1')
    if a.o.get('mh'): a('s_cmp_lt_u32 s5, 16\ns_cbranch_scc1 L_A_comm\ns_cmp_lt_u32 s5, 24\ns_cbranch_scc1 L_F_comm2')
    elif not a.o.get('p16'): a('s_cmp_ge_u32 s5, 24\ns_cbranch_scc1 L_M_comm')
    if not a.o.get('mh'): a('s_cmp_lt_u32 s5, 16\ns_cbranch_scc1 L_A_comm')
    a('s_branch L_F_comm')
    a('L_work:')
    a('s_cmp_lt_u32 s5, 16\ns_cbranch_scc1 L_Ai')
    FM_issue(a)
    F_early(a)
    a('s_branch L_F_j')
    a('L_Ai:')
    A_issue(a)
    a('s_branch L_A')
    if not a.o.get('p16'): M_early(a)
    for f in (F_body, F_comm, A_comm, A_body, M_body, M_comm):
        f(a); a.flush_tails()
    a('L_exit:\ns_endpgm\nL_code_end:')
    return a

def A_issue(a):
    a.role = 'A'
    a.karg(20, 'wq'); a.karg(12, 'k'); a.karg(16, 'v')
    a.srd(12, 0x2000000); a.srd(16, 0x2000000); a.srd(20, 0x400000)
    a('v_bfe_u32 v14, v1, 3, 1\nv_lshlrev_b32 v14, 13, v14\nv_and_b32 v6, 7, v1\nv_lshl_add_u32 v14, v6, 7, v14\nv_lshl_add_u32 v14, v4, 5, v14')
    a('s_lshr_b32 s44, s5, 1\ns_lshl_b32 s44, s44, 5\ns_and_b32 s41, s5, 1\ns_lshl_b32 s41, s41, 3\ns_add_u32 s44, s44, s41\ns_add_u32 s44, s44, s3\ns_lshl_b32 s44, s44, 14\ns_lshl_b32 s41, s4, 10\ns_add_u32 s44, s44, s41')
    a('v_lshlrev_b32 v5, 8, v4')
    for i in range(4): a(f'v_add_u32 v6, {4*i}, v4\nv_xor_b32 v6, v6, v3\nv_lshl_add_u32 v{8+i}, v6, 4, v5')
    for i in range(2): a(f'v_add_u32 v6, {4*i}, v4\nv_lshlrev_b32 v6, 1, v6\nv_xor_b32 v6, v6, v3\nv_lshl_add_u32 v{12+i}, v6, 4, v5')
    a(f's_lshl_b32 s40, s4, 22\ns_lshl_b32 s41, s5, 16\ns_add_u32 s40, s40, s41\ns_lshl_b32 s41, s3, 13\ns_add_u32 s40, s40, s41\ns_add_u32 s40, s40, {3<<20}\ns_add_u32 s43, s40, 4096\ns_mov_b32 m0, s41')
    a('s_waitcnt lgkmcnt(0)')
    a.stamp(0)
    a.get_tag()
    if a.o.get('kvt0'): a('s_mov_b64 exec, 1\nbuffer_load_dword v105, v8, s[12:15], s40 offen KPOL\nbuffer_load_dword v106, v8, s[16:19], s40 offen KPOL\nbuffer_load_dword v107, v14, s[20:23], s44 offen FPOL\ns_mov_b64 exec, -1')
    if a.o.get('a_tagw'): a.fin_tag()
    if a.o.get('a_tw'): a('s_waitcnt vmcnt(0)')
    if a.o.get('early'):
        a(f's_lshr_b32 s42, {a.o["early"]}, s3\ns_and_b32 s42, s42, 1\ns_cbranch_scc1 L_A_early')
    if not a.o.get('noapf'): a('buffer_load_dword v104, v14, s[20:23], s44 offen FPOL')
    if a.o.get('early_gu') or a.o.get('apf2'): a('s_add_u32 s44, s44, 262144\nbuffer_load_dword v120, v14, s[20:23], s44 offen FPOL')
    if a.o.get('kvt'): a('s_mov_b64 exec, 1\nbuffer_load_dword v105, v8, s[12:15], s40 offen KPOL\nbuffer_load_dword v106, v8, s[16:19], s40 offen KPOL\ns_mov_b64 exec, -1')
    if a.o.get('a_pfw'): a(f's_waitcnt vmcnt({2 if a.o.get("kvt") == 2 else 0})')
    for k in range(a.o.get('a_dly', 0)): a('s_mov_b64 exec, 1\nbuffer_load_dword v104, v14, s[20:23], s44 offen sc1\ns_mov_b64 exec, -1\ns_waitcnt vmcnt(0)')
    if a.o.get('early'):
        a('s_branch L_A_go\nL_A_early:\nbuffer_load_dword v104, v14, s[20:23], s44 offen FPOL\nL_A_go:')
    a.stamp(8)
    for kv in range(2):
        if kv == 1 and a.o.get('kv_bar'): a('s_barrier')
        for i in range(8):
            if i == 4 or (kv == 1 and i == 0): a(f's_add_u32 m0, s41, {LV*kv + 4096*(i>>2)}\ns_nop 0')
            vo = 8 + (i & 3) if kv == 0 else 12 + (i & 1)
            a(f'buffer_load_dwordx4 v{vo}, s[{12+4*kv}:{15+4*kv}], s{40 if i < 4 else 43} offen offset:{1024*(i&3)} {"KPOL" if kv == 0 else ("VPOL" if i < 4 else "WPOL")} lds')

def A_body(a):
    a.role = 'A'
    a('L_A:')
    a.stamp(10)
    a('v_xor_b32 v6, v4, v3\nv_lshlrev_b32 v6, 4, v6\nv_lshl_add_u32 v6, v3, 8, v6\nv_add_u32 v6, s41, v6')
    for jj in range(4): a(f'v_xor_b32 v{8+jj}, {64*jj}, v6')
    a(f'v_and_b32 v7, 3, v1\nv_mul_u32_u24 v12, 272, v7\nv_lshl_add_u32 v12, v4, 4, v12\nv_add_u32 v12, {LQ}, v12')
    a(f'v_lshlrev_b32 v13, 5, v7\nv_add_u32 v13, {LMX}, v13\ns_lshl_b32 s42, s3, 2\nv_add_u32 v14, s42, v13')
    a(f'v_lshlrev_b32 v16, 6, v4\nv_add_u32 v16, {LP}, v16\nv_lshl_add_u32 v15, v3, 4, v16\ns_lshl_b32 s42, s3, 8\nv_add_u32 v15, s42, v15')
    a('v_lshrrev_b32 v5, 2, v3\nv_lshl_add_u32 v16, v5, 4, v16')
    a('v_lshrrev_b32 v6, 2, v1\nv_and_b32 v17, 7, v6\nv_lshlrev_b32 v17, 1, v17\nv_bfe_u32 v18, v1, 1, 1\ns_lshl_b32 s42, s3, 1\nv_add_u32 v21, s42, v18\nv_xor_b32 v17, v17, v21')
    a(f'v_lshlrev_b32 v17, 4, v17\nv_lshl_add_u32 v17, v6, 8, v17\nv_and_b32 v21, 1, v1\nv_lshl_add_u32 v17, v21, 3, v17\nv_add_u32 v17, {LV}, v17')
    hc = a.o.get('hc')
    if hc:
        a('v_bfe_u32 v18, v1, 1, 1\nv_bfe_u32 v28, v1, 3, 1\nv_and_b32 v29, 1, v4\nv_lshl_add_u32 v28, v29, 1, v28\nv_lshlrev_b32 v28, 1, v28\nv_xor_b32 v28, v28, v18\nv_lshlrev_b32 v28, 4, v28')
        a('v_and_b32 v29, 1, v1\nv_lshl_add_u32 v28, v29, 3, v28\nv_lshl_add_u32 v28, v5, 7, v28\nv_lshl_add_u32 v28, v4, 10, v28\nv_add_u32 v28, s41, v28')
        for jj in range(4): a(f'v_xor_b32 v{96+jj}, {32*jj}, v28')
        a(f'v_lshlrev_b32 v100, 4, v1\nv_lshlrev_b32 v101, 4, v3\nv_lshlrev_b32 v102, 2, v3\ns_lshl_b32 s42, s3, 8\ns_add_u32 s42, s42, {LRED}\nv_add_u32 v102, s42, v102')
        a(f's_and_b32 s42, s5, 1\ns_lshl_b32 s42, s42, 3\ns_add_u32 s42, s42, s3\ns_lshl_b32 s48, s4, 4\ns_add_u32 s48, s48, s42\ns_lshl_b32 s48, s48, 11\ns_add_u32 s48, s48, {OP}')
        a(f's_lshr_b32 s42, s42, 2\ns_lshl_b32 s49, s4, 2\ns_add_u32 s49, s49, s42\ns_lshl_b32 s49, s49, 8\ns_add_u32 s49, s49, {OS}')
    else:
        a.tr_addr(LK, 96, 14 if a.o.get('cwo') is not None else 13); a.mask_addr(LOF, LZ, 100)
    a('s_and_b32 s42, s3, 1\ns_lshl_b32 s42, s42, 9\nv_bfe_u32 v6, v3, 2, 1\nv_lshlrev_b32 v19, 10, v6\nv_lshrrev_b32 v6, 3, v3\nv_lshl_add_u32 v19, v6, 8, v19')
    a('v_lshl_add_u32 v19, v7, 2, v19\nv_lshl_add_u32 v19, v4, 13, v19\nv_add_u32 v19, s42, v19')
    a(f's_lshl_b32 s54, s4, 4\ns_lshr_b32 s42, s3, 1\ns_add_u32 s54, s54, s42\ns_lshl_b32 s54, s54, 11\ns_lshl_b32 s42, s5, 4\ns_add_u32 s54, s54, s42\ns_add_u32 s54, s54, {OP}')
    a('v_lshrrev_b32 v6, 5, v1\nv_and_b32 v20, 31, v1\nv_lshlrev_b32 v20, 2, v20\nv_lshl_add_u32 v20, v6, 11, v20')
    a(f's_lshl_b32 s55, s4, 3\ns_add_u32 s55, s55, s3\ns_lshl_b32 s55, s55, 12\ns_lshl_b32 s42, s5, 7\ns_add_u32 s55, s55, s42\ns_add_u32 s55, s55, {AP}')
    a(f'v_mov_b32 v22, {LMODE_A}\nv_lshlrev_b32 v21, 5, v4\nv_add_u32 v21, {LMX}, v21')
    if a.o.get('cwo') is not None:
        a.karg(20, 'wo')
    if hc:
        a('v_and_b32 v6, 7, v1\nv_bfe_u32 v28, v1, 4, 1\nv_lshlrev_b32 v28, 1, v28\nv_xor_b32 v6, v6, v28\nv_lshlrev_b32 v6, 4, v6\nv_lshrrev_b32 v28, 3, v1\nv_lshl_add_u32 v108, v28, 10, v6\nv_xor_b32 v109, 64, v108')
        a('s_lshl_b32 s58, s4, 1\ns_and_b32 s42, s5, 1\ns_add_u32 s58, s58, s42\ns_lshl_b32 s58, s58, 3\ns_add_u32 s58, s58, s3\ns_lshl_b32 s58, s58, 15\ns_lshr_b32 s42, s5, 1\ns_lshl_b32 s42, s42, 7\ns_add_u32 s58, s58, s42\ns_mov_b32 s59, s41\ns_waitcnt lgkmcnt(0)')
    elif a.o.get('cwo') is not None:
        a('s_and_b32 s42, s3, 2\ns_lshl_b32 s42, s42, 2\nv_xor_b32 v6, s42, v1')
        for r in range(4): a(f'v_xor_b32 v{108+r}, {2*r}, v6\nv_lshlrev_b32 v{108+r}, 4, v{108+r}')
        a('s_lshl_b32 s58, s4, 19\ns_lshl_b32 s42, s5, 15\ns_add_u32 s58, s58, s42\ns_lshl_b32 s59, s3, 12\ns_add_u32 s58, s58, s59\ns_lshl_b32 s59, s3, 13\ns_waitcnt lgkmcnt(0)')
    qa = a.o.get('qa')
    if qa:
        a(f'v_mul_u32_u24 v12, 272, v5\nv_lshl_add_u32 v12, v4, 4, v12\nv_add_u32 v12, {LQ}, v12')
        a(f's_lshl_b32 s42, s3, 2\nv_add_u32 v14, s42, v21')
        a(f'v_lshlrev_b32 v15, 6, v5\nv_lshl_add_u32 v15, v4, 4, v15\nv_lshl_add_u32 v15, v7, 1, v15\ns_lshl_b32 s42, s3, 8\ns_add_u32 s43, s42, {LP}\nv_add_u32 v15, s43, v15')
        a(f'v_lshlrev_b32 v110, 2, v1\ns_add_u32 s43, s42, {LLS}\nv_add_u32 v110, s43, v110')
    else: a(f'v_lshlrev_b32 v110, 7, v7\nv_lshl_add_u32 v110, v4, 2, v110\ns_lshl_b32 s42, s3, 4\ns_add_u32 s42, s42, {LLS}\nv_add_u32 v110, s42, v110')
    a(f's_mov_b32 s56, {SCALE:#x}\ns_mov_b32 s57, {LOG2E:#x}')
    if not a.o.get('a_tagw'): a.fin_tag()
    if a.o.get('sq'):
        a(f's_lshl_b32 s62, s4, 11\ns_lshl_b32 s63, s3, 8\ns_add_u32 s62, s62, s63\ns_add_u32 s62, s62, {QV}\ns_add_u32 s62, s8, s62\ns_addc_u32 s63, s9, 0')
        a(f's_lshr_b32 s42, s3, 1\ns_mul_i32 s42, s42, 272\ns_and_b32 s43, s3, 1\ns_lshl_b32 s43, s43, 7\ns_add_u32 s42, s42, s43\ns_add_u32 s42, s42, {LQ}\nv_lshlrev_b32 v105, 1, v1\nv_add_u32 v105, s42, v105')
        QR = (24, 64, 80)
        a('s_barrier\ns_barrier')
        LD = lambda g: '\n'.join([f's_load_dwordx16 s[{r}:{r+15}], s[62:63], {64*i}{g}' for i, r in enumerate(QR)] + [f's_load_dwordx8 s[12:19], s[62:63], 192{g}', f's_load_dwordx4 s[40:43], s[62:63], 224{g}', f's_load_dwordx2 s[52:53], s[62:63], 240{g}', f's_load_dwordx2 s[50:51], s[62:63], 248{g}'])
        REGS = [r + k for r in QR for k in range(16)] + list(range(12, 20)) + [40, 41, 42, 43, 52, 53, 50, 51]
        a(LD(''))
        a('s_mov_b32 s47, 0\nL_q:\ns_waitcnt lgkmcnt(0)')
        for i, r in enumerate(REGS): a(f'v_writelane_b32 v106, s{r}, {i}')
        a(f'v_xor_b32 v106, v2, v106\nv_and_b32 v107, {TMASK}, v106\nv_cmp_ne_u32 vcc, 0, v107\ns_cbranch_vccnz L_q_retry\nL_q_ok:')
        a.tails.append(f'L_q_retry:\ns_add_u32 s47, s47, 1\ns_cmp_gt_u32 s47, {LIMIT}\ns_cbranch_scc1 L_q_ok\n' + LD(' glc') + '\ns_branch L_q')
        a('ds_write_b16_d16_hi v105, v106')
        a.stamp(11)
    a('s_waitcnt vmcnt(8)')
    a.stamp(1)
    for t in range(2):
        for jj in range(4): a(f'ds_read_b128 v[{32+16*t+4*jj}:{35+16*t+4*jj}], v{8+jj} offset:{4096*t}')
    if a.o.get('vstamp'): a('s_waitcnt vmcnt(0)'); a.stamp(9)
    ne = a.o.get('wo_early', 0)
    a('s_waitcnt lgkmcnt(0)')
    if ne:
        a('s_mov_b32 m0, s59\ns_nop 0')
        for r in range(ne): a.wo_row(r)
    ve = a.o.get('ve')
    if ve: a(f's_waitcnt vmcnt({ne})'); a.stamp(4)
    a('s_barrier')
    a.stamp(2)
    def wo_dma(pos):
        if a.o.get('cwo') == pos:
            a('s_mov_b32 m0, s59\ns_nop 0')
            for r in range(ne, 4): a.wo_row(r)
    for jj in range(4): a(f'ds_read_b128 v[{64+4*jj}:{67+4*jj}], v12 offset:{64*jj}')
    wo_dma(0)
    for jj in range(4):
        a(f's_waitcnt lgkmcnt({3-jj})')
        for t in range(2):
            c = '0' if jj == 0 else f'v[{24+4*t}:{27+4*t}]'
            kf = f'v[{32+16*t+4*jj}:{35+16*t+4*jj}]'; qf = f'v[{64+4*jj}:{67+4*jj}]'
            a(f'v_mfma_f32_16x16x32_bf16 v[{24+4*t}:{27+4*t}], {qf if qa else kf}, {kf if qa else qf}, {c}')
    wo_dma(1)
    if ve:
        for kk in range(8):
            a(f'ds_read_b64_tr_b16 v[{64+4*kk}:{65+4*kk}], v17 offset:{8192*kk}\nds_read_b64_tr_b16 v[{66+4*kk}:{67+4*kk}], v17 offset:{8192*kk+4096}')
    else: a('s_nop 6' if a.o.get('cwo') != 1 else 's_nop 0')
    if qa:
        if a.o.get('fine'): a.stamp(11)
        a.rbf(24, 24); a.rbf(25, 28)
        a('v_pk_mul_f32 v[24:25], v[24:25], s[56:57] op_sel_hi:[1,0]')
        a.rbf(24, 24); a.rbf(25, 25)
        a('v_max_f32 v32, v24, v25')
        for k in (8, 4, 2, 1): a(f's_nop 1\nv_max_f32_dpp v32, v32, v32 row_ror:{k} {DPP}')
        if a.o.get('fine'): a.stamp(12)
        a('s_mov_b32 exec_lo, 0x00010001\ns_mov_b32 exec_hi, 0x00010001\nds_write_b32 v14, v32\ns_mov_b64 exec, -1\ns_waitcnt lgkmcnt(0)\ns_barrier')
        if a.o.get('fine'): a.stamp(9)
        a('ds_read_b128 v[32:35], v21\nds_read_b128 v[36:39], v21 offset:16\ns_waitcnt lgkmcnt(0)')
        a('v_max3_f32 v32, v32, v33, v34\nv_max3_f32 v36, v36, v37, v38\nv_max3_f32 v32, v32, v35, v39\nv_max_f32 v32, v32, v36')
        a('v_pk_add_f32 v[24:25], v[24:25], v[32:33] op_sel_hi:[1,0] neg_lo:[0,1] neg_hi:[0,1]\nv_pk_mul_f32 v[24:25], v[24:25], s[56:57] op_sel:[0,1] op_sel_hi:[1,1]')
        a('v_exp_f32 v24, v24\nv_exp_f32 v25, v25\ns_nop 0\nv_cvt_pk_bf16_f32 v36, v24, v25\nv_add_f32 v24, v24, v25')
        a('ds_write_b16 v15, v36\nds_write_b16_d16_hi v15, v36 offset:8\nds_write_b32 v110, v24')
        wmax = False
    else:
        if a.o.get('fine'): a.stamp(11)
        for i in range(8): a.rbf(24 + i, 24 + i)
        for i in range(0, 8, 2): a(f'v_pk_mul_f32 v[{24+i}:{25+i}], v[{24+i}:{25+i}], s[56:57] op_sel_hi:[1,0]')
        for i in range(8): a.rbf(24 + i, 24 + i)
        a('v_max3_f32 v32, v24, v25, v26\nv_max3_f32 v33, v27, v28, v29\nv_max3_f32 v32, v32, v30, v31\nv_max_f32 v32, v32, v33')
        a.swap_op(16, 'v_max_f32', 32, 33); a.swap_op(32, 'v_max_f32', 32, 33)
        wmax = a.o.get('wmax')
        if a.o.get('fine'): a.stamp(12)
        if not wmax:
            a('s_mov_b64 exec, 0xf\nds_write_b32 v14, v32\ns_mov_b64 exec, -1\ns_waitcnt lgkmcnt(0)\ns_barrier')
            if a.o.get('fine'): a.stamp(9)
            a('ds_read_b128 v[32:35], v13\nds_read_b128 v[36:39], v13 offset:16\ns_waitcnt lgkmcnt(0)')
            a('v_max3_f32 v32, v32, v33, v34\nv_max3_f32 v36, v36, v37, v38\nv_max3_f32 v32, v32, v35, v39\nv_max_f32 v32, v32, v36')
        for i in range(0, 8, 2): a(f'v_pk_add_f32 v[{24+i}:{25+i}], v[{24+i}:{25+i}], v[32:33] op_sel_hi:[1,0] neg_lo:[0,1] neg_hi:[0,1]')
        for i in range(0, 8, 2): a(f'v_pk_mul_f32 v[{24+i}:{25+i}], v[{24+i}:{25+i}], s[56:57] op_sel:[0,1] op_sel_hi:[1,1]')
        for i in range(8): a(f'v_exp_f32 v{24+i}, v{24+i}')
        a('s_nop 0')
        for d in range(4): a(f'v_cvt_pk_bf16_f32 v{36+d}, v{24+2*d}, v{25+2*d}')
        a('s_mov_b32 exec_lo, 0x000f000f\ns_mov_b32 exec_hi, 0x000f000f\nds_write_b128 v15, v[36:39]')
        if wmax: a('ds_write_b32 v14, v32')
        a('v_pk_add_f32 v[24:25], v[24:25], v[26:27]\nv_pk_add_f32 v[28:29], v[28:29], v[30:31]\nv_pk_add_f32 v[24:25], v[24:25], v[28:29]\nv_add_f32 v24, v24, v25')
        a('ds_write_b32 v110, v24\ns_mov_b64 exec, -1')
    wo_dma(2)
    a.stamp(3)
    if ve:
        a('s_waitcnt lgkmcnt(0)\ns_barrier')
        if wmax: a('ds_read_b128 v[112:115], v21\nds_read_b128 v[116:119], v21 offset:16')
        a('ds_read_b32 v23, v22')
        for kk in range(8): a(f'ds_read_b128 v[{32+4*kk}:{35+4*kk}], v16 offset:{256*kk}')
        if wmax:
            a('s_waitcnt lgkmcnt(8)\nv_max3_f32 v120, v112, v113, v114\nv_max3_f32 v121, v115, v116, v117\nv_max3_f32 v120, v120, v118, v119\nv_max_f32 v120, v120, v121')
            for i in range(0, 8, 2): a(f'v_pk_add_f32 v[{112+i}:{113+i}], v[{112+i}:{113+i}], v[120:121] op_sel_hi:[1,0] neg_lo:[0,1] neg_hi:[0,1]')
            for i in range(0, 8, 2): a(f'v_pk_mul_f32 v[{112+i}:{113+i}], v[{112+i}:{113+i}], s[56:57] op_sel:[0,1] op_sel_hi:[1,1]')
        for kk in range(8):
            a(f's_waitcnt lgkmcnt({7-kk})')
            if kk == 1: a('v_readfirstlane_b32 s7, v23')
            if wmax: a(f'v_mfma_f32_16x16x32_bf16 v[{32+4*kk}:{35+4*kk}], v[{32+4*kk}:{35+4*kk}], v[{64+4*kk}:{67+4*kk}], 0\nv_exp_f32 v{112+kk}, v{112+kk}')
            else: a(f'v_mfma_f32_16x16x32_bf16 v[{24+4*(kk&1)}:{27+4*(kk&1)}], v[{32+4*kk}:{35+4*kk}], v[{64+4*kk}:{67+4*kk}], {"0" if kk < 2 else f"v[{24+4*(kk&1)}:{27+4*(kk&1)}]"}')
        if wmax:
            a('v_mul_f32 v24, v112, v32\nv_mul_f32 v25, v113, v36')
            for kk in range(2, 8):
                if kk == 6: a('s_nop 0')
                if kk == 7: a('s_nop 0')
                a(f'v_fmac_f32 v{24+(kk&1)}, v{112+kk}, v{32+4*kk}')
            a('v_add_f32 v24, v24, v25')
        else: a('s_nop 7\nv_add_f32 v24, v24, v28')
    elif a.o.get('sq') or a.o.get('split'):
        a('s_waitcnt lgkmcnt(0)\ns_barrier')
        for kk in range(8): a(f'ds_read_b128 v[{32+4*kk}:{35+4*kk}], v16 offset:{256*kk}')
        a(f's_waitcnt vmcnt({4 if a.o.get("cwo") is not None else 0}) lgkmcnt(0)')
        a.stamp(4)
        a('s_barrier')
        a('ds_read_b32 v23, v22')
        for kk in range(8):
            a(f'ds_read_b64_tr_b16 v[{64+4*kk}:{65+4*kk}], v17 offset:{8192*kk}\nds_read_b64_tr_b16 v[{66+4*kk}:{67+4*kk}], v17 offset:{8192*kk+4096}')
        for kk in range(8):
            a(f's_waitcnt lgkmcnt({2*(7-kk)})')
            if kk == 1: a('v_readfirstlane_b32 s7, v23')
            a(f'v_mfma_f32_16x16x32_bf16 v[24:27], v[{32+4*kk}:{35+4*kk}], v[{64+4*kk}:{67+4*kk}], {"0" if kk == 0 else "v[24:27]"}')
        a('s_nop 7')
    else: PV_old(a, wmax)
    a('v_and_or_b32 v28, v24, s46, v2')
    a.store_mode('buffer_store_dword v28, v19, s[8:11], s54 offen')
    A_tail(a)

def PV_old(a, wmax):
    a('s_waitcnt vmcnt(0) lgkmcnt(0)')
    a.stamp(4)
    a('s_barrier')
    if wmax: a('ds_read_b128 v[108:111], v21\nds_read_b128 v[112:115], v21 offset:16')
    a('ds_read_b32 v23, v22')
    order = []
    for kk in range(8):
        a(f'ds_read_b128 v[{32+4*kk}:{35+4*kk}], v16 offset:{256*kk}')
        a(f'ds_read_b64_tr_b16 v[{64+4*kk}:{65+4*kk}], v17 offset:{8192*kk}')
        a(f'ds_read_b64_tr_b16 v[{66+4*kk}:{67+4*kk}], v17 offset:{8192*kk+4096}')
        if kk == 4:
            a('s_waitcnt lgkmcnt(15)\nv_readfirstlane_b32 s7, v23')
            if wmax:
                a('v_max3_f32 v116, v108, v109, v110\nv_max3_f32 v117, v111, v112, v113\nv_max3_f32 v116, v116, v114, v115\nv_max_f32 v116, v116, v117')
                for i in range(8): a(f'v_sub_f32 v{108+i}, v{108+i}, v116')
                for i in range(8): a(f'v_mul_f32 v{108+i}, s57, v{108+i}')
                for i in range(8): a(f'v_exp_f32 v{108+i}, v{108+i}')
    for kk in range(8):
        a(f's_waitcnt lgkmcnt({min(15, 3*(7-kk))})')
        if wmax: a(f'v_mfma_f32_16x16x32_bf16 v[{32+4*kk}:{35+4*kk}], v[{32+4*kk}:{35+4*kk}], v[{64+4*kk}:{67+4*kk}], 0')
        else: a(f'v_mfma_f32_16x16x32_bf16 v[24:27], v[{32+4*kk}:{35+4*kk}], v[{64+4*kk}:{67+4*kk}], {"0" if kk == 0 else "v[24:27]"}')
    if wmax:
        a('v_mul_f32 v24, v108, v32\nv_mul_f32 v25, v109, v36')
        for kk in range(2, 8):
            if kk >= 5: a('s_nop 1')
            a(f'v_fmac_f32 v{24+(kk&1)}, v{108+kk}, v{32+4*kk}')
        a('v_add_f32 v24, v24, v25')
    else: a('s_nop 7')

def A_tail(a):
    a.stamp(5)
    if a.o.get('hc'):
        def pre():
            for jj in range(4): a(f'ds_read_b64_tr_b16 v[{64+4*jj}:{65+4*jj}], v{96+jj}\nds_read_b64_tr_b16 v[{66+4*jj}:{67+4*jj}], v{96+jj} offset:512')
        a.combine(101, 100, 49, 48, pre)
        a('s_waitcnt lgkmcnt(0)\ns_nop 0')
        for jj in range(4): a(f'v_mfma_f32_16x16x32_bf16 v[{36+4*jj}:{39+4*jj}], v[32:35], v[{64+4*jj}:{67+4*jj}], 0')
        a('s_mov_b64 exec, 0xffff\ns_nop 4\nds_write2_b32 v102, v36, v40 offset1:16\ns_nop 0\nds_write2_b32 v102, v44, v48 offset0:32 offset1:48\ns_waitcnt lgkmcnt(0)')
        a.stamp(7)
        a('s_barrier')
        a.exit()
        return
    if a.o.get('cwo') is not None: a('s_waitcnt vmcnt(1)')
    cwo = a.o.get('cwo') is not None
    if not cwo:
        a('s_barrier')
        for jj in range(4):
            a(f'ds_read_b64_tr_b16 v[{64+4*jj}:{65+4*jj}], v{96+jj}\nds_read_b64_tr_b16 v[{66+4*jj}:{67+4*jj}], v{96+jj} offset:4096')
    a.stamp(6)
    a('s_barrier')
    for jj in range(4):
        a(f'ds_read_b128 v[{32+4*jj}:{35+4*jj}], v{100+jj}')
        if cwo: a(f'ds_read_b64_tr_b16 v[{64+4*jj}:{65+4*jj}], v{96+jj}\nds_read_b64_tr_b16 v[{66+4*jj}:{67+4*jj}], v{96+jj} offset:8192')
    for jj in range(4):
        a(f's_waitcnt lgkmcnt({(3-jj)*(3 if cwo else 1)})')
        a(f'v_mfma_f32_16x16x32_bf16 v[24:27], v[{32+4*jj}:{35+4*jj}], v[{64+4*jj}:{67+4*jj}], {"0" if jj == 0 else "v[24:27]"}')
    a('s_nop 7')
    a('v_and_or_b32 v28, v24, s46, v2')
    a.store_mode('buffer_store_dword v28, v20, s[8:11], s55 offen')
    a.stamp(7)
    a.exit()

def A_comm(a):
    a.role = 'Ac'
    a('L_A_comm:')
    a.karg(20, 'wo'); a.srd(20, 0x400000)
    a('s_waitcnt lgkmcnt(0)')
    a.stamp(0)
    a.get_tag()
    a(f'v_mov_b32 v4, 0\nv_mov_b32 v5, 0\nv_mov_b32 v6, 0\nv_mov_b32 v7, 0\nv_mov_b32 v8, {LZ}\nds_write_b128 v8, v[4:7]')
    for k in range(8): a(f'v_xor_b32 v{64+k}, {2*k}, v1\nv_lshlrev_b32 v{64+k}, 4, v{64+k}')
    a.fin_tag()
    a.xid_publish()
    if a.o.get('kv_bar'): a('s_barrier')
    if a.o.get('wot'): a('s_lshl_b32 s42, s4, 19\ns_mov_b64 exec, 1\nbuffer_load_dword v108, v1, s[20:23], s42 offen nt\ns_mov_b64 exec, -1')
    a(f'v_lshlrev_b32 v9, 4, v1\ns_lshl_b32 s40, s4, 11\ns_add_u32 s62, s40, {QV}')
    a(f'v_lshrrev_b32 v10, 5, v1\nv_mul_u32_u24 v10, 272, v10\nv_and_b32 v11, 31, v1\nv_lshl_add_u32 v10, v11, 3, v10\nv_add_u32 v10, {LQ}, v10\nv_mov_b32 v12, {LMODE_A}')
    a('s_lshl_b32 s56, s4, 19\ns_lshl_b32 s42, s5, 15\ns_add_u32 s56, s56, s42')
    a(f'v_and_b32 v14, 3, v1\nv_lshlrev_b32 v13, 5, v14\nv_add_u32 v13, {LMX}, v13\nv_lshlrev_b32 v14, 8, v14')
    a(f's_lshl_b32 s41, s4, 10\ns_lshl_b32 s42, s5, 4\ns_add_u32 s63, s41, s42\ns_add_u32 s63, s63, {OS}')
    a(f's_lshr_b32 s42, s5, 2\ns_lshl_b32 s42, s42, 8\ns_add_u32 s41, s41, s42\ns_add_u32 s41, s41, {OS}')
    a(f's_lshl_b32 s40, s4, 4\ns_add_u32 s40, s40, s5\ns_lshl_b32 s40, s40, 11\ns_add_u32 s54, s40, {AP}\ns_add_u32 s40, s40, {OP}')
    a(f'v_and_b32 v15, 15, v1\nv_lshlrev_b32 v15, 4, v15\nv_lshrrev_b32 v16, 4, v1\nv_lshlrev_b32 v16, 4, v16\nv_add_u32 v16, {LOF}, v16\nv_lshlrev_b32 v17, 2, v1')
    a(f's_lshl_b32 s42, s4, 3\ns_lshr_b32 s55, s5, 1\ns_add_u32 s42, s42, s55\ns_and_b32 s55, s42, 15\ns_lshl_b32 s55, s55, 17\ns_lshr_b32 s42, s42, 4\ns_lshl_b32 s42, s42, 8\ns_add_u32 s55, s55, s42')
    a(f's_and_b32 s42, s5, 1\ns_lshl_b32 s42, s42, 7\ns_add_u32 s55, s55, s42\ns_add_u32 s55, s55, {AX}\ns_mov_b32 s57, {LOG2E:#x}')
    if a.o.get('hc'):
        a(f's_and_b32 s55, s5, 1\ns_lshl_b32 s55, s55, 3\ns_lshr_b32 s42, s5, 1\ns_add_u32 s55, s55, s42\ns_lshl_b32 s55, s55, 17\ns_lshl_b32 s42, s4, 8\ns_add_u32 s55, s55, s42\ns_add_u32 s55, s55, {AX}\nv_add_u32 v19, {LRED}, v17')
    if a.o.get('pt_o'): a('v_lshlrev_b32 v22, 5, v1\nbuffer_load_dword v108, v22, s[8:11], s40 offen sc1\nbuffer_load_dword v109, v15, s[8:11], s41 offen sc1')
    if a.o.get('pw_a'):
        a('v_xor_b32 v22, 1, v2'); a.store2('buffer_store_dword v22, v17, s[8:11], s{s} offen', 55, 42)
    if a.o.get('sq'):
        a('s_waitcnt lgkmcnt(0)\ns_barrier')
        a(a.xid_load(40))
        a(f's_lshl_b32 s58, s4, 12\ns_add_u32 s58, s58, {QF}\ns_add_u32 s58, s8, s58\ns_addc_u32 s59, s9, 0\ns_mov_b32 s47, 0')
        a('L_qd:\ns_load_dwordx8 s[64:71], s[58:59], s47\ns_add_u32 s47, s47, 64\ns_waitcnt lgkmcnt(0)')
        a('s_xor_b32 s64, s64, s45')
        for k in range(65, 72): a(f's_xor_b32 s{k}, s{k}, s45\ns_or_b32 s64, s64, s{k}')
        a(f's_cbranch_scc0 L_qe\ns_sleep {a.o.get("qsleep", 3)}\ns_cmp_lt_u32 s47, 4096\ns_cbranch_scc1 L_qd')
        a.poll(['buffer_load_dwordx4 v[32:35], v9, s[8:11], s62 offen sc1', 'buffer_load_dwordx4 v[36:39], v9, s[8:11], s62 offen offset:1024 sc1'], range(32, 40), 30)
        a('L_qe:')
        a.stamp(1)
        a('s_barrier\ns_barrier')
    else:
        Q = lambda r: [f'buffer_load_dwordx4 v[{r}:{r+3}], v9, s[8:11], s62 offen sc1', f'buffer_load_dwordx4 v[{r+4}:{r+7}], v9, s[8:11], s62 offen offset:1024 sc1']
        if not a.o.get('q1'):
            a('v_and_b32 v18, 7, v1\nv_lshlrev_b32 v18, 4, v18\ns_mov_b64 exec, 0xff')
            a.poll(['buffer_load_dwordx4 v[32:35], v18, s[8:11], s62 offen sc1'], range(32, 36), 30)
            a('s_mov_b64 exec, -1')
        if a.o.get('q1') == 2:
            def chk(r):
                for k in range(r, r+8): a(f'v_xor_b32 v{k}, v2, v{k}')
                a(f'v_or3_b32 v30, v{r}, v{r+1}, v{r+2}\nv_or3_b32 v30, v30, v{r+3}, v{r+4}\nv_or3_b32 v30, v30, v{r+5}, v{r+6}\nv_or_b32 v30, v30, v{r+7}\nv_and_b32 v30, {TMASK}, v30\nv_cmp_ne_u32 vcc, 0, v30')
            a('\n'.join(Q(48)) + f'\ns_sleep {a.o.get("qgap", 16)}\ns_mov_b32 s47, 0\nL_q2:\n' + '\n'.join(Q(32)) + '\ns_waitcnt vmcnt(2)')
            chk(48)
            a('s_cbranch_vccz L_q2b\n' + '\n'.join(Q(48)) + '\ns_waitcnt vmcnt(2)')
            chk(32)
            a(f's_cbranch_vccz L_q2a\ns_add_u32 s47, s47, 1\ns_cmp_lt_u32 s47, {LIMIT}\ns_cbranch_scc1 L_q2\ns_branch L_q2a')
            a('L_q2b:')
            for k in range(8): a(f'v_mov_b32 v{80+k}, v{48+k}')
            a('s_branch L_q2c\nL_q2a:')
            for k in range(8): a(f'v_mov_b32 v{80+k}, v{32+k}')
            a('L_q2c:')
        else: a.poll(Q(32), range(32, 40), 30)
        a.stamp(1)
        for i in range(2):
            qb = 80 if a.o.get('q1') == 2 else 32
            a(f'v_perm_b32 v{44+2*i}, v{qb+1+4*i}, v{qb+4*i}, s51\nv_perm_b32 v{45+2*i}, v{qb+3+4*i}, v{qb+2+4*i}, s51')
            a(f'ds_write_b64 v10, v[{44+2*i}:{45+2*i}] offset:{544*i}')
        if a.o.get('qmode'): a('v_bfe_u32 v18, v32, 10, 1\nds_write_b32 v12, v18\nv_readfirstlane_b32 s7, v18')
        elif a.o.get('cwo') is not None: a(a.xid_load(40))
        a('s_waitcnt lgkmcnt(0)\ns_barrier')
    if a.o.get('sq'): A_comm_sq2(a); return
    if a.o.get('split'): A_comm_split(a); return
    a(a.xid_load(40))
    for b in range(8):
        a(f's_mov_b32 m0, {LK + 4096*b}' + ('\ns_add_u32 s56, s56, 4096' if b else '\ns_nop 0'))
        for r in range(4): a(f'buffer_load_dwordx4 v{64 + r + 4*((b>>1)&1)}, s[20:23], s56 offen offset:{1024*r} OPOL lds')
    a('s_waitcnt vmcnt(32)')
    a.xid_mode(40)
    a('v_mov_b32 v18, s7\nds_write_b32 v12, v18\ns_waitcnt lgkmcnt(0)')
    if not a.o.get('wmax') and not a.o.get('sq'): a('s_barrier')
    if not a.o.get('sq'): a('s_barrier')
    a(f'ds_read_b128 v[32:35], v13\nds_read_b128 v[36:39], v13 offset:16\nds_read_b128 v[40:43], v13 offset:{LLS-LMX}\nds_read_b128 v[44:47], v13 offset:{LLS-LMX+16}\ns_waitcnt lgkmcnt(2)')
    a('v_max3_f32 v48, v32, v33, v34\nv_max3_f32 v49, v36, v37, v38\nv_max3_f32 v48, v48, v35, v39\nv_max_f32 v48, v48, v49')
    if a.o.get('wmax'):
        for i in range(8): a(f'v_sub_f32 v{32+i}, v{32+i}, v48')
        for i in range(8): a(f'v_mul_f32 v{32+i}, s57, v{32+i}')
        for i in range(8): a(f'v_exp_f32 v{32+i}, v{32+i}')
        a('s_waitcnt lgkmcnt(0)')
        for i in range(8): a(f'v_mul_f32 v{40+i}, v{32+i}, v{40+i}')
    a('s_waitcnt lgkmcnt(0)')
    a.tree_add(range(40, 48))
    a('v_or_b32 v32, v2, v48\nv_and_or_b32 v33, v40, s46, v2\nv_mov_b32 v34, v32\nv_mov_b32 v35, v33\ns_mov_b64 exec, 0xf')
    a.store_mode('buffer_store_dwordx4 v[32:35], v14, s[8:11], s63 offen')
    a('s_mov_b64 exec, -1')
    a('s_waitcnt vmcnt(1)')
    A_comm_tail(a)

def A_comm_sq(a):
    for b in range(8):
        a(f's_mov_b32 m0, {LK + 4096*b}' + ('\ns_add_u32 s56, s56, 4096' if b else '\ns_nop 0'))
        for r in range(4): a(f'buffer_load_dwordx4 v{64 + r + 4*((b>>1)&1)}, s[20:23], s56 offen offset:{1024*r} OPOL lds')
        if b == 0: a('s_barrier')
        if b == a.o.get('wo_b2', 1): a('s_barrier')
    a('s_barrier')
    a(f'ds_read_b128 v[32:35], v13\nds_read_b128 v[36:39], v13 offset:16\nds_read_b128 v[40:43], v13 offset:{LLS-LMX}\nds_read_b128 v[44:47], v13 offset:{LLS-LMX+16}\ns_waitcnt lgkmcnt(0)')
    a('v_max3_f32 v48, v32, v33, v34\nv_max3_f32 v49, v36, v37, v38\nv_max3_f32 v48, v48, v35, v39\nv_max_f32 v48, v48, v49')
    a.tree_add(range(40, 48))
    a('v_or_b32 v32, v2, v48\nv_and_or_b32 v33, v40, s46, v2\nv_mov_b32 v34, v32\nv_mov_b32 v35, v33\ns_mov_b64 exec, 0xf')
    a.store_mode('buffer_store_dwordx4 v[32:35], v14, s[8:11], s63 offen')
    a('s_mov_b64 exec, -1')
    a('s_waitcnt vmcnt(1)')
    A_comm_tail(a)

def A_comm_sq2(a):
    a(f'v_lshrrev_b32 v20, 1, v14\nv_add_u32 v20, {LLS}, v20\ns_barrier\ns_barrier')
    a('ds_read_b128 v[32:35], v13\nds_read_b128 v[36:39], v13 offset:16')
    for w in range(8): a(f'ds_read_b128 v[{72+4*w}:{75+4*w}], v20 offset:{16*w}')
    a('s_waitcnt lgkmcnt(8)')
    a('v_max3_f32 v48, v32, v33, v34\nv_max3_f32 v49, v36, v37, v38\nv_max3_f32 v48, v48, v35, v39\nv_max_f32 v48, v48, v49')
    a('s_waitcnt lgkmcnt(0)')
    for w in range(8): a(f'v_pk_add_f32 v[{72+4*w}:{73+4*w}], v[{72+4*w}:{73+4*w}], v[{74+4*w}:{75+4*w}]')
    for w in range(8): a(f'v_add_f32 v{56+w}, v{72+4*w}, v{73+4*w}')
    a.tree_add(range(56, 64))
    a('v_or_b32 v32, v2, v48\nv_and_or_b32 v33, v56, s46, v2\nv_mov_b32 v34, v32\nv_mov_b32 v35, v33\ns_waitcnt vmcnt(0)')
    a.xid_mode(40)
    if a.prof: a('v_writelane_b32 v127, s7, 12')
    a('v_mov_b32 v18, s7\nds_write_b32 v12, v18\ns_mov_b64 exec, 0xf')
    a.store_mode('buffer_store_dwordx4 v[32:35], v14, s[8:11], s63 offen')
    a('s_mov_b64 exec, -1\ns_waitcnt lgkmcnt(0)\ns_barrier')
    A_comm_tail(a)

def A_comm_split(a):
    cwo = a.o.get('cwo') is not None
    if not cwo:
        a(a.xid_load(40))
        for b in range(8):
            a(f's_mov_b32 m0, {LK + 4096*b}' + ('\ns_add_u32 s56, s56, 4096' if b else '\ns_nop 0'))
            for r in range(4): a(f'buffer_load_dwordx4 v{64 + r + 4*((b>>1)&1)}, s[20:23], s56 offen offset:{1024*r} OPOL lds')
            if b == a.o.get('wo_b1', 3): a('s_barrier')
            if b == a.o.get('wo_b2', 5): a('s_barrier')
        a('s_waitcnt vmcnt(32)')
    else: a(('' if a.o.get('wmax') else 's_barrier\n') + 's_waitcnt vmcnt(0)')
    if not a.o.get('qmode'): a.xid_mode(40)
    if a.prof: a('v_writelane_b32 v127, s7, 12')
    a(f'v_mov_b32 v18, s7\nds_write_b32 v12, v18\nv_lshrrev_b32 v20, 1, v14\nv_add_u32 v20, {LLS}, v20')
    if a.o.get('qa'): a(f'v_add_u32 v20, {LLS}, v17\nv_lshrrev_b32 v22, 4, v1\nv_lshlrev_b32 v21, 5, v22\nv_add_u32 v21, {LMX}, v21\nv_lshlrev_b32 v22, 8, v22')
    a('s_waitcnt lgkmcnt(0)')
    a('s_barrier')
    if a.o.get('qa'):
        a('ds_read_b128 v[32:35], v21\nds_read_b128 v[36:39], v21 offset:16')
        for i in range(4): a(f'ds_read2st64_b32 v[{40+2*i}:{41+2*i}], v20 offset0:{2*i} offset1:{2*i+1}')
        a('s_waitcnt lgkmcnt(4)')
        a('v_max3_f32 v48, v32, v33, v34\nv_max3_f32 v49, v36, v37, v38\nv_max3_f32 v48, v48, v35, v39\nv_max_f32 v48, v48, v49\ns_waitcnt lgkmcnt(0)')
        a.tree8(40)
        for k in (8, 4, 2, 1): a(f's_nop 1\nv_add_f32_dpp v40, v40, v40 row_ror:{k} {DPP}')
        a('v_or_b32 v32, v2, v48\nv_and_or_b32 v33, v40, s46, v2\nv_mov_b32 v34, v32\nv_mov_b32 v35, v33\ns_mov_b32 exec_lo, 0x00010001\ns_mov_b32 exec_hi, 0x00010001')
        a.store_mode('buffer_store_dwordx4 v[32:35], v22, s[8:11], s63 offen')
    else:
        a('ds_read_b128 v[32:35], v13\nds_read_b128 v[36:39], v13 offset:16')
        for w in range(8): a(f'ds_read_b128 v[{72+4*w}:{75+4*w}], v20 offset:{16*w}')
        a('s_waitcnt lgkmcnt(8)')
        a('v_max3_f32 v48, v32, v33, v34\nv_max3_f32 v49, v36, v37, v38\nv_max3_f32 v48, v48, v35, v39\nv_max_f32 v48, v48, v49')
        if a.o.get('wmax'):
            for i in range(8): a(f'v_sub_f32 v{32+i}, v{32+i}, v48')
            for i in range(8): a(f'v_mul_f32 v{32+i}, s57, v{32+i}')
            for i in range(8): a(f'v_exp_f32 v{32+i}, v{32+i}')
        a('s_waitcnt lgkmcnt(0)')
        for w in range(8): a(f'v_pk_add_f32 v[{72+4*w}:{73+4*w}], v[{72+4*w}:{73+4*w}], v[{74+4*w}:{75+4*w}]')
        for w in range(8): a(f'v_add_f32 v{40+w}, v{72+4*w}, v{73+4*w}')
        if a.o.get('wmax'):
            for i in range(8): a(f'v_mul_f32 v{40+i}, v{32+i}, v{40+i}')
        a.tree_add(range(40, 48))
        a('v_or_b32 v32, v2, v48\nv_and_or_b32 v33, v40, s46, v2\nv_mov_b32 v34, v32\nv_mov_b32 v35, v33\ns_mov_b64 exec, 0xf')
        a.store_mode('buffer_store_dwordx4 v[32:35], v14, s[8:11], s63 offen')
    a('s_mov_b64 exec, -1')
    if cwo and not a.o.get('ve'): a('s_barrier')
    if not cwo: a('s_waitcnt vmcnt(1)')
    A_comm_tail(a)

def A_comm_tail(a):
    a.stamp(2)
    if a.o.get('cwo') is None: a('s_barrier')
    if a.o.get('hc'):
        a('s_barrier')
        for i in range(4): a(f'ds_read2st64_b32 v[{32+2*i}:{33+2*i}], v17 offset0:{2*i} offset1:{2*i+1}'.replace('v17', 'v19'))
        a('s_waitcnt lgkmcnt(0)')
        a.stamp(5)
        a.tree8(32)
        a('v_and_or_b32 v32, v32, s46, v2')
        A_comm_end(a)
        return
    a.combine(15, 9, 41, 40)
    a('s_mov_b32 exec_lo, 0x00010001\ns_mov_b32 exec_hi, 0x00010001\nds_write_b128 v16, v[32:35]\ns_mov_b64 exec, -1\ns_waitcnt lgkmcnt(0)\ns_barrier')
    a.stamp(4)
    a.poll([f'buffer_load_dword v{32+i}, v17, s[8:11], s54 offen offset:{256*i} sc1' for i in range(8)], range(32, 40), 30)
    a.stamp(5)
    a.tree_add(range(32, 40))
    a.swap_op(32, 'v_add_f32', 32, 33)
    a('v_and_or_b32 v32, v32, s46, v2\ns_mov_b32 exec_hi, 0')
    A_comm_end(a)

def A_comm_end(a):
    a.store2('buffer_store_dword v32, v17, s[8:11], s{s} offen', 55, 42)
    if a.o.get('axgate'):
        a(f's_lshl_b32 s42, s4, 4\ns_add_u32 s42, s42, s5\ns_lshl_b32 s42, s42, 4\ns_add_u32 s42, s42, {AL}\ns_mov_b64 exec, 0xf')
        a.store_mode('buffer_store_dword v32, v17, s[8:11], s42 offen')
    a.stamp(6)
    if a.o.get('wb') == 'A': a('s_cmp_lg_u32 s5, 0\ns_cbranch_scc1 L_A_nowb\ns_waitcnt vmcnt(0)\nbuffer_wbl2 sc1\ns_waitcnt vmcnt(0)\nL_A_nowb:')
    a.exit()

def FM_issue(a):
    a.role = 'F'
    for s, k in ((12, 'wmod'), (20, 'c'), (16, 'wq')): a.karg(s, k)
    for s, n in ((12, 0x300000), (20, 1024), (16, 0x400000)): a.srd(s, n)
    a('v_lshlrev_b32 v7, 1, v1\nv_lshlrev_b32 v9, 4, v4\nv_lshlrev_b32 v17, 2, v1')
    a(f's_mov_b32 s57, {LOG2E:#x}\ns_and_b32 s58, s5, 7')
    p16 = a.o.get('p16')
    if not p16: a('s_cmp_ge_u32 s5, 24\ns_cbranch_scc1 L_M')
    a('v_mul_u32_u24 v5, 49152, v4\nv_lshl_add_u32 v5, v3, 2, v5\ns_lshl_b32 s40, s4, 7\ns_mul_i32 s56, s4, 393216')
    fl = a.o.get('fl')
    if fl: a('v_lshl_add_u32 v5, v3, 2, v5\ns_lshl_b32 s59, s58, 1\ns_add_u32 s59, s59, s3\ns_lshl_b32 s59, s59, 1\ns_lshl_b32 s42, s59, 6\ns_add_u32 s41, s56, s42')
    else: a('s_lshl_b32 s59, s58, 2\ns_add_u32 s59, s59, s3\ns_lshl_b32 s42, s59, 6\ns_add_u32 s41, s56, s42')
    a('s_waitcnt lgkmcnt(0)')
    a.stamp(0)
    a('buffer_load_ushort v8, v7, s[20:23], s40 offen')
    a.get_tag()
    a('s_cmp_ge_u32 s3, 4\ns_cbranch_scc1 L_F_wq')
    if p16: a('s_cmp_ge_u32 s5, 24\ns_cbranch_scc1 L_F_j')
    if fl:
        a('s_cmp_ge_u32 s3, 2\ns_cbranch_scc1 L_F_idle')
        for r in range(16):
            a(f'buffer_load_dwordx2 v[{32+2*r}:{33+2*r}], v5, s[12:15], s41 offen FPOL')
            if r < 15: a(f's_add_u32 s41, s41, {6144 if r != 7 else 6144*25}')
    else: a.mod_loads()

def F_early(a):
    a.role = 'F'
    a.modp_base(55, 59)
    if a.o.get('pw_h'): a('s_lshl_b32 s42, s4, 8\ns_add_u32 s42, s42, s55\nv_mov_b32 v28, 0\nbuffer_store_dword v28, v17, s[8:11], s42 offen sc1')
    a.fin_tag()
    a.silu_frag(17 if a.o.get('pw_h') else 16)
    if a.o.get('fl'):
        a('v_lshrrev_b32 v15, 3, v3\nv_lshlrev_b32 v15, 17, v15\nv_and_b32 v16, 7, v3\nv_lshl_add_u32 v15, v16, 5, v15\ns_lshl_b32 s42, s4, 8\ns_add_u32 s42, s42, s55')
        for r in (97, 99, 101, 103): a(f'v_mov_b32 v{r}, s45')
        a('s_waitcnt vmcnt(8)')
        a.perm_x2(32, 64)
        a('s_waitcnt vmcnt(0) lgkmcnt(0)')
        a.stamp(1)
        for jj in range(4): a(f'v_mfma_f32_16x16x32_bf16 v[{104+4*jj}:{107+4*jj}], v[20:23], v[{64+4*jj}:{67+4*jj}], 0')
        a.perm_x2(48, 80)
        a('s_nop 0')
        for jj in range(4): a(f'v_mfma_f32_16x16x32_bf16 v[{104+4*jj}:{107+4*jj}], v[24:27], v[{80+4*jj}:{83+4*jj}], v[{104+4*jj}:{107+4*jj}]')
        a('s_mov_b64 exec, 0xffff\ns_nop 3')
        for jj in range(4): a(f'v_mov_b32 v{96+2*jj}, v{104+4*jj}')
        a('buffer_store_dwordx4 v[96:99], v15, s[8:11], s42 offen sc1\nbuffer_store_dwordx4 v[100:103], v15, s[8:11], s42 offen offset:16 sc1\ns_mov_b64 exec, -1')
    else:
        a('s_waitcnt vmcnt(0)')
        a.stamp(1)
        a.mod_partial()
    a.stamp(2)
    if a.o.get('tlb_f'): a(f's_mov_b32 s42, {QP}\ns_mov_b64 exec, 1\nbuffer_load_dword v116, v7, s[8:11], s42 offen sc1\ns_mov_b64 exec, -1')
    a('s_branch L_F_j')
    if a.o.get('fl'):
        a('L_F_idle:')
        a.fin_tag()
        a.silu_frag(0)
        a('s_branch L_F_j')
    a('L_F_wq:')
    if a.o.get('p16'):
        a('s_and_b32 s42, s3, 1\ns_lshl_b32 s42, s42, 3\nv_xor_b32 v6, s42, v1')
        for r in range(4): a(f'v_xor_b32 v{64+r}, {2*r}, v6\nv_lshlrev_b32 v{64+r}, 4, v{64+r}')
        a('s_and_b32 s42, s3, 3\ns_lshl_b32 s44, s42, 13\ns_lshl_b32 s42, s42, 16\ns_and_b32 s62, s5, 15\ns_lshl_b32 s62, s62, 18\ns_add_u32 s62, s62, s42\ns_lshl_b32 s42, s4, 10\ns_add_u32 s62, s62, s42')
        if a.o.get('f_tagw'): a.fin_tag()
        for b in range(2):
            a(f's_add_u32 m0, s44, {WQL + 4096*b}')
            for r in range(4):
                if b or r: a(f's_add_u32 s62, s62, {7168 if r else 11264}')
                else: a('s_nop 0')
                a(f'buffer_load_dwordx4 v{64 + r}, s[16:19], s62 offen offset:{1024*r} FPOL lds')
        return
    for k in range(8): a(f'v_xor_b32 v{64+k}, {2*k}, v1\nv_lshlrev_b32 v{64+k}, 4, v{64+k}')
    a('s_and_b32 s42, s3, 3\ns_lshl_b32 s44, s42, 14\ns_lshl_b32 s42, s42, 17\ns_lshl_b32 s62, s58, 19\ns_add_u32 s62, s62, s42\ns_lshl_b32 s42, s4, 10\ns_add_u32 s62, s62, s42')
    if a.o.get('f_tagw'): a.fin_tag()
    for b in range(4):
        a(f's_add_u32 m0, s44, {WQL + 4096*b}')
        for r in range(4):
            if b or r: a(f's_add_u32 s62, s62, {7168 if r else 11264}')
            else: a('s_nop 0')
            a(f'buffer_load_dwordx4 v{64 + r + 4*((b>>1)&1)}, s[16:19], s62 offen offset:{1024*r} FPOL lds')

def F_body(a):
    a.role = 'F'
    a('L_F_j:')
    if a.o.get('p16'): return P_body(a)
    a.karg(36, 'wd'); a.srd(36, 0x1C0000)
    a('s_cmp_lt_u32 s3, 4\ns_cbranch_scc1 L_F_j2')
    if not a.o.get('f_tagw'): a.fin_tag()
    a.silu_frag(16)
    a('L_F_j2:')
    a('v_lshrrev_b32 v5, 2, v3')
    a(f'v_mov_b32 v28, 0\nv_add_u32 v29, {WZ}, v7\nds_write_b16 v29, v28')
    a.tr_addr(WQL, 96); a.mask_addr(WH, WZ, 100)
    a(f'v_mov_b32 v11, {WMODE}\nv_lshlrev_b32 v18, 3, v1\nv_mov_b32 v31, s45')
    a(f's_lshl_b32 s54, s4, 3\ns_add_u32 s54, s54, s3\ns_lshl_b32 s54, s54, 3\ns_add_u32 s54, s54, s58\ns_lshl_b32 s54, s54, 9\ns_add_u32 s54, s54, {QP}')
    a('s_cmp_lt_u32 s3, 4\ns_cbranch_scc1 L_F_k\ns_waitcnt vmcnt(0)\nL_F_k:\ns_waitcnt lgkmcnt(0)')
    a.stamp(3)
    a('s_barrier')
    for t2 in range(2):
        for jj in range(4):
            b = 32 + 16*t2 + 4*jj
            a(f'ds_read_b64_tr_b16 v[{b}:{b+1}], v{96+jj} offset:{32768*t2}\nds_read_b64_tr_b16 v[{b+2}:{b+3}], v{96+jj} offset:{32768*t2+4096}')
    a('s_waitcnt lgkmcnt(0)\ns_barrier')
    a('ds_read_b64 v[28:29], v11')
    for t2 in range(2):
        for jj in range(4): a(f'ds_read_b128 v[{64+16*t2+4*jj}:{67+16*t2+4*jj}], v{100+jj} offset:{64*t2}')
    for k in range(8):
        a(f's_waitcnt lgkmcnt({7-k})')
        c = '0' if k < 2 else f'v[{108+4*(k&1)}:{111+4*(k&1)}]'
        a(f'v_mfma_f32_16x16x32_bf16 v[{108+4*(k&1)}:{111+4*(k&1)}], v[{64+4*k}:{67+4*k}], v[{32+4*k}:{35+4*k}], {c}')
        if k == 0: a('v_readfirstlane_b32 s7, v28\nv_readfirstlane_b32 s76, v29')
    a('s_nop 7')
    a('v_add_f32 v30, v108, v112')
    a.store_mode('buffer_store_dwordx2 v[30:31], v18, s[8:11], s54 offen')
    a.stamp(4)
    F_rest(a)

def P_body(a):
    for s, k in ((24, 'x'), (28, 'wg'), (32, 'wu'), (36, 'wd')): a.karg(s, k)
    a.srd(24, 1024)
    for s in (28, 32, 36): a.srd(s, 0x1C0000)
    a('s_cmp_lt_u32 s3, 4\ns_cselect_b32 s42, 1, 0\ns_cmp_lt_u32 s5, 24\ns_cselect_b32 s43, 1, 0\ns_and_b32 s42, s42, s43\ns_cbranch_scc1 L_F_j2')
    a('s_cmp_lt_u32 s3, 4\ns_cbranch_scc1 L_F_j1')
    if not a.o.get('f_tagw'): a.fin_tag()
    a.silu_frag(8)
    a('s_branch L_F_j2\nL_F_j1:')
    a.fin_tag()
    a('L_F_j2:')
    a('v_lshrrev_b32 v5, 2, v3')
    a(f'v_mov_b32 v28, 0\nv_add_u32 v29, {WZ}, v7\nds_write_b16 v29, v28')
    a.tr_addr(WQL, 96); a.mask_addr(WH, WZ, 100)
    a(f'v_mov_b32 v11, {WMODE}\nv_lshlrev_b32 v18, 3, v1\nv_mov_b32 v31, s45')
    a(f's_lshl_b32 s54, s4, 3\ns_add_u32 s54, s54, s3\ns_lshl_b32 s54, s54, 4\ns_and_b32 s42, s5, 15\ns_add_u32 s54, s54, s42\ns_lshl_b32 s54, s54, 9\ns_add_u32 s54, s54, {QP}')
    a('s_cmp_lt_u32 s3, 4\ns_cbranch_scc1 L_F_k\ns_waitcnt vmcnt(0)\nL_F_k:\ns_waitcnt lgkmcnt(0)')
    a.stamp(3)
    a('s_barrier')
    for jj in range(4): a(f'ds_read_b64_tr_b16 v[{32+4*jj}:{33+4*jj}], v{96+jj}\nds_read_b64_tr_b16 v[{34+4*jj}:{35+4*jj}], v{96+jj} offset:4096')
    a('s_waitcnt lgkmcnt(0)\ns_barrier')
    a('ds_read_b64 v[28:29], v11')
    for jj in range(4): a(f'ds_read_b128 v[{64+4*jj}:{67+4*jj}], v{100+jj}')
    for k in range(4):
        a(f's_waitcnt lgkmcnt({3-k})')
        a(f'v_mfma_f32_16x16x32_bf16 v[108:111], v[{64+4*k}:{67+4*k}], v[{32+4*k}:{35+4*k}], {"0" if k == 0 else "v[108:111]"}')
        if k == 0: a('v_readfirstlane_b32 s7, v28\nv_readfirstlane_b32 s76, v29')
    a('s_nop 7')
    a('v_mov_b32 v30, v108')
    a.store_mode('buffer_store_dwordx2 v[30:31], v18, s[8:11], s54 offen')
    a.stamp(4)
    a('s_cmp_ge_u32 s5, 24\ns_cbranch_scc1 L_M2')
    F_rest(a)

def F_rest(a):
    a('v_mul_u32_u24 v5, 49152, v4\nv_lshl_add_u32 v5, v3, 2, v5')
    a('s_lshl_b32 s59, s58, 3\ns_add_u32 s59, s59, s3\ns_add_u32 s59, s59, 32\ns_lshl_b32 s42, s59, 6\ns_add_u32 s41, s56, s42')
    a.modp_base(55, 59)
    a('v_lshlrev_b32 v6, 7, v1\ns_mul_i32 s40, s4, 229376\ns_mul_i32 s42, s58, 28672\ns_add_u32 s40, s40, s42\ns_lshl_b32 s42, s3, 13\ns_add_u32 s40, s40, s42')
    if not a.o.get('rq'): a('s_barrier')
    if a.o.get('rq') == 2: a('s_waitcnt vmcnt(0)\ns_barrier')
    a.mod_loads('RPOL')
    if a.o.get('dpf') == 3:
        a('s_cmp_ge_u32 s3, 4\ns_cbranch_scc1 L_F_nopf\nbuffer_load_dword v117, v6, s[36:39], s40 offen MPOL\ns_waitcnt vmcnt(1)\ns_branch L_F_pf\nL_F_nopf:\ns_waitcnt vmcnt(0)\nL_F_pf:')
    else: a('s_waitcnt vmcnt(0)')
    a.stamp(5)
    if a.o.get('dpf') == 5: a('s_cmp_ge_u32 s3, 4\ns_cbranch_scc1 L_F_nopf\nbuffer_load_dword v117, v6, s[36:39], s40 offen MPOL\nL_F_nopf:')
    if a.o.get('fp2'): a('ds_read_b32 v29, v11 offset:4\ns_waitcnt lgkmcnt(0)\nv_readfirstlane_b32 s76, v29')
    a.mod_partial(two=a.o.get('fp2'))
    if a.o.get('fgate'): a('s_waitcnt vmcnt(0)')
    if a.o.get('dpf') == 1: a('s_cmp_ge_u32 s3, 4\ns_cbranch_scc1 L_F_nopf\nbuffer_load_dword v8, v6, s[36:39], s40 offen MPOL\nL_F_nopf:')
    a('s_add_u32 s55, s55, s76')
    a.poll8([f'buffer_load_dwordx2 v[{32+2*i}:{33+2*i}], v18, s[8:11], s55 offen offset:{512*i} sc1' for i in range(4)], range(33, 40, 2), 30)
    a.tree_add(range(32, 40, 2))
    a.swap_op(32, 'v_add_f32', 32, 33)
    a.rbf(32, 32)
    a(f's_mul_i32 s42, s4, 12288\ns_lshl_b32 s43, s59, 7\ns_add_u32 s42, s42, s43\ns_add_u32 s42, s42, {MODV}')
    a('v_or_b32 v33, v2, v32\ns_mov_b32 exec_hi, 0')
    a.store_mode('buffer_store_dword v33, v17, s[8:11], s42 offen')
    a.stamp(6)
    if a.o.get('wb') == 'F': a('s_lshl_b32 s42, s58, 3\ns_or_b32 s42, s42, s3\ns_cbranch_scc1 L_F_nowb\ns_waitcnt vmcnt(0)\nbuffer_wbl2 sc1\ns_waitcnt vmcnt(0)\nL_F_nowb:')
    if a.o.get('dpf') == 4: a('s_mov_b64 exec, -1\ns_cmp_ge_u32 s3, 4\ns_cbranch_scc1 L_F_nopf\nbuffer_load_dword v117, v6, s[36:39], s40 offen MPOL\ns_waitcnt vmcnt(0)\nL_F_nopf:')
    a.exit()

def F_comm(a):
    a.role = 'Fc'
    a('L_F_comm:')
    a.karg(24, 'x'); a.srd(24, 1024)
    p16 = a.o.get('p16')
    if p16: a('s_and_b32 s58, s5, 7\nv_lshlrev_b32 v9, 4, v1\nv_and_b32 v11, 31, v1\nv_lshlrev_b32 v11, 1, v11\ns_and_b32 s40, s5, 15\ns_lshl_b32 s40, s40, 6')
    else: a('s_and_b32 s58, s5, 7\nv_lshlrev_b32 v9, 4, v1\nv_lshlrev_b32 v11, 1, v1\ns_lshl_b32 s40, s58, 7')
    a('s_waitcnt lgkmcnt(0)')
    a.stamp(0)
    a('buffer_load_dwordx4 v[32:35], v9, s[24:27], 0 offen\nbuffer_load_ushort v36, v11, s[24:27], s40 offen')
    a.get_tag(); a.fin_tag()
    a.xid_publish()
    if a.o.get('fprobe'): a.probe(a.o['fprobe'])
    else: a('s_mov_b32 s76, 0')
    a('s_waitcnt vmcnt(1)')
    for d in range(4): a(f'v_lshlrev_b32 v{40+2*d}, 16, v{32+d}\nv_and_b32 v{41+2*d}, 0xffff0000, v{32+d}')
    a('v_add_f32 v32, v40, v41\nv_add_f32 v33, v42, v43\nv_add_f32 v34, v44, v45\nv_add_f32 v35, v46, v47')
    a.tree_add(range(32, 36))
    a.wave_reduce('v_add_f32', [32], 33)
    a('v_mul_f32 v32, 0x3b000000, v32')
    for i in range(8): a(f'v_sub_f32 v{40+i}, v{40+i}, v32')
    for i in range(8): a(f'v_mul_f32 v{40+i}, v{40+i}, v{40+i}')
    a.tree_add(range(40, 48))
    a.wave_reduce('v_add_f32', [40], 33)
    a('v_mul_f32 v40, 0x3b000000, v40')
    a.rbf(32, 32); a.rbf(40, 40)
    a(f'v_add_f32 v40, {EPS:#x}, v40'); a.rbf(40, 40)
    a('v_sqrt_f32 v40, v40\nv_lshlrev_b32 v36, 16, v36'); a.rbf(40, 40)
    a('v_sub_f32 v36, v36, v32'); a.rbf(36, 36)
    a.div(40, 36, 40, 41, 42); a.rbf(28, 40)
    if p16:
        a(f'v_lshrrev_b32 v12, 5, v1\nv_lshlrev_b32 v12, 11, v12\nv_lshl_add_u32 v12, v11, 2, v12\ns_and_b32 s41, s5, 15\ns_lshl_b32 s41, s41, 17\ns_add_u32 s41, s41, {MODP}')
        a(f'v_add_u32 v13, {WH}, v11\nv_mov_b32 v14, {WMODE}\nv_lshlrev_b32 v17, 2, v1\nv_lshlrev_b32 v18, 3, v1')
        a(f's_lshl_b32 s54, s4, 3\ns_add_u32 s54, s54, s58\ns_lshl_b32 s55, s54, 8\ns_add_u32 s55, s55, {QV}\ns_lshl_b32 s54, s54, 13\ns_add_u32 s54, s54, {QP}\ns_add_u32 s56, s54, 4096')
        a.stamp(1)
        a('s_barrier')
        a(a.xid_load(64))
        a.poll8([f'buffer_load_dwordx2 v[{32+2*i}:{33+2*i}], v12, s[8:11], s41 offen offset:{256*i} sc1' for i in range(8)], range(33, 48, 2), 30)
        a.stamp(2)
        a.tree_add(range(32, 48, 2))
        a.rbf(32, 32)
        a('v_mov_b32 v48, v32\ns_nop 1\nv_permlane32_swap_b32 v32, v48')
        a('v_add_f32 v48, 1.0, v48'); a.rbf(48, 48)
        a('v_mul_f32 v48, v28, v48'); a.rbf(48, 48)
        a('v_add_f32 v48, v48, v32'); a.rbf(48, 48)
    else:
        a(f'v_lshrrev_b32 v12, 5, v1\nv_lshlrev_b32 v12, 17, v12\nv_and_b32 v10, 31, v1\nv_lshl_add_u32 v12, v10, 3, v12\ns_lshl_b32 s41, s58, 18\ns_add_u32 s41, s41, {MODP}\ns_add_u32 s41, s41, s76')
        a(f'v_add_u32 v13, {WH}, v11\nv_mov_b32 v14, {WMODE}\nv_lshlrev_b32 v17, 2, v1\nv_lshlrev_b32 v18, 3, v1')
        a(f's_lshl_b32 s54, s4, 3\ns_add_u32 s54, s54, s58\ns_lshl_b32 s55, s54, 8\ns_add_u32 s55, s55, {QV}\ns_lshl_b32 s54, s54, 12\ns_add_u32 s54, s54, {QP}')
        a(f'v_lshlrev_b32 v19, 6, v1\nv_mov_b32 v20, s45\ns_lshl_b32 s56, s4, 12\ns_lshl_b32 s42, s58, 2\ns_add_u32 s56, s56, s42\ns_add_u32 s56, s56, {QF}')
        if a.o.get('pt_q') == 1: a('v_lshlrev_b32 v22, 6, v1\nbuffer_load_dword v108, v22, s[8:11], s54 offen sc1')
        if a.o.get('pt_h'):
            a(f'v_and_b32 v22, 31, v1\nv_lshlrev_b32 v22, 7, v22\nv_lshrrev_b32 v23, 5, v1\nv_lshl_add_u32 v22, v23, 17, v22\nbuffer_load_dword v109, v22, s[8:11], s41 offen {a.o["pt_h"]}')
        a.stamp(1)
        if not a.o.get('mh'): a('s_barrier')
        H1 = [f'buffer_load_dwordx2 v[{32+2*i}:{33+2*i}], v12, s[8:11], s41 offen offset:{256*i} sc1' for i in range(16)]
        if a.o.get('mh'):
            if a.o.get('mown', 1): a.trigger('own')
            H1 = H1 + [a.xid_load(64)]
        else: a(a.xid_load(64))
        if a.o.get('pt_q') == 2: a('v_lshlrev_b32 v22, 6, v1\nbuffer_load_dword v108, v22, s[8:11], s54 offen sc1')
        ps = a.o.get('ps') and not a.o.get('mh')
        if ps: a.poll8_sum(H1, 32, 16, 30, [(0, 8), (8, 8)])
        else: a.poll8(H1, range(33, 64, 2), 30)
        a.stamp(2)
        for k in (() if ps else (1, 2, 4)):
            for b in (48, 32):
                for i in range(0, 8, 2*k): a(f'v_add_f32 v{b+2*i}, v{b+2*i}, v{b+2*(i+k)}')
        a.rbf(48, 48); a.rbf(32, 32)
        a('v_add_f32 v48, 1.0, v48'); a.rbf(48, 48)
        a('v_mul_f32 v48, v28, v48'); a.rbf(48, 48)
        a('v_add_f32 v48, v48, v32'); a.rbf(48, 48)
    if a.o.get('mh'):
        a.xid_mode(64)
        a(f's_lshl_b32 s42, s7, 10\ns_or_b32 s42, s42, s6\nv_or_b32 v48, s42, v48\ns_lshl_b32 s42, s4, 3\ns_add_u32 s42, s42, s58\ns_lshl_b32 s42, s42, 8\ns_add_u32 s42, s42, {HV}')
        a.store_mode('buffer_store_dword v48, v17, s[8:11], s42 offen')
        a.stamp(3)
        a('v_mov_b32 v15, 0\nds_write_b32 v14, v15\ns_branch L_M_comm')
        a('L_F_comm2:')
        a('s_and_b32 s58, s5, 7\ns_waitcnt lgkmcnt(0)')
        a.get_tag(); a.fin_tag()
        a.xid_publish()
        a(f'v_lshlrev_b32 v13, 1, v1\nv_add_u32 v13, {WH}, v13\nv_mov_b32 v14, {WMODE}\nv_lshlrev_b32 v17, 2, v1\nv_lshlrev_b32 v18, 3, v1\ns_mov_b32 s76, 0')
        a(f's_lshl_b32 s54, s4, 3\ns_add_u32 s54, s54, s58\ns_lshl_b32 s55, s54, 8\ns_add_u32 s41, s55, {HV}\ns_add_u32 s55, s55, {QV}\ns_lshl_b32 s54, s54, 12\ns_add_u32 s54, s54, {QP}')
        if a.o['mh'] == 2: a('s_barrier')
        l = a.label('P')
        a(f's_mov_b32 s47, 0\n{l}:\nbuffer_load_dword v48, v17, s[8:11], s41 offen sc1\ns_add_u32 s47, s47, 1\ns_cmp_gt_u32 s47, {LIMIT}\ns_cbranch_scc1 {l}_t\ns_waitcnt vmcnt(0)')
        a(f'v_xor_b32 v48, v2, v48\nv_and_b32 v30, {TMASK}, v48\nv_cmp_ne_u32 vcc, 0, v30\ns_cbranch_vccnz {l}\n{l}_x:')
        a.tails.append(f'{l}_t:\ns_waitcnt vmcnt(0)\ns_branch {l}_x')
        a.stamp(2)
        a('ds_write_b16_d16_hi v13, v48\nv_bfe_u32 v64, v48, 10, 1\nv_mov_b32 v65, 0\nds_write_b64 v14, v[64:65]\nv_readfirstlane_b32 s7, v64')
        if a.o['mh'] == 1: a('s_barrier')
        a('s_waitcnt lgkmcnt(0)\ns_barrier')
        F_comm_tail(a, False)
        return
    a('ds_write_b16_d16_hi v13, v48')
    a.xid_mode(64)
    a('v_mov_b32 v64, s7\nv_mov_b32 v65, s76\nds_write_b64 v14, v[64:65]\ns_waitcnt lgkmcnt(0)\ns_barrier')
    F_comm_tail(a, p16)

def F_comm_tail(a, p16):
    a.stamp(3)
    if p16: a('s_cmp_ge_u32 s5, 24\ns_cbranch_scc1 L_M_comm')
    if a.o.get('rq'):
        if a.o.get('rq') == 2: a('s_barrier')
        if a.o.get('fp2'):
            a.probe(3)
            a('v_mov_b32 v65, s76\nds_write_b32 v14, v65 offset:4\ns_waitcnt lgkmcnt(0)')
        a.exit()
        return
    if a.o.get('qmode'): a('s_lshl_b32 s43, s7, 10\ns_or_b32 s43, s43, s6')
    nq = 16 if p16 else 8
    QL = [f'buffer_load_dwordx2 v[{32+2*i}:{33+2*i}], v18, s[8:11], s{54 if i < 8 else 56} offen offset:{512*(i&7)} sc1' for i in range(nq)]
    if a.o.get('ps'): a.poll8_sum(QL, 32, nq, 30, [(0, nq)])
    else: a.poll8(QL, range(33, 32+2*nq, 2), 30)
    a.stamp(4)
    if not a.o.get('ps'): a.tree_add(range(32, 32+2*nq, 2))
    a.rbf(32, 32)
    if a.o.get('qmode'): a('v_or_b32 v32, s43, v32')
    else: a('v_or_b32 v32, v2, v32')
    a.store_mode('buffer_store_dword v32, v17, s[8:11], s55 offen')
    if a.o.get('sq'): a.store_mode('buffer_store_dword v20, v19, s[8:11], s56 offen')
    a.stamp(5)
    a.trigger(a.o.get('ftrig'))
    a('s_barrier')
    if a.o.get('fp2'):
        a.probe(3)
        a('v_mov_b32 v65, s76\nds_write_b32 v14, v65 offset:4\ns_waitcnt lgkmcnt(0)')
    a.exit()

def M_early(a):
    a.role = 'M'
    a('L_M:')
    for s, k in ((24, 'x'), (28, 'wg'), (32, 'wu'), (36, 'wd')): a.karg(s, k)
    a.srd(24, 1024)
    for s in (28, 32, 36): a.srd(s, 0x1C0000)
    a('v_bfe_u32 v10, v1, 3, 2\nv_lshlrev_b32 v10, 13, v10\nv_and_b32 v6, 7, v1\nv_lshl_add_u32 v10, v6, 7, v10\nv_lshrrev_b32 v6, 5, v1\nv_lshl_add_u32 v10, v6, 6, v10')
    a('s_lshl_b32 s43, s58, 4\ns_add_u32 s43, s43, s3\ns_add_u32 s43, s43, 8\ns_lshl_b32 s43, s43, 15\ns_lshl_b32 s42, s4, 10\ns_add_u32 s43, s43, s42')
    a('v_and_b32 v11, 31, v1')
    a('s_waitcnt lgkmcnt(0)')
    a.stamp(0)
    a.get_tag()
    if a.o.get('a_tagw'): a.fin_tag()
    if not a.o.get('early_gu') and a.o.get('apf2') != 1 and not a.o.get('nompf'): a('buffer_load_dword v112, v10, s[16:19], s43 offen FPOL')
    if a.o.get('mpf2'): a('s_sub_u32 s43, s43, 131072\nbuffer_load_dword v115, v10, s[16:19], s43 offen FPOL')
    if not a.o.get('a_tagw'): a.fin_tag()
    if a.o.get('vpf'):
        a.karg(68, 'v'); a.srd(68, 0x2000000)
        a(f'v_lshrrev_b32 v12, 5, v1\nv_lshlrev_b32 v12, 13, v12\nv_lshl_add_u32 v12, v11, 7, v12\ns_lshl_b32 s40, s4, 22\ns_lshl_b32 s41, s58, 17\ns_add_u32 s40, s40, s41\ns_lshl_b32 s41, s3, 14\ns_add_u32 s40, s40, s41\ns_add_u32 s40, s40, {(3<<20) + 4096}\ns_waitcnt lgkmcnt(0)')
        if a.o['vpf'] == 2: a('s_barrier')
        a('buffer_load_dword v113, v12, s[68:71], s40 offen UPOL')
    if a.o.get('rpf'):
        a('v_bfe_u32 v13, v1, 2, 3\nv_mul_u32_u24 v13, 6144, v13\nv_and_b32 v14, 3, v1\nv_lshl_add_u32 v13, v14, 7, v13\nv_lshl_add_u32 v13, v6, 6, v13')
        a('s_lshl_b32 s42, s4, 3\ns_add_u32 s42, s42, s3\ns_mul_i32 s42, s42, 49152\ns_lshl_b32 s44, s58, 9\ns_add_u32 s42, s42, s44\ns_add_u32 s42, s42, 2048')
        if a.o.get('rpf') == 2: a('s_waitcnt vmcnt(0)')
        if a.o.get('rpf') != 3: a('buffer_load_dword v22, v13, s[12:15], s42 offen FPOL')
        else: a('s_mov_b32 s62, s42')
    a('s_branch L_M2')

def M_body(a):
    a.role = 'M'
    a('L_M2:')
    if a.o.get('p16'): a('v_and_b32 v11, 31, v1\nv_lshrrev_b32 v6, 5, v1')
    a('s_mul_i32 s59, s4, 7\ns_add_u32 s59, s59, s58')
    a('s_cmp_eq_u32 s58, 7\ns_cbranch_scc1 L_R')
    if a.o.get('mearly'): a('s_mov_b32 s66, s3')
    a('v_mul_u32_u24 v5, 28672, v4\nv_lshl_add_u32 v5, v3, 2, v5')
    a(f's_and_b32 s42, s59, 1\ns_cselect_b32 s44, {39*3584}, 0\ns_cselect_b32 s48, -1, 1\ns_cselect_b32 s63, 78, 0\ns_cselect_b32 s42, 7, 0\ns_xor_b32 s3, s3, s42\ns_mul_i32 s49, s48, {3584*25}\ns_mul_i32 s48, s48, 3584')
    a('s_mul_i32 s41, s3, 229376\ns_lshl_b32 s42, s59, 6\ns_add_u32 s41, s41, s42\ns_add_u32 s41, s41, s44')
    a('s_lshl_b32 s40, s3, 7')
    eg = a.o.get('early_gu')
    def gu():
        for r in range(16):
            a(f'buffer_load_dword v{32+r}, v5, s[28:31], s41 offen MPOL\nbuffer_load_dword v{48+r}, v5, s[32:35], s41 offen MPOL')
            if r < 15: a(f's_add_u32 s41, s41, s{48 if r != 7 else 49}')
    if eg:
        gu()
        a('s_waitcnt vmcnt(0)')
        a.stamp(4)
        a.perm_x1(32, 80); a.perm_x1(40, 88); a.perm_x1(48, 96); a.perm_x1(56, 104)
    if a.o.get('m_pfw') or a.o.get('p16'): a('s_waitcnt vmcnt(0)')
    if a.o.get('tlb_m'):
        a.karg(68, 'wo'); a.srd(68, 0x400000)
        a('s_lshl_b32 s42, s4, 19\ns_mov_b64 exec, 1\nbuffer_load_dword v113, v5, s[28:31], s41 offen nt\nbuffer_load_dword v114, v5, s[32:35], s41 offen nt\nbuffer_load_dword v115, v5, s[36:39], 0 offen nt\nbuffer_load_dword v116, v5, s[24:27], 0 offen')
        a(f's_mov_b32 s44, {MODV}\nbuffer_load_dword v117, v5, s[8:11], s44 offen sc1\ns_waitcnt lgkmcnt(0)\nbuffer_load_dword v118, v5, s[68:71], s42 offen nt\ns_mov_b64 exec, -1')
    if a.o.get('dfirst'):
        a('v_lshlrev_b32 v6, 13, v4\nv_lshl_add_u32 v6, v3, 3, v6\ns_lshl_b32 s43, s59, 15\ns_add_u32 s43, s43, s40\ns_add_u32 s42, s43, 4096')
        if a.o['dfirst'] != 'none': a('s_barrier')
        for i in range(8): a(f'buffer_load_dwordx2 v[{64+2*i}:{65+2*i}], v6, s[36:39], s{43 if i<4 else 42} offen offset:{1024*(i&3)} MPOL')
    a.stamp(1)
    if a.o.get('mearly'):
        a(f's_cmp_lt_u32 s66, {a.o["mearly"]}\ns_cbranch_scc0 L_M_w')
        gu()
        a('s_barrier\nbuffer_load_ushort v8, v7, s[24:27], s40 offen\ns_branch L_M_x\nL_M_w:')
    a('s_barrier')
    a.stamp(3)
    if a.o.get('rpf') == 3: a('buffer_load_dword v22, v13, s[12:15], s62 offen FPOL')
    a('buffer_load_ushort v8, v7, s[24:27], s40 offen')
    if not eg: gu()
    if a.o.get('mearly'): a('L_M_x:')
    a('v_lshlrev_b32 v6, 13, v4\nv_lshl_add_u32 v6, v3, 3, v6\ns_lshl_b32 s43, s59, 15\ns_add_u32 s43, s43, s40\ns_add_u32 s41, s43, 4096' + ('\ns_mov_b32 s64, s43\ns_mov_b32 s65, s41' if a.o.get('dl') else ''))
    dl = a.o.get('dl')
    MV = ['buffer_load_dword v112, v17, s[8:11], s55 offen sc1', 'buffer_load_dword v113, v17, s[8:11], s55 offen offset:2048 sc1', 'buffer_load_dword v114, v17, s[8:11], s56 offen sc1']
    if not dl and not a.o.get('dfirst'):
        for i in range(8): a(f'buffer_load_dwordx2 v[{64+2*i}:{65+2*i}], v6, s[36:39], s{43 if i<4 else 41} offen offset:{1024*(i&3)} MPOL')
    a(f's_lshl_b32 s42, s3, 8\ns_lshl_b32 s54, s3, 17\ns_add_u32 s54, s54, {AX}\ns_mul_i32 s55, s4, 12288\ns_add_u32 s55, s55, s42\ns_add_u32 s55, s55, {MODV + 2*2048}\ns_add_u32 s56, s55, 4096')
    if a.o.get('mv') or a.o.get('pt_m'): a('\n'.join(MV))
    a(f'v_add_u32 v13, s42, v17\nv_add_u32 v13, {WX1}, v13')
    a(f's_lshl_b32 s43, s3, 3\ns_add_u32 s43, s43, {WST}\nv_mov_b32 v14, s43\nv_and_b32 v15, 7, v1\nv_lshlrev_b32 v15, 3, v15\nv_add_u32 v15, {WST}, v15')
    a(f's_add_u32 s43, s40, {WH2}\nv_xor_b32 v16, s63, v7\nv_add_u32 v16, s43, v16\nv_add_u32 v18, s43, v9')
    a(f's_add_u32 s43, s42, {WGU}\nv_lshlrev_b32 v19, 3, v3\nv_add_u32 v19, s43, v19')
    a(f's_lshl_b32 s43, s3, 6\ns_add_u32 s43, s43, {WHH}\nv_lshlrev_b32 v10, 1, v11\nv_add_u32 v10, s43, v10\nv_add_u32 v11, s43, v9')
    a('v_lshrrev_b32 v12, 3, v3\nv_lshlrev_b32 v12, 9, v12\nv_and_b32 v20, 7, v3\nv_lshl_add_u32 v12, v20, 4, v12')
    a(f's_bfe_u32 s62, s59, 0x40001\ns_lshl_b32 s62, s62, 17\ns_lshr_b32 s42, s59, 5\ns_lshl_b32 s42, s42, 8\ns_add_u32 s62, s62, s42\ns_and_b32 s42, s59, 1\ns_lshl_b32 s42, s42, 7\ns_add_u32 s62, s62, s42\ns_lshl_b32 s42, s3, 10\ns_add_u32 s62, s62, s42\ns_add_u32 s62, s62, {DP}')
    if a.o.get('pw_d'):
        a('v_xor_b32 v28, 1, v2\nv_mov_b32 v29, v28\nv_mov_b32 v30, v28\nv_mov_b32 v31, v28\ns_mov_b64 exec, 0xffff')
        a.store2('buffer_store_dwordx4 v[28:31], v12, s[8:11], s{s} offen', 62, 42)
        a('s_mov_b64 exec, -1')
    a(f'v_mov_b32 v21, {WMODE + (4 if a.o.get("p16") else 0)}')
    if not eg:
        a(f's_waitcnt vmcnt({(0 if dl or a.o.get("dfirst") else 8) + (3 if a.o.get("mv") or a.o.get("pt_m") else 0) + (2 if a.o.get("pw_d") else 0)})')
        a.stamp(4)
        a.perm_x1(32, 80); a.perm_x1(40, 88); a.perm_x1(48, 96); a.perm_x1(56, 104)
    if not dl:
        a(f's_waitcnt vmcnt({(3 if a.o.get("mv") or a.o.get("pt_m") else 0) + (2 if a.o.get("pw_d") else 0)})')
        a.perm_x2(64, 32)
    if dl == 3:
        a('s_barrier')
        for i in range(8): a(f'buffer_load_dwordx2 v[{32+2*i}:{33+2*i}], v6, s[36:39], s{64 if i<4 else 65} offen offset:{1024*(i&3)} MPOL')
        a('s_waitcnt vmcnt(0)')
    a('v_lshlrev_b32 v8, 16, v8')
    a.stamp(5)
    a.poll(MV, range(112, 115), 30, first_issued=bool(a.o.get('mv')), sleep=a.o.get('msleep'))
    a('ds_read_b32 v21, v21\nv_add_f32 v114, 1.0, v114'); a.rbf(114, 114)
    a('s_waitcnt lgkmcnt(0)\nv_readfirstlane_b32 s76, v21\ns_mov_b32 s63, 0x42800000\ns_nop 2')
    a(f's_add_u32 s54, s54, s76\ns_add_u32 s40, s54, {8*BLK}')
    if a.o.get('axgate'):
        a(f's_lshl_b32 s41, s4, 8\ns_add_u32 s41, s41, {AL}')
        a.poll(['buffer_load_dword v48, v17, s[8:11], s41 offen sc1', 'buffer_load_dword v49, v17, s[8:11], s41 offen sc1'], [48, 49], 30)
        if a.o['axgate'] > 1: a(f's_sleep {a.o["axgate"]}')
    a.stamp(6)
    if a.o.get('axl'):
        a('s_lshl_b32 s41, s4, 8\ns_add_u32 s43, s41, s40\ns_add_u32 s41, s41, s54')
        a.poll(['buffer_load_dword v48, v17, s[8:11], s41 offen sc1', 'buffer_load_dword v49, v17, s[8:11], s43 offen sc1'], [48, 49], 30, sleep=a.o.get('asleep'))
    R = list(range(48, 56)) + (list(range(60, 68)) if a.o.get('hc') else [])
    LDS_ = [f'buffer_load_dword v{r}, v17, s[8:11], s{40 if i & 1 else 54} offen offset:{256*(i>>1)} sc1' for i, r in enumerate(R)]
    if a.o.get('sel'):
        n = a.o['sel']; ng = len(R) // n
        a(f's_mov_b32 s42, {(1 << ng) - 1}\ns_mov_b32 s47, 0\nL_ax:')
        for g in range(ng):
            a(f's_bitcmp1_b32 s42, {g}\ns_cbranch_scc0 L_ax_i{g}\n' + '\n'.join(LDS_[n*g:n*g+n]) + f'\nL_ax_i{g}:')
        a(f's_add_u32 s47, s47, 1\ns_cmp_gt_u32 s47, {LIMIT}\ns_cselect_b32 s43, 0, -1')
        for g in range(ng):
            rs = R[n*g:n*g+n]
            a(f's_bitcmp1_b32 s42, {g}\ns_cbranch_scc0 L_ax_c{g}' + ('\ns_waitcnt vmcnt(0)'))
            for r in rs: a(f'v_xor_b32 v{r}, v2, v{r}')
            if n == 2: a(f'v_or_b32 v30, v{rs[0]}, v{rs[1]}')
            else: a(f'v_or3_b32 v30, v{rs[0]}, v{rs[1]}, v{rs[2]}\nv_or_b32 v30, v30, v{rs[3]}')
            a(f'v_and_b32 v30, {TMASK}, v30\nv_cmp_ne_u32 vcc, 0, v30\ns_cbranch_vccnz L_ax_c{g}\ns_bitset0_b32 s42, {g}\nL_ax_c{g}:')
        a('s_and_b32 s42, s42, s43\ns_cbranch_scc1 L_ax')
    elif a.o.get('ps'): a.poll_sum(LDS_, R, 30, 68)
    else: a.poll(LDS_, R, 30, sleep=(None if a.o.get('axl') else a.o.get('asleep')))
    a.stamp(7)
    def dn_loads():
        for i in range(8): a(f'buffer_load_dwordx2 v[{32+2*i}:{33+2*i}], v6, s[36:39], s{64 if i<4 else 65} offen offset:{1024*(i&3)} MPOL')
    if dl == 1: dn_loads()
    if a.o.get('ps'): a('v_add_f32 v48, v68, v69')
    elif a.o.get('pk'):
        for x, y in ((48, 60), (50, 62), (52, 64), (54, 66), (48, 52), (50, 54), (48, 50)): a(f'v_pk_add_f32 v[{x}:{x+1}], v[{x}:{x+1}], v[{y}:{y+1}]')
        a('v_add_f32 v48, v48, v49')
    else: a.tree_add(R)
    a.rbf(48, 48)
    a('v_mul_f32 v48, v112, v48'); a.rbf(48, 48)
    a('v_add_f32 v48, v8, v48'); a.rbf(48, 48)
    a('ds_write_b32 v13, v48\nv_readfirstlane_b32 s40, v48\ns_nop 1')
    a('v_subrev_f32 v49, s40, v48\nv_mul_f32 v50, v49, v49\ns_nop 0')
    for m in ('row_shr:1', 'row_shr:2', 'row_shr:4', 'row_shr:8'):
        a(f'v_add_f32_dpp v49, v49, v49 {m} {DPP} bound_ctrl:0\nv_add_f32_dpp v50, v50, v50 {m} {DPP} bound_ctrl:0\ns_nop 0')
    for m, rm in (('row_bcast:15', '0xa'), ('row_bcast:31', '0xc')):
        a(f'v_add_f32_dpp v49, v49, v49 {m} row_mask:{rm} bank_mask:0xf\nv_add_f32_dpp v50, v50, v50 {m} row_mask:{rm} bank_mask:0xf' + ('\ns_nop 0' if rm == '0xa' else ''))
    a('v_mul_f32 v51, 0x3c800000, v49\ns_mov_b32 exec_lo, 0\nv_fma_f32 v53, -v51, v49, v50\nv_add_f32 v52, s40, v51\ns_mov_b32 exec_hi, 0x80000000')
    a('ds_write_b64 v14, v[52:53]\ns_mov_b64 exec, -1\ns_waitcnt lgkmcnt(0)\ns_barrier')
    a('ds_read_b64 v[60:61], v15')
    if dl == 2: dn_loads()
    a('s_waitcnt lgkmcnt(0)')
    a(f'v_add_f32_dpp v49, v60, v60 row_ror:4 {DPP}')
    for k in (2, 1): a(f's_nop 1\nv_add_f32_dpp v49, v49, v49 row_ror:{k} {DPP}')
    a('v_mul_f32 v49, 0x3e000000, v49\nv_sub_f32 v60, v60, v49\nv_mul_f32 v60, v60, v60\nv_fma_f32 v61, v60, s63, v61')
    a.rbf(49, 49)
    a('v_sub_f32 v48, v48, v49')
    a(f'v_add_f32_dpp v61, v61, v61 row_ror:4 {DPP}'); a.rbf(48, 48); a('s_nop 0')
    a(f'v_add_f32_dpp v61, v61, v61 row_ror:2 {DPP}\ns_nop 1\nv_add_f32_dpp v61, v61, v61 row_ror:1 {DPP}')
    a('v_mul_f32 v61, 0x3b000000, v61'); a.rbf(61, 61)
    a(f'v_add_f32 v61, {EPS:#x}, v61'); a.rbf(61, 61)
    a('v_sqrt_f32 v61, v61\ns_nop 0'); a.rbf(61, 61)
    a.div(61, 48, 61, 62, 63); a.rbf(48, 61)
    a('v_mul_f32 v48, v48, v114'); a.rbf(48, 48)
    a('v_add_f32 v48, v48, v113'); a.rbf(48, 48)
    a('ds_write_b16_d16_hi v16, v48\nds_read_b128 v[20:23], v18\nds_read_b128 v[24:27], v18 offset:64')
    for t in range(2):
        a(f's_waitcnt lgkmcnt({1-t})')
        for m in range(4):
            b = 80 + 16*(m >> 1) + 8*t + 4*(m & 1)
            c = '0' if t == 0 else f'v[{48+4*m}:{51+4*m}]'
            a(f'v_mfma_f32_16x16x32_bf16 v[{48+4*m}:{51+4*m}], v[{20+4*t}:{23+4*t}], v[{b}:{b+3}], {c}')
    a('s_mov_b64 exec, 0xffff\ns_nop 4\nds_write2_b32 v19, v48, v52 offset1:1\ns_nop 0\nds_write2_b32 v19, v56, v60 offset0:32 offset1:33\ns_mov_b64 exec, -1\ns_waitcnt lgkmcnt(0)\ns_barrier')
    a.stamp(8)
    for i in range(4): a(f'ds_read2st64_b32 v[{48+2*i}:{49+2*i}], v17 offset0:{(WGU+512*i)//256} offset1:{(WGU+512*i+256)//256}')
    if dl:
        a('s_waitcnt vmcnt(0)')
        a.perm_x2(32, 64)
    a('s_waitcnt lgkmcnt(0)')
    a.tree8(48)
    a.rbf(48, 48)
    a('v_mov_b32 v49, v48\ns_nop 1\nv_permlane32_swap_b32 v48, v49')
    a('v_mul_f32 v48, s57, v48\nv_max_f32 v48, 0xc2fc0000, v48\nv_exp_f32 v48, -v48\ns_nop 0\nv_add_f32 v48, 1.0, v48\nv_rcp_f32 v50, v48\ns_nop 0\nv_fma_f32 v48, -v48, v50, 1.0\nv_fma_f32 v48, v48, v50, v50')
    a.rbf(48, 48)
    a('v_mul_f32 v48, v48, v49'); a.rbf(48, 48)
    a('ds_write_b16_d16_hi v10, v48\nds_read_b128 v[20:23], v11\ns_waitcnt lgkmcnt(0)')
    for jj in range(4): a(f'v_mfma_f32_16x16x32_bf16 v[{48+4*jj}:{51+4*jj}], v[20:23], v[{(64 if dl else 32)+4*jj}:{(67 if dl else 35)+4*jj}], 0')
    a('s_mov_b64 exec, 0xffff\ns_nop 3')
    for jj in range(4): a(f'v_and_or_b32 v{28+jj}, v{48+4*jj}, s46, v2')
    a.store2('buffer_store_dwordx4 v[28:31], v12, s[8:11], s{s} offen', 62, 42)
    a.stamp(9)
    if a.o.get('dpgate'): a(f's_waitcnt vmcnt({a.o["dpgate"]-1})\ns_barrier')
    a.exit()
    a('L_R:')
    if a.o.get('rq'):
        a(f'v_lshlrev_b32 v18, 3, v1\ns_lshl_b32 s54, s4, 3\ns_add_u32 s54, s54, s3\ns_lshl_b32 s55, s54, 8\ns_add_u32 s55, s55, {QV}\ns_lshl_b32 s54, s54, 12\ns_add_u32 s54, s54, {QP}\nv_mov_b32 v21, {WMODE}')
        a('s_barrier\nds_read_b32 v21, v21 offset:4\ns_waitcnt lgkmcnt(0)\nv_readfirstlane_b32 s7, v21')
        a.poll8([f'buffer_load_dwordx2 v[{32+2*i}:{33+2*i}], v18, s[8:11], s54 offen offset:{512*i} sc1' for i in range(8)], range(33, 48, 2), 30)
        a.stamp(11)
        a.tree_add(range(32, 48, 2))
        a.rbf(32, 32)
        a('v_or_b32 v32, v2, v32')
        a.store_mode('buffer_store_dword v32, v17, s[8:11], s55 offen')
        a.stamp(12)
        a.exit()
        return
    a('s_and_b32 s42, s4, 1\ns_cselect_b32 s40, 7, 1\ns_cselect_b32 s41, 0, 256\ns_sub_u32 s40, s59, s40\ns_lshl_b32 s40, s40, 6\ns_and_b32 s40, s40, 0xffffff80')
    a('s_and_b32 s42, s3, 3\ns_lshl_b32 s42, s42, 6\ns_add_u32 s41, s41, s42\ns_mul_i32 s41, s41, 3584\ns_add_u32 s40, s40, s41')
    a('v_mul_u32_u24 v5, 3584, v1')
    if a.o.get('p16'): a('s_waitcnt vmcnt(0)')
    if a.o.get('dfirst') not in (None, 'none'): a('s_barrier')
    if not a.o.get('early_gu'): a('s_barrier')
    if a.o.get('rpf') == 3: a('buffer_load_dword v22, v13, s[12:15], s62 offen FPOL')
    a('s_cmp_ge_u32 s3, 4\ns_cbranch_scc1 L_R_up\nbuffer_load_dword v8, v5, s[28:31], s40 offen MPOL\ns_branch L_R_done\nL_R_up:\nbuffer_load_dword v8, v5, s[32:35], s40 offen MPOL\nL_R_done:\ns_waitcnt vmcnt(0)')
    a.exit()

def M_comm(a):
    a.role = 'Mc'
    a('L_M_comm:')
    a.karg(64, 'out'); a.srd(64, 1024)
    if a.o.get('p16') or a.o.get('mh'):
        a('s_waitcnt lgkmcnt(0)')
        a.trigger(a.o.get('trig2'))
    else:
        a(f's_and_b32 s58, s5, 7\nv_mov_b32 v14, {WMODE}\nv_mov_b32 v15, 0\nds_write_b32 v14, v15\ns_waitcnt lgkmcnt(0)')
        a.stamp(0)
        a.mark('karg')
        a.get_tag(); a.fin_tag()
        a.mark('tag')
        a.xid_publish()
        if a.o.get('pt_q') == 3: a(f'v_lshlrev_b32 v22, 6, v1\ns_lshl_b32 s42, s4, 3\ns_add_u32 s42, s42, s58\ns_lshl_b32 s42, s42, 12\ns_add_u32 s42, s42, {QP}\nbuffer_load_dword v108, v22, s[8:11], s42 offen sc1')
        if a.o.get('sq'): a(f'v_lshlrev_b32 v22, 6, v1\ns_lshl_b32 s42, s4, 12\ns_add_u32 s42, s42, {QF}\nbuffer_load_dword v113, v22, s[8:11], s42 offen sc1')
        if a.o.get('pt_a'):
            a(f's_lshl_b32 s42, s4, 3\ns_add_u32 s42, s42, s58\ns_and_b32 s43, s42, 15\ns_lshl_b32 s43, s43, 17\ns_bfe_u32 s40, s42, 0x10004\ns_lshl_b32 s40, s40, 13\ns_add_u32 s43, s43, s40\ns_lshr_b32 s40, s42, 5\ns_lshl_b32 s40, s40, 10\ns_add_u32 s43, s43, s40\ns_add_u32 s43, s43, {AX}')
            a(f'v_and_b32 v22, 7, v1\nv_lshlrev_b32 v22, 7, v22\nbuffer_load_dword v110, v22, s[8:11], s43 offen {a.o["pt_a"]}'.replace(' plain', ''))
        if a.o.get('pt_p'):
            a(f's_lshl_b32 s42, s4, 3\ns_add_u32 s42, s42, s58\ns_and_b32 s43, s42, 15\ns_lshl_b32 s43, s43, 17\ns_lshr_b32 s40, s42, 4\ns_lshl_b32 s40, s40, 13\ns_add_u32 s43, s43, s40\ns_add_u32 s43, s43, {MODP}')
            a(f'v_lshlrev_b32 v22, 7, v1\nbuffer_load_dword v111, v22, s[8:11], s43 offen {a.o["pt_p"]}'.replace(' plain', ''))
        if a.o.get('pt_dd'):
            a(f's_lshl_b32 s42, s4, 3\ns_add_u32 s42, s42, s58\ns_and_b32 s43, s42, 15\ns_lshl_b32 s43, s43, 17\ns_lshr_b32 s40, s42, 4\ns_lshl_b32 s40, s40, 12\ns_add_u32 s43, s43, s40\ns_add_u32 s43, s43, {DP}')
            a(f'v_and_b32 v22, 31, v1\nv_lshlrev_b32 v22, 7, v22\nbuffer_load_dword v112, v22, s[8:11], s43 offen')
        if a.o.get('vd'):
            a('s_cmp_lg_u32 s58, 7\ns_cbranch_scc1 L_M_c0')
            a(a.xid_load(44))
            a.poll([a.xid_load(40, True)], range(40, 44), 30, sleep=2)
            for i in range(4): a(f'v_xor_b32 v{40+i}, v2, v{40+i}')
            a.xid_mode(40, True)
            a('s_lshl_b32 s42, s7, 10\ns_or_b32 s42, s42, s6\nv_mov_b32 v40, s42\nv_mov_b32 v41, s42\nv_mov_b32 v42, s42\nv_mov_b32 v43, s42\ns_mov_b64 exec, 1')
            a.store_mode('buffer_store_dwordx4 v[40:43], off, s[8:11], s49')
            a('s_mov_b64 exec, -1\nL_M_c0:')
        if a.o.get('vpf') == 2:
            a.trigger(a.o.get('vtrig', 'own')); a('s_barrier')
        if a.o.get('dfirst') not in (None, 'none'):
            a.trigger(a.o['dfirst']); a('s_barrier')
        a.trigger(a.o.get('trig'))
    a.mark('trig')
    if a.o.get('rq'):
        a('s_cmp_lg_u32 s58, 7\ns_cbranch_scc1 L_M_c1')
        a.poll([a.xid_load(40)], range(40, 44), 30, sleep=4)
        for i in range(4): a(f'v_xor_b32 v{40+i}, v2, v{40+i}')
        a.xid_mode(40)
        a('v_mov_b32 v15, s7\nds_write_b32 v14, v15 offset:4\ns_waitcnt lgkmcnt(0)\nL_M_c1:')
    a('s_barrier')
    a.stamp(1)
    if a.o.get('cpf2'): a('global_load_dword v23, v21, s[52:53]\nglobal_load_dword v24, v22, s[52:53]')
    if a.o.get('tlb_out'): a('v_mov_b32 v108, 0\ns_mov_b64 exec, 1\nbuffer_load_dword v109, v108, s[64:67], 0 offen\ns_mov_b64 exec, -1')
    a('s_cmp_eq_u32 s58, 7\ns_cbranch_scc1 L_M_cdone')
    a.probe(4)
    a('v_mov_b32 v15, s76\nds_write_b32 v14, v15' + (' offset:4' if a.o.get('p16') else ''))
    a('s_cmp_ge_u32 s58, 2\ns_cbranch_scc1 L_M_cdone')
    a('s_lshl_b32 s59, s4, 1\ns_add_u32 s59, s59, s58\nv_and_b32 v10, 31, v1\nv_lshlrev_b32 v11, 1, v10\nv_lshlrev_b32 v12, 2, v10\nv_lshlrev_b32 v17, 2, v1')
    a(f's_lshl_b32 s40, s59, 6\ns_lshl_b32 s42, s59, 7\nv_add_u32 v13, s42, v12\ns_lshl_b32 s54, s59, 9\ns_add_u32 s54, s54, {DP}\ns_add_u32 s54, s54, s76')
    a(f's_mul_i32 s41, s4, 12288\ns_add_u32 s41, s41, s42\ns_add_u32 s41, s41, {MODV + 5*2048}')
    for i in range(1, 16): a(f'v_add_u32 v{64+i}, {i*BLK}, v17')
    a('v_mov_b32 v64, v17')
    if a.o.get('pt_out'): a('buffer_load_ushort v110, v11, s[64:67], s40 offen sc1')
    if a.o.get('pt_d'):
        for i in range(28): a(f'buffer_load_dword v{32+i}, v{64+(i&15)}, s[8:11], s54 offen offset:{256*(i>>4)} {a.o["pt_d"]}')
    if a.o.get('dl') == 3: a('s_barrier')
    a('s_barrier')
    a.mark('mb1')
    a(f'ds_read_b32 v28, v13 offset:{WX1}')
    a.poll(['buffer_load_dword v29, v12, s[8:11], s41 offen sc1', 'buffer_load_dword v31, v12, s[8:11], s41 offen sc1'], [29, 31], 30)
    a('s_waitcnt lgkmcnt(0)\ns_barrier')
    a.stamp(2)
    if a.o.get('dpdelay'): a(f's_sleep {a.o["dpdelay"]}')
    if a.o.get('dpgate'): a('s_barrier')
    DPL = [f'buffer_load_dword v{32+i}, v{64+(i&15)}, s[8:11], s54 offen offset:{256*(i>>4)} sc1' for i in range(28)]
    if a.o.get('ps'): a.poll_sum(DPL, list(range(32, 60)), 30, 60)
    else: a.poll(DPL, range(32, 60), 30)
    a.stamp(3)
    if a.o.get('ps'): a('v_add_f32 v32, v60, v61')
    elif a.o.get('pk'):
        regs = list(range(32, 60, 2))
        while len(regs) > 1:
            nxt = []
            for i in range(0, len(regs) - 1, 2):
                a(f'v_pk_add_f32 v[{regs[i]}:{regs[i]+1}], v[{regs[i]}:{regs[i]+1}], v[{regs[i+1]}:{regs[i+1]+1}]'); nxt.append(regs[i])
            if len(regs) % 2: nxt.append(regs[-1])
            regs = nxt
        a('v_add_f32 v32, v32, v33')
    else: a.tree_add(range(32, 60))
    a.swap_op(32, 'v_add_f32', 32, 33)
    a.rbf(32, 32)
    a('v_mul_f32 v32, v29, v32'); a.rbf(32, 32)
    a('v_add_f32 v32, v28, v32'); a.rbf(32, 32)
    a.mark('end'); a.hold()
    a('s_mov_b32 exec_hi, 0\nbuffer_store_short_d16_hi v32, v11, s[64:67], s40 offen' + (' sc1' if a.o.get('out_wt') else ''))
    a(f's_cmp_lg_u32 s59, 0\ns_cbranch_scc1 L_M_noep\ns_mov_b64 exec, 1\nv_mov_b32 v33, s45\nv_mov_b32 v34, {EPOCH}\nbuffer_store_dword v33, v34, s[8:11], 0 offen sc1\nL_M_noep:')
    a.stamp(4)
    if a.o.get('amp'):
        a('s_waitcnt vmcnt(0)\ns_memrealtime s[98:99]\ns_waitcnt lgkmcnt(0)\ns_sub_u32 s97, s98, s96\ns_mul_i32 s97, s97, 11')
        a('L_amp:\ns_memrealtime s[98:99]\ns_waitcnt lgkmcnt(0)\ns_sub_u32 s98, s98, s96\ns_cmp_lt_u32 s98, s97\ns_cbranch_scc1 L_amp')
    a('L_M_cdone:')
    a.exit()

DOC = '; ---------------------------------------------------------------------------------------------------------------\n; One persistent launch: 256 workgroups (one per CU) x 9 waves (8 work waves + 1 communication wave).\n; group g = wg & 7 owns kv head g; idx = wg >> 3 picks the role:\n;   idx 24..30  M: LN2, 32 columns of gate/up, sigmoid(g)*u, 32 rows of w_down; slots 0,1 also reduce the output\n; Hand-offs go through d_ws; every word (or 8-byte granule) carries the launch tag = (word at d_ws[0] on entry) + 1,\n; which the last reducer writes back.  Readers poll with sc1 loads until all tags match.  Hand-offs inside a group use\n; plain stores only when all 32 workgroups of the group reported the same XCC id, else write-through (sc1) stores.\n; Cross-group hand-offs are written twice (address bit 13 clear/set); a reader picks the copy that answers faster.\n; All intermediate values are rounded to bf16 where the reference rounds them.\n; ---------------------------------------------------------------------------------------------------------------\n'
HEADER = open('adaLN_cond__sliding_block_cached__glu_gated_glu__decode.s.ref').read().split('; Override launch')[0]
def emit(fn, prof=False, opts=None):
    a = gen_all(prof, opts)
    body = a.text()
    for p in ('MPOL', 'FPOL', 'OPOL', 'KPOL', 'VPOL', 'WPOL', 'RPOL', 'UPOL'): body = body.replace(' ' + p, (' ' + a.o.get(p, 'nt')).rstrip())
    errs = lint(body)
    if errs: print('\n'.join(errs)); raise SystemExit('lint errors')
    vg = 128
    txt = f'''{HEADER}; @launch grid=(256,1,1) block=(576,1,1) lds={LDS_TOTAL}
{DOC}.amdgcn_target "amdgcn-amd-amdhsa--gfx950"
.text
.globl {NAME}
.p2align 8
.type {NAME},@function
{NAME}:
{body}.section .rodata,"a"
.p2align 6
.amdhsa_kernel {NAME}
  .amdhsa_next_free_vgpr {vg}
  .amdhsa_next_free_sgpr 100
  .amdhsa_accum_offset {vg}
  .amdhsa_group_segment_fixed_size 0
  .amdhsa_kernarg_size 112
  .amdhsa_user_sgpr_count 2
  .amdhsa_user_sgpr_kernarg_segment_ptr 1
  .amdhsa_system_sgpr_workgroup_id_x 1
.end_amdhsa_kernel
'''
    open(fn, 'w').write(txt)
BEST = dict(qa=1, ve=1, ps=1, pk=1, psame=1, pt_m=1, pt_o=1, pw_d=1, pt_q=3, RPOL='', FPOL='', MPOL='', OPOL='', kvt0=1, apf2=1, a_pfw=1, trig='h1', q1=1, split=1, kv_bar=1, dpgate=1, cwo=0, fp2=1, fgate=1, hc=1)
if __name__ == '__main__':
    emit('best.s', opts=BEST); emit('bestp.s', prof=True, opts=BEST); emit('best_amp.s', opts=dict(BEST, amp=1)); emit('best_slow.s', opts=dict(BEST, force_slow=1))
```

```python
import sys
from asmlib import Asm, KOFF, NAME
from lint import lint

BLK = 131072
EPOCH = 0; XID = 0x400; AX = 0x1000; DP = 0x4000; MODP = 0x8000; PROBE = 0x10000; COPY = 8192
QV = 0x200000; MODV = 0x204000; OS = 0x21C000; QF = 0x220000; AL = 0x230000; HV = 0x238000; VD = 0x23C000; QP = 0x240000; OP = 0x2C0000; AP = 0x300000; STAMP = 0x400000
TMASK = 0x3FF; LIMIT = 1000000
LK = 0; LV = 65536; LQ = 131072; LMX = LQ + 1152; LLS = LMX + 128; LP = LLS + 2048; LOF = LP + 2048; LZ = LOF + 64; LMODE_A = LZ + 64; LRED = (LMODE_A + 64 + 255) // 256 * 256; LDS_TOTAL = LRED + 2048
WCS = 0; WH = 1024; WMODE = 1152; WZ = 1280; WX1 = 2048; WST = 4096; WH2 = 4224; WGU = 5376; WHH = 7424; WQL = 8192
SCALE = 0x3DB504F3; LOG2E = 0x3FB8AA3B; EPS = 0x3727C5AC
DPP = 'row_mask:0xf bank_mask:0xf'

class G(Asm):
    def __init__(self, prof=False, opts=None):
        super().__init__(); self.prof = prof; self.o = opts or {}
    role = ''
    def stamp(self, slot):
        if self.o.get('hs') == (self.role, slot): self('s_memrealtime s[94:95]\ns_waitcnt lgkmcnt(0)')
        if self.prof: self(f's_memrealtime s[60:61]\ns_waitcnt lgkmcnt(0)\nv_writelane_b32 v127, s60, {slot}')
    def exit(self):
        if self.o.get('hs') and self.o['hs'][0] == self.role:
            l = self.label('H')
            self('s_waitcnt lgkmcnt(0)\ns_sub_u32 s97, s94, s96\ns_mul_i32 s97, s97, 10\ns_add_u32 s97, s97, 1500')
            self(f'{l}:\ns_memrealtime s[98:99]\ns_waitcnt lgkmcnt(0)\ns_sub_u32 s98, s98, s96\ns_cmp_lt_u32 s98, s97\ns_cbranch_scc1 {l}')
        if self.prof:
            self('v_writelane_b32 v127, s96, 13')
            self(f's_mov_b64 exec, 0xffff\ns_lshl_b32 s60, s5, 3\ns_add_u32 s60, s60, s4\ns_mul_i32 s60, s60, 9\ns_add_u32 s60, s60, s3\ns_lshl_b32 s60, s60, 6\ns_add_u32 s60, s60, {STAMP}')
            self('v_lshlrev_b32 v126, 2, v1\nbuffer_store_dword v127, v126, s[8:11], s60 offen')
        self('s_endpgm')
    def srd(self, s, nbytes): self(f's_mov_b32 s{s+2}, {nbytes:#x}\ns_mov_b32 s{s+3}, 0x20000')
    def karg(self, s, k): self(f's_load_dwordx2 s[{s}:{s+1}], s[0:1], {KOFF[k]}')
    def rbf(self, d, s): self(f'v_cvt_pk_bf16_f32 v{d}, 0, v{s}')
    def get_tag(self):
        self(f's_load_dword s45, s[8:9], {EPOCH}\ns_mov_b32 s46, {0xFFFFFFFF ^ TMASK:#x}\ns_mov_b32 s50, 0x05040100\ns_mov_b32 s51, 0x07060302')
    def fin_tag(self):
        self(f's_waitcnt lgkmcnt(0)\ns_add_u32 s45, s45, 1\ns_and_b32 s6, s45, {TMASK}\nv_mov_b32 v2, s6')
    def _loop(self, loads, check, sleep, first_issued=False):
        l = self.label('P')
        self('s_mov_b32 s47, 0')
        if first_issued: self(f's_branch {l}_w')
        self(f'{l}:')
        for x in loads: self(x)
        if first_issued: self(f'{l}_w:')
        self(f's_add_u32 s47, s47, 1\ns_cmp_gt_u32 s47, {LIMIT}\ns_cbranch_scc1 {l}_t')
        self('s_waitcnt vmcnt(0)')
        check()
        if sleep: self(f's_cbranch_vccz {l}_x\ns_sleep {sleep}\ns_branch {l}')
        else: self(f's_cbranch_vccnz {l}')
        self.tails.append(f'{l}_t:\ns_waitcnt vmcnt(0)\ns_branch {l}_x')
        self(f'{l}_x:')
    tails = None
    def poll(self, loads, regs, acc, sleep=None, first_issued=False):
        def check():
            for r in regs: self(f'v_xor_b32 v{r}, v2, v{r}')
            rs = list(regs)
            self(f'v_or_b32 v{acc}, v{rs[0]}, v{rs[1]}'); rs = rs[2:]
            while len(rs) >= 2: self(f'v_or3_b32 v{acc}, v{acc}, v{rs[0]}, v{rs[1]}'); rs = rs[2:]
            if rs: self(f'v_or_b32 v{acc}, v{acc}, v{rs[0]}')
            self(f'v_and_b32 v{acc}, {TMASK}, v{acc}\nv_cmp_ne_u32 vcc, 0, v{acc}')
        self._loop(loads, check, sleep, first_issued)
    def poll_sum(self, loads, regs, acc, out):
        l = self.label('P'); n = len(regs)
        self(f's_mov_b32 s47, 0\n{l}:')
        for x in loads: self(x)
        self(f's_add_u32 s47, s47, 1\ns_cmp_gt_u32 s47, {LIMIT}\ns_cbranch_scc1 {l}_t')
        for k in range(0, n, 4):
            r = regs[k:k+4]
            self(f's_waitcnt vmcnt({n - k - 4})')
            for x in r: self(f'v_xor_b32 v{x}, v2, v{x}')
            if k == 0: self(f'v_or_b32 v{acc}, v{r[0]}, v{r[1]}\nv_pk_add_f32 v[{out}:{out+1}], v[{r[0]}:{r[1]}], v[{r[2]}:{r[3]}]\nv_or3_b32 v{acc}, v{acc}, v{r[2]}, v{r[3]}')
            else:
                self(f'v_or3_b32 v{acc}, v{acc}, v{r[0]}, v{r[1]}\nv_or3_b32 v{acc}, v{acc}, v{r[2]}, v{r[3]}')
                if k == n - 4: self(f'v_and_b32 v{acc}, {TMASK}, v{acc}\nv_cmp_ne_u32 vcc, 0, v{acc}')
                self(f'v_pk_add_f32 v[{r[0]}:{r[1]}], v[{r[0]}:{r[1]}], v[{r[2]}:{r[3]}]\nv_pk_add_f32 v[{out}:{out+1}], v[{out}:{out+1}], v[{r[0]}:{r[1]}]')
        self(f's_cbranch_vccnz {l}')
        self.tails.append(f'{l}_t:\ns_waitcnt vmcnt(0)\ns_branch {l}_x')
        self(f'{l}_x:')
    def poll8_sum(self, loads, base, n, acc, groups):
        l = self.label('P')
        self(f's_mov_b32 s47, 0\n{l}:')
        for x in loads: self(x)
        self(f's_add_u32 s47, s47, 1\ns_cmp_gt_u32 s47, {LIMIT}\ns_cbranch_scc1 {l}_t')
        first = {i: f for f, c in groups for i in range(f, f + c)}
        for k in range(0, n, 2):
            self(f's_waitcnt vmcnt({n - k - 2})')
            if k == 0: self(f'v_xor_b32 v{acc}, s45, v{base+1}')
            else: self(f'v_bitop3_b32 v{acc}, v{acc}, v{base+2*k+1}, s45 bitop3:0xf6')
            self(f'v_bitop3_b32 v{acc}, v{acc}, v{base+2*k+3}, s45 bitop3:0xf6')
            if k == n - 2: self(f'v_cmp_ne_u32 vcc, 0, v{acc}')
            self(f'v_add_f32 v{base+2*k}, v{base+2*k}, v{base+2*k+2}')
            if first[k] != k: self(f'v_add_f32 v{base+2*first[k]}, v{base+2*first[k]}, v{base+2*k}')
        self(f's_cbranch_vccnz {l}')
        self.tails.append(f'{l}_t:\ns_waitcnt vmcnt(0)\ns_branch {l}_x')
        self(f'{l}_x:')
    def poll8(self, loads, tags, acc, sleep=None):
        def check():
            rs = list(tags)
            self(f'v_xor_b32 v{acc}, s45, v{rs[0]}')
            for r in rs[1:]: self(f'v_bitop3_b32 v{acc}, v{acc}, v{r}, s45 bitop3:0xf6')
            self(f'v_cmp_ne_u32 vcc, 0, v{acc}')
        self._loop(loads, check, sleep)
    def store_mode(self, ins):
        l = self.label('S')
        self(f's_cmp_eq_u32 s7, 1\ns_cbranch_scc0 {l}_s\n{ins}\n{l}_e:')
        self.tails.append(f'{l}_s:\n{ins} sc1\ns_branch {l}_e')
    def store2(self, ins, sreg, tmp):
        self(ins.format(s=sreg) + ' sc1')
        if not self.o.get('onecopy'): self(f's_add_u32 s{tmp}, s{sreg}, {COPY}\n' + ins.format(s=tmp) + ' sc1')
    def tree_add(self, regs):
        regs = list(regs)
        while len(regs) > 1:
            nxt = []
            for i in range(0, len(regs) - 1, 2):
                self(f'v_add_f32 v{regs[i]}, v{regs[i]}, v{regs[i+1]}'); nxt.append(regs[i])
            if len(regs) % 2: nxt.append(regs[-1])
            regs = nxt
    def tree8(self, b):
        if self.o.get('pk'):
            self(f'v_pk_add_f32 v[{b}:{b+1}], v[{b}:{b+1}], v[{b+2}:{b+3}]\nv_pk_add_f32 v[{b+4}:{b+5}], v[{b+4}:{b+5}], v[{b+6}:{b+7}]\nv_pk_add_f32 v[{b}:{b+1}], v[{b}:{b+1}], v[{b+4}:{b+5}]\nv_add_f32 v{b}, v{b}, v{b+1}')
        else: self.tree_add(range(b, b + 8))
    def swap_op(self, which, op, v, t):
        self(f'v_mov_b32 v{t}, v{v}\ns_nop 1\nv_permlane{which}_swap_b32 v{v}, v{t}\n{op} v{v}, v{v}, v{t}')
    def row_reduce(self, op, regs):
        for k in (8, 4, 2, 1):
            if len(regs) < 3: self(f's_nop {2 - len(regs) + (0 if k != 8 else 1)}')
            elif k == 8: self('s_nop 1')
            for r in regs: self(f'{op}_dpp v{r}, v{r}, v{r} row_ror:{k} {DPP}')
    def wave_reduce(self, op, regs, t):
        self.row_reduce(op, regs)
        for w in (16, 32):
            for i, r in enumerate(regs): self(f'v_mov_b32 v{t+i}, v{r}')
            self('s_nop 1')
            for i, r in enumerate(regs): self(f'v_permlane{w}_swap_b32 v{r}, v{t+i}')
            for i, r in enumerate(regs): self(f'{op} v{r}, v{r}, v{t+i}')
    def div(self, q, n, d, r, t):
        self(f'v_rcp_f32 v{r}, v{d}\ns_nop 0\nv_mul_f32 v{t}, v{n}, v{r}\nv_fma_f32 v{q}, -v{t}, v{d}, v{n}\nv_fma_f32 v{q}, v{q}, v{r}, v{t}')
    def xid_publish(self):
        self('s_getreg_b32 s44, hwreg(HW_REG_XCC_ID)\ns_and_b32 s44, s44, 0xffff\ns_lshl_b32 s44, s44, 16\ns_or_b32 s44, s44, s6')
        self('v_mov_b32 v4, s44\nv_mov_b32 v5, s44\nv_mov_b32 v6, s44\nv_mov_b32 v7, s44\nv_mov_b32 v8, 0')
        self(f's_lshl_b32 s48, s4, 8\ns_add_u32 s48, s48, {XID}\ns_and_b32 s49, s5, 15\ns_lshl_b32 s49, s49, 17\ns_add_u32 s49, s49, s48\ns_lshr_b32 s42, s5, 4\ns_lshl_b32 s42, s42, 7\ns_add_u32 s49, s49, s42')
        self('s_mov_b64 exec, 1\nbuffer_store_dwordx4 v[4:7], v8, s[8:11], s49 offen sc1\ns_mov_b64 exec, -1')
        self('v_and_b32 v3, 15, v1\nv_lshlrev_b32 v3, 17, v3\nv_bfe_u32 v8, v1, 4, 1\nv_lshl_add_u32 v3, v8, 7, v3')
        if self.o.get('vd'): self(f's_lshl_b32 s49, s4, 7\ns_add_u32 s49, s49, {VD}')
    def xid_load(self, r, full=False):
        if self.o.get('vd') and not full: return f'buffer_load_dwordx4 v[{r}:{r+3}], off, s[8:11], s49 sc1'
        return f'buffer_load_dwordx4 v[{r}:{r+3}], v3, s[8:11], s48 offen sc1'
    def xid_mode(self, r, full=False):
        if self.o.get('vd') and not full:
            self(f's_or_b32 s44, s6, 0x400')
        for i in range(4): self(f'v_xor_b32 v{r+i}, s44, v{r+i}')
        self(f'v_or3_b32 v{r}, v{r}, v{r+1}, v{r+2}\nv_or_b32 v{r}, v{r}, v{r+3}\nv_cmp_ne_u32 vcc, 0, v{r}\ns_nop 1\ns_cmp_eq_u64 vcc, 0\ns_cselect_b32 s7, 1, 0')
        if self.o.get('force_slow'): self('s_mov_b32 s7, 0')
    def probe(self, rounds):
        if self.o.get('onecopy') or self.o.get('noprobe'):
            self(f's_mov_b32 s76, {COPY if self.o.get("noprobe") == 2 else 0}'); return
        self(f's_and_b32 s42, s5, 15\ns_lshl_b32 s42, s42, 17\ns_lshl_b32 s43, s4, 10\ns_add_u32 s42, s42, s43\ns_add_u32 s42, s42, {PROBE}\ns_add_u32 s78, s8, s42\ns_addc_u32 s79, s9, 0')
        same = self.o.get('psame')
        if same: self(f's_mov_b32 s76, -1\ns_mov_b32 s77, -1\ns_load_dword s42, s[78:79], 0 glc\ns_load_dword s43, s[78:79], {COPY} glc\ns_waitcnt lgkmcnt(0)')
        else: self('s_mov_b32 s76, -1\ns_mov_b32 s77, -1\ns_load_dword s42, s[78:79], 896 glc\ns_waitcnt lgkmcnt(0)')
        for k in range(rounds):
            for side in range(2):
                self(f's_memtime s[72:73]\ns_waitcnt lgkmcnt(0)\ns_load_dword s42, s[78:79], {(0 if same else 128*k) + COPY*side} glc\ns_waitcnt lgkmcnt(0)\ns_memtime s[74:75]\ns_waitcnt lgkmcnt(0)')
                self(f's_sub_u32 s74, s74, s72\ns_min_u32 s{76+side}, s{76+side}, s74')
        if self.prof: self('v_writelane_b32 v127, s76, 14\nv_writelane_b32 v127, s77, 15')
        self(f's_cmp_lt_u32 s77, s76\ns_cselect_b32 s76, {COPY}, 0')
    def prefetch_code(self, r):
        self(f's_getpc_b64 s[52:53]\nL_pc:')
        self(f's_sub_u32 s52, s52, L_pc-{NAME}\ns_subb_u32 s53, s53, 0')
        self(f'v_lshlrev_b32 v{r}, 7, v1')
        for k in range(2):
            self(f'v_add_u32 v{r+1+k}, {k*8192}, v{r}\nv_min_u32 v{r+1+k}, L_code_end-{NAME}-4, v{r+1+k}')
            self(f'global_load_dword v{r+3+k}, v{r+1+k}, s[52:53]')
    def perm_x2(self, src, dst):
        for jj in range(4):
            for d in range(4): self(f'v_perm_b32 v{dst+4*jj+d}, v{src+2*(2*d+1)+(jj>>1)}, v{src+2*(2*d)+(jj>>1)}, s{50+(jj&1)}')
    def perm_x1(self, src, dst):
        for jj in range(2):
            for d in range(4): self(f'v_perm_b32 v{dst+4*jj+d}, v{src+2*d+1}, v{src+2*d}, s{50+jj}')
    def tr_addr(self, base, dst, sh=13):
        self('v_bfe_u32 v18, v1, 1, 1\nv_and_b32 v28, 1, v1\nv_and_b32 v29, 1, v4\nv_lshl_add_u32 v29, v29, 2, v5\nv_lshlrev_b32 v29, 1, v29\nv_xor_b32 v29, v29, v18')
        self('v_lshlrev_b32 v29, 4, v29\nv_lshl_add_u32 v29, v28, 3, v29\nv_lshl_add_u32 v29, v5, 10, v29\n' + f'v_lshl_add_u32 v29, v4, {sh}, v29')
        self('s_lshl_b32 s42, s3, 7\nv_xor_b32 v29, s42, v29')
        if base: self(f'v_add_u32 v29, {base}, v29')
        for jj in range(4): self(f'v_xor_b32 v{dst+jj}, {32*jj}, v29')
    def mask_addr(self, frag, zero, dst):
        self(f'v_lshlrev_b32 v28, 4, v4\nv_add_u32 v28, {frag}, v28\nv_mov_b32 v29, {zero}')
        for jj in range(4): self(f'v_cmp_eq_u32 vcc, {jj}, v5\ns_nop 1\nv_cndmask_b32 v{dst+jj}, v29, v28, vcc')
    def modp_base(self, d, cb):
        self(f's_and_b32 s{d}, s{cb}, 15\ns_lshl_b32 s{d}, s{d}, 17\ns_bfe_u32 s42, s{cb}, 0x20004\ns_lshl_b32 s42, s42, 11\ns_add_u32 s{d}, s{d}, s42\ns_lshr_b32 s42, s{cb}, 6\ns_lshl_b32 s42, s42, 14\ns_add_u32 s{d}, s{d}, s42\ns_add_u32 s{d}, s{d}, {MODP}')
    def silu_frag(self, nvm):
        self('s_lshl_b32 s42, s3, 7\nv_add_u32 v13, s42, v7\nv_add_u32 v14, s42, v9')
        self(f's_waitcnt vmcnt({nvm})')
        self('v_lshlrev_b32 v8, 16, v8\nv_mul_f32 v15, s57, v8\nv_max_f32 v15, 0xc2fc0000, v15\nv_exp_f32 v15, -v15\ns_nop 0\nv_add_f32 v15, 1.0, v15')
        self.div(15, 8, 15, 16, 18)
        self.rbf(15, 15)
        self('ds_write_b16_d16_hi v13, v15\nds_read_b128 v[20:23], v14\nds_read_b128 v[24:27], v14 offset:64')
    def mod_loads(self, pol='FPOL'):
        for r in range(16):
            self(f'buffer_load_dword v{32+r}, v5, s[12:15], s41 offen {pol}')
            if r < 15: self(f's_add_u32 s41, s41, {6144 if r != 7 else 6144*25}')
    def mod_partial(self, two=False):
        self.perm_x1(32, 48); self.perm_x1(40, 56)
        self('s_waitcnt lgkmcnt(0)')
        for t in range(2):
            for jj in range(2):
                c = '0' if t == 0 else f'v[{32+4*jj}:{35+4*jj}]'
                self(f'v_mfma_f32_16x16x32_bf16 v[{32+4*jj}:{35+4*jj}], v[{20+4*t}:{23+4*t}], v[{48+8*t+4*jj}:{51+8*t+4*jj}], {c}')
        self('v_lshlrev_b32 v15, 4, v3\ns_lshl_b32 s42, s4, 8\ns_add_u32 s42, s42, s55\nv_mov_b32 v29, s45\nv_mov_b32 v31, s45\ns_mov_b64 exec, 0xffff\ns_nop 0')
        self('v_mov_b32 v28, v32\nv_mov_b32 v30, v36')
        if self.o.get('fprobe') or two: self.store2('buffer_store_dwordx4 v[28:31], v15, s[8:11], s{s} offen', 42, 43)
        else: self('buffer_store_dwordx4 v[28:31], v15, s[8:11], s42 offen sc1')
        self('s_mov_b64 exec, -1')
    def trigger(self, kind):
        if kind == 'os':
            self(f'v_lshlrev_b32 v9, 4, v1\ns_lshl_b32 s40, s4, 10\ns_add_u32 s40, s40, {OS}')
            self.poll(['buffer_load_dwordx4 v[32:35], v9, s[8:11], s40 offen sc1'], range(32, 36), 30, sleep=2)
        elif kind == 'h1':
            self(f'v_and_b32 v9, 7, v1\nv_lshlrev_b32 v9, 8, v9\ns_lshl_b32 s40, s58, 18\ns_add_u32 s40, s40, {MODP}')
            self.poll8(['buffer_load_dwordx2 v[32:33], v9, s[8:11], s40 offen sc1'], [33], 30, sleep=2)
        elif kind == 'os1':
            self(f'v_mov_b32 v9, 0\ns_lshl_b32 s40, s4, 10\ns_lshl_b32 s42, s58, 4\ns_add_u32 s40, s40, s42\ns_add_u32 s40, s40, {OS}')
            self.poll(['buffer_load_dwordx4 v[32:35], v9, s[8:11], s40 offen sc1'], range(32, 36), 30, sleep=2)
        elif kind == 'qp':
            self(f'v_and_b32 v9, 7, v1\nv_lshlrev_b32 v9, 9, v9\ns_lshl_b32 s40, s4, 3\ns_add_u32 s40, s40, s58\ns_lshl_b32 s40, s40, 12\ns_add_u32 s40, s40, {QP}')
            self.poll8(['buffer_load_dwordx2 v[32:33], v9, s[8:11], s40 offen sc1'], [33], 30, sleep=2)
        elif kind == 'own':
            self(f'v_mov_b32 v9, 0\ns_lshl_b32 s40, s58, 18\ns_lshl_b32 s42, s4, 8\ns_add_u32 s40, s40, s42\ns_add_u32 s40, s40, {MODP}')
            self.poll8(['buffer_load_dwordx2 v[32:33], v9, s[8:11], s40 offen sc1'], [33], 30, sleep=2)
        elif kind == 'q':
            self(f'v_lshlrev_b32 v9, 4, v1\ns_lshl_b32 s40, s4, 11\ns_add_u32 s40, s40, {QV}')
            self.poll(['buffer_load_dwordx4 v[32:35], v9, s[8:11], s40 offen sc1', 'buffer_load_dwordx4 v[36:39], v9, s[8:11], s40 offen offset:1024 sc1'], range(32, 40), 30, sleep=2)
    def mark(self, name):
        if self.o.get('hold') == name: self('s_memrealtime s[96:97]\ns_waitcnt lgkmcnt(0)')
    def hold(self):
        if self.o.get('hold'): self('L_hold:\ns_memrealtime s[98:99]\ns_waitcnt lgkmcnt(0)\ns_sub_u32 s98, s98, s96\ns_cmp_lt_u32 s98, 2000\ns_cbranch_scc1 L_hold')
    def wo_row(self, r):
        if self.o.get('hc'):
            self(f'buffer_load_dwordx4 v{108+(r&1)}, s[20:23], s58 offen offset:{1024*r} OPOL lds' + ('\ns_add_u32 s58, s58, 7168' if r < 3 else ''))
        else: self(f'buffer_load_dwordx4 v{108+r}, s[20:23], s58 offen offset:{1024*r} OPOL lds')
    def combine(self, vs, vd, ss, sd, pre=None):
        D = [f'buffer_load_dwordx4 v[48:51], v{vd}, s[8:11], s{sd} offen sc1', f'buffer_load_dwordx4 v[52:55], v{vd}, s[8:11], s{sd} offen offset:1024 sc1']
        S = f'buffer_load_dwordx4 v[56:59], v{vs}, s[8:11], s{ss} offen sc1'
        if self.o.get('se'):
            l = self.label('P')
            self(f's_mov_b32 s47, 0\n{l}:\n{S}\n' + '\n'.join(D) + f'\ns_add_u32 s47, s47, 1\ns_cmp_gt_u32 s47, {LIMIT}\ns_cbranch_scc1 {l}_x\ns_waitcnt vmcnt(2)')
            for r in range(56, 60): self(f'v_xor_b32 v{r}, v2, v{r}')
            self(f'v_or3_b32 v30, v56, v57, v58\nv_or_b32 v30, v30, v59\nv_and_b32 v30, {TMASK}, v30\nv_cmp_ne_u32 vcc, 0, v30\ns_cbranch_vccnz {l}\n{l}_x:')
        else:
            self.poll([S], range(56, 60), 30, sleep=self.o.get('ssleep'))
            self('\n'.join(D))
        if pre: pre()
        self(f'v_max_f32_dpp v58, v56, v56 row_ror:8 {DPP}')
        for k in (4, 2, 1): self(f's_nop 1\nv_max_f32_dpp v58, v58, v58 row_ror:{k} {DPP}')
        self('v_sub_f32 v56, v56, v58\nv_mul_f32 v56, s57, v56\nv_exp_f32 v56, v56\ns_nop 0\nv_mul_f32 v57, v56, v57')
        for k in (8, 4, 2, 1): self(f's_nop 1\nv_add_f32_dpp v57, v57, v57 row_ror:{k} {DPP}')
        self('v_rcp_f32 v57, v57\ns_nop 0\nv_mul_f32 v56, v56, v57')
        self.poll(D, range(48, 56), 30, first_issued=True)
        self.stamp(3 if self.role == 'Ac' else 6)
        for r in range(48, 56, 2): self(f'v_pk_mul_f32 v[{r}:{r+1}], v[{r}:{r+1}], v[56:57] op_sel_hi:[1,0]')
        for k in (8, 4, 2, 1):
            for r in range(48, 56): self(f'v_add_f32_dpp v{r}, v{r}, v{r} row_ror:{k} {DPP}')
        for d in range(4): self(f'v_cvt_pk_bf16_f32 v{32+d}, v{48+2*d}, v{49+2*d}')
    def flush_tails(self):
        for t in self.tails: self(t)
        self.tails = []

def gen_all(prof=False, opts=None):
    a = G(prof, opts); a.tails = []
    a('s_cmp_ge_u32 s2, 256\ns_cbranch_scc1 L_exit')
    a.mark('entry')
    if a.o.get('hs') or a.o.get('amp'): a('s_memrealtime s[96:97]\ns_memrealtime s[94:95]')
    if prof: a('s_memrealtime s[96:97]')
    a.karg(8, 'ws')
    if not a.o.get('nokt'): a('s_load_dword s62, s[0:1], 0')
    a('s_and_b32 s4, s2, 7\ns_lshr_b32 s5, s2, 3\nv_lshrrev_b32 v2, 6, v0\nv_and_b32 v1, 63, v0')
    if a.o.get('ffirst'): a('s_add_u32 s7, s5, 16\ns_sub_u32 s42, s5, 8\ns_cmp_lt_u32 s5, 8\ns_cselect_b32 s42, s7, s42\ns_cmp_lt_u32 s5, 24\ns_cselect_b32 s5, s42, s5')
    a('s_mov_b32 s7, 0\nv_readfirstlane_b32 s3, v2')
    a.srd(8, 0x10000000)
    if prof: a('v_mov_b32 v127, 0')
    a('v_and_b32 v3, 15, v1\nv_lshrrev_b32 v4, 4, v1')
    a('s_cmp_lg_u32 s3, 8\ns_cbranch_scc1 L_work')
    if a.o.get('tlb0'):
        a('s_load_dwordx4 s[24:27], s[0:1], 24\ns_load_dwordx8 s[28:35], s[0:1], 48\ns_load_dwordx4 s[36:39], s[0:1], 80')
    if not a.o.get('nocpf'): a.prefetch_code(20)
    a('s_setprio 3')
    if a.o.get('tlb0'):
        a('s_lshl_b32 s42, s4, 19\nv_mov_b32 v26, 0\nv_mov_b32 v27, 0x200000\nv_mov_b32 v28, s42\ns_mov_b64 exec, 1\ns_waitcnt lgkmcnt(0)')
        for i, (p, v) in enumerate(((8, 26), (8, 27), (26, 28), (28, 26), (30, 26), (32, 26), (38, 26), (24, 26), (24, 27))):
            a(f'global_load_dword v{108+i}, v{v}, s[{p}:{p+1}]')
        a('s_mov_b64 exec, -1')
    if a.o.get('mh'): a('s_cmp_lt_u32 s5, 16\ns_cbranch_scc1 L_A_comm\ns_cmp_lt_u32 s5, 24\ns_cbranch_scc1 L_F_comm2')
    elif not a.o.get('p16'): a('s_cmp_ge_u32 s5, 24\ns_cbranch_scc1 L_M_comm')
    if not a.o.get('mh'): a('s_cmp_lt_u32 s5, 16\ns_cbranch_scc1 L_A_comm')
    a('s_branch L_F_comm')
    a('L_work:')
    a('s_cmp_lt_u32 s5, 16\ns_cbranch_scc1 L_Ai')
    FM_issue(a)
    F_early(a)
    a('s_branch L_F_j')
    a('L_Ai:')
    A_issue(a)
    a('s_branch L_A')
    if not a.o.get('p16'): M_early(a)
    for f in (F_body, F_comm, A_comm, A_body, M_body, M_comm):
        f(a); a.flush_tails()
    a('L_exit:\ns_endpgm\nL_code_end:')
    return a

def A_issue(a):
    a.role = 'A'
    a.karg(20, 'wq'); a.karg(12, 'k'); a.karg(16, 'v')
    a.srd(12, 0x2000000); a.srd(16, 0x2000000); a.srd(20, 0x400000)
    a('v_bfe_u32 v14, v1, 3, 1\nv_lshlrev_b32 v14, 13, v14\nv_and_b32 v6, 7, v1\nv_lshl_add_u32 v14, v6, 7, v14\nv_lshl_add_u32 v14, v4, 5, v14')
    a('s_lshr_b32 s44, s5, 1\ns_lshl_b32 s44, s44, 5\ns_and_b32 s41, s5, 1\ns_lshl_b32 s41, s41, 3\ns_add_u32 s44, s44, s41\ns_add_u32 s44, s44, s3\ns_lshl_b32 s44, s44, 14\ns_lshl_b32 s41, s4, 10\ns_add_u32 s44, s44, s41')
    a('v_lshlrev_b32 v5, 8, v4')
    for i in range(4): a(f'v_add_u32 v6, {4*i}, v4\nv_xor_b32 v6, v6, v3\nv_lshl_add_u32 v{8+i}, v6, 4, v5')
    for i in range(2): a(f'v_add_u32 v6, {4*i}, v4\nv_lshlrev_b32 v6, 1, v6\nv_xor_b32 v6, v6, v3\nv_lshl_add_u32 v{12+i}, v6, 4, v5')
    a(f's_lshl_b32 s40, s4, 22\ns_lshl_b32 s41, s5, 16\ns_add_u32 s40, s40, s41\ns_lshl_b32 s41, s3, 13\ns_add_u32 s40, s40, s41\ns_add_u32 s40, s40, {3<<20}\ns_add_u32 s43, s40, 4096\ns_mov_b32 m0, s41')
    a('s_waitcnt lgkmcnt(0)')
    a.stamp(0)
    a.get_tag()
    if a.o.get('kvt0'): a('s_mov_b64 exec, 1\nbuffer_load_dword v105, v8, s[12:15], s40 offen KPOL\nbuffer_load_dword v106, v8, s[16:19], s40 offen KPOL\nbuffer_load_dword v107, v14, s[20:23], s44 offen FPOL\ns_mov_b64 exec, -1')
    if a.o.get('a_tagw'): a.fin_tag()
    if a.o.get('a_tw'): a('s_waitcnt vmcnt(0)')
    if a.o.get('early'):
        a(f's_lshr_b32 s42, {a.o["early"]}, s3\ns_and_b32 s42, s42, 1\ns_cbranch_scc1 L_A_early')
    if not a.o.get('noapf'): a('buffer_load_dword v104, v14, s[20:23], s44 offen FPOL')
    if a.o.get('early_gu') or a.o.get('apf2'): a('s_add_u32 s44, s44, 262144\nbuffer_load_dword v120, v14, s[20:23], s44 offen FPOL')
    if a.o.get('kvt'): a('s_mov_b64 exec, 1\nbuffer_load_dword v105, v8, s[12:15], s40 offen KPOL\nbuffer_load_dword v106, v8, s[16:19], s40 offen KPOL\ns_mov_b64 exec, -1')
    if a.o.get('a_pfw'): a(f's_waitcnt vmcnt({2 if a.o.get("kvt") == 2 else 0})')
    for k in range(a.o.get('a_dly', 0)): a('s_mov_b64 exec, 1\nbuffer_load_dword v104, v14, s[20:23], s44 offen sc1\ns_mov_b64 exec, -1\ns_waitcnt vmcnt(0)')
    if a.o.get('early'):
        a('s_branch L_A_go\nL_A_early:\nbuffer_load_dword v104, v14, s[20:23], s44 offen FPOL\nL_A_go:')
    a.stamp(8)
    for kv in range(2):
        if kv == 1 and a.o.get('kv_bar'): a('s_barrier')
        for i in range(8):
            if i == 4 or (kv == 1 and i == 0): a(f's_add_u32 m0, s41, {LV*kv + 4096*(i>>2)}\ns_nop 0')
            vo = 8 + (i & 3) if kv == 0 else 12 + (i & 1)
            a(f'buffer_load_dwordx4 v{vo}, s[{12+4*kv}:{15+4*kv}], s{40 if i < 4 else 43} offen offset:{1024*(i&3)} {"KPOL" if kv == 0 else ("VPOL" if i < 4 else "WPOL")} lds')

def A_body(a):
    a.role = 'A'
    a('L_A:')
    a.stamp(10)
    a('v_xor_b32 v6, v4, v3\nv_lshlrev_b32 v6, 4, v6\nv_lshl_add_u32 v6, v3, 8, v6\nv_add_u32 v6, s41, v6')
    for jj in range(4): a(f'v_xor_b32 v{8+jj}, {64*jj}, v6')
    a(f'v_and_b32 v7, 3, v1\nv_mul_u32_u24 v12, 272, v7\nv_lshl_add_u32 v12, v4, 4, v12\nv_add_u32 v12, {LQ}, v12')
    a(f'v_lshlrev_b32 v13, 5, v7\nv_add_u32 v13, {LMX}, v13\ns_lshl_b32 s42, s3, 2\nv_add_u32 v14, s42, v13')
    a(f'v_lshlrev_b32 v16, 6, v4\nv_add_u32 v16, {LP}, v16\nv_lshl_add_u32 v15, v3, 4, v16\ns_lshl_b32 s42, s3, 8\nv_add_u32 v15, s42, v15')
    a('v_lshrrev_b32 v5, 2, v3\nv_lshl_add_u32 v16, v5, 4, v16')
    a('v_lshrrev_b32 v6, 2, v1\nv_and_b32 v17, 7, v6\nv_lshlrev_b32 v17, 1, v17\nv_bfe_u32 v18, v1, 1, 1\ns_lshl_b32 s42, s3, 1\nv_add_u32 v21, s42, v18\nv_xor_b32 v17, v17, v21')
    a(f'v_lshlrev_b32 v17, 4, v17\nv_lshl_add_u32 v17, v6, 8, v17\nv_and_b32 v21, 1, v1\nv_lshl_add_u32 v17, v21, 3, v17\nv_add_u32 v17, {LV}, v17')
    hc = a.o.get('hc')
    if hc:
        a('v_bfe_u32 v18, v1, 1, 1\nv_bfe_u32 v28, v1, 3, 1\nv_and_b32 v29, 1, v4\nv_lshl_add_u32 v28, v29, 1, v28\nv_lshlrev_b32 v28, 1, v28\nv_xor_b32 v28, v28, v18\nv_lshlrev_b32 v28, 4, v28')
        a('v_and_b32 v29, 1, v1\nv_lshl_add_u32 v28, v29, 3, v28\nv_lshl_add_u32 v28, v5, 7, v28\nv_lshl_add_u32 v28, v4, 10, v28\nv_add_u32 v28, s41, v28')
        for jj in range(4): a(f'v_xor_b32 v{96+jj}, {32*jj}, v28')
        a(f'v_lshlrev_b32 v100, 4, v1\nv_lshlrev_b32 v101, 4, v3\nv_lshlrev_b32 v102, 2, v3\ns_lshl_b32 s42, s3, 8\ns_add_u32 s42, s42, {LRED}\nv_add_u32 v102, s42, v102')
        a(f's_and_b32 s42, s5, 1\ns_lshl_b32 s42, s42, 3\ns_add_u32 s42, s42, s3\ns_lshl_b32 s48, s4, 4\ns_add_u32 s48, s48, s42\ns_lshl_b32 s48, s48, 11\ns_add_u32 s48, s48, {OP}')
        a(f's_lshr_b32 s42, s42, 2\ns_lshl_b32 s49, s4, 2\ns_add_u32 s49, s49, s42\ns_lshl_b32 s49, s49, 8\ns_add_u32 s49, s49, {OS}')
    else:
        a.tr_addr(LK, 96, 14 if a.o.get('cwo') is not None else 13); a.mask_addr(LOF, LZ, 100)
    a('s_and_b32 s42, s3, 1\ns_lshl_b32 s42, s42, 9\nv_bfe_u32 v6, v3, 2, 1\nv_lshlrev_b32 v19, 10, v6\nv_lshrrev_b32 v6, 3, v3\nv_lshl_add_u32 v19, v6, 8, v19')
    a('v_lshl_add_u32 v19, v7, 2, v19\nv_lshl_add_u32 v19, v4, 13, v19\nv_add_u32 v19, s42, v19')
    a(f's_lshl_b32 s54, s4, 4\ns_lshr_b32 s42, s3, 1\ns_add_u32 s54, s54, s42\ns_lshl_b32 s54, s54, 11\ns_lshl_b32 s42, s5, 4\ns_add_u32 s54, s54, s42\ns_add_u32 s54, s54, {OP}')
    a('v_lshrrev_b32 v6, 5, v1\nv_and_b32 v20, 31, v1\nv_lshlrev_b32 v20, 2, v20\nv_lshl_add_u32 v20, v6, 11, v20')
    a(f's_lshl_b32 s55, s4, 3\ns_add_u32 s55, s55, s3\ns_lshl_b32 s55, s55, 12\ns_lshl_b32 s42, s5, 7\ns_add_u32 s55, s55, s42\ns_add_u32 s55, s55, {AP}')
    a(f'v_mov_b32 v22, {LMODE_A}\nv_lshlrev_b32 v21, 5, v4\nv_add_u32 v21, {LMX}, v21')
    if a.o.get('cwo') is not None:
        a.karg(20, 'wo')
    if hc:
        a('v_and_b32 v6, 7, v1\nv_bfe_u32 v28, v1, 4, 1\nv_lshlrev_b32 v28, 1, v28\nv_xor_b32 v6, v6, v28\nv_lshlrev_b32 v6, 4, v6\nv_lshrrev_b32 v28, 3, v1\nv_lshl_add_u32 v108, v28, 10, v6\nv_xor_b32 v109, 64, v108')
        a('s_lshl_b32 s58, s4, 1\ns_and_b32 s42, s5, 1\ns_add_u32 s58, s58, s42\ns_lshl_b32 s58, s58, 3\ns_add_u32 s58, s58, s3\ns_lshl_b32 s58, s58, 15\ns_lshr_b32 s42, s5, 1\ns_lshl_b32 s42, s42, 7\ns_add_u32 s58, s58, s42\ns_mov_b32 s59, s41\ns_waitcnt lgkmcnt(0)')
    elif a.o.get('cwo') is not None:
        a('s_and_b32 s42, s3, 2\ns_lshl_b32 s42, s42, 2\nv_xor_b32 v6, s42, v1')
        for r in range(4): a(f'v_xor_b32 v{108+r}, {2*r}, v6\nv_lshlrev_b32 v{108+r}, 4, v{108+r}')
        a('s_lshl_b32 s58, s4, 19\ns_lshl_b32 s42, s5, 15\ns_add_u32 s58, s58, s42\ns_lshl_b32 s59, s3, 12\ns_add_u32 s58, s58, s59\ns_lshl_b32 s59, s3, 13\ns_waitcnt lgkmcnt(0)')
    qa = a.o.get('qa')
    if qa:
        a(f'v_mul_u32_u24 v12, 272, v5\nv_lshl_add_u32 v12, v4, 4, v12\nv_add_u32 v12, {LQ}, v12')
        a(f's_lshl_b32 s42, s3, 2\nv_add_u32 v14, s42, v21')
        a(f'v_lshlrev_b32 v15, 6, v5\nv_lshl_add_u32 v15, v4, 4, v15\nv_lshl_add_u32 v15, v7, 1, v15\ns_lshl_b32 s42, s3, 8\ns_add_u32 s43, s42, {LP}\nv_add_u32 v15, s43, v15')
        a(f'v_lshlrev_b32 v110, 2, v1\ns_add_u32 s43, s42, {LLS}\nv_add_u32 v110, s43, v110')
    else: a(f'v_lshlrev_b32 v110, 7, v7\nv_lshl_add_u32 v110, v4, 2, v110\ns_lshl_b32 s42, s3, 4\ns_add_u32 s42, s42, {LLS}\nv_add_u32 v110, s42, v110')
    a(f's_mov_b32 s56, {SCALE:#x}\ns_mov_b32 s57, {LOG2E:#x}')
    if not a.o.get('a_tagw'): a.fin_tag()
    if a.o.get('sq'):
        a(f's_lshl_b32 s62, s4, 11\ns_lshl_b32 s63, s3, 8\ns_add_u32 s62, s62, s63\ns_add_u32 s62, s62, {QV}\ns_add_u32 s62, s8, s62\ns_addc_u32 s63, s9, 0')
        a(f's_lshr_b32 s42, s3, 1\ns_mul_i32 s42, s42, 272\ns_and_b32 s43, s3, 1\ns_lshl_b32 s43, s43, 7\ns_add_u32 s42, s42, s43\ns_add_u32 s42, s42, {LQ}\nv_lshlrev_b32 v105, 1, v1\nv_add_u32 v105, s42, v105')
        QR = (24, 64, 80)
        a('s_barrier\ns_barrier')
        LD = lambda g: '\n'.join([f's_load_dwordx16 s[{r}:{r+15}], s[62:63], {64*i}{g}' for i, r in enumerate(QR)] + [f's_load_dwordx8 s[12:19], s[62:63], 192{g}', f's_load_dwordx4 s[40:43], s[62:63], 224{g}', f's_load_dwordx2 s[52:53], s[62:63], 240{g}', f's_load_dwordx2 s[50:51], s[62:63], 248{g}'])
        REGS = [r + k for r in QR for k in range(16)] + list(range(12, 20)) + [40, 41, 42, 43, 52, 53, 50, 51]
        a(LD(''))
        a('s_mov_b32 s47, 0\nL_q:\ns_waitcnt lgkmcnt(0)')
        for i, r in enumerate(REGS): a(f'v_writelane_b32 v106, s{r}, {i}')
        a(f'v_xor_b32 v106, v2, v106\nv_and_b32 v107, {TMASK}, v106\nv_cmp_ne_u32 vcc, 0, v107\ns_cbranch_vccnz L_q_retry\nL_q_ok:')
        a.tails.append(f'L_q_retry:\ns_add_u32 s47, s47, 1\ns_cmp_gt_u32 s47, {LIMIT}\ns_cbranch_scc1 L_q_ok\n' + LD(' glc') + '\ns_branch L_q')
        a('ds_write_b16_d16_hi v105, v106')
        a.stamp(11)
    a('s_waitcnt vmcnt(8)')
    a.stamp(1)
    for t in range(2):
        for jj in range(4): a(f'ds_read_b128 v[{32+16*t+4*jj}:{35+16*t+4*jj}], v{8+jj} offset:{4096*t}')
    if a.o.get('vstamp'): a('s_waitcnt vmcnt(0)'); a.stamp(9)
    ne = a.o.get('wo_early', 0)
    a('s_waitcnt lgkmcnt(0)')
    if ne:
        a('s_mov_b32 m0, s59\ns_nop 0')
        for r in range(ne): a.wo_row(r)
    ve = a.o.get('ve')
    if ve: a(f's_waitcnt vmcnt({ne})'); a.stamp(4)
    a('s_barrier')
    a.stamp(2)
    def wo_dma(pos):
        if a.o.get('cwo') == pos:
            a('s_mov_b32 m0, s59\ns_nop 0')
            for r in range(ne, 4): a.wo_row(r)
    for jj in range(4): a(f'ds_read_b128 v[{64+4*jj}:{67+4*jj}], v12 offset:{64*jj}')
    wo_dma(0)
    for jj in range(4):
        a(f's_waitcnt lgkmcnt({3-jj})')
        for t in range(2):
            c = '0' if jj == 0 else f'v[{24+4*t}:{27+4*t}]'
            kf = f'v[{32+16*t+4*jj}:{35+16*t+4*jj}]'; qf = f'v[{64+4*jj}:{67+4*jj}]'
            a(f'v_mfma_f32_16x16x32_bf16 v[{24+4*t}:{27+4*t}], {qf if qa else kf}, {kf if qa else qf}, {c}')
    wo_dma(1)
    if ve:
        for kk in range(8):
            a(f'ds_read_b64_tr_b16 v[{64+4*kk}:{65+4*kk}], v17 offset:{8192*kk}\nds_read_b64_tr_b16 v[{66+4*kk}:{67+4*kk}], v17 offset:{8192*kk+4096}')
    else: a('s_nop 6' if a.o.get('cwo') != 1 else 's_nop 0')
    if qa:
        if a.o.get('fine'): a.stamp(11)
        a.rbf(24, 24); a.rbf(25, 28)
        a('v_pk_mul_f32 v[24:25], v[24:25], s[56:57] op_sel_hi:[1,0]')
        a.rbf(24, 24); a.rbf(25, 25)
        a('v_max_f32 v32, v24, v25')
        for k in (8, 4, 2, 1): a(f's_nop 1\nv_max_f32_dpp v32, v32, v32 row_ror:{k} {DPP}')
        if a.o.get('fine'): a.stamp(12)
        a('s_mov_b32 exec_lo, 0x00010001\ns_mov_b32 exec_hi, 0x00010001\nds_write_b32 v14, v32\ns_mov_b64 exec, -1\ns_waitcnt lgkmcnt(0)\ns_barrier')
        if a.o.get('fine'): a.stamp(9)
        a('ds_read_b128 v[32:35], v21\nds_read_b128 v[36:39], v21 offset:16\ns_waitcnt lgkmcnt(0)')
        a('v_max3_f32 v32, v32, v33, v34\nv_max3_f32 v36, v36, v37, v38\nv_max3_f32 v32, v32, v35, v39\nv_max_f32 v32, v32, v36')
        a('v_pk_add_f32 v[24:25], v[24:25], v[32:33] op_sel_hi:[1,0] neg_lo:[0,1] neg_hi:[0,1]\nv_pk_mul_f32 v[24:25], v[24:25], s[56:57] op_sel:[0,1] op_sel_hi:[1,1]')
        a('v_exp_f32 v24, v24\nv_exp_f32 v25, v25\ns_nop 0\nv_cvt_pk_bf16_f32 v36, v24, v25\nv_add_f32 v24, v24, v25')
        a('ds_write_b16 v15, v36\nds_write_b16_d16_hi v15, v36 offset:8\nds_write_b32 v110, v24')
        wmax = False
    else:
        if a.o.get('fine'): a.stamp(11)
        for i in range(8): a.rbf(24 + i, 24 + i)
        for i in range(0, 8, 2): a(f'v_pk_mul_f32 v[{24+i}:{25+i}], v[{24+i}:{25+i}], s[56:57] op_sel_hi:[1,0]')
        for i in range(8): a.rbf(24 + i, 24 + i)
        a('v_max3_f32 v32, v24, v25, v26\nv_max3_f32 v33, v27, v28, v29\nv_max3_f32 v32, v32, v30, v31\nv_max_f32 v32, v32, v33')
        a.swap_op(16, 'v_max_f32', 32, 33); a.swap_op(32, 'v_max_f32', 32, 33)
        wmax = a.o.get('wmax')
        if a.o.get('fine'): a.stamp(12)
        if not wmax:
            a('s_mov_b64 exec, 0xf\nds_write_b32 v14, v32\ns_mov_b64 exec, -1\ns_waitcnt lgkmcnt(0)\ns_barrier')
            if a.o.get('fine'): a.stamp(9)
            a('ds_read_b128 v[32:35], v13\nds_read_b128 v[36:39], v13 offset:16\ns_waitcnt lgkmcnt(0)')
            a('v_max3_f32 v32, v32, v33, v34\nv_max3_f32 v36, v36, v37, v38\nv_max3_f32 v32, v32, v35, v39\nv_max_f32 v32, v32, v36')
        for i in range(0, 8, 2): a(f'v_pk_add_f32 v[{24+i}:{25+i}], v[{24+i}:{25+i}], v[32:33] op_sel_hi:[1,0] neg_lo:[0,1] neg_hi:[0,1]')
        for i in range(0, 8, 2): a(f'v_pk_mul_f32 v[{24+i}:{25+i}], v[{24+i}:{25+i}], s[56:57] op_sel:[0,1] op_sel_hi:[1,1]')
        for i in range(8): a(f'v_exp_f32 v{24+i}, v{24+i}')
        a('s_nop 0')
        for d in range(4): a(f'v_cvt_pk_bf16_f32 v{36+d}, v{24+2*d}, v{25+2*d}')
        a('s_mov_b32 exec_lo, 0x000f000f\ns_mov_b32 exec_hi, 0x000f000f\nds_write_b128 v15, v[36:39]')
        if wmax: a('ds_write_b32 v14, v32')
        a('v_pk_add_f32 v[24:25], v[24:25], v[26:27]\nv_pk_add_f32 v[28:29], v[28:29], v[30:31]\nv_pk_add_f32 v[24:25], v[24:25], v[28:29]\nv_add_f32 v24, v24, v25')
        a('ds_write_b32 v110, v24\ns_mov_b64 exec, -1')
    wo_dma(2)
    a.stamp(3)
    if ve:
        a('s_waitcnt lgkmcnt(0)\ns_barrier')
        if wmax: a('ds_read_b128 v[112:115], v21\nds_read_b128 v[116:119], v21 offset:16')
        a('ds_read_b32 v23, v22')
        for kk in range(8): a(f'ds_read_b128 v[{32+4*kk}:{35+4*kk}], v16 offset:{256*kk}')
        if wmax:
            a('s_waitcnt lgkmcnt(8)\nv_max3_f32 v120, v112, v113, v114\nv_max3_f32 v121, v115, v116, v117\nv_max3_f32 v120, v120, v118, v119\nv_max_f32 v120, v120, v121')
            for i in range(0, 8, 2): a(f'v_pk_add_f32 v[{112+i}:{113+i}], v[{112+i}:{113+i}], v[120:121] op_sel_hi:[1,0] neg_lo:[0,1] neg_hi:[0,1]')
            for i in range(0, 8, 2): a(f'v_pk_mul_f32 v[{112+i}:{113+i}], v[{112+i}:{113+i}], s[56:57] op_sel:[0,1] op_sel_hi:[1,1]')
        for kk in range(8):
            a(f's_waitcnt lgkmcnt({7-kk})')
            if kk == 1: a('v_readfirstlane_b32 s7, v23')
            if wmax: a(f'v_mfma_f32_16x16x32_bf16 v[{32+4*kk}:{35+4*kk}], v[{32+4*kk}:{35+4*kk}], v[{64+4*kk}:{67+4*kk}], 0\nv_exp_f32 v{112+kk}, v{112+kk}')
            else: a(f'v_mfma_f32_16x16x32_bf16 v[{24+4*(kk&1)}:{27+4*(kk&1)}], v[{32+4*kk}:{35+4*kk}], v[{64+4*kk}:{67+4*kk}], {"0" if kk < 2 else f"v[{24+4*(kk&1)}:{27+4*(kk&1)}]"}')
        if wmax:
            a('v_mul_f32 v24, v112, v32\nv_mul_f32 v25, v113, v36')
            for kk in range(2, 8):
                if kk == 6: a('s_nop 0')
                if kk == 7: a('s_nop 0')
                a(f'v_fmac_f32 v{24+(kk&1)}, v{112+kk}, v{32+4*kk}')
            a('v_add_f32 v24, v24, v25')
        else: a('s_nop 7\nv_add_f32 v24, v24, v28')
    elif a.o.get('sq') or a.o.get('split'):
        a('s_waitcnt lgkmcnt(0)\ns_barrier')
        for kk in range(8): a(f'ds_read_b128 v[{32+4*kk}:{35+4*kk}], v16 offset:{256*kk}')
        a(f's_waitcnt vmcnt({4 if a.o.get("cwo") is not None else 0}) lgkmcnt(0)')
        a.stamp(4)
        a('s_barrier')
        a('ds_read_b32 v23, v22')
        for kk in range(8):
            a(f'ds_read_b64_tr_b16 v[{64+4*kk}:{65+4*kk}], v17 offset:{8192*kk}\nds_read_b64_tr_b16 v[{66+4*kk}:{67+4*kk}], v17 offset:{8192*kk+4096}')
        for kk in range(8):
            a(f's_waitcnt lgkmcnt({2*(7-kk)})')
            if kk == 1: a('v_readfirstlane_b32 s7, v23')
            a(f'v_mfma_f32_16x16x32_bf16 v[24:27], v[{32+4*kk}:{35+4*kk}], v[{64+4*kk}:{67+4*kk}], {"0" if kk == 0 else "v[24:27]"}')
        a('s_nop 7')
    else: PV_old(a, wmax)
    a('v_and_or_b32 v28, v24, s46, v2')
    a.store_mode('buffer_store_dword v28, v19, s[8:11], s54 offen')
    A_tail(a)

def PV_old(a, wmax):
    a('s_waitcnt vmcnt(0) lgkmcnt(0)')
    a.stamp(4)
    a('s_barrier')
    if wmax: a('ds_read_b128 v[108:111], v21\nds_read_b128 v[112:115], v21 offset:16')
    a('ds_read_b32 v23, v22')
    order = []
    for kk in range(8):
        a(f'ds_read_b128 v[{32+4*kk}:{35+4*kk}], v16 offset:{256*kk}')
        a(f'ds_read_b64_tr_b16 v[{64+4*kk}:{65+4*kk}], v17 offset:{8192*kk}')
        a(f'ds_read_b64_tr_b16 v[{66+4*kk}:{67+4*kk}], v17 offset:{8192*kk+4096}')
        if kk == 4:
            a('s_waitcnt lgkmcnt(15)\nv_readfirstlane_b32 s7, v23')
            if wmax:
                a('v_max3_f32 v116, v108, v109, v110\nv_max3_f32 v117, v111, v112, v113\nv_max3_f32 v116, v116, v114, v115\nv_max_f32 v116, v116, v117')
                for i in range(8): a(f'v_sub_f32 v{108+i}, v{108+i}, v116')
                for i in range(8): a(f'v_mul_f32 v{108+i}, s57, v{108+i}')
                for i in range(8): a(f'v_exp_f32 v{108+i}, v{108+i}')
    for kk in range(8):
        a(f's_waitcnt lgkmcnt({min(15, 3*(7-kk))})')
        if wmax: a(f'v_mfma_f32_16x16x32_bf16 v[{32+4*kk}:{35+4*kk}], v[{32+4*kk}:{35+4*kk}], v[{64+4*kk}:{67+4*kk}], 0')
        else: a(f'v_mfma_f32_16x16x32_bf16 v[24:27], v[{32+4*kk}:{35+4*kk}], v[{64+4*kk}:{67+4*kk}], {"0" if kk == 0 else "v[24:27]"}')
    if wmax:
        a('v_mul_f32 v24, v108, v32\nv_mul_f32 v25, v109, v36')
        for kk in range(2, 8):
            if kk >= 5: a('s_nop 1')
            a(f'v_fmac_f32 v{24+(kk&1)}, v{108+kk}, v{32+4*kk}')
        a('v_add_f32 v24, v24, v25')
    else: a('s_nop 7')

def A_tail(a):
    a.stamp(5)
    if a.o.get('hc'):
        def pre():
            for jj in range(4): a(f'ds_read_b64_tr_b16 v[{64+4*jj}:{65+4*jj}], v{96+jj}\nds_read_b64_tr_b16 v[{66+4*jj}:{67+4*jj}], v{96+jj} offset:512')
        a.combine(101, 100, 49, 48, pre)
        a('s_waitcnt lgkmcnt(0)\ns_nop 0')
        for jj in range(4): a(f'v_mfma_f32_16x16x32_bf16 v[{36+4*jj}:{39+4*jj}], v[32:35], v[{64+4*jj}:{67+4*jj}], 0')
        a('s_mov_b64 exec, 0xffff\ns_nop 4\nds_write2_b32 v102, v36, v40 offset1:16\ns_nop 0\nds_write2_b32 v102, v44, v48 offset0:32 offset1:48\ns_waitcnt lgkmcnt(0)')
        a.stamp(7)
        a('s_barrier')
        a.exit()
        return
    if a.o.get('cwo') is not None: a('s_waitcnt vmcnt(1)')
    cwo = a.o.get('cwo') is not None
    if not cwo:
        a('s_barrier')
        for jj in range(4):
            a(f'ds_read_b64_tr_b16 v[{64+4*jj}:{65+4*jj}], v{96+jj}\nds_read_b64_tr_b16 v[{66+4*jj}:{67+4*jj}], v{96+jj} offset:4096')
    a.stamp(6)
    a('s_barrier')
    for jj in range(4):
        a(f'ds_read_b128 v[{32+4*jj}:{35+4*jj}], v{100+jj}')
        if cwo: a(f'ds_read_b64_tr_b16 v[{64+4*jj}:{65+4*jj}], v{96+jj}\nds_read_b64_tr_b16 v[{66+4*jj}:{67+4*jj}], v{96+jj} offset:8192')
    for jj in range(4):
        a(f's_waitcnt lgkmcnt({(3-jj)*(3 if cwo else 1)})')
        a(f'v_mfma_f32_16x16x32_bf16 v[24:27], v[{32+4*jj}:{35+4*jj}], v[{64+4*jj}:{67+4*jj}], {"0" if jj == 0 else "v[24:27]"}')
    a('s_nop 7')
    a('v_and_or_b32 v28, v24, s46, v2')
    a.store_mode('buffer_store_dword v28, v20, s[8:11], s55 offen')
    a.stamp(7)
    a.exit()

def A_comm(a):
    a.role = 'Ac'
    a('L_A_comm:')
    a.karg(20, 'wo'); a.srd(20, 0x400000)
    a('s_waitcnt lgkmcnt(0)')
    a.stamp(0)
    a.get_tag()
    a(f'v_mov_b32 v4, 0\nv_mov_b32 v5, 0\nv_mov_b32 v6, 0\nv_mov_b32 v7, 0\nv_mov_b32 v8, {LZ}\nds_write_b128 v8, v[4:7]')
    for k in range(8): a(f'v_xor_b32 v{64+k}, {2*k}, v1\nv_lshlrev_b32 v{64+k}, 4, v{64+k}')
    a.fin_tag()
    a.xid_publish()
    if a.o.get('kv_bar'): a('s_barrier')
    if a.o.get('wot'): a('s_lshl_b32 s42, s4, 19\ns_mov_b64 exec, 1\nbuffer_load_dword v108, v1, s[20:23], s42 offen nt\ns_mov_b64 exec, -1')
    a(f'v_lshlrev_b32 v9, 4, v1\ns_lshl_b32 s40, s4, 11\ns_add_u32 s62, s40, {QV}')
    a(f'v_lshrrev_b32 v10, 5, v1\nv_mul_u32_u24 v10, 272, v10\nv_and_b32 v11, 31, v1\nv_lshl_add_u32 v10, v11, 3, v10\nv_add_u32 v10, {LQ}, v10\nv_mov_b32 v12, {LMODE_A}')
    a('s_lshl_b32 s56, s4, 19\ns_lshl_b32 s42, s5, 15\ns_add_u32 s56, s56, s42')
    a(f'v_and_b32 v14, 3, v1\nv_lshlrev_b32 v13, 5, v14\nv_add_u32 v13, {LMX}, v13\nv_lshlrev_b32 v14, 8, v14')
    a(f's_lshl_b32 s41, s4, 10\ns_lshl_b32 s42, s5, 4\ns_add_u32 s63, s41, s42\ns_add_u32 s63, s63, {OS}')
    a(f's_lshr_b32 s42, s5, 2\ns_lshl_b32 s42, s42, 8\ns_add_u32 s41, s41, s42\ns_add_u32 s41, s41, {OS}')
    a(f's_lshl_b32 s40, s4, 4\ns_add_u32 s40, s40, s5\ns_lshl_b32 s40, s40, 11\ns_add_u32 s54, s40, {AP}\ns_add_u32 s40, s40, {OP}')
    a(f'v_and_b32 v15, 15, v1\nv_lshlrev_b32 v15, 4, v15\nv_lshrrev_b32 v16, 4, v1\nv_lshlrev_b32 v16, 4, v16\nv_add_u32 v16, {LOF}, v16\nv_lshlrev_b32 v17, 2, v1')
    a(f's_lshl_b32 s42, s4, 3\ns_lshr_b32 s55, s5, 1\ns_add_u32 s42, s42, s55\ns_and_b32 s55, s42, 15\ns_lshl_b32 s55, s55, 17\ns_lshr_b32 s42, s42, 4\ns_lshl_b32 s42, s42, 8\ns_add_u32 s55, s55, s42')
    a(f's_and_b32 s42, s5, 1\ns_lshl_b32 s42, s42, 7\ns_add_u32 s55, s55, s42\ns_add_u32 s55, s55, {AX}\ns_mov_b32 s57, {LOG2E:#x}')
    if a.o.get('hc'):
        a(f's_and_b32 s55, s5, 1\ns_lshl_b32 s55, s55, 3\ns_lshr_b32 s42, s5, 1\ns_add_u32 s55, s55, s42\ns_lshl_b32 s55, s55, 17\ns_lshl_b32 s42, s4, 8\ns_add_u32 s55, s55, s42\ns_add_u32 s55, s55, {AX}\nv_add_u32 v19, {LRED}, v17')
    if a.o.get('pt_o'): a('v_lshlrev_b32 v22, 5, v1\nbuffer_load_dword v108, v22, s[8:11], s40 offen sc1\nbuffer_load_dword v109, v15, s[8:11], s41 offen sc1')
    if a.o.get('pw_a'):
        a('v_xor_b32 v22, 1, v2'); a.store2('buffer_store_dword v22, v17, s[8:11], s{s} offen', 55, 42)
    if a.o.get('sq'):
        a('s_waitcnt lgkmcnt(0)\ns_barrier')
        a(a.xid_load(40))
        a(f's_lshl_b32 s58, s4, 12\ns_add_u32 s58, s58, {QF}\ns_add_u32 s58, s8, s58\ns_addc_u32 s59, s9, 0\ns_mov_b32 s47, 0')
        a('L_qd:\ns_load_dwordx8 s[64:71], s[58:59], s47\ns_add_u32 s47, s47, 64\ns_waitcnt lgkmcnt(0)')
        a('s_xor_b32 s64, s64, s45')
        for k in range(65, 72): a(f's_xor_b32 s{k}, s{k}, s45\ns_or_b32 s64, s64, s{k}')
        a(f's_cbranch_scc0 L_qe\ns_sleep {a.o.get("qsleep", 3)}\ns_cmp_lt_u32 s47, 4096\ns_cbranch_scc1 L_qd')
        a.poll(['buffer_load_dwordx4 v[32:35], v9, s[8:11], s62 offen sc1', 'buffer_load_dwordx4 v[36:39], v9, s[8:11], s62 offen offset:1024 sc1'], range(32, 40), 30)
        a('L_qe:')
        a.stamp(1)
        a('s_barrier\ns_barrier')
    else:
        Q = lambda r: [f'buffer_load_dwordx4 v[{r}:{r+3}], v9, s[8:11], s62 offen sc1', f'buffer_load_dwordx4 v[{r+4}:{r+7}], v9, s[8:11], s62 offen offset:1024 sc1']
        if not a.o.get('q1'):
            a('v_and_b32 v18, 7, v1\nv_lshlrev_b32 v18, 4, v18\ns_mov_b64 exec, 0xff')
            a.poll(['buffer_load_dwordx4 v[32:35], v18, s[8:11], s62 offen sc1'], range(32, 36), 30)
            a('s_mov_b64 exec, -1')
        if a.o.get('q1') == 2:
            def chk(r):
                for k in range(r, r+8): a(f'v_xor_b32 v{k}, v2, v{k}')
                a(f'v_or3_b32 v30, v{r}, v{r+1}, v{r+2}\nv_or3_b32 v30, v30, v{r+3}, v{r+4}\nv_or3_b32 v30, v30, v{r+5}, v{r+6}\nv_or_b32 v30, v30, v{r+7}\nv_and_b32 v30, {TMASK}, v30\nv_cmp_ne_u32 vcc, 0, v30')
            a('\n'.join(Q(48)) + f'\ns_sleep {a.o.get("qgap", 16)}\ns_mov_b32 s47, 0\nL_q2:\n' + '\n'.join(Q(32)) + '\ns_waitcnt vmcnt(2)')
            chk(48)
            a('s_cbranch_vccz L_q2b\n' + '\n'.join(Q(48)) + '\ns_waitcnt vmcnt(2)')
            chk(32)
            a(f's_cbranch_vccz L_q2a\ns_add_u32 s47, s47, 1\ns_cmp_lt_u32 s47, {LIMIT}\ns_cbranch_scc1 L_q2\ns_branch L_q2a')
            a('L_q2b:')
            for k in range(8): a(f'v_mov_b32 v{80+k}, v{48+k}')
            a('s_branch L_q2c\nL_q2a:')
            for k in range(8): a(f'v_mov_b32 v{80+k}, v{32+k}')
            a('L_q2c:')
        else:
            if a.o.get('xe'): a('\n'.join(Q(32)) + '\ns_waitcnt vmcnt(0)\n' + a.xid_load(40))
            a.poll(Q(32), range(32, 40), 30)
        a.stamp(1)
        for i in range(2):
            qb = 80 if a.o.get('q1') == 2 else 32
            a(f'v_perm_b32 v{44+2*i}, v{qb+1+4*i}, v{qb+4*i}, s51\nv_perm_b32 v{45+2*i}, v{qb+3+4*i}, v{qb+2+4*i}, s51')
            a(f'ds_write_b64 v10, v[{44+2*i}:{45+2*i}] offset:{544*i}')
        if a.o.get('qmode'): a('v_bfe_u32 v18, v32, 10, 1\nds_write_b32 v12, v18\nv_readfirstlane_b32 s7, v18')
        elif a.o.get('cwo') is not None and not a.o.get('xe'): a(a.xid_load(40))
        a('s_waitcnt lgkmcnt(0)\ns_barrier')
    if a.o.get('sq'): A_comm_sq2(a); return
    if a.o.get('split'): A_comm_split(a); return
    a(a.xid_load(40))
    for b in range(8):
        a(f's_mov_b32 m0, {LK + 4096*b}' + ('\ns_add_u32 s56, s56, 4096' if b else '\ns_nop 0'))
        for r in range(4): a(f'buffer_load_dwordx4 v{64 + r + 4*((b>>1)&1)}, s[20:23], s56 offen offset:{1024*r} OPOL lds')
    a('s_waitcnt vmcnt(32)')
    a.xid_mode(40)
    a('v_mov_b32 v18, s7\nds_write_b32 v12, v18\ns_waitcnt lgkmcnt(0)')
    if not a.o.get('wmax') and not a.o.get('sq'): a('s_barrier')
    if not a.o.get('sq'): a('s_barrier')
    a(f'ds_read_b128 v[32:35], v13\nds_read_b128 v[36:39], v13 offset:16\nds_read_b128 v[40:43], v13 offset:{LLS-LMX}\nds_read_b128 v[44:47], v13 offset:{LLS-LMX+16}\ns_waitcnt lgkmcnt(2)')
    a('v_max3_f32 v48, v32, v33, v34\nv_max3_f32 v49, v36, v37, v38\nv_max3_f32 v48, v48, v35, v39\nv_max_f32 v48, v48, v49')
    if a.o.get('wmax'):
        for i in range(8): a(f'v_sub_f32 v{32+i}, v{32+i}, v48')
        for i in range(8): a(f'v_mul_f32 v{32+i}, s57, v{32+i}')
        for i in range(8): a(f'v_exp_f32 v{32+i}, v{32+i}')
        a('s_waitcnt lgkmcnt(0)')
        for i in range(8): a(f'v_mul_f32 v{40+i}, v{32+i}, v{40+i}')
    a('s_waitcnt lgkmcnt(0)')
    a.tree_add(range(40, 48))
    a('v_or_b32 v32, v2, v48\nv_and_or_b32 v33, v40, s46, v2\nv_mov_b32 v34, v32\nv_mov_b32 v35, v33\ns_mov_b64 exec, 0xf')
    a.store_mode('buffer_store_dwordx4 v[32:35], v14, s[8:11], s63 offen')
    a('s_mov_b64 exec, -1')
    a('s_waitcnt vmcnt(1)')
    A_comm_tail(a)

def A_comm_sq(a):
    for b in range(8):
        a(f's_mov_b32 m0, {LK + 4096*b}' + ('\ns_add_u32 s56, s56, 4096' if b else '\ns_nop 0'))
        for r in range(4): a(f'buffer_load_dwordx4 v{64 + r + 4*((b>>1)&1)}, s[20:23], s56 offen offset:{1024*r} OPOL lds')
        if b == 0: a('s_barrier')
        if b == a.o.get('wo_b2', 1): a('s_barrier')
    a('s_barrier')
    a(f'ds_read_b128 v[32:35], v13\nds_read_b128 v[36:39], v13 offset:16\nds_read_b128 v[40:43], v13 offset:{LLS-LMX}\nds_read_b128 v[44:47], v13 offset:{LLS-LMX+16}\ns_waitcnt lgkmcnt(0)')
    a('v_max3_f32 v48, v32, v33, v34\nv_max3_f32 v49, v36, v37, v38\nv_max3_f32 v48, v48, v35, v39\nv_max_f32 v48, v48, v49')
    a.tree_add(range(40, 48))
    a('v_or_b32 v32, v2, v48\nv_and_or_b32 v33, v40, s46, v2\nv_mov_b32 v34, v32\nv_mov_b32 v35, v33\ns_mov_b64 exec, 0xf')
    a.store_mode('buffer_store_dwordx4 v[32:35], v14, s[8:11], s63 offen')
    a('s_mov_b64 exec, -1')
    a('s_waitcnt vmcnt(1)')
    A_comm_tail(a)

def A_comm_sq2(a):
    a(f'v_lshrrev_b32 v20, 1, v14\nv_add_u32 v20, {LLS}, v20\ns_barrier\ns_barrier')
    a('ds_read_b128 v[32:35], v13\nds_read_b128 v[36:39], v13 offset:16')
    for w in range(8): a(f'ds_read_b128 v[{72+4*w}:{75+4*w}], v20 offset:{16*w}')
    a('s_waitcnt lgkmcnt(8)')
    a('v_max3_f32 v48, v32, v33, v34\nv_max3_f32 v49, v36, v37, v38\nv_max3_f32 v48, v48, v35, v39\nv_max_f32 v48, v48, v49')
    a('s_waitcnt lgkmcnt(0)')
    for w in range(8): a(f'v_pk_add_f32 v[{72+4*w}:{73+4*w}], v[{72+4*w}:{73+4*w}], v[{74+4*w}:{75+4*w}]')
    for w in range(8): a(f'v_add_f32 v{56+w}, v{72+4*w}, v{73+4*w}')
    a.tree_add(range(56, 64))
    a('v_or_b32 v32, v2, v48\nv_and_or_b32 v33, v56, s46, v2\nv_mov_b32 v34, v32\nv_mov_b32 v35, v33\ns_waitcnt vmcnt(0)')
    a.xid_mode(40)
    if a.prof: a('v_writelane_b32 v127, s7, 12')
    a('v_mov_b32 v18, s7\nds_write_b32 v12, v18\ns_mov_b64 exec, 0xf')
    a.store_mode('buffer_store_dwordx4 v[32:35], v14, s[8:11], s63 offen')
    a('s_mov_b64 exec, -1\ns_waitcnt lgkmcnt(0)\ns_barrier')
    A_comm_tail(a)

def A_comm_split(a):
    cwo = a.o.get('cwo') is not None
    if not cwo:
        a(a.xid_load(40))
        for b in range(8):
            a(f's_mov_b32 m0, {LK + 4096*b}' + ('\ns_add_u32 s56, s56, 4096' if b else '\ns_nop 0'))
            for r in range(4): a(f'buffer_load_dwordx4 v{64 + r + 4*((b>>1)&1)}, s[20:23], s56 offen offset:{1024*r} OPOL lds')
            if b == a.o.get('wo_b1', 3): a('s_barrier')
            if b == a.o.get('wo_b2', 5): a('s_barrier')
        a('s_waitcnt vmcnt(32)')
    else: a(('' if a.o.get('wmax') else 's_barrier\n') + 's_waitcnt vmcnt(0)')
    if not a.o.get('qmode'): a.xid_mode(40)
    if a.prof: a('v_writelane_b32 v127, s7, 12')
    a(f'v_mov_b32 v18, s7\nds_write_b32 v12, v18\nv_lshrrev_b32 v20, 1, v14\nv_add_u32 v20, {LLS}, v20')
    if a.o.get('qa'): a(f'v_add_u32 v20, {LLS}, v17\nv_lshrrev_b32 v22, 4, v1\nv_lshlrev_b32 v21, 5, v22\nv_add_u32 v21, {LMX}, v21\nv_lshlrev_b32 v22, 8, v22')
    a('s_waitcnt lgkmcnt(0)')
    a('s_barrier')
    if a.o.get('qa'):
        a('ds_read_b128 v[32:35], v21\nds_read_b128 v[36:39], v21 offset:16')
        for i in range(4): a(f'ds_read2st64_b32 v[{40+2*i}:{41+2*i}], v20 offset0:{2*i} offset1:{2*i+1}')
        a('s_waitcnt lgkmcnt(4)')
        a('v_max3_f32 v48, v32, v33, v34\nv_max3_f32 v49, v36, v37, v38\nv_max3_f32 v48, v48, v35, v39\nv_max_f32 v48, v48, v49\ns_waitcnt lgkmcnt(0)')
        a.tree8(40)
        for k in (8, 4, 2, 1): a(f's_nop 1\nv_add_f32_dpp v40, v40, v40 row_ror:{k} {DPP}')
        a('v_or_b32 v32, v2, v48\nv_and_or_b32 v33, v40, s46, v2\nv_mov_b32 v34, v32\nv_mov_b32 v35, v33\ns_mov_b32 exec_lo, 0x00010001\ns_mov_b32 exec_hi, 0x00010001')
        a.store_mode('buffer_store_dwordx4 v[32:35], v22, s[8:11], s63 offen')
    else:
        a('ds_read_b128 v[32:35], v13\nds_read_b128 v[36:39], v13 offset:16')
        for w in range(8): a(f'ds_read_b128 v[{72+4*w}:{75+4*w}], v20 offset:{16*w}')
        a('s_waitcnt lgkmcnt(8)')
        a('v_max3_f32 v48, v32, v33, v34\nv_max3_f32 v49, v36, v37, v38\nv_max3_f32 v48, v48, v35, v39\nv_max_f32 v48, v48, v49')
        if a.o.get('wmax'):
            for i in range(8): a(f'v_sub_f32 v{32+i}, v{32+i}, v48')
            for i in range(8): a(f'v_mul_f32 v{32+i}, s57, v{32+i}')
            for i in range(8): a(f'v_exp_f32 v{32+i}, v{32+i}')
        a('s_waitcnt lgkmcnt(0)')
        for w in range(8): a(f'v_pk_add_f32 v[{72+4*w}:{73+4*w}], v[{72+4*w}:{73+4*w}], v[{74+4*w}:{75+4*w}]')
        for w in range(8): a(f'v_add_f32 v{40+w}, v{72+4*w}, v{73+4*w}')
        if a.o.get('wmax'):
            for i in range(8): a(f'v_mul_f32 v{40+i}, v{32+i}, v{40+i}')
        a.tree_add(range(40, 48))
        a('v_or_b32 v32, v2, v48\nv_and_or_b32 v33, v40, s46, v2\nv_mov_b32 v34, v32\nv_mov_b32 v35, v33\ns_mov_b64 exec, 0xf')
        a.store_mode('buffer_store_dwordx4 v[32:35], v14, s[8:11], s63 offen')
    a('s_mov_b64 exec, -1')
    if cwo and not a.o.get('ve'): a('s_barrier')
    if not cwo: a('s_waitcnt vmcnt(1)')
    A_comm_tail(a)

def A_comm_tail(a):
    a.stamp(2)
    if a.o.get('cwo') is None: a('s_barrier')
    if a.o.get('hc'):
        a('s_barrier')
        for i in range(4): a(f'ds_read2st64_b32 v[{32+2*i}:{33+2*i}], v17 offset0:{2*i} offset1:{2*i+1}'.replace('v17', 'v19'))
        a('s_waitcnt lgkmcnt(0)')
        a.stamp(5)
        a.tree8(32)
        a('v_and_or_b32 v32, v32, s46, v2')
        A_comm_end(a)
        return
    a.combine(15, 9, 41, 40)
    a('s_mov_b32 exec_lo, 0x00010001\ns_mov_b32 exec_hi, 0x00010001\nds_write_b128 v16, v[32:35]\ns_mov_b64 exec, -1\ns_waitcnt lgkmcnt(0)\ns_barrier')
    a.stamp(4)
    a.poll([f'buffer_load_dword v{32+i}, v17, s[8:11], s54 offen offset:{256*i} sc1' for i in range(8)], range(32, 40), 30)
    a.stamp(5)
    a.tree_add(range(32, 40))
    a.swap_op(32, 'v_add_f32', 32, 33)
    a('v_and_or_b32 v32, v32, s46, v2\ns_mov_b32 exec_hi, 0')
    A_comm_end(a)

def A_comm_end(a):
    a.store2('buffer_store_dword v32, v17, s[8:11], s{s} offen', 55, 42)
    if a.o.get('axgate'):
        a(f's_lshl_b32 s42, s4, 4\ns_add_u32 s42, s42, s5\ns_lshl_b32 s42, s42, 4\ns_add_u32 s42, s42, {AL}\ns_mov_b64 exec, 0xf')
        a.store_mode('buffer_store_dword v32, v17, s[8:11], s42 offen')
    a.stamp(6)
    if a.o.get('wb') == 'A': a('s_cmp_lg_u32 s5, 0\ns_cbranch_scc1 L_A_nowb\ns_waitcnt vmcnt(0)\nbuffer_wbl2 sc1\ns_waitcnt vmcnt(0)\nL_A_nowb:')
    a.exit()

def FM_issue(a):
    a.role = 'F'
    for s, k in ((12, 'wmod'), (20, 'c'), (16, 'wq')): a.karg(s, k)
    for s, n in ((12, 0x300000), (20, 1024), (16, 0x400000)): a.srd(s, n)
    a('v_lshlrev_b32 v7, 1, v1\nv_lshlrev_b32 v9, 4, v4\nv_lshlrev_b32 v17, 2, v1')
    a(f's_mov_b32 s57, {LOG2E:#x}\ns_and_b32 s58, s5, 7')
    p16 = a.o.get('p16')
    if not p16: a('s_cmp_ge_u32 s5, 24\ns_cbranch_scc1 L_M')
    a('v_mul_u32_u24 v5, 49152, v4\nv_lshl_add_u32 v5, v3, 2, v5\ns_lshl_b32 s40, s4, 7\ns_mul_i32 s56, s4, 393216')
    fl = a.o.get('fl')
    if fl: a('v_lshl_add_u32 v5, v3, 2, v5\ns_lshl_b32 s59, s58, 1\ns_add_u32 s59, s59, s3\ns_lshl_b32 s59, s59, 1\ns_lshl_b32 s42, s59, 6\ns_add_u32 s41, s56, s42')
    else: a('s_lshl_b32 s59, s58, 2\ns_add_u32 s59, s59, s3\ns_lshl_b32 s42, s59, 6\ns_add_u32 s41, s56, s42')
    a('s_waitcnt lgkmcnt(0)')
    a.stamp(0)
    a('buffer_load_ushort v8, v7, s[20:23], s40 offen')
    a.get_tag()
    a('s_cmp_ge_u32 s3, 4\ns_cbranch_scc1 L_F_wq')
    if p16: a('s_cmp_ge_u32 s5, 24\ns_cbranch_scc1 L_F_j')
    if fl:
        a('s_cmp_ge_u32 s3, 2\ns_cbranch_scc1 L_F_idle')
        for r in range(16):
            a(f'buffer_load_dwordx2 v[{32+2*r}:{33+2*r}], v5, s[12:15], s41 offen FPOL')
            if r < 15: a(f's_add_u32 s41, s41, {6144 if r != 7 else 6144*25}')
    else: a.mod_loads()

def F_early(a):
    a.role = 'F'
    a.modp_base(55, 59)
    if a.o.get('pw_h'): a('s_lshl_b32 s42, s4, 8\ns_add_u32 s42, s42, s55\nv_mov_b32 v28, 0\nbuffer_store_dword v28, v17, s[8:11], s42 offen sc1')
    a.fin_tag()
    a.silu_frag(17 if a.o.get('pw_h') else 16)
    if a.o.get('fl'):
        a('v_lshrrev_b32 v15, 3, v3\nv_lshlrev_b32 v15, 17, v15\nv_and_b32 v16, 7, v3\nv_lshl_add_u32 v15, v16, 5, v15\ns_lshl_b32 s42, s4, 8\ns_add_u32 s42, s42, s55')
        for r in (97, 99, 101, 103): a(f'v_mov_b32 v{r}, s45')
        a('s_waitcnt vmcnt(8)')
        a.perm_x2(32, 64)
        a('s_waitcnt vmcnt(0) lgkmcnt(0)')
        a.stamp(1)
        for jj in range(4): a(f'v_mfma_f32_16x16x32_bf16 v[{104+4*jj}:{107+4*jj}], v[20:23], v[{64+4*jj}:{67+4*jj}], 0')
        a.perm_x2(48, 80)
        a('s_nop 0')
        for jj in range(4): a(f'v_mfma_f32_16x16x32_bf16 v[{104+4*jj}:{107+4*jj}], v[24:27], v[{80+4*jj}:{83+4*jj}], v[{104+4*jj}:{107+4*jj}]')
        a('s_mov_b64 exec, 0xffff\ns_nop 3')
        for jj in range(4): a(f'v_mov_b32 v{96+2*jj}, v{104+4*jj}')
        a('buffer_store_dwordx4 v[96:99], v15, s[8:11], s42 offen sc1\nbuffer_store_dwordx4 v[100:103], v15, s[8:11], s42 offen offset:16 sc1\ns_mov_b64 exec, -1')
    else:
        a('s_waitcnt vmcnt(0)')
        a.stamp(1)
        a.mod_partial()
    a.stamp(2)
    if a.o.get('tlb_f'): a(f's_mov_b32 s42, {QP}\ns_mov_b64 exec, 1\nbuffer_load_dword v116, v7, s[8:11], s42 offen sc1\ns_mov_b64 exec, -1')
    a('s_branch L_F_j')
    if a.o.get('fl'):
        a('L_F_idle:')
        a.fin_tag()
        a.silu_frag(0)
        a('s_branch L_F_j')
    a('L_F_wq:')
    if a.o.get('p16'):
        a('s_and_b32 s42, s3, 1\ns_lshl_b32 s42, s42, 3\nv_xor_b32 v6, s42, v1')
        for r in range(4): a(f'v_xor_b32 v{64+r}, {2*r}, v6\nv_lshlrev_b32 v{64+r}, 4, v{64+r}')
        a('s_and_b32 s42, s3, 3\ns_lshl_b32 s44, s42, 13\ns_lshl_b32 s42, s42, 16\ns_and_b32 s62, s5, 15\ns_lshl_b32 s62, s62, 18\ns_add_u32 s62, s62, s42\ns_lshl_b32 s42, s4, 10\ns_add_u32 s62, s62, s42')
        if a.o.get('f_tagw'): a.fin_tag()
        for b in range(2):
            a(f's_add_u32 m0, s44, {WQL + 4096*b}')
            for r in range(4):
                if b or r: a(f's_add_u32 s62, s62, {7168 if r else 11264}')
                else: a('s_nop 0')
                a(f'buffer_load_dwordx4 v{64 + r}, s[16:19], s62 offen offset:{1024*r} FPOL lds')
        return
    for k in range(8): a(f'v_xor_b32 v{64+k}, {2*k}, v1\nv_lshlrev_b32 v{64+k}, 4, v{64+k}')
    a('s_and_b32 s42, s3, 3\ns_lshl_b32 s44, s42, 14\ns_lshl_b32 s42, s42, 17\ns_lshl_b32 s62, s58, 19\ns_add_u32 s62, s62, s42\ns_lshl_b32 s42, s4, 10\ns_add_u32 s62, s62, s42')
    if a.o.get('f_tagw'): a.fin_tag()
    for b in range(4):
        a(f's_add_u32 m0, s44, {WQL + 4096*b}')
        for r in range(4):
            if b or r: a(f's_add_u32 s62, s62, {7168 if r else 11264}')
            else: a('s_nop 0')
            a(f'buffer_load_dwordx4 v{64 + r + 4*((b>>1)&1)}, s[16:19], s62 offen offset:{1024*r} FPOL lds')

def F_body(a):
    a.role = 'F'
    a('L_F_j:')
    if a.o.get('p16'): return P_body(a)
    a.karg(36, 'wd'); a.srd(36, 0x1C0000)
    a('s_cmp_lt_u32 s3, 4\ns_cbranch_scc1 L_F_j2')
    if not a.o.get('f_tagw'): a.fin_tag()
    a.silu_frag(16)
    a('L_F_j2:')
    a('v_lshrrev_b32 v5, 2, v3')
    a(f'v_mov_b32 v28, 0\nv_add_u32 v29, {WZ}, v7\nds_write_b16 v29, v28')
    a.tr_addr(WQL, 96); a.mask_addr(WH, WZ, 100)
    a(f'v_mov_b32 v11, {WMODE}\nv_lshlrev_b32 v18, 3, v1\nv_mov_b32 v31, s45')
    a(f's_lshl_b32 s54, s4, 3\ns_add_u32 s54, s54, s3\ns_lshl_b32 s54, s54, 3\ns_add_u32 s54, s54, s58\ns_lshl_b32 s54, s54, 9\ns_add_u32 s54, s54, {QP}')
    a('s_cmp_lt_u32 s3, 4\ns_cbranch_scc1 L_F_k\ns_waitcnt vmcnt(0)\nL_F_k:\ns_waitcnt lgkmcnt(0)')
    a.stamp(3)
    a('s_barrier')
    for t2 in range(2):
        for jj in range(4):
            b = 32 + 16*t2 + 4*jj
            a(f'ds_read_b64_tr_b16 v[{b}:{b+1}], v{96+jj} offset:{32768*t2}\nds_read_b64_tr_b16 v[{b+2}:{b+3}], v{96+jj} offset:{32768*t2+4096}')
    a('s_waitcnt lgkmcnt(0)\ns_barrier')
    a('ds_read_b64 v[28:29], v11')
    for t2 in range(2):
        for jj in range(4): a(f'ds_read_b128 v[{64+16*t2+4*jj}:{67+16*t2+4*jj}], v{100+jj} offset:{64*t2}')
    for k in range(8):
        a(f's_waitcnt lgkmcnt({7-k})')
        c = '0' if k < 2 else f'v[{108+4*(k&1)}:{111+4*(k&1)}]'
        a(f'v_mfma_f32_16x16x32_bf16 v[{108+4*(k&1)}:{111+4*(k&1)}], v[{64+4*k}:{67+4*k}], v[{32+4*k}:{35+4*k}], {c}')
        if k == 0: a('v_readfirstlane_b32 s7, v28\nv_readfirstlane_b32 s76, v29')
    a('s_nop 7')
    a('v_add_f32 v30, v108, v112')
    a.store_mode('buffer_store_dwordx2 v[30:31], v18, s[8:11], s54 offen')
    a.stamp(4)
    F_rest(a)

def P_body(a):
    for s, k in ((24, 'x'), (28, 'wg'), (32, 'wu'), (36, 'wd')): a.karg(s, k)
    a.srd(24, 1024)
    for s in (28, 32, 36): a.srd(s, 0x1C0000)
    a('s_cmp_lt_u32 s3, 4\ns_cselect_b32 s42, 1, 0\ns_cmp_lt_u32 s5, 24\ns_cselect_b32 s43, 1, 0\ns_and_b32 s42, s42, s43\ns_cbranch_scc1 L_F_j2')
    a('s_cmp_lt_u32 s3, 4\ns_cbranch_scc1 L_F_j1')
    if not a.o.get('f_tagw'): a.fin_tag()
    a.silu_frag(8)
    a('s_branch L_F_j2\nL_F_j1:')
    a.fin_tag()
    a('L_F_j2:')
    a('v_lshrrev_b32 v5, 2, v3')
    a(f'v_mov_b32 v28, 0\nv_add_u32 v29, {WZ}, v7\nds_write_b16 v29, v28')
    a.tr_addr(WQL, 96); a.mask_addr(WH, WZ, 100)
    a(f'v_mov_b32 v11, {WMODE}\nv_lshlrev_b32 v18, 3, v1\nv_mov_b32 v31, s45')
    a(f's_lshl_b32 s54, s4, 3\ns_add_u32 s54, s54, s3\ns_lshl_b32 s54, s54, 4\ns_and_b32 s42, s5, 15\ns_add_u32 s54, s54, s42\ns_lshl_b32 s54, s54, 9\ns_add_u32 s54, s54, {QP}')
    a('s_cmp_lt_u32 s3, 4\ns_cbranch_scc1 L_F_k\ns_waitcnt vmcnt(0)\nL_F_k:\ns_waitcnt lgkmcnt(0)')
    a.stamp(3)
    a('s_barrier')
    for jj in range(4): a(f'ds_read_b64_tr_b16 v[{32+4*jj}:{33+4*jj}], v{96+jj}\nds_read_b64_tr_b16 v[{34+4*jj}:{35+4*jj}], v{96+jj} offset:4096')
    a('s_waitcnt lgkmcnt(0)\ns_barrier')
    a('ds_read_b64 v[28:29], v11')
    for jj in range(4): a(f'ds_read_b128 v[{64+4*jj}:{67+4*jj}], v{100+jj}')
    for k in range(4):
        a(f's_waitcnt lgkmcnt({3-k})')
        a(f'v_mfma_f32_16x16x32_bf16 v[108:111], v[{64+4*k}:{67+4*k}], v[{32+4*k}:{35+4*k}], {"0" if k == 0 else "v[108:111]"}')
        if k == 0: a('v_readfirstlane_b32 s7, v28\nv_readfirstlane_b32 s76, v29')
    a('s_nop 7')
    a('v_mov_b32 v30, v108')
    a.store_mode('buffer_store_dwordx2 v[30:31], v18, s[8:11], s54 offen')
    a.stamp(4)
    a('s_cmp_ge_u32 s5, 24\ns_cbranch_scc1 L_M2')
    F_rest(a)

def F_rest(a):
    a('v_mul_u32_u24 v5, 49152, v4\nv_lshl_add_u32 v5, v3, 2, v5')
    a('s_lshl_b32 s59, s58, 3\ns_add_u32 s59, s59, s3\ns_add_u32 s59, s59, 32\ns_lshl_b32 s42, s59, 6\ns_add_u32 s41, s56, s42')
    a.modp_base(55, 59)
    a('v_lshlrev_b32 v6, 7, v1\ns_mul_i32 s40, s4, 229376\ns_mul_i32 s42, s58, 28672\ns_add_u32 s40, s40, s42\ns_lshl_b32 s42, s3, 13\ns_add_u32 s40, s40, s42')
    if not a.o.get('rq'): a('s_barrier')
    if a.o.get('rq') == 2: a('s_waitcnt vmcnt(0)\ns_barrier')
    a.mod_loads('RPOL')
    if a.o.get('dpf') == 3:
        a('s_cmp_ge_u32 s3, 4\ns_cbranch_scc1 L_F_nopf\nbuffer_load_dword v117, v6, s[36:39], s40 offen MPOL\ns_waitcnt vmcnt(1)\ns_branch L_F_pf\nL_F_nopf:\ns_waitcnt vmcnt(0)\nL_F_pf:')
    else: a('s_waitcnt vmcnt(0)')
    a.stamp(5)
    if a.o.get('dpf') == 5: a('s_cmp_ge_u32 s3, 4\ns_cbranch_scc1 L_F_nopf\nbuffer_load_dword v117, v6, s[36:39], s40 offen MPOL\nL_F_nopf:')
    if a.o.get('fp2'): a('ds_read_b32 v29, v11 offset:4\ns_waitcnt lgkmcnt(0)\nv_readfirstlane_b32 s76, v29')
    a.mod_partial(two=a.o.get('fp2'))
    if a.o.get('fgate'): a('s_waitcnt vmcnt(0)')
    if a.o.get('dpf') == 1: a('s_cmp_ge_u32 s3, 4\ns_cbranch_scc1 L_F_nopf\nbuffer_load_dword v8, v6, s[36:39], s40 offen MPOL\nL_F_nopf:')
    a('s_add_u32 s55, s55, s76')
    a.poll8([f'buffer_load_dwordx2 v[{32+2*i}:{33+2*i}], v18, s[8:11], s55 offen offset:{512*i} sc1' for i in range(4)], range(33, 40, 2), 30)
    a.tree_add(range(32, 40, 2))
    a.swap_op(32, 'v_add_f32', 32, 33)
    a.rbf(32, 32)
    a(f's_mul_i32 s42, s4, 12288\ns_lshl_b32 s43, s59, 7\ns_add_u32 s42, s42, s43\ns_add_u32 s42, s42, {MODV}')
    a('v_or_b32 v33, v2, v32\ns_mov_b32 exec_hi, 0')
    a.store_mode('buffer_store_dword v33, v17, s[8:11], s42 offen')
    a.stamp(6)
    if a.o.get('wb') == 'F': a('s_lshl_b32 s42, s58, 3\ns_or_b32 s42, s42, s3\ns_cbranch_scc1 L_F_nowb\ns_waitcnt vmcnt(0)\nbuffer_wbl2 sc1\ns_waitcnt vmcnt(0)\nL_F_nowb:')
    if a.o.get('dpf') == 4: a('s_mov_b64 exec, -1\ns_cmp_ge_u32 s3, 4\ns_cbranch_scc1 L_F_nopf\nbuffer_load_dword v117, v6, s[36:39], s40 offen MPOL\ns_waitcnt vmcnt(0)\nL_F_nopf:')
    a.exit()

def F_comm(a):
    a.role = 'Fc'
    a('L_F_comm:')
    a.karg(24, 'x'); a.srd(24, 1024)
    p16 = a.o.get('p16')
    if p16: a('s_and_b32 s58, s5, 7\nv_lshlrev_b32 v9, 4, v1\nv_and_b32 v11, 31, v1\nv_lshlrev_b32 v11, 1, v11\ns_and_b32 s40, s5, 15\ns_lshl_b32 s40, s40, 6')
    else: a('s_and_b32 s58, s5, 7\nv_lshlrev_b32 v9, 4, v1\nv_lshlrev_b32 v11, 1, v1\ns_lshl_b32 s40, s58, 7')
    a('s_waitcnt lgkmcnt(0)')
    a.stamp(0)
    a('buffer_load_dwordx4 v[32:35], v9, s[24:27], 0 offen\nbuffer_load_ushort v36, v11, s[24:27], s40 offen')
    a.get_tag(); a.fin_tag()
    a.xid_publish()
    if a.o.get('fprobe'): a.probe(a.o['fprobe'])
    else: a('s_mov_b32 s76, 0')
    a('s_waitcnt vmcnt(1)')
    for d in range(4): a(f'v_lshlrev_b32 v{40+2*d}, 16, v{32+d}\nv_and_b32 v{41+2*d}, 0xffff0000, v{32+d}')
    a('v_add_f32 v32, v40, v41\nv_add_f32 v33, v42, v43\nv_add_f32 v34, v44, v45\nv_add_f32 v35, v46, v47')
    a.tree_add(range(32, 36))
    a.wave_reduce('v_add_f32', [32], 33)
    a('v_mul_f32 v32, 0x3b000000, v32')
    for i in range(8): a(f'v_sub_f32 v{40+i}, v{40+i}, v32')
    for i in range(8): a(f'v_mul_f32 v{40+i}, v{40+i}, v{40+i}')
    a.tree_add(range(40, 48))
    a.wave_reduce('v_add_f32', [40], 33)
    a('v_mul_f32 v40, 0x3b000000, v40')
    a.rbf(32, 32); a.rbf(40, 40)
    a(f'v_add_f32 v40, {EPS:#x}, v40'); a.rbf(40, 40)
    a('v_sqrt_f32 v40, v40\nv_lshlrev_b32 v36, 16, v36'); a.rbf(40, 40)
    a('v_sub_f32 v36, v36, v32'); a.rbf(36, 36)
    a.div(40, 36, 40, 41, 42); a.rbf(28, 40)
    if p16:
        a(f'v_lshrrev_b32 v12, 5, v1\nv_lshlrev_b32 v12, 11, v12\nv_lshl_add_u32 v12, v11, 2, v12\ns_and_b32 s41, s5, 15\ns_lshl_b32 s41, s41, 17\ns_add_u32 s41, s41, {MODP}')
        a(f'v_add_u32 v13, {WH}, v11\nv_mov_b32 v14, {WMODE}\nv_lshlrev_b32 v17, 2, v1\nv_lshlrev_b32 v18, 3, v1')
        a(f's_lshl_b32 s54, s4, 3\ns_add_u32 s54, s54, s58\ns_lshl_b32 s55, s54, 8\ns_add_u32 s55, s55, {QV}\ns_lshl_b32 s54, s54, 13\ns_add_u32 s54, s54, {QP}\ns_add_u32 s56, s54, 4096')
        a.stamp(1)
        a('s_barrier')
        a(a.xid_load(64))
        a.poll8([f'buffer_load_dwordx2 v[{32+2*i}:{33+2*i}], v12, s[8:11], s41 offen offset:{256*i} sc1' for i in range(8)], range(33, 48, 2), 30)
        a.stamp(2)
        a.tree_add(range(32, 48, 2))
        a.rbf(32, 32)
        a('v_mov_b32 v48, v32\ns_nop 1\nv_permlane32_swap_b32 v32, v48')
        a('v_add_f32 v48, 1.0, v48'); a.rbf(48, 48)
        a('v_mul_f32 v48, v28, v48'); a.rbf(48, 48)
        a('v_add_f32 v48, v48, v32'); a.rbf(48, 48)
    else:
        a(f'v_lshrrev_b32 v12, 5, v1\nv_lshlrev_b32 v12, 17, v12\nv_and_b32 v10, 31, v1\nv_lshl_add_u32 v12, v10, 3, v12\ns_lshl_b32 s41, s58, 18\ns_add_u32 s41, s41, {MODP}\ns_add_u32 s41, s41, s76')
        a(f'v_add_u32 v13, {WH}, v11\nv_mov_b32 v14, {WMODE}\nv_lshlrev_b32 v17, 2, v1\nv_lshlrev_b32 v18, 3, v1')
        a(f's_lshl_b32 s54, s4, 3\ns_add_u32 s54, s54, s58\ns_lshl_b32 s55, s54, 8\ns_add_u32 s55, s55, {QV}\ns_lshl_b32 s54, s54, 12\ns_add_u32 s54, s54, {QP}')
        a(f'v_lshlrev_b32 v19, 6, v1\nv_mov_b32 v20, s45\ns_lshl_b32 s56, s4, 12\ns_lshl_b32 s42, s58, 2\ns_add_u32 s56, s56, s42\ns_add_u32 s56, s56, {QF}')
        if a.o.get('pt_q') == 1: a('v_lshlrev_b32 v22, 6, v1\nbuffer_load_dword v108, v22, s[8:11], s54 offen sc1')
        if a.o.get('pt_h'):
            a(f'v_and_b32 v22, 31, v1\nv_lshlrev_b32 v22, 7, v22\nv_lshrrev_b32 v23, 5, v1\nv_lshl_add_u32 v22, v23, 17, v22\nbuffer_load_dword v109, v22, s[8:11], s41 offen {a.o["pt_h"]}')
        a.stamp(1)
        if not a.o.get('mh'): a('s_barrier')
        H1 = [f'buffer_load_dwordx2 v[{32+2*i}:{33+2*i}], v12, s[8:11], s41 offen offset:{256*i} sc1' for i in range(16)]
        if a.o.get('mh'):
            if a.o.get('mown', 1): a.trigger('own')
            H1 = H1 + [a.xid_load(64)]
        else: a(a.xid_load(64))
        if a.o.get('pt_q') == 2: a('v_lshlrev_b32 v22, 6, v1\nbuffer_load_dword v108, v22, s[8:11], s54 offen sc1')
        ps = a.o.get('ps') and not a.o.get('mh')
        if ps: a.poll8_sum(H1, 32, 16, 30, [(0, 8), (8, 8)])
        else: a.poll8(H1, range(33, 64, 2), 30)
        a.stamp(2)
        for k in (() if ps else (1, 2, 4)):
            for b in (48, 32):
                for i in range(0, 8, 2*k): a(f'v_add_f32 v{b+2*i}, v{b+2*i}, v{b+2*(i+k)}')
        a.rbf(48, 48); a.rbf(32, 32)
        a('v_add_f32 v48, 1.0, v48'); a.rbf(48, 48)
        a('v_mul_f32 v48, v28, v48'); a.rbf(48, 48)
        a('v_add_f32 v48, v48, v32'); a.rbf(48, 48)
    if a.o.get('mh'):
        a.xid_mode(64)
        a(f's_lshl_b32 s42, s7, 10\ns_or_b32 s42, s42, s6\nv_or_b32 v48, s42, v48\ns_lshl_b32 s42, s4, 3\ns_add_u32 s42, s42, s58\ns_lshl_b32 s42, s42, 8\ns_add_u32 s42, s42, {HV}')
        a.store_mode('buffer_store_dword v48, v17, s[8:11], s42 offen')
        a.stamp(3)
        a('v_mov_b32 v15, 0\nds_write_b32 v14, v15\ns_branch L_M_comm')
        a('L_F_comm2:')
        a('s_and_b32 s58, s5, 7\ns_waitcnt lgkmcnt(0)')
        a.get_tag(); a.fin_tag()
        a.xid_publish()
        a(f'v_lshlrev_b32 v13, 1, v1\nv_add_u32 v13, {WH}, v13\nv_mov_b32 v14, {WMODE}\nv_lshlrev_b32 v17, 2, v1\nv_lshlrev_b32 v18, 3, v1\ns_mov_b32 s76, 0')
        a(f's_lshl_b32 s54, s4, 3\ns_add_u32 s54, s54, s58\ns_lshl_b32 s55, s54, 8\ns_add_u32 s41, s55, {HV}\ns_add_u32 s55, s55, {QV}\ns_lshl_b32 s54, s54, 12\ns_add_u32 s54, s54, {QP}')
        if a.o['mh'] == 2: a('s_barrier')
        l = a.label('P')
        a(f's_mov_b32 s47, 0\n{l}:\nbuffer_load_dword v48, v17, s[8:11], s41 offen sc1\ns_add_u32 s47, s47, 1\ns_cmp_gt_u32 s47, {LIMIT}\ns_cbranch_scc1 {l}_t\ns_waitcnt vmcnt(0)')
        a(f'v_xor_b32 v48, v2, v48\nv_and_b32 v30, {TMASK}, v48\nv_cmp_ne_u32 vcc, 0, v30\ns_cbranch_vccnz {l}\n{l}_x:')
        a.tails.append(f'{l}_t:\ns_waitcnt vmcnt(0)\ns_branch {l}_x')
        a.stamp(2)
        a('ds_write_b16_d16_hi v13, v48\nv_bfe_u32 v64, v48, 10, 1\nv_mov_b32 v65, 0\nds_write_b64 v14, v[64:65]\nv_readfirstlane_b32 s7, v64')
        if a.o['mh'] == 1: a('s_barrier')
        a('s_waitcnt lgkmcnt(0)\ns_barrier')
        F_comm_tail(a, False)
        return
    a('ds_write_b16_d16_hi v13, v48')
    a.xid_mode(64)
    a('v_mov_b32 v64, s7\nv_mov_b32 v65, s76\nds_write_b64 v14, v[64:65]\ns_waitcnt lgkmcnt(0)\ns_barrier')
    F_comm_tail(a, p16)

def F_comm_tail(a, p16):
    a.stamp(3)
    if p16: a('s_cmp_ge_u32 s5, 24\ns_cbranch_scc1 L_M_comm')
    if a.o.get('rq'):
        if a.o.get('rq') == 2: a('s_barrier')
        if a.o.get('fp2'):
            a.probe(3)
            a('v_mov_b32 v65, s76\nds_write_b32 v14, v65 offset:4\ns_waitcnt lgkmcnt(0)')
        a.exit()
        return
    if a.o.get('qmode'): a('s_lshl_b32 s43, s7, 10\ns_or_b32 s43, s43, s6')
    nq = 16 if p16 else 8
    QL = [f'buffer_load_dwordx2 v[{32+2*i}:{33+2*i}], v18, s[8:11], s{54 if i < 8 else 56} offen offset:{512*(i&7)} sc1' for i in range(nq)]
    if a.o.get('ps'): a.poll8_sum(QL, 32, nq, 30, [(0, nq)])
    else: a.poll8(QL, range(33, 32+2*nq, 2), 30)
    a.stamp(4)
    if not a.o.get('ps'): a.tree_add(range(32, 32+2*nq, 2))
    a.rbf(32, 32)
    if a.o.get('qmode'): a('v_or_b32 v32, s43, v32')
    else: a('v_or_b32 v32, v2, v32')
    a.store_mode('buffer_store_dword v32, v17, s[8:11], s55 offen')
    if a.o.get('sq'): a.store_mode('buffer_store_dword v20, v19, s[8:11], s56 offen')
    a.stamp(5)
    a.trigger(a.o.get('ftrig'))
    if a.o.get('gbl'):
        a('s_cmp_lt_u32 s58, ' + str(a.o.get('gbj', 6)) + '\ns_cbranch_scc1 L_F_gb')
        a.trigger(a.o['gbl'])
        a('L_F_gb:')
    a('s_barrier')
    if a.o.get('fp2'):
        a.probe(3)
        a('v_mov_b32 v65, s76\nds_write_b32 v14, v65 offset:4\ns_waitcnt lgkmcnt(0)')
    a.exit()

def M_early(a):
    a.role = 'M'
    a('L_M:')
    for s, k in ((24, 'x'), (28, 'wg'), (32, 'wu'), (36, 'wd')): a.karg(s, k)
    a.srd(24, 1024)
    for s in (28, 32, 36): a.srd(s, 0x1C0000)
    a('v_bfe_u32 v10, v1, 3, 2\nv_lshlrev_b32 v10, 13, v10\nv_and_b32 v6, 7, v1\nv_lshl_add_u32 v10, v6, 7, v10\nv_lshrrev_b32 v6, 5, v1\nv_lshl_add_u32 v10, v6, 6, v10')
    a('s_lshl_b32 s43, s58, 4\ns_add_u32 s43, s43, s3\ns_add_u32 s43, s43, 8\ns_lshl_b32 s43, s43, 15\ns_lshl_b32 s42, s4, 10\ns_add_u32 s43, s43, s42')
    a('v_and_b32 v11, 31, v1')
    a('s_waitcnt lgkmcnt(0)')
    a.stamp(0)
    a.get_tag()
    if a.o.get('a_tagw'): a.fin_tag()
    if not a.o.get('early_gu') and a.o.get('apf2') != 1 and not a.o.get('nompf'): a('buffer_load_dword v112, v10, s[16:19], s43 offen FPOL')
    if a.o.get('mpf2'): a('s_sub_u32 s43, s43, 131072\nbuffer_load_dword v115, v10, s[16:19], s43 offen FPOL')
    if not a.o.get('a_tagw'): a.fin_tag()
    if a.o.get('vpf'):
        a.karg(68, 'v'); a.srd(68, 0x2000000)
        a(f'v_lshrrev_b32 v12, 5, v1\nv_lshlrev_b32 v12, 13, v12\nv_lshl_add_u32 v12, v11, 7, v12\ns_lshl_b32 s40, s4, 22\ns_lshl_b32 s41, s58, 17\ns_add_u32 s40, s40, s41\ns_lshl_b32 s41, s3, 14\ns_add_u32 s40, s40, s41\ns_add_u32 s40, s40, {(3<<20) + 4096}\ns_waitcnt lgkmcnt(0)')
        if a.o['vpf'] == 2: a('s_barrier')
        a('buffer_load_dword v113, v12, s[68:71], s40 offen UPOL')
    if a.o.get('rpf'):
        a('v_bfe_u32 v13, v1, 2, 3\nv_mul_u32_u24 v13, 6144, v13\nv_and_b32 v14, 3, v1\nv_lshl_add_u32 v13, v14, 7, v13\nv_lshl_add_u32 v13, v6, 6, v13')
        a('s_lshl_b32 s42, s4, 3\ns_add_u32 s42, s42, s3\ns_mul_i32 s42, s42, 49152\ns_lshl_b32 s44, s58, 9\ns_add_u32 s42, s42, s44\ns_add_u32 s42, s42, 2048')
        if a.o.get('rpf') == 2: a('s_waitcnt vmcnt(0)')
        if a.o.get('rpf') != 3: a('buffer_load_dword v22, v13, s[12:15], s42 offen FPOL')
        else: a('s_mov_b32 s62, s42')
    a('s_branch L_M2')

def M_body(a):
    a.role = 'M'
    a('L_M2:')
    if a.o.get('p16'): a('v_and_b32 v11, 31, v1\nv_lshrrev_b32 v6, 5, v1')
    a('s_mul_i32 s59, s4, 7\ns_add_u32 s59, s59, s58')
    a('s_cmp_eq_u32 s58, 7\ns_cbranch_scc1 L_R')
    if a.o.get('mearly'): a('s_mov_b32 s66, s3')
    a('v_mul_u32_u24 v5, 28672, v4\nv_lshl_add_u32 v5, v3, 2, v5')
    a(f's_and_b32 s42, s59, 1\ns_cselect_b32 s44, {39*3584}, 0\ns_cselect_b32 s48, -1, 1\ns_cselect_b32 s63, 78, 0\ns_cselect_b32 s42, 7, 0\ns_xor_b32 s3, s3, s42\ns_mul_i32 s49, s48, {3584*25}\ns_mul_i32 s48, s48, 3584')
    a('s_mul_i32 s41, s3, 229376\ns_lshl_b32 s42, s59, 6\ns_add_u32 s41, s41, s42\ns_add_u32 s41, s41, s44')
    a('s_lshl_b32 s40, s3, 7')
    eg = a.o.get('early_gu')
    def gu():
        for r in range(16):
            a(f'buffer_load_dword v{32+r}, v5, s[28:31], s41 offen MPOL\nbuffer_load_dword v{48+r}, v5, s[32:35], s41 offen MPOL')
            if r < 15: a(f's_add_u32 s41, s41, s{48 if r != 7 else 49}')
    if eg:
        gu()
        a('s_waitcnt vmcnt(0)')
        a.stamp(4)
        a.perm_x1(32, 80); a.perm_x1(40, 88); a.perm_x1(48, 96); a.perm_x1(56, 104)
    if a.o.get('m_pfw') or a.o.get('p16'): a('s_waitcnt vmcnt(0)')
    if a.o.get('tlb_m'):
        a.karg(68, 'wo'); a.srd(68, 0x400000)
        a('s_lshl_b32 s42, s4, 19\ns_mov_b64 exec, 1\nbuffer_load_dword v113, v5, s[28:31], s41 offen nt\nbuffer_load_dword v114, v5, s[32:35], s41 offen nt\nbuffer_load_dword v115, v5, s[36:39], 0 offen nt\nbuffer_load_dword v116, v5, s[24:27], 0 offen')
        a(f's_mov_b32 s44, {MODV}\nbuffer_load_dword v117, v5, s[8:11], s44 offen sc1\ns_waitcnt lgkmcnt(0)\nbuffer_load_dword v118, v5, s[68:71], s42 offen nt\ns_mov_b64 exec, -1')
    if a.o.get('dfirst'):
        a('v_lshlrev_b32 v6, 13, v4\nv_lshl_add_u32 v6, v3, 3, v6\ns_lshl_b32 s43, s59, 15\ns_add_u32 s43, s43, s40\ns_add_u32 s42, s43, 4096')
        if a.o['dfirst'] != 'none': a('s_barrier')
        for i in range(8): a(f'buffer_load_dwordx2 v[{64+2*i}:{65+2*i}], v6, s[36:39], s{43 if i<4 else 42} offen offset:{1024*(i&3)} MPOL')
    a.stamp(1)
    if a.o.get('mearly'):
        a(f's_cmp_lt_u32 s66, {a.o["mearly"]}\ns_cbranch_scc0 L_M_w')
        gu()
        a('s_barrier\nbuffer_load_ushort v8, v7, s[24:27], s40 offen\ns_branch L_M_x\nL_M_w:')
    a('s_barrier')
    a.stamp(3)
    if a.o.get('rpf') == 3: a('buffer_load_dword v22, v13, s[12:15], s62 offen FPOL')
    a('buffer_load_ushort v8, v7, s[24:27], s40 offen')
    if not eg: gu()
    if a.o.get('mearly'): a('L_M_x:')
    a('v_lshlrev_b32 v6, 13, v4\nv_lshl_add_u32 v6, v3, 3, v6\ns_lshl_b32 s43, s59, 15\ns_add_u32 s43, s43, s40\ns_add_u32 s41, s43, 4096' + ('\ns_mov_b32 s64, s43\ns_mov_b32 s65, s41' if a.o.get('dl') else ''))
    dl = a.o.get('dl')
    MV = ['buffer_load_dword v112, v17, s[8:11], s55 offen sc1', 'buffer_load_dword v113, v17, s[8:11], s55 offen offset:2048 sc1', 'buffer_load_dword v114, v17, s[8:11], s56 offen sc1']
    dt = a.o.get('dt')
    if dt: a('s_mov_b32 s64, s43\ns_mov_b32 s65, s41')
    if not dl and not a.o.get('dfirst') and not dt:
        for i in range(8): a(f'buffer_load_dwordx2 v[{64+2*i}:{65+2*i}], v6, s[36:39], s{43 if i<4 else 41} offen offset:{1024*(i&3)} MPOL')
    a(f's_lshl_b32 s42, s3, 8\ns_lshl_b32 s54, s3, 17\ns_add_u32 s54, s54, {AX}\ns_mul_i32 s55, s4, 12288\ns_add_u32 s55, s55, s42\ns_add_u32 s55, s55, {MODV + 2*2048}\ns_add_u32 s56, s55, 4096')
    if a.o.get('mv') or a.o.get('pt_m'): a('\n'.join(MV))
    a(f'v_add_u32 v13, s42, v17\nv_add_u32 v13, {WX1}, v13')
    a(f's_lshl_b32 s43, s3, 3\ns_add_u32 s43, s43, {WST}\nv_mov_b32 v14, s43\nv_and_b32 v15, 7, v1\nv_lshlrev_b32 v15, 3, v15\nv_add_u32 v15, {WST}, v15')
    a(f's_add_u32 s43, s40, {WH2}\nv_xor_b32 v16, s63, v7\nv_add_u32 v16, s43, v16\nv_add_u32 v18, s43, v9')
    a(f's_add_u32 s43, s42, {WGU}\nv_lshlrev_b32 v19, 3, v3\nv_add_u32 v19, s43, v19')
    a(f's_lshl_b32 s43, s3, 6\ns_add_u32 s43, s43, {WHH}\nv_lshlrev_b32 v10, 1, v11\nv_add_u32 v10, s43, v10\nv_add_u32 v11, s43, v9')
    a('v_lshrrev_b32 v12, 3, v3\nv_lshlrev_b32 v12, 9, v12\nv_and_b32 v20, 7, v3\nv_lshl_add_u32 v12, v20, 4, v12')
    a(f's_bfe_u32 s62, s59, 0x40001\ns_lshl_b32 s62, s62, 17\ns_lshr_b32 s42, s59, 5\ns_lshl_b32 s42, s42, 8\ns_add_u32 s62, s62, s42\ns_and_b32 s42, s59, 1\ns_lshl_b32 s42, s42, 7\ns_add_u32 s62, s62, s42\ns_lshl_b32 s42, s3, 10\ns_add_u32 s62, s62, s42\ns_add_u32 s62, s62, {DP}')
    if a.o.get('pw_d'):
        a('v_xor_b32 v28, 1, v2\nv_mov_b32 v29, v28\nv_mov_b32 v30, v28\nv_mov_b32 v31, v28\ns_mov_b64 exec, 0xffff')
        a.store2('buffer_store_dwordx4 v[28:31], v12, s[8:11], s{s} offen', 62, 42)
        a('s_mov_b64 exec, -1')
    a(f'v_mov_b32 v21, {WMODE + (4 if a.o.get("p16") else 0)}')
    if not eg:
        a(f's_waitcnt vmcnt({(0 if dl or dt or a.o.get("dfirst") else 8) + (3 if a.o.get("mv") or a.o.get("pt_m") else 0) + (2 if a.o.get("pw_d") else 0)})')
        a.stamp(4)
        a.perm_x1(32, 80); a.perm_x1(40, 88); a.perm_x1(48, 96); a.perm_x1(56, 104)
    if not dl and not dt:
        a(f's_waitcnt vmcnt({(3 if a.o.get("mv") or a.o.get("pt_m") else 0) + (2 if a.o.get("pw_d") else 0)})')
        a.perm_x2(64, 32)
    if dl == 3:
        a('s_barrier')
        for i in range(8): a(f'buffer_load_dwordx2 v[{32+2*i}:{33+2*i}], v6, s[36:39], s{64 if i<4 else 65} offen offset:{1024*(i&3)} MPOL')
        a('s_waitcnt vmcnt(0)')
    if dt:
        a('s_barrier')
        for i in range(8): a(f'buffer_load_dwordx2 v[{64+2*i}:{65+2*i}], v6, s[36:39], s{64 if i<4 else 65} offen offset:{1024*(i&3)} MPOL')
        a('s_waitcnt vmcnt(0)')
        a.perm_x2(64, 32)
    a('v_lshlrev_b32 v8, 16, v8')
    a.stamp(5)
    a.poll(MV, range(112, 115), 30, first_issued=bool(a.o.get('mv')), sleep=a.o.get('msleep'))
    a('ds_read_b32 v21, v21\nv_add_f32 v114, 1.0, v114'); a.rbf(114, 114)
    a('s_waitcnt lgkmcnt(0)\nv_readfirstlane_b32 s76, v21\ns_mov_b32 s63, 0x42800000\ns_nop 2')
    a(f's_add_u32 s54, s54, s76\ns_add_u32 s40, s54, {8*BLK}')
    if a.o.get('axgate'):
        a(f's_lshl_b32 s41, s4, 8\ns_add_u32 s41, s41, {AL}')
        a.poll(['buffer_load_dword v48, v17, s[8:11], s41 offen sc1', 'buffer_load_dword v49, v17, s[8:11], s41 offen sc1'], [48, 49], 30)
        if a.o['axgate'] > 1: a(f's_sleep {a.o["axgate"]}')
    a.stamp(6)
    if a.o.get('axl'):
        a('s_lshl_b32 s41, s4, 8\ns_add_u32 s43, s41, s40\ns_add_u32 s41, s41, s54')
        a.poll(['buffer_load_dword v48, v17, s[8:11], s41 offen sc1', 'buffer_load_dword v49, v17, s[8:11], s43 offen sc1'], [48, 49], 30, sleep=a.o.get('asleep'))
    R = list(range(48, 56)) + (list(range(60, 68)) if a.o.get('hc') else [])
    LDS_ = [f'buffer_load_dword v{r}, v17, s[8:11], s{40 if i & 1 else 54} offen offset:{256*(i>>1)} sc1' for i, r in enumerate(R)]
    if a.o.get('sel'):
        n = a.o['sel']; ng = len(R) // n
        a(f's_mov_b32 s42, {(1 << ng) - 1}\ns_mov_b32 s47, 0\nL_ax:')
        for g in range(ng):
            a(f's_bitcmp1_b32 s42, {g}\ns_cbranch_scc0 L_ax_i{g}\n' + '\n'.join(LDS_[n*g:n*g+n]) + f'\nL_ax_i{g}:')
        a(f's_add_u32 s47, s47, 1\ns_cmp_gt_u32 s47, {LIMIT}\ns_cselect_b32 s43, 0, -1')
        for g in range(ng):
            rs = R[n*g:n*g+n]
            a(f's_bitcmp1_b32 s42, {g}\ns_cbranch_scc0 L_ax_c{g}' + ('\ns_waitcnt vmcnt(0)'))
            for r in rs: a(f'v_xor_b32 v{r}, v2, v{r}')
            if n == 2: a(f'v_or_b32 v30, v{rs[0]}, v{rs[1]}')
            else: a(f'v_or3_b32 v30, v{rs[0]}, v{rs[1]}, v{rs[2]}\nv_or_b32 v30, v30, v{rs[3]}')
            a(f'v_and_b32 v30, {TMASK}, v30\nv_cmp_ne_u32 vcc, 0, v30\ns_cbranch_vccnz L_ax_c{g}\ns_bitset0_b32 s42, {g}\nL_ax_c{g}:')
        a('s_and_b32 s42, s42, s43\ns_cbranch_scc1 L_ax')
    elif a.o.get('ps'): a.poll_sum(LDS_, R, 30, 68)
    else: a.poll(LDS_, R, 30, sleep=(None if a.o.get('axl') else a.o.get('asleep')))
    a.stamp(7)
    def dn_loads():
        for i in range(8): a(f'buffer_load_dwordx2 v[{32+2*i}:{33+2*i}], v6, s[36:39], s{64 if i<4 else 65} offen offset:{1024*(i&3)} MPOL')
    if dl == 1: dn_loads()
    if a.o.get('ps'): a('v_add_f32 v48, v68, v69')
    elif a.o.get('pk'):
        for x, y in ((48, 60), (50, 62), (52, 64), (54, 66), (48, 52), (50, 54), (48, 50)): a(f'v_pk_add_f32 v[{x}:{x+1}], v[{x}:{x+1}], v[{y}:{y+1}]')
        a('v_add_f32 v48, v48, v49')
    else: a.tree_add(R)
    a.rbf(48, 48)
    a('v_mul_f32 v48, v112, v48'); a.rbf(48, 48)
    a('v_add_f32 v48, v8, v48'); a.rbf(48, 48)
    a('ds_write_b32 v13, v48\nv_readfirstlane_b32 s40, v48\ns_nop 1')
    a('v_subrev_f32 v49, s40, v48\nv_mul_f32 v50, v49, v49\ns_nop 0')
    for m in ('row_shr:1', 'row_shr:2', 'row_shr:4', 'row_shr:8'):
        a(f'v_add_f32_dpp v49, v49, v49 {m} {DPP} bound_ctrl:0\nv_add_f32_dpp v50, v50, v50 {m} {DPP} bound_ctrl:0\ns_nop 0')
    for m, rm in (('row_bcast:15', '0xa'), ('row_bcast:31', '0xc')):
        a(f'v_add_f32_dpp v49, v49, v49 {m} row_mask:{rm} bank_mask:0xf\nv_add_f32_dpp v50, v50, v50 {m} row_mask:{rm} bank_mask:0xf' + ('\ns_nop 0' if rm == '0xa' else ''))
    a('v_mul_f32 v51, 0x3c800000, v49\ns_mov_b32 exec_lo, 0\nv_fma_f32 v53, -v51, v49, v50\nv_add_f32 v52, s40, v51\ns_mov_b32 exec_hi, 0x80000000')
    a('ds_write_b64 v14, v[52:53]\ns_mov_b64 exec, -1\ns_waitcnt lgkmcnt(0)\ns_barrier')
    a('ds_read_b64 v[60:61], v15')
    if dl == 2: dn_loads()
    a('s_waitcnt lgkmcnt(0)')
    a(f'v_add_f32_dpp v49, v60, v60 row_ror:4 {DPP}')
    for k in (2, 1): a(f's_nop 1\nv_add_f32_dpp v49, v49, v49 row_ror:{k} {DPP}')
    a('v_mul_f32 v49, 0x3e000000, v49\nv_sub_f32 v60, v60, v49\nv_mul_f32 v60, v60, v60\nv_fma_f32 v61, v60, s63, v61')
    a.rbf(49, 49)
    a('v_sub_f32 v48, v48, v49')
    a(f'v_add_f32_dpp v61, v61, v61 row_ror:4 {DPP}'); a.rbf(48, 48); a('s_nop 0')
    a(f'v_add_f32_dpp v61, v61, v61 row_ror:2 {DPP}\ns_nop 1\nv_add_f32_dpp v61, v61, v61 row_ror:1 {DPP}')
    a('v_mul_f32 v61, 0x3b000000, v61'); a.rbf(61, 61)
    a(f'v_add_f32 v61, {EPS:#x}, v61'); a.rbf(61, 61)
    a('v_sqrt_f32 v61, v61\ns_nop 0'); a.rbf(61, 61)
    a.div(61, 48, 61, 62, 63); a.rbf(48, 61)
    a('v_mul_f32 v48, v48, v114'); a.rbf(48, 48)
    a('v_add_f32 v48, v48, v113'); a.rbf(48, 48)
    a('ds_write_b16_d16_hi v16, v48\nds_read_b128 v[20:23], v18\nds_read_b128 v[24:27], v18 offset:64')
    for t in range(2):
        a(f's_waitcnt lgkmcnt({1-t})')
        for m in range(4):
            b = 80 + 16*(m >> 1) + 8*t + 4*(m & 1)
            c = '0' if t == 0 else f'v[{48+4*m}:{51+4*m}]'
            a(f'v_mfma_f32_16x16x32_bf16 v[{48+4*m}:{51+4*m}], v[{20+4*t}:{23+4*t}], v[{b}:{b+3}], {c}')
    a('s_mov_b64 exec, 0xffff\ns_nop 4\nds_write2_b32 v19, v48, v52 offset1:1\ns_nop 0\nds_write2_b32 v19, v56, v60 offset0:32 offset1:33\ns_mov_b64 exec, -1\ns_waitcnt lgkmcnt(0)\ns_barrier')
    a.stamp(8)
    for i in range(4): a(f'ds_read2st64_b32 v[{48+2*i}:{49+2*i}], v17 offset0:{(WGU+512*i)//256} offset1:{(WGU+512*i+256)//256}')
    if dl:
        a('s_waitcnt vmcnt(0)')
        a.perm_x2(32, 64)
    a('s_waitcnt lgkmcnt(0)')
    a.tree8(48)
    a.rbf(48, 48)
    a('v_mov_b32 v49, v48\ns_nop 1\nv_permlane32_swap_b32 v48, v49')
    a('v_mul_f32 v48, s57, v48\nv_max_f32 v48, 0xc2fc0000, v48\nv_exp_f32 v48, -v48\ns_nop 0\nv_add_f32 v48, 1.0, v48\nv_rcp_f32 v50, v48\ns_nop 0\nv_fma_f32 v48, -v48, v50, 1.0\nv_fma_f32 v48, v48, v50, v50')
    a.rbf(48, 48)
    a('v_mul_f32 v48, v48, v49'); a.rbf(48, 48)
    a('ds_write_b16_d16_hi v10, v48\nds_read_b128 v[20:23], v11\ns_waitcnt lgkmcnt(0)')
    for jj in range(4): a(f'v_mfma_f32_16x16x32_bf16 v[{48+4*jj}:{51+4*jj}], v[20:23], v[{(64 if dl else 32)+4*jj}:{(67 if dl else 35)+4*jj}], 0')
    a('s_mov_b64 exec, 0xffff\ns_nop 3')
    for jj in range(4): a(f'v_and_or_b32 v{28+jj}, v{48+4*jj}, s46, v2')
    a.store2('buffer_store_dwordx4 v[28:31], v12, s[8:11], s{s} offen', 62, 42)
    a.stamp(9)
    if a.o.get('dpgate'): a(f's_waitcnt vmcnt({a.o["dpgate"]-1})\ns_barrier')
    a.exit()
    a('L_R:')
    if a.o.get('rq'):
        a(f'v_lshlrev_b32 v18, 3, v1\ns_lshl_b32 s54, s4, 3\ns_add_u32 s54, s54, s3\ns_lshl_b32 s55, s54, 8\ns_add_u32 s55, s55, {QV}\ns_lshl_b32 s54, s54, 12\ns_add_u32 s54, s54, {QP}\nv_mov_b32 v21, {WMODE}')
        a('s_barrier\nds_read_b32 v21, v21 offset:4\ns_waitcnt lgkmcnt(0)\nv_readfirstlane_b32 s7, v21')
        a.poll8([f'buffer_load_dwordx2 v[{32+2*i}:{33+2*i}], v18, s[8:11], s54 offen offset:{512*i} sc1' for i in range(8)], range(33, 48, 2), 30)
        a.stamp(11)
        a.tree_add(range(32, 48, 2))
        a.rbf(32, 32)
        a('v_or_b32 v32, v2, v32')
        a.store_mode('buffer_store_dword v32, v17, s[8:11], s55 offen')
        a.stamp(12)
        a.exit()
        return
    a('s_and_b32 s42, s4, 1\ns_cselect_b32 s40, 7, 1\ns_cselect_b32 s41, 0, 256\ns_sub_u32 s40, s59, s40\ns_lshl_b32 s40, s40, 6\ns_and_b32 s40, s40, 0xffffff80')
    a('s_and_b32 s42, s3, 3\ns_lshl_b32 s42, s42, 6\ns_add_u32 s41, s41, s42\ns_mul_i32 s41, s41, 3584\ns_add_u32 s40, s40, s41')
    a('v_mul_u32_u24 v5, 3584, v1')
    if a.o.get('p16'): a('s_waitcnt vmcnt(0)')
    if a.o.get('dfirst') not in (None, 'none'): a('s_barrier')
    if not a.o.get('early_gu'): a('s_barrier')
    if a.o.get('rpf') == 3: a('buffer_load_dword v22, v13, s[12:15], s62 offen FPOL')
    a('s_cmp_ge_u32 s3, 4\ns_cbranch_scc1 L_R_up\nbuffer_load_dword v8, v5, s[28:31], s40 offen MPOL\ns_branch L_R_done\nL_R_up:\nbuffer_load_dword v8, v5, s[32:35], s40 offen MPOL\nL_R_done:\ns_waitcnt vmcnt(0)')
    a.exit()

def M_comm(a):
    a.role = 'Mc'
    a('L_M_comm:')
    a.karg(64, 'out'); a.srd(64, 1024)
    if a.o.get('p16') or a.o.get('mh'):
        a('s_waitcnt lgkmcnt(0)')
        a.trigger(a.o.get('trig2'))
    else:
        a(f's_and_b32 s58, s5, 7\nv_mov_b32 v14, {WMODE}\nv_mov_b32 v15, 0\nds_write_b32 v14, v15\ns_waitcnt lgkmcnt(0)')
        a.stamp(0)
        a.mark('karg')
        a.get_tag(); a.fin_tag()
        a.mark('tag')
        a.xid_publish()
        if a.o.get('pt_q') == 3: a(f'v_lshlrev_b32 v22, 6, v1\ns_lshl_b32 s42, s4, 3\ns_add_u32 s42, s42, s58\ns_lshl_b32 s42, s42, 12\ns_add_u32 s42, s42, {QP}\nbuffer_load_dword v108, v22, s[8:11], s42 offen sc1')
        if a.o.get('sq'): a(f'v_lshlrev_b32 v22, 6, v1\ns_lshl_b32 s42, s4, 12\ns_add_u32 s42, s42, {QF}\nbuffer_load_dword v113, v22, s[8:11], s42 offen sc1')
        if a.o.get('pt_a'):
            a(f's_lshl_b32 s42, s4, 3\ns_add_u32 s42, s42, s58\ns_and_b32 s43, s42, 15\ns_lshl_b32 s43, s43, 17\ns_bfe_u32 s40, s42, 0x10004\ns_lshl_b32 s40, s40, 13\ns_add_u32 s43, s43, s40\ns_lshr_b32 s40, s42, 5\ns_lshl_b32 s40, s40, 10\ns_add_u32 s43, s43, s40\ns_add_u32 s43, s43, {AX}')
            a(f'v_and_b32 v22, 7, v1\nv_lshlrev_b32 v22, 7, v22\nbuffer_load_dword v110, v22, s[8:11], s43 offen {a.o["pt_a"]}'.replace(' plain', ''))
        if a.o.get('pt_p'):
            a(f's_lshl_b32 s42, s4, 3\ns_add_u32 s42, s42, s58\ns_and_b32 s43, s42, 15\ns_lshl_b32 s43, s43, 17\ns_lshr_b32 s40, s42, 4\ns_lshl_b32 s40, s40, 13\ns_add_u32 s43, s43, s40\ns_add_u32 s43, s43, {MODP}')
            a(f'v_lshlrev_b32 v22, 7, v1\nbuffer_load_dword v111, v22, s[8:11], s43 offen {a.o["pt_p"]}'.replace(' plain', ''))
        if a.o.get('pt_dd'):
            a(f's_lshl_b32 s42, s4, 3\ns_add_u32 s42, s42, s58\ns_and_b32 s43, s42, 15\ns_lshl_b32 s43, s43, 17\ns_lshr_b32 s40, s42, 4\ns_lshl_b32 s40, s40, 12\ns_add_u32 s43, s43, s40\ns_add_u32 s43, s43, {DP}')
            a(f'v_and_b32 v22, 31, v1\nv_lshlrev_b32 v22, 7, v22\nbuffer_load_dword v112, v22, s[8:11], s43 offen')
        if a.o.get('vd'):
            a('s_cmp_lg_u32 s58, 7\ns_cbranch_scc1 L_M_c0')
            a(a.xid_load(44))
            a.poll([a.xid_load(40, True)], range(40, 44), 30, sleep=2)
            for i in range(4): a(f'v_xor_b32 v{40+i}, v2, v{40+i}')
            a.xid_mode(40, True)
            a('s_lshl_b32 s42, s7, 10\ns_or_b32 s42, s42, s6\nv_mov_b32 v40, s42\nv_mov_b32 v41, s42\nv_mov_b32 v42, s42\nv_mov_b32 v43, s42\ns_mov_b64 exec, 1')
            a.store_mode('buffer_store_dwordx4 v[40:43], off, s[8:11], s49')
            a('s_mov_b64 exec, -1\nL_M_c0:')
        if a.o.get('vpf') == 2:
            a.trigger(a.o.get('vtrig', 'own')); a('s_barrier')
        if a.o.get('dfirst') not in (None, 'none'):
            a.trigger(a.o['dfirst']); a('s_barrier')
        a.trigger(a.o.get('trig'))
    a.mark('trig')
    if a.o.get('rq'):
        a('s_cmp_lg_u32 s58, 7\ns_cbranch_scc1 L_M_c1')
        a.poll([a.xid_load(40)], range(40, 44), 30, sleep=4)
        for i in range(4): a(f'v_xor_b32 v{40+i}, v2, v{40+i}')
        a.xid_mode(40)
        a('v_mov_b32 v15, s7\nds_write_b32 v14, v15 offset:4\ns_waitcnt lgkmcnt(0)\nL_M_c1:')
    a('s_barrier')
    a.stamp(1)
    if a.o.get('cpf2'): a('global_load_dword v23, v21, s[52:53]\nglobal_load_dword v24, v22, s[52:53]')
    if a.o.get('tlb_out'): a('v_mov_b32 v108, 0\ns_mov_b64 exec, 1\nbuffer_load_dword v109, v108, s[64:67], 0 offen\ns_mov_b64 exec, -1')
    a('s_cmp_eq_u32 s58, 7\ns_cbranch_scc1 L_M_cdone')
    a.probe(4)
    a('v_mov_b32 v15, s76\nds_write_b32 v14, v15' + (' offset:4' if a.o.get('p16') else ''))
    if a.o.get('dt'):
        a.trigger(a.o['dt']); a('s_barrier')
    a('s_cmp_ge_u32 s58, 2\ns_cbranch_scc1 L_M_cdone')
    a('s_lshl_b32 s59, s4, 1\ns_add_u32 s59, s59, s58\nv_and_b32 v10, 31, v1\nv_lshlrev_b32 v11, 1, v10\nv_lshlrev_b32 v12, 2, v10\nv_lshlrev_b32 v17, 2, v1')
    a(f's_lshl_b32 s40, s59, 6\ns_lshl_b32 s42, s59, 7\nv_add_u32 v13, s42, v12\ns_lshl_b32 s54, s59, 9\ns_add_u32 s54, s54, {DP}\ns_add_u32 s54, s54, s76')
    a(f's_mul_i32 s41, s4, 12288\ns_add_u32 s41, s41, s42\ns_add_u32 s41, s41, {MODV + 5*2048}')
    for i in range(1, 16): a(f'v_add_u32 v{64+i}, {i*BLK}, v17')
    a('v_mov_b32 v64, v17')
    if a.o.get('pt_out'): a('buffer_load_ushort v110, v11, s[64:67], s40 offen sc1')
    if a.o.get('pt_d'):
        for i in range(28): a(f'buffer_load_dword v{32+i}, v{64+(i&15)}, s[8:11], s54 offen offset:{256*(i>>4)} {a.o["pt_d"]}')
    if a.o.get('dl') == 3: a('s_barrier')
    a('s_barrier')
    a.mark('mb1')
    a(f'ds_read_b32 v28, v13 offset:{WX1}')
    GBP = lambda: a.poll(['buffer_load_dword v29, v12, s[8:11], s41 offen sc1', 'buffer_load_dword v31, v12, s[8:11], s41 offen sc1'], [29, 31], 30)
    if not a.o.get('gb2'): GBP()
    a('s_waitcnt lgkmcnt(0)\ns_barrier')
    if a.o.get('gb2'): GBP()
    a.stamp(2)
    if a.o.get('dpdelay'): a(f's_sleep {a.o["dpdelay"]}')
    if a.o.get('dpgate'): a('s_barrier')
    DPL = [f'buffer_load_dword v{32+i}, v{64+(i&15)}, s[8:11], s54 offen offset:{256*(i>>4)} sc1' for i in range(28)]
    if a.o.get('ps'): a.poll_sum(DPL, list(range(32, 60)), 30, 60)
    else: a.poll(DPL, range(32, 60), 30)
    a.stamp(3)
    if a.o.get('ps'): a('v_add_f32 v32, v60, v61')
    elif a.o.get('pk'):
        regs = list(range(32, 60, 2))
        while len(regs) > 1:
            nxt = []
            for i in range(0, len(regs) - 1, 2):
                a(f'v_pk_add_f32 v[{regs[i]}:{regs[i]+1}], v[{regs[i]}:{regs[i]+1}], v[{regs[i+1]}:{regs[i+1]+1}]'); nxt.append(regs[i])
            if len(regs) % 2: nxt.append(regs[-1])
            regs = nxt
        a('v_add_f32 v32, v32, v33')
    else: a.tree_add(range(32, 60))
    a.swap_op(32, 'v_add_f32', 32, 33)
    a.rbf(32, 32)
    a('v_mul_f32 v32, v29, v32'); a.rbf(32, 32)
    a('v_add_f32 v32, v28, v32'); a.rbf(32, 32)
    a.mark('end'); a.hold()
    a('s_mov_b32 exec_hi, 0\nbuffer_store_short_d16_hi v32, v11, s[64:67], s40 offen' + (' sc1' if a.o.get('out_wt') else ''))
    a(f's_cmp_lg_u32 s59, 0\ns_cbranch_scc1 L_M_noep\ns_mov_b64 exec, 1\nv_mov_b32 v33, s45\nv_mov_b32 v34, {EPOCH}\nbuffer_store_dword v33, v34, s[8:11], 0 offen sc1\nL_M_noep:')
    a.stamp(4)
    if a.o.get('amp'):
        a('s_waitcnt vmcnt(0)\ns_memrealtime s[98:99]\ns_waitcnt lgkmcnt(0)\ns_sub_u32 s97, s98, s96\ns_mul_i32 s97, s97, 11')
        a('L_amp:\ns_memrealtime s[98:99]\ns_waitcnt lgkmcnt(0)\ns_sub_u32 s98, s98, s96\ns_cmp_lt_u32 s98, s97\ns_cbranch_scc1 L_amp')
    a('L_M_cdone:')
    a.exit()

DOC = '; ---------------------------------------------------------------------------------------------------------------\n; One persistent launch: 256 workgroups (one per CU) x 9 waves (8 work waves + 1 communication wave).\n; group g = wg & 7 owns kv head g; idx = wg >> 3 picks the role:\n;   idx 24..30  M: LN2, 32 columns of gate/up, sigmoid(g)*u, 32 rows of w_down; slots 0,1 also reduce the output\n; Hand-offs go through d_ws; every word (or 8-byte granule) carries the launch tag = (word at d_ws[0] on entry) + 1,\n; which the last reducer writes back.  Readers poll with sc1 loads until all tags match.  Hand-offs inside a group use\n; plain stores only when all 32 workgroups of the group reported the same XCC id, else write-through (sc1) stores.\n; Cross-group hand-offs are written twice (address bit 13 clear/set); a reader picks the copy that answers faster.\n; All intermediate values are rounded to bf16 where the reference rounds them.\n; ---------------------------------------------------------------------------------------------------------------\n'
HEADER = open('adaLN_cond__sliding_block_cached__glu_gated_glu__decode.s.ref').read().split('; Override launch')[0]
def emit(fn, prof=False, opts=None):
    a = gen_all(prof, opts)
    body = a.text()
    for p in ('MPOL', 'FPOL', 'OPOL', 'KPOL', 'VPOL', 'WPOL', 'RPOL', 'UPOL'): body = body.replace(' ' + p, (' ' + a.o.get(p, 'nt')).rstrip())
    errs = lint(body)
    if errs: print('\n'.join(errs)); raise SystemExit('lint errors')
    vg = 128
    txt = f'''{HEADER}; @launch grid=(256,1,1) block=(576,1,1) lds={LDS_TOTAL}
{DOC}.amdgcn_target "amdgcn-amd-amdhsa--gfx950"
.text
.globl {NAME}
.p2align 8
.type {NAME},@function
{NAME}:
{body}.section .rodata,"a"
.p2align 6
.amdhsa_kernel {NAME}
  .amdhsa_next_free_vgpr {vg}
  .amdhsa_next_free_sgpr 100
  .amdhsa_accum_offset {vg}
  .amdhsa_group_segment_fixed_size 0
  .amdhsa_kernarg_size 112
  .amdhsa_user_sgpr_count 2
  .amdhsa_user_sgpr_kernarg_segment_ptr 1
  .amdhsa_system_sgpr_workgroup_id_x 1
.end_amdhsa_kernel
'''
    open(fn, 'w').write(txt)
BEST = dict(gb2=1, gbl='os', qa=1, ve=1, ps=1, pk=1, psame=1, pt_m=1, pt_o=1, pw_d=1, pt_q=3, RPOL='', FPOL='', MPOL='', OPOL='', kvt0=1, apf2=1, a_pfw=1, trig='h1', q1=1, split=1, kv_bar=1, dpgate=1, cwo=0, fp2=1, fgate=1, hc=1)
if __name__ == '__main__':
    emit('best.s', opts=BEST); emit('bestp.s', prof=True, opts=BEST); emit('best_amp.s', opts=dict(BEST, amp=1)); emit('best_slow.s', opts=dict(BEST, force_slow=1))
```

```python
import sys
from asmlib import Asm, KOFF, NAME
from lint import lint

BLK = 131072
EPOCH = 0; XID = 0x400; AX = 0x1000; DP = 0x4000; MODP = 0x8000; PROBE = 0x10000; COPY = 8192
QV = 0x200000; MODV = 0x204000; OS = 0x21C000; QF = 0x220000; AL = 0x230000; HV = 0x238000; VD = 0x23C000; QP = 0x240000; OP = 0x2C0000; AP = 0x300000; STAMP = 0x400000
TMASK = 0x3FF; LIMIT = 1000000
LK = 0; LV = 65536; LQ = 131072; LMX = LQ + 1152; LLS = LMX + 128; LP = LLS + 2048; LOF = LP + 2048; LZ = LOF + 64; LMODE_A = LZ + 64; LRED = (LMODE_A + 64 + 255) // 256 * 256; LDS_TOTAL = LRED + 2048
WCS = 0; WH = 1024; WMODE = 1152; WZ = 1280; WX1 = 2048; WST = 4096; WH2 = 4224; WGU = 5376; WHH = 7424; WQL = 8192
SCALE = 0x3DB504F3; LOG2E = 0x3FB8AA3B; EPS = 0x3727C5AC
DPP = 'row_mask:0xf bank_mask:0xf'

class G(Asm):
    def __init__(self, prof=False, opts=None):
        super().__init__(); self.prof = prof; self.o = opts or {}
    role = ''
    def stamp(self, slot):
        if self.o.get('hs') == (self.role, slot): self('s_memrealtime s[94:95]\ns_waitcnt lgkmcnt(0)')
        if self.prof: self(f's_memrealtime s[60:61]\ns_waitcnt lgkmcnt(0)\nv_writelane_b32 v127, s60, {slot}')
    def exit(self):
        if self.o.get('hs') and self.o['hs'][0] == self.role:
            l = self.label('H')
            self('s_waitcnt lgkmcnt(0)\ns_sub_u32 s97, s94, s96\ns_mul_i32 s97, s97, 10\ns_add_u32 s97, s97, 1500')
            self(f'{l}:\ns_memrealtime s[98:99]\ns_waitcnt lgkmcnt(0)\ns_sub_u32 s98, s98, s96\ns_cmp_lt_u32 s98, s97\ns_cbranch_scc1 {l}')
        if self.prof:
            self('v_writelane_b32 v127, s96, 13')
            self(f's_mov_b64 exec, 0xffff\ns_lshl_b32 s60, s5, 3\ns_add_u32 s60, s60, s4\ns_mul_i32 s60, s60, 9\ns_add_u32 s60, s60, s3\ns_lshl_b32 s60, s60, 6\ns_add_u32 s60, s60, {STAMP}')
            self('v_lshlrev_b32 v126, 2, v1\nbuffer_store_dword v127, v126, s[8:11], s60 offen')
        self('s_endpgm')
    def srd(self, s, nbytes): self(f's_mov_b32 s{s+2}, {nbytes:#x}\ns_mov_b32 s{s+3}, 0x20000')
    def karg(self, s, k): self(f's_load_dwordx2 s[{s}:{s+1}], s[0:1], {KOFF[k]}')
    def rbf(self, d, s): self(f'v_cvt_pk_bf16_f32 v{d}, 0, v{s}')
    def get_tag(self):
        self(f's_load_dword s45, s[8:9], {EPOCH}\ns_mov_b32 s46, {0xFFFFFFFF ^ TMASK:#x}\ns_mov_b32 s50, 0x05040100\ns_mov_b32 s51, 0x07060302')
    def fin_tag(self):
        self(f's_waitcnt lgkmcnt(0)\ns_add_u32 s45, s45, 1\ns_and_b32 s6, s45, {TMASK}\nv_mov_b32 v2, s6')
    def _loop(self, loads, check, sleep, first_issued=False):
        l = self.label('P')
        self('s_mov_b32 s47, 0')
        if first_issued: self(f's_branch {l}_w')
        self(f'{l}:')
        for x in loads: self(x)
        if first_issued: self(f'{l}_w:')
        self(f's_add_u32 s47, s47, 1\ns_cmp_gt_u32 s47, {LIMIT}\ns_cbranch_scc1 {l}_t')
        self('s_waitcnt vmcnt(0)')
        check()
        if sleep: self(f's_cbranch_vccz {l}_x\ns_sleep {sleep}\ns_branch {l}')
        else: self(f's_cbranch_vccnz {l}')
        self.tails.append(f'{l}_t:\ns_waitcnt vmcnt(0)\ns_branch {l}_x')
        self(f'{l}_x:')
    tails = None
    def poll(self, loads, regs, acc, sleep=None, first_issued=False):
        def check():
            for r in regs: self(f'v_xor_b32 v{r}, v2, v{r}')
            rs = list(regs)
            self(f'v_or_b32 v{acc}, v{rs[0]}, v{rs[1]}'); rs = rs[2:]
            while len(rs) >= 2: self(f'v_or3_b32 v{acc}, v{acc}, v{rs[0]}, v{rs[1]}'); rs = rs[2:]
            if rs: self(f'v_or_b32 v{acc}, v{acc}, v{rs[0]}')
            self(f'v_and_b32 v{acc}, {TMASK}, v{acc}\nv_cmp_ne_u32 vcc, 0, v{acc}')
        self._loop(loads, check, sleep, first_issued)
    def poll_sum(self, loads, regs, acc, out):
        l = self.label('P'); n = len(regs)
        self(f's_mov_b32 s47, 0\n{l}:')
        for x in loads: self(x)
        self(f's_add_u32 s47, s47, 1\ns_cmp_gt_u32 s47, {LIMIT}\ns_cbranch_scc1 {l}_t')
        for k in range(0, n, 4):
            r = regs[k:k+4]
            self(f's_waitcnt vmcnt({n - k - 4})')
            for x in r: self(f'v_xor_b32 v{x}, v2, v{x}')
            if k == 0: self(f'v_or_b32 v{acc}, v{r[0]}, v{r[1]}\nv_pk_add_f32 v[{out}:{out+1}], v[{r[0]}:{r[1]}], v[{r[2]}:{r[3]}]\nv_or3_b32 v{acc}, v{acc}, v{r[2]}, v{r[3]}')
            else:
                self(f'v_or3_b32 v{acc}, v{acc}, v{r[0]}, v{r[1]}\nv_or3_b32 v{acc}, v{acc}, v{r[2]}, v{r[3]}')
                if k == n - 4: self(f'v_and_b32 v{acc}, {TMASK}, v{acc}\nv_cmp_ne_u32 vcc, 0, v{acc}')
                self(f'v_pk_add_f32 v[{r[0]}:{r[1]}], v[{r[0]}:{r[1]}], v[{r[2]}:{r[3]}]\nv_pk_add_f32 v[{out}:{out+1}], v[{out}:{out+1}], v[{r[0]}:{r[1]}]')
        self(f's_cbranch_vccnz {l}')
        self.tails.append(f'{l}_t:\ns_waitcnt vmcnt(0)\ns_branch {l}_x')
        self(f'{l}_x:')
    def poll8_sum(self, loads, base, n, acc, groups):
        l = self.label('P')
        self(f's_mov_b32 s47, 0\n{l}:')
        for x in loads: self(x)
        self(f's_add_u32 s47, s47, 1\ns_cmp_gt_u32 s47, {LIMIT}\ns_cbranch_scc1 {l}_t')
        first = {i: f for f, c in groups for i in range(f, f + c)}
        for k in range(0, n, 2):
            self(f's_waitcnt vmcnt({n - k - 2})')
            if k == 0: self(f'v_xor_b32 v{acc}, s45, v{base+1}')
            else: self(f'v_bitop3_b32 v{acc}, v{acc}, v{base+2*k+1}, s45 bitop3:0xf6')
            self(f'v_bitop3_b32 v{acc}, v{acc}, v{base+2*k+3}, s45 bitop3:0xf6')
            if k == n - 2: self(f'v_cmp_ne_u32 vcc, 0, v{acc}')
            self(f'v_add_f32 v{base+2*k}, v{base+2*k}, v{base+2*k+2}')
            if first[k] != k: self(f'v_add_f32 v{base+2*first[k]}, v{base+2*first[k]}, v{base+2*k}')
        self(f's_cbranch_vccnz {l}')
        self.tails.append(f'{l}_t:\ns_waitcnt vmcnt(0)\ns_branch {l}_x')
        self(f'{l}_x:')
    def poll8(self, loads, tags, acc, sleep=None):
        def check():
            rs = list(tags)
            self(f'v_xor_b32 v{acc}, s45, v{rs[0]}')
            for r in rs[1:]: self(f'v_bitop3_b32 v{acc}, v{acc}, v{r}, s45 bitop3:0xf6')
            self(f'v_cmp_ne_u32 vcc, 0, v{acc}')
        self._loop(loads, check, sleep)
    def store_mode(self, ins):
        l = self.label('S')
        self(f's_cmp_eq_u32 s7, 1\ns_cbranch_scc0 {l}_s\n{ins}\n{l}_e:')
        self.tails.append(f'{l}_s:\n{ins} sc1\ns_branch {l}_e')
    def store2(self, ins, sreg, tmp):
        self(ins.format(s=sreg) + ' sc1')
        if not self.o.get('onecopy'): self(f's_add_u32 s{tmp}, s{sreg}, {COPY}\n' + ins.format(s=tmp) + ' sc1')
    def tree_add(self, regs):
        regs = list(regs)
        while len(regs) > 1:
            nxt = []
            for i in range(0, len(regs) - 1, 2):
                self(f'v_add_f32 v{regs[i]}, v{regs[i]}, v{regs[i+1]}'); nxt.append(regs[i])
            if len(regs) % 2: nxt.append(regs[-1])
            regs = nxt
    def tree8(self, b):
        if self.o.get('pk'):
            self(f'v_pk_add_f32 v[{b}:{b+1}], v[{b}:{b+1}], v[{b+2}:{b+3}]\nv_pk_add_f32 v[{b+4}:{b+5}], v[{b+4}:{b+5}], v[{b+6}:{b+7}]\nv_pk_add_f32 v[{b}:{b+1}], v[{b}:{b+1}], v[{b+4}:{b+5}]\nv_add_f32 v{b}, v{b}, v{b+1}')
        else: self.tree_add(range(b, b + 8))
    def swap_op(self, which, op, v, t):
        self(f'v_mov_b32 v{t}, v{v}\ns_nop 1\nv_permlane{which}_swap_b32 v{v}, v{t}\n{op} v{v}, v{v}, v{t}')
    def row_reduce(self, op, regs):
        for k in (8, 4, 2, 1):
            if len(regs) < 3: self(f's_nop {2 - len(regs) + (0 if k != 8 else 1)}')
            elif k == 8: self('s_nop 1')
            for r in regs: self(f'{op}_dpp v{r}, v{r}, v{r} row_ror:{k} {DPP}')
    def wave_reduce(self, op, regs, t):
        self.row_reduce(op, regs)
        for w in (16, 32):
            for i, r in enumerate(regs): self(f'v_mov_b32 v{t+i}, v{r}')
            self('s_nop 1')
            for i, r in enumerate(regs): self(f'v_permlane{w}_swap_b32 v{r}, v{t+i}')
            for i, r in enumerate(regs): self(f'{op} v{r}, v{r}, v{t+i}')
    def div(self, q, n, d, r, t):
        self(f'v_rcp_f32 v{r}, v{d}\ns_nop 0\nv_mul_f32 v{t}, v{n}, v{r}\nv_fma_f32 v{q}, -v{t}, v{d}, v{n}\nv_fma_f32 v{q}, v{q}, v{r}, v{t}')
    def xid_publish(self):
        self('s_getreg_b32 s44, hwreg(HW_REG_XCC_ID)\ns_and_b32 s44, s44, 0xffff\ns_lshl_b32 s44, s44, 16\ns_or_b32 s44, s44, s6')
        self('v_mov_b32 v4, s44\nv_mov_b32 v5, s44\nv_mov_b32 v6, s44\nv_mov_b32 v7, s44\nv_mov_b32 v8, 0')
        self(f's_lshl_b32 s48, s4, 8\ns_add_u32 s48, s48, {XID}\ns_and_b32 s49, s5, 15\ns_lshl_b32 s49, s49, 17\ns_add_u32 s49, s49, s48\ns_lshr_b32 s42, s5, 4\ns_lshl_b32 s42, s42, 7\ns_add_u32 s49, s49, s42')
        self('s_mov_b64 exec, 1\nbuffer_store_dwordx4 v[4:7], v8, s[8:11], s49 offen sc1\ns_mov_b64 exec, -1')
        self('v_and_b32 v3, 15, v1\nv_lshlrev_b32 v3, 17, v3\nv_bfe_u32 v8, v1, 4, 1\nv_lshl_add_u32 v3, v8, 7, v3')
        if self.o.get('vd'): self(f's_lshl_b32 s49, s4, 7\ns_add_u32 s49, s49, {VD}')
    def xid_load(self, r, full=False):
        if self.o.get('vd') and not full: return f'buffer_load_dwordx4 v[{r}:{r+3}], off, s[8:11], s49 sc1'
        return f'buffer_load_dwordx4 v[{r}:{r+3}], v3, s[8:11], s48 offen sc1'
    def xid_mode(self, r, full=False):
        if self.o.get('vd') and not full:
            self(f's_or_b32 s44, s6, 0x400')
        for i in range(4): self(f'v_xor_b32 v{r+i}, s44, v{r+i}')
        self(f'v_or3_b32 v{r}, v{r}, v{r+1}, v{r+2}\nv_or_b32 v{r}, v{r}, v{r+3}\nv_cmp_ne_u32 vcc, 0, v{r}\ns_nop 1\ns_cmp_eq_u64 vcc, 0\ns_cselect_b32 s7, 1, 0')
        if self.o.get('force_slow'): self('s_mov_b32 s7, 0')
    def probe(self, rounds):
        if self.o.get('onecopy') or self.o.get('noprobe'):
            self(f's_mov_b32 s76, {COPY if self.o.get("noprobe") == 2 else 0}'); return
        self(f's_and_b32 s42, s5, 15\ns_lshl_b32 s42, s42, 17\ns_lshl_b32 s43, s4, 10\ns_add_u32 s42, s42, s43\ns_add_u32 s42, s42, {PROBE}\ns_add_u32 s78, s8, s42\ns_addc_u32 s79, s9, 0')
        same = self.o.get('psame')
        if same: self(f's_mov_b32 s76, -1\ns_mov_b32 s77, -1\ns_load_dword s42, s[78:79], 0 glc\ns_load_dword s43, s[78:79], {COPY} glc\ns_waitcnt lgkmcnt(0)')
        else: self('s_mov_b32 s76, -1\ns_mov_b32 s77, -1\ns_load_dword s42, s[78:79], 896 glc\ns_waitcnt lgkmcnt(0)')
        for k in range(rounds):
            for side in range(2):
                self(f's_memtime s[72:73]\ns_waitcnt lgkmcnt(0)\ns_load_dword s42, s[78:79], {(0 if same else 128*k) + COPY*side} glc\ns_waitcnt lgkmcnt(0)\ns_memtime s[74:75]\ns_waitcnt lgkmcnt(0)')
                self(f's_sub_u32 s74, s74, s72\ns_min_u32 s{76+side}, s{76+side}, s74')
        if self.prof: self('v_writelane_b32 v127, s76, 14\nv_writelane_b32 v127, s77, 15')
        self(f's_cmp_lt_u32 s77, s76\ns_cselect_b32 s76, {COPY}, 0')
    def prefetch_code(self, r):
        self(f's_getpc_b64 s[52:53]\nL_pc:')
        self(f's_sub_u32 s52, s52, L_pc-{NAME}\ns_subb_u32 s53, s53, 0')
        self(f'v_lshlrev_b32 v{r}, 7, v1')
        for k in range(2):
            self(f'v_add_u32 v{r+1+k}, {k*8192}, v{r}\nv_min_u32 v{r+1+k}, L_code_end-{NAME}-4, v{r+1+k}')
            self(f'global_load_dword v{r+3+k}, v{r+1+k}, s[52:53]')
    def perm_x2(self, src, dst):
        for jj in range(4):
            for d in range(4): self(f'v_perm_b32 v{dst+4*jj+d}, v{src+2*(2*d+1)+(jj>>1)}, v{src+2*(2*d)+(jj>>1)}, s{50+(jj&1)}')
    def perm_x1(self, src, dst):
        for jj in range(2):
            for d in range(4): self(f'v_perm_b32 v{dst+4*jj+d}, v{src+2*d+1}, v{src+2*d}, s{50+jj}')
    def tr_addr(self, base, dst, sh=13):
        self('v_bfe_u32 v18, v1, 1, 1\nv_and_b32 v28, 1, v1\nv_and_b32 v29, 1, v4\nv_lshl_add_u32 v29, v29, 2, v5\nv_lshlrev_b32 v29, 1, v29\nv_xor_b32 v29, v29, v18')
        self('v_lshlrev_b32 v29, 4, v29\nv_lshl_add_u32 v29, v28, 3, v29\nv_lshl_add_u32 v29, v5, 10, v29\n' + f'v_lshl_add_u32 v29, v4, {sh}, v29')
        self('s_lshl_b32 s42, s3, 7\nv_xor_b32 v29, s42, v29')
        if base: self(f'v_add_u32 v29, {base}, v29')
        for jj in range(4): self(f'v_xor_b32 v{dst+jj}, {32*jj}, v29')
    def mask_addr(self, frag, zero, dst):
        self(f'v_lshlrev_b32 v28, 4, v4\nv_add_u32 v28, {frag}, v28\nv_mov_b32 v29, {zero}')
        for jj in range(4): self(f'v_cmp_eq_u32 vcc, {jj}, v5\ns_nop 1\nv_cndmask_b32 v{dst+jj}, v29, v28, vcc')
    def modp_base(self, d, cb):
        self(f's_and_b32 s{d}, s{cb}, 15\ns_lshl_b32 s{d}, s{d}, 17\ns_bfe_u32 s42, s{cb}, 0x20004\ns_lshl_b32 s42, s42, 11\ns_add_u32 s{d}, s{d}, s42\ns_lshr_b32 s42, s{cb}, 6\ns_lshl_b32 s42, s42, 14\ns_add_u32 s{d}, s{d}, s42\ns_add_u32 s{d}, s{d}, {MODP}')
    def silu_frag(self, nvm):
        self('s_lshl_b32 s42, s3, 7\nv_add_u32 v13, s42, v7\nv_add_u32 v14, s42, v9')
        self(f's_waitcnt vmcnt({nvm})')
        self('v_lshlrev_b32 v8, 16, v8\nv_mul_f32 v15, s57, v8\nv_max_f32 v15, 0xc2fc0000, v15\nv_exp_f32 v15, -v15\ns_nop 0\nv_add_f32 v15, 1.0, v15')
        self.div(15, 8, 15, 16, 18)
        self.rbf(15, 15)
        self('ds_write_b16_d16_hi v13, v15\nds_read_b128 v[20:23], v14\nds_read_b128 v[24:27], v14 offset:64')
    def mod_loads(self, pol='FPOL'):
        for r in range(16):
            self(f'buffer_load_dword v{32+r}, v5, s[12:15], s41 offen {pol}')
            if r < 15: self(f's_add_u32 s41, s41, {6144 if r != 7 else 6144*25}')
    def mod_partial(self, two=False):
        self.perm_x1(32, 48); self.perm_x1(40, 56)
        self('s_waitcnt lgkmcnt(0)')
        for t in range(2):
            for jj in range(2):
                c = '0' if t == 0 else f'v[{32+4*jj}:{35+4*jj}]'
                self(f'v_mfma_f32_16x16x32_bf16 v[{32+4*jj}:{35+4*jj}], v[{20+4*t}:{23+4*t}], v[{48+8*t+4*jj}:{51+8*t+4*jj}], {c}')
        self('v_lshlrev_b32 v15, 4, v3\ns_lshl_b32 s42, s4, 8\ns_add_u32 s42, s42, s55\nv_mov_b32 v29, s45\nv_mov_b32 v31, s45\ns_mov_b64 exec, 0xffff\ns_nop 0')
        self('v_mov_b32 v28, v32\nv_mov_b32 v30, v36')
        if self.o.get('fprobe') or two: self.store2('buffer_store_dwordx4 v[28:31], v15, s[8:11], s{s} offen', 42, 43)
        else: self('buffer_store_dwordx4 v[28:31], v15, s[8:11], s42 offen sc1')
        self('s_mov_b64 exec, -1')
    def trigger(self, kind):
        if kind == 'os':
            self(f'v_lshlrev_b32 v9, 4, v1\ns_lshl_b32 s40, s4, 10\ns_add_u32 s40, s40, {OS}')
            self.poll(['buffer_load_dwordx4 v[32:35], v9, s[8:11], s40 offen sc1'], range(32, 36), 30, sleep=2)
        elif kind == 'h1':
            self(f'v_and_b32 v9, 7, v1\nv_lshlrev_b32 v9, 8, v9\ns_lshl_b32 s40, s58, 18\ns_add_u32 s40, s40, {MODP}')
            self.poll8(['buffer_load_dwordx2 v[32:33], v9, s[8:11], s40 offen sc1'], [33], 30, sleep=2)
        elif kind == 'os1':
            self(f'v_mov_b32 v9, 0\ns_lshl_b32 s40, s4, 10\ns_lshl_b32 s42, s58, 4\ns_add_u32 s40, s40, s42\ns_add_u32 s40, s40, {OS}')
            self.poll(['buffer_load_dwordx4 v[32:35], v9, s[8:11], s40 offen sc1'], range(32, 36), 30, sleep=2)
        elif kind == 'qp':
            self(f'v_and_b32 v9, 7, v1\nv_lshlrev_b32 v9, 9, v9\ns_lshl_b32 s40, s4, 3\ns_add_u32 s40, s40, s58\ns_lshl_b32 s40, s40, 12\ns_add_u32 s40, s40, {QP}')
            self.poll8(['buffer_load_dwordx2 v[32:33], v9, s[8:11], s40 offen sc1'], [33], 30, sleep=2)
        elif kind == 'own':
            self(f'v_mov_b32 v9, 0\ns_lshl_b32 s40, s58, 18\ns_lshl_b32 s42, s4, 8\ns_add_u32 s40, s40, s42\ns_add_u32 s40, s40, {MODP}')
            self.poll8(['buffer_load_dwordx2 v[32:33], v9, s[8:11], s40 offen sc1'], [33], 30, sleep=2)
        elif kind == 'q':
            self(f'v_lshlrev_b32 v9, 4, v1\ns_lshl_b32 s40, s4, 11\ns_add_u32 s40, s40, {QV}')
            self.poll(['buffer_load_dwordx4 v[32:35], v9, s[8:11], s40 offen sc1', 'buffer_load_dwordx4 v[36:39], v9, s[8:11], s40 offen offset:1024 sc1'], range(32, 40), 30, sleep=2)
    def mark(self, name):
        if self.o.get('hold') == name: self('s_memrealtime s[96:97]\ns_waitcnt lgkmcnt(0)')
    def hold(self):
        if self.o.get('hold'): self('L_hold:\ns_memrealtime s[98:99]\ns_waitcnt lgkmcnt(0)\ns_sub_u32 s98, s98, s96\ns_cmp_lt_u32 s98, 2000\ns_cbranch_scc1 L_hold')
    def wo_row(self, r):
        if self.o.get('hc'):
            self(f'buffer_load_dwordx4 v{108+(r&1)}, s[20:23], s58 offen offset:{1024*r} OPOL lds' + ('\ns_add_u32 s58, s58, 7168' if r < 3 else ''))
        else: self(f'buffer_load_dwordx4 v{108+r}, s[20:23], s58 offen offset:{1024*r} OPOL lds')
    def combine(self, vs, vd, ss, sd, pre=None):
        D = [f'buffer_load_dwordx4 v[48:51], v{vd}, s[8:11], s{sd} offen sc1', f'buffer_load_dwordx4 v[52:55], v{vd}, s[8:11], s{sd} offen offset:1024 sc1']
        S = f'buffer_load_dwordx4 v[56:59], v{vs}, s[8:11], s{ss} offen sc1'
        if self.o.get('se'):
            l = self.label('P')
            self(f's_mov_b32 s47, 0\n{l}:\n{S}\n' + '\n'.join(D) + f'\ns_add_u32 s47, s47, 1\ns_cmp_gt_u32 s47, {LIMIT}\ns_cbranch_scc1 {l}_x\ns_waitcnt vmcnt(2)')
            for r in range(56, 60): self(f'v_xor_b32 v{r}, v2, v{r}')
            self(f'v_or3_b32 v30, v56, v57, v58\nv_or_b32 v30, v30, v59\nv_and_b32 v30, {TMASK}, v30\nv_cmp_ne_u32 vcc, 0, v30\ns_cbranch_vccnz {l}\n{l}_x:')
        else:
            self.poll([S], range(56, 60), 30, sleep=self.o.get('ssleep'))
            self('\n'.join(D))
        if pre: pre()
        self(f'v_max_f32_dpp v58, v56, v56 row_ror:8 {DPP}')
        for k in (4, 2, 1): self(f's_nop 1\nv_max_f32_dpp v58, v58, v58 row_ror:{k} {DPP}')
        self('v_sub_f32 v56, v56, v58\nv_mul_f32 v56, s57, v56\nv_exp_f32 v56, v56\ns_nop 0\nv_mul_f32 v57, v56, v57')
        for k in (8, 4, 2, 1): self(f's_nop 1\nv_add_f32_dpp v57, v57, v57 row_ror:{k} {DPP}')
        self('v_rcp_f32 v57, v57\ns_nop 0\nv_mul_f32 v56, v56, v57')
        self.poll(D, range(48, 56), 30, first_issued=True)
        self.stamp(3 if self.role == 'Ac' else 6)
        for r in range(48, 56, 2): self(f'v_pk_mul_f32 v[{r}:{r+1}], v[{r}:{r+1}], v[56:57] op_sel_hi:[1,0]')
        for k in (8, 4, 2, 1):
            for r in range(48, 56): self(f'v_add_f32_dpp v{r}, v{r}, v{r} row_ror:{k} {DPP}')
        for d in range(4): self(f'v_cvt_pk_bf16_f32 v{32+d}, v{48+2*d}, v{49+2*d}')
    def flush_tails(self):
        for t in self.tails: self(t)
        self.tails = []

def gen_all(prof=False, opts=None):
    a = G(prof, opts); a.tails = []
    a('s_cmp_ge_u32 s2, 256\ns_cbranch_scc1 L_exit')
    a.mark('entry')
    if a.o.get('hs') or a.o.get('amp'): a('s_memrealtime s[96:97]\ns_memrealtime s[94:95]')
    if prof: a('s_memrealtime s[96:97]')
    a.karg(8, 'ws')
    if not a.o.get('nokt'): a('s_load_dword s62, s[0:1], 0')
    a('s_and_b32 s4, s2, 7\ns_lshr_b32 s5, s2, 3\nv_lshrrev_b32 v2, 6, v0\nv_and_b32 v1, 63, v0')
    if a.o.get('ffirst'): a('s_add_u32 s7, s5, 16\ns_sub_u32 s42, s5, 8\ns_cmp_lt_u32 s5, 8\ns_cselect_b32 s42, s7, s42\ns_cmp_lt_u32 s5, 24\ns_cselect_b32 s5, s42, s5')
    a('s_mov_b32 s7, 0\nv_readfirstlane_b32 s3, v2')
    a.srd(8, 0x10000000)
    if prof: a('v_mov_b32 v127, 0')
    a('v_and_b32 v3, 15, v1\nv_lshrrev_b32 v4, 4, v1')
    a('s_cmp_lg_u32 s3, 8\ns_cbranch_scc1 L_work')
    if a.o.get('tlb0'):
        a('s_load_dwordx4 s[24:27], s[0:1], 24\ns_load_dwordx8 s[28:35], s[0:1], 48\ns_load_dwordx4 s[36:39], s[0:1], 80')
    if not a.o.get('nocpf'): a.prefetch_code(20)
    a('s_setprio 3')
    if a.o.get('tlb0'):
        a('s_lshl_b32 s42, s4, 19\nv_mov_b32 v26, 0\nv_mov_b32 v27, 0x200000\nv_mov_b32 v28, s42\ns_mov_b64 exec, 1\ns_waitcnt lgkmcnt(0)')
        for i, (p, v) in enumerate(((8, 26), (8, 27), (26, 28), (28, 26), (30, 26), (32, 26), (38, 26), (24, 26), (24, 27))):
            a(f'global_load_dword v{108+i}, v{v}, s[{p}:{p+1}]')
        a('s_mov_b64 exec, -1')
    if a.o.get('mh'): a('s_cmp_lt_u32 s5, 16\ns_cbranch_scc1 L_A_comm\ns_cmp_lt_u32 s5, 24\ns_cbranch_scc1 L_F_comm2')
    elif not a.o.get('p16'): a('s_cmp_ge_u32 s5, 24\ns_cbranch_scc1 L_M_comm')
    if not a.o.get('mh'): a('s_cmp_lt_u32 s5, 16\ns_cbranch_scc1 L_A_comm')
    a('s_branch L_F_comm')
    a('L_work:')
    a('s_cmp_lt_u32 s5, 16\ns_cbranch_scc1 L_Ai')
    FM_issue(a)
    F_early(a)
    a('s_branch L_F_j')
    a('L_Ai:')
    A_issue(a)
    a('s_branch L_A')
    if not a.o.get('p16'): M_early(a)
    for f in (F_body, F_comm, A_comm, A_body, M_body, M_comm):
        f(a); a.flush_tails()
    a('L_exit:\ns_endpgm\nL_code_end:')
    return a

def A_issue(a):
    a.role = 'A'
    a.karg(20, 'wq'); a.karg(12, 'k'); a.karg(16, 'v')
    a.srd(12, 0x2000000); a.srd(16, 0x2000000); a.srd(20, 0x400000)
    a('v_bfe_u32 v14, v1, 3, 1\nv_lshlrev_b32 v14, 13, v14\nv_and_b32 v6, 7, v1\nv_lshl_add_u32 v14, v6, 7, v14\nv_lshl_add_u32 v14, v4, 5, v14')
    a('s_lshr_b32 s44, s5, 1\ns_lshl_b32 s44, s44, 5\ns_and_b32 s41, s5, 1\ns_lshl_b32 s41, s41, 3\ns_add_u32 s44, s44, s41\ns_add_u32 s44, s44, s3\ns_lshl_b32 s44, s44, 14\ns_lshl_b32 s41, s4, 10\ns_add_u32 s44, s44, s41')
    a('v_lshlrev_b32 v5, 8, v4')
    for i in range(4): a(f'v_add_u32 v6, {4*i}, v4\nv_xor_b32 v6, v6, v3\nv_lshl_add_u32 v{8+i}, v6, 4, v5')
    for i in range(2): a(f'v_add_u32 v6, {4*i}, v4\nv_lshlrev_b32 v6, 1, v6\nv_xor_b32 v6, v6, v3\nv_lshl_add_u32 v{12+i}, v6, 4, v5')
    a(f's_lshl_b32 s40, s4, 22\ns_lshl_b32 s41, s5, 16\ns_add_u32 s40, s40, s41\ns_lshl_b32 s41, s3, 13\ns_add_u32 s40, s40, s41\ns_add_u32 s40, s40, {3<<20}\ns_add_u32 s43, s40, 4096\ns_mov_b32 m0, s41')
    a('s_waitcnt lgkmcnt(0)')
    a.stamp(0)
    a.get_tag()
    if a.o.get('kvt0'): a('s_mov_b64 exec, 1\nbuffer_load_dword v105, v8, s[12:15], s40 offen KPOL\nbuffer_load_dword v106, v8, s[16:19], s40 offen KPOL\nbuffer_load_dword v107, v14, s[20:23], s44 offen FPOL\ns_mov_b64 exec, -1')
    if a.o.get('a_tagw'): a.fin_tag()
    if a.o.get('a_tw'): a('s_waitcnt vmcnt(0)')
    if a.o.get('early'):
        a(f's_lshr_b32 s42, {a.o["early"]}, s3\ns_and_b32 s42, s42, 1\ns_cbranch_scc1 L_A_early')
    if not a.o.get('noapf'): a('buffer_load_dword v104, v14, s[20:23], s44 offen FPOL')
    if a.o.get('early_gu') or a.o.get('apf2'): a('s_add_u32 s44, s44, 262144\nbuffer_load_dword v120, v14, s[20:23], s44 offen FPOL')
    if a.o.get('kvt'): a('s_mov_b64 exec, 1\nbuffer_load_dword v105, v8, s[12:15], s40 offen KPOL\nbuffer_load_dword v106, v8, s[16:19], s40 offen KPOL\ns_mov_b64 exec, -1')
    if a.o.get('a_pfw'): a(f's_waitcnt vmcnt({2 if a.o.get("kvt") == 2 else 0})')
    for k in range(a.o.get('a_dly', 0)): a('s_mov_b64 exec, 1\nbuffer_load_dword v104, v14, s[20:23], s44 offen sc1\ns_mov_b64 exec, -1\ns_waitcnt vmcnt(0)')
    if a.o.get('early'):
        a('s_branch L_A_go\nL_A_early:\nbuffer_load_dword v104, v14, s[20:23], s44 offen FPOL\nL_A_go:')
    a.stamp(8)
    for kv in range(2):
        if kv == 1 and a.o.get('kv_bar'): a('s_barrier')
        for i in range(8):
            if i == 4 or (kv == 1 and i == 0): a(f's_add_u32 m0, s41, {LV*kv + 4096*(i>>2)}\ns_nop 0')
            vo = 8 + (i & 3) if kv == 0 else 12 + (i & 1)
            a(f'buffer_load_dwordx4 v{vo}, s[{12+4*kv}:{15+4*kv}], s{40 if i < 4 else 43} offen offset:{1024*(i&3)} {"KPOL" if kv == 0 else ("VPOL" if i < 4 else "WPOL")} lds')

def A_body(a):
    a.role = 'A'
    a('L_A:')
    a.stamp(10)
    a('v_xor_b32 v6, v4, v3\nv_lshlrev_b32 v6, 4, v6\nv_lshl_add_u32 v6, v3, 8, v6\nv_add_u32 v6, s41, v6')
    for jj in range(4): a(f'v_xor_b32 v{8+jj}, {64*jj}, v6')
    a(f'v_and_b32 v7, 3, v1\nv_mul_u32_u24 v12, 272, v7\nv_lshl_add_u32 v12, v4, 4, v12\nv_add_u32 v12, {LQ}, v12')
    a(f'v_lshlrev_b32 v13, 5, v7\nv_add_u32 v13, {LMX}, v13\ns_lshl_b32 s42, s3, 2\nv_add_u32 v14, s42, v13')
    a(f'v_lshlrev_b32 v16, 6, v4\nv_add_u32 v16, {LP}, v16\nv_lshl_add_u32 v15, v3, 4, v16\ns_lshl_b32 s42, s3, 8\nv_add_u32 v15, s42, v15')
    a('v_lshrrev_b32 v5, 2, v3\nv_lshl_add_u32 v16, v5, 4, v16')
    a('v_lshrrev_b32 v6, 2, v1\nv_and_b32 v17, 7, v6\nv_lshlrev_b32 v17, 1, v17\nv_bfe_u32 v18, v1, 1, 1\ns_lshl_b32 s42, s3, 1\nv_add_u32 v21, s42, v18\nv_xor_b32 v17, v17, v21')
    a(f'v_lshlrev_b32 v17, 4, v17\nv_lshl_add_u32 v17, v6, 8, v17\nv_and_b32 v21, 1, v1\nv_lshl_add_u32 v17, v21, 3, v17\nv_add_u32 v17, {LV}, v17')
    hc = a.o.get('hc')
    if hc:
        a('v_bfe_u32 v18, v1, 1, 1\nv_bfe_u32 v28, v1, 3, 1\nv_and_b32 v29, 1, v4\nv_lshl_add_u32 v28, v29, 1, v28\nv_lshlrev_b32 v28, 1, v28\nv_xor_b32 v28, v28, v18\nv_lshlrev_b32 v28, 4, v28')
        a('v_and_b32 v29, 1, v1\nv_lshl_add_u32 v28, v29, 3, v28\nv_lshl_add_u32 v28, v5, 7, v28\nv_lshl_add_u32 v28, v4, 10, v28\nv_add_u32 v28, s41, v28')
        for jj in range(4): a(f'v_xor_b32 v{96+jj}, {32*jj}, v28')
        a(f'v_lshlrev_b32 v100, 4, v1\nv_lshlrev_b32 v101, 4, v3\nv_lshlrev_b32 v102, 2, v3\ns_lshl_b32 s42, s3, 8\ns_add_u32 s42, s42, {LRED}\nv_add_u32 v102, s42, v102')
        a(f's_and_b32 s42, s5, 1\ns_lshl_b32 s42, s42, 3\ns_add_u32 s42, s42, s3\ns_lshl_b32 s48, s4, 4\ns_add_u32 s48, s48, s42\ns_lshl_b32 s48, s48, 11\ns_add_u32 s48, s48, {OP}')
        a(f's_lshr_b32 s42, s42, 2\ns_lshl_b32 s49, s4, 2\ns_add_u32 s49, s49, s42\ns_lshl_b32 s49, s49, 8\ns_add_u32 s49, s49, {OS}')
    else:
        a.tr_addr(LK, 96, 14 if a.o.get('cwo') is not None else 13); a.mask_addr(LOF, LZ, 100)
    a('s_and_b32 s42, s3, 1\ns_lshl_b32 s42, s42, 9\nv_bfe_u32 v6, v3, 2, 1\nv_lshlrev_b32 v19, 10, v6\nv_lshrrev_b32 v6, 3, v3\nv_lshl_add_u32 v19, v6, 8, v19')
    a('v_lshl_add_u32 v19, v7, 2, v19\nv_lshl_add_u32 v19, v4, 13, v19\nv_add_u32 v19, s42, v19')
    a(f's_lshl_b32 s54, s4, 4\ns_lshr_b32 s42, s3, 1\ns_add_u32 s54, s54, s42\ns_lshl_b32 s54, s54, 11\ns_lshl_b32 s42, s5, 4\ns_add_u32 s54, s54, s42\ns_add_u32 s54, s54, {OP}')
    a('v_lshrrev_b32 v6, 5, v1\nv_and_b32 v20, 31, v1\nv_lshlrev_b32 v20, 2, v20\nv_lshl_add_u32 v20, v6, 11, v20')
    a(f's_lshl_b32 s55, s4, 3\ns_add_u32 s55, s55, s3\ns_lshl_b32 s55, s55, 12\ns_lshl_b32 s42, s5, 7\ns_add_u32 s55, s55, s42\ns_add_u32 s55, s55, {AP}')
    a(f'v_mov_b32 v22, {LMODE_A}\nv_lshlrev_b32 v21, 5, v4\nv_add_u32 v21, {LMX}, v21')
    if a.o.get('cwo') is not None:
        a.karg(20, 'wo')
    if hc:
        a('v_and_b32 v6, 7, v1\nv_bfe_u32 v28, v1, 4, 1\nv_lshlrev_b32 v28, 1, v28\nv_xor_b32 v6, v6, v28\nv_lshlrev_b32 v6, 4, v6\nv_lshrrev_b32 v28, 3, v1\nv_lshl_add_u32 v108, v28, 10, v6\nv_xor_b32 v109, 64, v108')
        a('s_lshl_b32 s58, s4, 1\ns_and_b32 s42, s5, 1\ns_add_u32 s58, s58, s42\ns_lshl_b32 s58, s58, 3\ns_add_u32 s58, s58, s3\ns_lshl_b32 s58, s58, 15\ns_lshr_b32 s42, s5, 1\ns_lshl_b32 s42, s42, 7\ns_add_u32 s58, s58, s42\ns_mov_b32 s59, s41\ns_waitcnt lgkmcnt(0)')
    elif a.o.get('cwo') is not None:
        a('s_and_b32 s42, s3, 2\ns_lshl_b32 s42, s42, 2\nv_xor_b32 v6, s42, v1')
        for r in range(4): a(f'v_xor_b32 v{108+r}, {2*r}, v6\nv_lshlrev_b32 v{108+r}, 4, v{108+r}')
        a('s_lshl_b32 s58, s4, 19\ns_lshl_b32 s42, s5, 15\ns_add_u32 s58, s58, s42\ns_lshl_b32 s59, s3, 12\ns_add_u32 s58, s58, s59\ns_lshl_b32 s59, s3, 13\ns_waitcnt lgkmcnt(0)')
    qa = a.o.get('qa')
    if qa:
        a(f'v_mul_u32_u24 v12, 272, v5\nv_lshl_add_u32 v12, v4, 4, v12\nv_add_u32 v12, {LQ}, v12')
        a(f's_lshl_b32 s42, s3, 2\nv_add_u32 v14, s42, v21')
        a(f'v_lshlrev_b32 v15, 6, v5\nv_lshl_add_u32 v15, v4, 4, v15\nv_lshl_add_u32 v15, v7, 1, v15\ns_lshl_b32 s42, s3, 8\ns_add_u32 s43, s42, {LP}\nv_add_u32 v15, s43, v15')
        a(f'v_lshlrev_b32 v110, 2, v1\ns_add_u32 s43, s42, {LLS}\nv_add_u32 v110, s43, v110')
    else: a(f'v_lshlrev_b32 v110, 7, v7\nv_lshl_add_u32 v110, v4, 2, v110\ns_lshl_b32 s42, s3, 4\ns_add_u32 s42, s42, {LLS}\nv_add_u32 v110, s42, v110')
    a(f's_mov_b32 s56, {SCALE:#x}\ns_mov_b32 s57, {LOG2E:#x}')
    if not a.o.get('a_tagw'): a.fin_tag()
    if a.o.get('sq'):
        a(f's_lshl_b32 s62, s4, 11\ns_lshl_b32 s63, s3, 8\ns_add_u32 s62, s62, s63\ns_add_u32 s62, s62, {QV}\ns_add_u32 s62, s8, s62\ns_addc_u32 s63, s9, 0')
        a(f's_lshr_b32 s42, s3, 1\ns_mul_i32 s42, s42, 272\ns_and_b32 s43, s3, 1\ns_lshl_b32 s43, s43, 7\ns_add_u32 s42, s42, s43\ns_add_u32 s42, s42, {LQ}\nv_lshlrev_b32 v105, 1, v1\nv_add_u32 v105, s42, v105')
        QR = (24, 64, 80)
        a('s_barrier\ns_barrier')
        LD = lambda g: '\n'.join([f's_load_dwordx16 s[{r}:{r+15}], s[62:63], {64*i}{g}' for i, r in enumerate(QR)] + [f's_load_dwordx8 s[12:19], s[62:63], 192{g}', f's_load_dwordx4 s[40:43], s[62:63], 224{g}', f's_load_dwordx2 s[52:53], s[62:63], 240{g}', f's_load_dwordx2 s[50:51], s[62:63], 248{g}'])
        REGS = [r + k for r in QR for k in range(16)] + list(range(12, 20)) + [40, 41, 42, 43, 52, 53, 50, 51]
        a(LD(''))
        a('s_mov_b32 s47, 0\nL_q:\ns_waitcnt lgkmcnt(0)')
        for i, r in enumerate(REGS): a(f'v_writelane_b32 v106, s{r}, {i}')
        a(f'v_xor_b32 v106, v2, v106\nv_and_b32 v107, {TMASK}, v106\nv_cmp_ne_u32 vcc, 0, v107\ns_cbranch_vccnz L_q_retry\nL_q_ok:')
        a.tails.append(f'L_q_retry:\ns_add_u32 s47, s47, 1\ns_cmp_gt_u32 s47, {LIMIT}\ns_cbranch_scc1 L_q_ok\n' + LD(' glc') + '\ns_branch L_q')
        a('ds_write_b16_d16_hi v105, v106')
        a.stamp(11)
    a('s_waitcnt vmcnt(8)')
    a.stamp(1)
    for t in range(2):
        for jj in range(4): a(f'ds_read_b128 v[{32+16*t+4*jj}:{35+16*t+4*jj}], v{8+jj} offset:{4096*t}')
    if a.o.get('vstamp'): a('s_waitcnt vmcnt(0)'); a.stamp(9)
    ne = a.o.get('wo_early', 0)
    a('s_waitcnt lgkmcnt(0)')
    if ne:
        a('s_mov_b32 m0, s59\ns_nop 0')
        for r in range(ne): a.wo_row(r)
    ve = a.o.get('ve')
    if ve: a(f's_waitcnt vmcnt({ne})'); a.stamp(4)
    a('s_barrier')
    a.stamp(2)
    def wo_dma(pos):
        if a.o.get('cwo') == pos:
            a('s_mov_b32 m0, s59\ns_nop 0')
            for r in range(ne, 4): a.wo_row(r)
    for jj in range(4): a(f'ds_read_b128 v[{64+4*jj}:{67+4*jj}], v12 offset:{64*jj}')
    wo_dma(0)
    for jj in range(4):
        a(f's_waitcnt lgkmcnt({3-jj})')
        for t in range(2):
            c = '0' if jj == 0 else f'v[{24+4*t}:{27+4*t}]'
            kf = f'v[{32+16*t+4*jj}:{35+16*t+4*jj}]'; qf = f'v[{64+4*jj}:{67+4*jj}]'
            a(f'v_mfma_f32_16x16x32_bf16 v[{24+4*t}:{27+4*t}], {qf if qa else kf}, {kf if qa else qf}, {c}')
    wo_dma(1)
    if ve:
        for kk in range(8):
            a(f'ds_read_b64_tr_b16 v[{64+4*kk}:{65+4*kk}], v17 offset:{8192*kk}\nds_read_b64_tr_b16 v[{66+4*kk}:{67+4*kk}], v17 offset:{8192*kk+4096}')
    else: a('s_nop 6' if a.o.get('cwo') != 1 else 's_nop 0')
    if qa:
        if a.o.get('fine'): a.stamp(11)
        a.rbf(24, 24); a.rbf(25, 28)
        a('v_pk_mul_f32 v[24:25], v[24:25], s[56:57] op_sel_hi:[1,0]')
        a.rbf(24, 24); a.rbf(25, 25)
        a('v_max_f32 v32, v24, v25')
        for k in (8, 4, 2, 1): a(f's_nop 1\nv_max_f32_dpp v32, v32, v32 row_ror:{k} {DPP}')
        if a.o.get('fine'): a.stamp(12)
        a('s_mov_b32 exec_lo, 0x00010001\ns_mov_b32 exec_hi, 0x00010001\nds_write_b32 v14, v32\ns_mov_b64 exec, -1\ns_waitcnt lgkmcnt(0)\ns_barrier')
        if a.o.get('fine'): a.stamp(9)
        a('ds_read_b128 v[32:35], v21\nds_read_b128 v[36:39], v21 offset:16\ns_waitcnt lgkmcnt(0)')
        a('v_max3_f32 v32, v32, v33, v34\nv_max3_f32 v36, v36, v37, v38\nv_max3_f32 v32, v32, v35, v39\nv_max_f32 v32, v32, v36')
        a('v_pk_add_f32 v[24:25], v[24:25], v[32:33] op_sel_hi:[1,0] neg_lo:[0,1] neg_hi:[0,1]\nv_pk_mul_f32 v[24:25], v[24:25], s[56:57] op_sel:[0,1] op_sel_hi:[1,1]')
        a('v_exp_f32 v24, v24\nv_exp_f32 v25, v25\ns_nop 0\nv_cvt_pk_bf16_f32 v36, v24, v25\nv_add_f32 v24, v24, v25')
        a('ds_write_b16 v15, v36\nds_write_b16_d16_hi v15, v36 offset:8\nds_write_b32 v110, v24')
        wmax = False
    else:
        if a.o.get('fine'): a.stamp(11)
        for i in range(8): a.rbf(24 + i, 24 + i)
        for i in range(0, 8, 2): a(f'v_pk_mul_f32 v[{24+i}:{25+i}], v[{24+i}:{25+i}], s[56:57] op_sel_hi:[1,0]')
        for i in range(8): a.rbf(24 + i, 24 + i)
        a('v_max3_f32 v32, v24, v25, v26\nv_max3_f32 v33, v27, v28, v29\nv_max3_f32 v32, v32, v30, v31\nv_max_f32 v32, v32, v33')
        a.swap_op(16, 'v_max_f32', 32, 33); a.swap_op(32, 'v_max_f32', 32, 33)
        wmax = a.o.get('wmax')
        if a.o.get('fine'): a.stamp(12)
        if not wmax:
            a('s_mov_b64 exec, 0xf\nds_write_b32 v14, v32\ns_mov_b64 exec, -1\ns_waitcnt lgkmcnt(0)\ns_barrier')
            if a.o.get('fine'): a.stamp(9)
            a('ds_read_b128 v[32:35], v13\nds_read_b128 v[36:39], v13 offset:16\ns_waitcnt lgkmcnt(0)')
            a('v_max3_f32 v32, v32, v33, v34\nv_max3_f32 v36, v36, v37, v38\nv_max3_f32 v32, v32, v35, v39\nv_max_f32 v32, v32, v36')
        for i in range(0, 8, 2): a(f'v_pk_add_f32 v[{24+i}:{25+i}], v[{24+i}:{25+i}], v[32:33] op_sel_hi:[1,0] neg_lo:[0,1] neg_hi:[0,1]')
        for i in range(0, 8, 2): a(f'v_pk_mul_f32 v[{24+i}:{25+i}], v[{24+i}:{25+i}], s[56:57] op_sel:[0,1] op_sel_hi:[1,1]')
        for i in range(8): a(f'v_exp_f32 v{24+i}, v{24+i}')
        a('s_nop 0')
        for d in range(4): a(f'v_cvt_pk_bf16_f32 v{36+d}, v{24+2*d}, v{25+2*d}')
        a('s_mov_b32 exec_lo, 0x000f000f\ns_mov_b32 exec_hi, 0x000f000f\nds_write_b128 v15, v[36:39]')
        if wmax: a('ds_write_b32 v14, v32')
        a('v_pk_add_f32 v[24:25], v[24:25], v[26:27]\nv_pk_add_f32 v[28:29], v[28:29], v[30:31]\nv_pk_add_f32 v[24:25], v[24:25], v[28:29]\nv_add_f32 v24, v24, v25')
        a('ds_write_b32 v110, v24\ns_mov_b64 exec, -1')
    wo_dma(2)
    a.stamp(3)
    if ve:
        a('s_waitcnt lgkmcnt(0)\ns_barrier')
        if wmax: a('ds_read_b128 v[112:115], v21\nds_read_b128 v[116:119], v21 offset:16')
        a('ds_read_b32 v23, v22')
        for kk in range(8): a(f'ds_read_b128 v[{32+4*kk}:{35+4*kk}], v16 offset:{256*kk}')
        if wmax:
            a('s_waitcnt lgkmcnt(8)\nv_max3_f32 v120, v112, v113, v114\nv_max3_f32 v121, v115, v116, v117\nv_max3_f32 v120, v120, v118, v119\nv_max_f32 v120, v120, v121')
            for i in range(0, 8, 2): a(f'v_pk_add_f32 v[{112+i}:{113+i}], v[{112+i}:{113+i}], v[120:121] op_sel_hi:[1,0] neg_lo:[0,1] neg_hi:[0,1]')
            for i in range(0, 8, 2): a(f'v_pk_mul_f32 v[{112+i}:{113+i}], v[{112+i}:{113+i}], s[56:57] op_sel:[0,1] op_sel_hi:[1,1]')
        for kk in range(8):
            a(f's_waitcnt lgkmcnt({7-kk})')
            if kk == 1: a('v_readfirstlane_b32 s7, v23')
            if wmax: a(f'v_mfma_f32_16x16x32_bf16 v[{32+4*kk}:{35+4*kk}], v[{32+4*kk}:{35+4*kk}], v[{64+4*kk}:{67+4*kk}], 0\nv_exp_f32 v{112+kk}, v{112+kk}')
            else: a(f'v_mfma_f32_16x16x32_bf16 v[{24+4*(kk&1)}:{27+4*(kk&1)}], v[{32+4*kk}:{35+4*kk}], v[{64+4*kk}:{67+4*kk}], {"0" if kk < 2 else f"v[{24+4*(kk&1)}:{27+4*(kk&1)}]"}')
        if wmax:
            a('v_mul_f32 v24, v112, v32\nv_mul_f32 v25, v113, v36')
            for kk in range(2, 8):
                if kk == 6: a('s_nop 0')
                if kk == 7: a('s_nop 0')
                a(f'v_fmac_f32 v{24+(kk&1)}, v{112+kk}, v{32+4*kk}')
            a('v_add_f32 v24, v24, v25')
        else: a('s_nop 7\nv_add_f32 v24, v24, v28')
    elif a.o.get('sq') or a.o.get('split'):
        a('s_waitcnt lgkmcnt(0)\ns_barrier')
        for kk in range(8): a(f'ds_read_b128 v[{32+4*kk}:{35+4*kk}], v16 offset:{256*kk}')
        a(f's_waitcnt vmcnt({4 if a.o.get("cwo") is not None else 0}) lgkmcnt(0)')
        a.stamp(4)
        a('s_barrier')
        a('ds_read_b32 v23, v22')
        for kk in range(8):
            a(f'ds_read_b64_tr_b16 v[{64+4*kk}:{65+4*kk}], v17 offset:{8192*kk}\nds_read_b64_tr_b16 v[{66+4*kk}:{67+4*kk}], v17 offset:{8192*kk+4096}')
        for kk in range(8):
            a(f's_waitcnt lgkmcnt({2*(7-kk)})')
            if kk == 1: a('v_readfirstlane_b32 s7, v23')
            a(f'v_mfma_f32_16x16x32_bf16 v[24:27], v[{32+4*kk}:{35+4*kk}], v[{64+4*kk}:{67+4*kk}], {"0" if kk == 0 else "v[24:27]"}')
        a('s_nop 7')
    else: PV_old(a, wmax)
    a('v_and_or_b32 v28, v24, s46, v2')
    a.store_mode('buffer_store_dword v28, v19, s[8:11], s54 offen')
    A_tail(a)

def PV_old(a, wmax):
    a('s_waitcnt vmcnt(0) lgkmcnt(0)')
    a.stamp(4)
    a('s_barrier')
    if wmax: a('ds_read_b128 v[108:111], v21\nds_read_b128 v[112:115], v21 offset:16')
    a('ds_read_b32 v23, v22')
    order = []
    for kk in range(8):
        a(f'ds_read_b128 v[{32+4*kk}:{35+4*kk}], v16 offset:{256*kk}')
        a(f'ds_read_b64_tr_b16 v[{64+4*kk}:{65+4*kk}], v17 offset:{8192*kk}')
        a(f'ds_read_b64_tr_b16 v[{66+4*kk}:{67+4*kk}], v17 offset:{8192*kk+4096}')
        if kk == 4:
            a('s_waitcnt lgkmcnt(15)\nv_readfirstlane_b32 s7, v23')
            if wmax:
                a('v_max3_f32 v116, v108, v109, v110\nv_max3_f32 v117, v111, v112, v113\nv_max3_f32 v116, v116, v114, v115\nv_max_f32 v116, v116, v117')
                for i in range(8): a(f'v_sub_f32 v{108+i}, v{108+i}, v116')
                for i in range(8): a(f'v_mul_f32 v{108+i}, s57, v{108+i}')
                for i in range(8): a(f'v_exp_f32 v{108+i}, v{108+i}')
    for kk in range(8):
        a(f's_waitcnt lgkmcnt({min(15, 3*(7-kk))})')
        if wmax: a(f'v_mfma_f32_16x16x32_bf16 v[{32+4*kk}:{35+4*kk}], v[{32+4*kk}:{35+4*kk}], v[{64+4*kk}:{67+4*kk}], 0')
        else: a(f'v_mfma_f32_16x16x32_bf16 v[24:27], v[{32+4*kk}:{35+4*kk}], v[{64+4*kk}:{67+4*kk}], {"0" if kk == 0 else "v[24:27]"}')
    if wmax:
        a('v_mul_f32 v24, v108, v32\nv_mul_f32 v25, v109, v36')
        for kk in range(2, 8):
            if kk >= 5: a('s_nop 1')
            a(f'v_fmac_f32 v{24+(kk&1)}, v{108+kk}, v{32+4*kk}')
        a('v_add_f32 v24, v24, v25')
    else: a('s_nop 7')

def A_tail(a):
    a.stamp(5)
    if a.o.get('hc'):
        def pre():
            for jj in range(4): a(f'ds_read_b64_tr_b16 v[{64+4*jj}:{65+4*jj}], v{96+jj}\nds_read_b64_tr_b16 v[{66+4*jj}:{67+4*jj}], v{96+jj} offset:512')
        a.combine(101, 100, 49, 48, pre)
        a('s_waitcnt lgkmcnt(0)\ns_nop 0')
        for jj in range(4): a(f'v_mfma_f32_16x16x32_bf16 v[{36+4*jj}:{39+4*jj}], v[32:35], v[{64+4*jj}:{67+4*jj}], 0')
        a('s_mov_b64 exec, 0xffff\ns_nop 4\nds_write2_b32 v102, v36, v40 offset1:16\ns_nop 0\nds_write2_b32 v102, v44, v48 offset0:32 offset1:48\ns_waitcnt lgkmcnt(0)')
        a.stamp(7)
        a('s_barrier')
        a.exit()
        return
    if a.o.get('cwo') is not None: a('s_waitcnt vmcnt(1)')
    cwo = a.o.get('cwo') is not None
    if not cwo:
        a('s_barrier')
        for jj in range(4):
            a(f'ds_read_b64_tr_b16 v[{64+4*jj}:{65+4*jj}], v{96+jj}\nds_read_b64_tr_b16 v[{66+4*jj}:{67+4*jj}], v{96+jj} offset:4096')
    a.stamp(6)
    a('s_barrier')
    for jj in range(4):
        a(f'ds_read_b128 v[{32+4*jj}:{35+4*jj}], v{100+jj}')
        if cwo: a(f'ds_read_b64_tr_b16 v[{64+4*jj}:{65+4*jj}], v{96+jj}\nds_read_b64_tr_b16 v[{66+4*jj}:{67+4*jj}], v{96+jj} offset:8192')
    for jj in range(4):
        a(f's_waitcnt lgkmcnt({(3-jj)*(3 if cwo else 1)})')
        a(f'v_mfma_f32_16x16x32_bf16 v[24:27], v[{32+4*jj}:{35+4*jj}], v[{64+4*jj}:{67+4*jj}], {"0" if jj == 0 else "v[24:27]"}')
    a('s_nop 7')
    a('v_and_or_b32 v28, v24, s46, v2')
    a.store_mode('buffer_store_dword v28, v20, s[8:11], s55 offen')
    a.stamp(7)
    a.exit()

def A_comm(a):
    a.role = 'Ac'
    a('L_A_comm:')
    a.karg(20, 'wo'); a.srd(20, 0x400000)
    a('s_waitcnt lgkmcnt(0)')
    a.stamp(0)
    a.get_tag()
    a(f'v_mov_b32 v4, 0\nv_mov_b32 v5, 0\nv_mov_b32 v6, 0\nv_mov_b32 v7, 0\nv_mov_b32 v8, {LZ}\nds_write_b128 v8, v[4:7]')
    for k in range(8): a(f'v_xor_b32 v{64+k}, {2*k}, v1\nv_lshlrev_b32 v{64+k}, 4, v{64+k}')
    a.fin_tag()
    a.xid_publish()
    if a.o.get('kv_bar'): a('s_barrier')
    if a.o.get('wot'): a('s_lshl_b32 s42, s4, 19\ns_mov_b64 exec, 1\nbuffer_load_dword v108, v1, s[20:23], s42 offen nt\ns_mov_b64 exec, -1')
    a(f'v_lshlrev_b32 v9, 4, v1\ns_lshl_b32 s40, s4, 11\ns_add_u32 s62, s40, {QV}')
    a(f'v_lshrrev_b32 v10, 5, v1\nv_mul_u32_u24 v10, 272, v10\nv_and_b32 v11, 31, v1\nv_lshl_add_u32 v10, v11, 3, v10\nv_add_u32 v10, {LQ}, v10\nv_mov_b32 v12, {LMODE_A}')
    a('s_lshl_b32 s56, s4, 19\ns_lshl_b32 s42, s5, 15\ns_add_u32 s56, s56, s42')
    a(f'v_and_b32 v14, 3, v1\nv_lshlrev_b32 v13, 5, v14\nv_add_u32 v13, {LMX}, v13\nv_lshlrev_b32 v14, 8, v14')
    a(f's_lshl_b32 s41, s4, 10\ns_lshl_b32 s42, s5, 4\ns_add_u32 s63, s41, s42\ns_add_u32 s63, s63, {OS}')
    a(f's_lshr_b32 s42, s5, 2\ns_lshl_b32 s42, s42, 8\ns_add_u32 s41, s41, s42\ns_add_u32 s41, s41, {OS}')
    a(f's_lshl_b32 s40, s4, 4\ns_add_u32 s40, s40, s5\ns_lshl_b32 s40, s40, 11\ns_add_u32 s54, s40, {AP}\ns_add_u32 s40, s40, {OP}')
    a(f'v_and_b32 v15, 15, v1\nv_lshlrev_b32 v15, 4, v15\nv_lshrrev_b32 v16, 4, v1\nv_lshlrev_b32 v16, 4, v16\nv_add_u32 v16, {LOF}, v16\nv_lshlrev_b32 v17, 2, v1')
    a(f's_lshl_b32 s42, s4, 3\ns_lshr_b32 s55, s5, 1\ns_add_u32 s42, s42, s55\ns_and_b32 s55, s42, 15\ns_lshl_b32 s55, s55, 17\ns_lshr_b32 s42, s42, 4\ns_lshl_b32 s42, s42, 8\ns_add_u32 s55, s55, s42')
    a(f's_and_b32 s42, s5, 1\ns_lshl_b32 s42, s42, 7\ns_add_u32 s55, s55, s42\ns_add_u32 s55, s55, {AX}\ns_mov_b32 s57, {LOG2E:#x}')
    if a.o.get('hc'):
        a(f's_and_b32 s55, s5, 1\ns_lshl_b32 s55, s55, 3\ns_lshr_b32 s42, s5, 1\ns_add_u32 s55, s55, s42\ns_lshl_b32 s55, s55, 17\ns_lshl_b32 s42, s4, 8\ns_add_u32 s55, s55, s42\ns_add_u32 s55, s55, {AX}\nv_add_u32 v19, {LRED}, v17\nv_add_u32 v26, {LRED}, v15')
    if a.o.get('pt_o'): a('v_lshlrev_b32 v22, 5, v1\nbuffer_load_dword v108, v22, s[8:11], s40 offen sc1\nbuffer_load_dword v109, v15, s[8:11], s41 offen sc1')
    if a.o.get('pw_a'):
        a('v_xor_b32 v22, 1, v2'); a.store2('buffer_store_dword v22, v17, s[8:11], s{s} offen', 55, 42)
    if a.o.get('sq'):
        a('s_waitcnt lgkmcnt(0)\ns_barrier')
        a(a.xid_load(40))
        a(f's_lshl_b32 s58, s4, 12\ns_add_u32 s58, s58, {QF}\ns_add_u32 s58, s8, s58\ns_addc_u32 s59, s9, 0\ns_mov_b32 s47, 0')
        a('L_qd:\ns_load_dwordx8 s[64:71], s[58:59], s47\ns_add_u32 s47, s47, 64\ns_waitcnt lgkmcnt(0)')
        a('s_xor_b32 s64, s64, s45')
        for k in range(65, 72): a(f's_xor_b32 s{k}, s{k}, s45\ns_or_b32 s64, s64, s{k}')
        a(f's_cbranch_scc0 L_qe\ns_sleep {a.o.get("qsleep", 3)}\ns_cmp_lt_u32 s47, 4096\ns_cbranch_scc1 L_qd')
        a.poll(['buffer_load_dwordx4 v[32:35], v9, s[8:11], s62 offen sc1', 'buffer_load_dwordx4 v[36:39], v9, s[8:11], s62 offen offset:1024 sc1'], range(32, 40), 30)
        a('L_qe:')
        a.stamp(1)
        a('s_barrier\ns_barrier')
    else:
        Q = lambda r: [f'buffer_load_dwordx4 v[{r}:{r+3}], v9, s[8:11], s62 offen sc1', f'buffer_load_dwordx4 v[{r+4}:{r+7}], v9, s[8:11], s62 offen offset:1024 sc1']
        if not a.o.get('q1'):
            a('v_and_b32 v18, 7, v1\nv_lshlrev_b32 v18, 4, v18\ns_mov_b64 exec, 0xff')
            a.poll(['buffer_load_dwordx4 v[32:35], v18, s[8:11], s62 offen sc1'], range(32, 36), 30)
            a('s_mov_b64 exec, -1')
        if a.o.get('q1') == 2:
            def chk(r):
                for k in range(r, r+8): a(f'v_xor_b32 v{k}, v2, v{k}')
                a(f'v_or3_b32 v30, v{r}, v{r+1}, v{r+2}\nv_or3_b32 v30, v30, v{r+3}, v{r+4}\nv_or3_b32 v30, v30, v{r+5}, v{r+6}\nv_or_b32 v30, v30, v{r+7}\nv_and_b32 v30, {TMASK}, v30\nv_cmp_ne_u32 vcc, 0, v30')
            a('\n'.join(Q(48)) + f'\ns_sleep {a.o.get("qgap", 16)}\ns_mov_b32 s47, 0\nL_q2:\n' + '\n'.join(Q(32)) + '\ns_waitcnt vmcnt(2)')
            chk(48)
            a('s_cbranch_vccz L_q2b\n' + '\n'.join(Q(48)) + '\ns_waitcnt vmcnt(2)')
            chk(32)
            a(f's_cbranch_vccz L_q2a\ns_add_u32 s47, s47, 1\ns_cmp_lt_u32 s47, {LIMIT}\ns_cbranch_scc1 L_q2\ns_branch L_q2a')
            a('L_q2b:')
            for k in range(8): a(f'v_mov_b32 v{80+k}, v{48+k}')
            a('s_branch L_q2c\nL_q2a:')
            for k in range(8): a(f'v_mov_b32 v{80+k}, v{32+k}')
            a('L_q2c:')
        else:
            if a.o.get('xe'): a('\n'.join(Q(32)) + '\ns_waitcnt vmcnt(0)\n' + a.xid_load(40))
            a.poll(Q(32), range(32, 40), 30)
        a.stamp(1)
        for i in range(2):
            qb = 80 if a.o.get('q1') == 2 else 32
            a(f'v_perm_b32 v{44+2*i}, v{qb+1+4*i}, v{qb+4*i}, s51\nv_perm_b32 v{45+2*i}, v{qb+3+4*i}, v{qb+2+4*i}, s51')
            a(f'ds_write_b64 v10, v[{44+2*i}:{45+2*i}] offset:{544*i}')
        if a.o.get('qmode'): a('v_bfe_u32 v18, v32, 10, 1\nds_write_b32 v12, v18\nv_readfirstlane_b32 s7, v18')
        elif a.o.get('cwo') is not None and not a.o.get('xe'): a(a.xid_load(40))
        a('s_waitcnt lgkmcnt(0)\ns_barrier')
    if a.o.get('sq'): A_comm_sq2(a); return
    if a.o.get('split'): A_comm_split(a); return
    a(a.xid_load(40))
    for b in range(8):
        a(f's_mov_b32 m0, {LK + 4096*b}' + ('\ns_add_u32 s56, s56, 4096' if b else '\ns_nop 0'))
        for r in range(4): a(f'buffer_load_dwordx4 v{64 + r + 4*((b>>1)&1)}, s[20:23], s56 offen offset:{1024*r} OPOL lds')
    a('s_waitcnt vmcnt(32)')
    a.xid_mode(40)
    a('v_mov_b32 v18, s7\nds_write_b32 v12, v18\ns_waitcnt lgkmcnt(0)')
    if not a.o.get('wmax') and not a.o.get('sq'): a('s_barrier')
    if not a.o.get('sq'): a('s_barrier')
    a(f'ds_read_b128 v[32:35], v13\nds_read_b128 v[36:39], v13 offset:16\nds_read_b128 v[40:43], v13 offset:{LLS-LMX}\nds_read_b128 v[44:47], v13 offset:{LLS-LMX+16}\ns_waitcnt lgkmcnt(2)')
    a('v_max3_f32 v48, v32, v33, v34\nv_max3_f32 v49, v36, v37, v38\nv_max3_f32 v48, v48, v35, v39\nv_max_f32 v48, v48, v49')
    if a.o.get('wmax'):
        for i in range(8): a(f'v_sub_f32 v{32+i}, v{32+i}, v48')
        for i in range(8): a(f'v_mul_f32 v{32+i}, s57, v{32+i}')
        for i in range(8): a(f'v_exp_f32 v{32+i}, v{32+i}')
        a('s_waitcnt lgkmcnt(0)')
        for i in range(8): a(f'v_mul_f32 v{40+i}, v{32+i}, v{40+i}')
    a('s_waitcnt lgkmcnt(0)')
    a.tree_add(range(40, 48))
    a('v_or_b32 v32, v2, v48\nv_and_or_b32 v33, v40, s46, v2\nv_mov_b32 v34, v32\nv_mov_b32 v35, v33\ns_mov_b64 exec, 0xf')
    a.store_mode('buffer_store_dwordx4 v[32:35], v14, s[8:11], s63 offen')
    a('s_mov_b64 exec, -1')
    a('s_waitcnt vmcnt(1)')
    A_comm_tail(a)

def A_comm_sq(a):
    for b in range(8):
        a(f's_mov_b32 m0, {LK + 4096*b}' + ('\ns_add_u32 s56, s56, 4096' if b else '\ns_nop 0'))
        for r in range(4): a(f'buffer_load_dwordx4 v{64 + r + 4*((b>>1)&1)}, s[20:23], s56 offen offset:{1024*r} OPOL lds')
        if b == 0: a('s_barrier')
        if b == a.o.get('wo_b2', 1): a('s_barrier')
    a('s_barrier')
    a(f'ds_read_b128 v[32:35], v13\nds_read_b128 v[36:39], v13 offset:16\nds_read_b128 v[40:43], v13 offset:{LLS-LMX}\nds_read_b128 v[44:47], v13 offset:{LLS-LMX+16}\ns_waitcnt lgkmcnt(0)')
    a('v_max3_f32 v48, v32, v33, v34\nv_max3_f32 v49, v36, v37, v38\nv_max3_f32 v48, v48, v35, v39\nv_max_f32 v48, v48, v49')
    a.tree_add(range(40, 48))
    a('v_or_b32 v32, v2, v48\nv_and_or_b32 v33, v40, s46, v2\nv_mov_b32 v34, v32\nv_mov_b32 v35, v33\ns_mov_b64 exec, 0xf')
    a.store_mode('buffer_store_dwordx4 v[32:35], v14, s[8:11], s63 offen')
    a('s_mov_b64 exec, -1')
    a('s_waitcnt vmcnt(1)')
    A_comm_tail(a)

def A_comm_sq2(a):
    a(f'v_lshrrev_b32 v20, 1, v14\nv_add_u32 v20, {LLS}, v20\ns_barrier\ns_barrier')
    a('ds_read_b128 v[32:35], v13\nds_read_b128 v[36:39], v13 offset:16')
    for w in range(8): a(f'ds_read_b128 v[{72+4*w}:{75+4*w}], v20 offset:{16*w}')
    a('s_waitcnt lgkmcnt(8)')
    a('v_max3_f32 v48, v32, v33, v34\nv_max3_f32 v49, v36, v37, v38\nv_max3_f32 v48, v48, v35, v39\nv_max_f32 v48, v48, v49')
    a('s_waitcnt lgkmcnt(0)')
    for w in range(8): a(f'v_pk_add_f32 v[{72+4*w}:{73+4*w}], v[{72+4*w}:{73+4*w}], v[{74+4*w}:{75+4*w}]')
    for w in range(8): a(f'v_add_f32 v{56+w}, v{72+4*w}, v{73+4*w}')
    a.tree_add(range(56, 64))
    a('v_or_b32 v32, v2, v48\nv_and_or_b32 v33, v56, s46, v2\nv_mov_b32 v34, v32\nv_mov_b32 v35, v33\ns_waitcnt vmcnt(0)')
    a.xid_mode(40)
    if a.prof: a('v_writelane_b32 v127, s7, 12')
    a('v_mov_b32 v18, s7\nds_write_b32 v12, v18\ns_mov_b64 exec, 0xf')
    a.store_mode('buffer_store_dwordx4 v[32:35], v14, s[8:11], s63 offen')
    a('s_mov_b64 exec, -1\ns_waitcnt lgkmcnt(0)\ns_barrier')
    A_comm_tail(a)

def A_comm_split(a):
    cwo = a.o.get('cwo') is not None
    if not cwo:
        a(a.xid_load(40))
        for b in range(8):
            a(f's_mov_b32 m0, {LK + 4096*b}' + ('\ns_add_u32 s56, s56, 4096' if b else '\ns_nop 0'))
            for r in range(4): a(f'buffer_load_dwordx4 v{64 + r + 4*((b>>1)&1)}, s[20:23], s56 offen offset:{1024*r} OPOL lds')
            if b == a.o.get('wo_b1', 3): a('s_barrier')
            if b == a.o.get('wo_b2', 5): a('s_barrier')
        a('s_waitcnt vmcnt(32)')
    else: a(('' if a.o.get('wmax') else 's_barrier\n') + 's_waitcnt vmcnt(0)')
    if not a.o.get('qmode'): a.xid_mode(40)
    if a.prof: a('v_writelane_b32 v127, s7, 12')
    a(f'v_mov_b32 v18, s7\nds_write_b32 v12, v18\nv_lshrrev_b32 v20, 1, v14\nv_add_u32 v20, {LLS}, v20')
    if a.o.get('qa'): a(f'v_add_u32 v20, {LLS}, v17\nv_lshrrev_b32 v22, 4, v1\nv_lshlrev_b32 v21, 5, v22\nv_add_u32 v21, {LMX}, v21\nv_lshlrev_b32 v22, 8, v22')
    a('s_waitcnt lgkmcnt(0)')
    a('s_barrier')
    if a.o.get('qa'):
        a('ds_read_b128 v[32:35], v21\nds_read_b128 v[36:39], v21 offset:16')
        for i in range(4): a(f'ds_read2st64_b32 v[{40+2*i}:{41+2*i}], v20 offset0:{2*i} offset1:{2*i+1}')
        a('s_waitcnt lgkmcnt(4)')
        a('v_max3_f32 v48, v32, v33, v34\nv_max3_f32 v49, v36, v37, v38\nv_max3_f32 v48, v48, v35, v39\nv_max_f32 v48, v48, v49\ns_waitcnt lgkmcnt(0)')
        a.tree8(40)
        for k in (8, 4, 2, 1): a(f's_nop 1\nv_add_f32_dpp v40, v40, v40 row_ror:{k} {DPP}')
        a('v_or_b32 v32, v2, v48\nv_and_or_b32 v33, v40, s46, v2\nv_mov_b32 v34, v32\nv_mov_b32 v35, v33\ns_mov_b32 exec_lo, 0x00010001\ns_mov_b32 exec_hi, 0x00010001')
        a.store_mode('buffer_store_dwordx4 v[32:35], v22, s[8:11], s63 offen')
    else:
        a('ds_read_b128 v[32:35], v13\nds_read_b128 v[36:39], v13 offset:16')
        for w in range(8): a(f'ds_read_b128 v[{72+4*w}:{75+4*w}], v20 offset:{16*w}')
        a('s_waitcnt lgkmcnt(8)')
        a('v_max3_f32 v48, v32, v33, v34\nv_max3_f32 v49, v36, v37, v38\nv_max3_f32 v48, v48, v35, v39\nv_max_f32 v48, v48, v49')
        if a.o.get('wmax'):
            for i in range(8): a(f'v_sub_f32 v{32+i}, v{32+i}, v48')
            for i in range(8): a(f'v_mul_f32 v{32+i}, s57, v{32+i}')
            for i in range(8): a(f'v_exp_f32 v{32+i}, v{32+i}')
        a('s_waitcnt lgkmcnt(0)')
        for w in range(8): a(f'v_pk_add_f32 v[{72+4*w}:{73+4*w}], v[{72+4*w}:{73+4*w}], v[{74+4*w}:{75+4*w}]')
        for w in range(8): a(f'v_add_f32 v{40+w}, v{72+4*w}, v{73+4*w}')
        if a.o.get('wmax'):
            for i in range(8): a(f'v_mul_f32 v{40+i}, v{32+i}, v{40+i}')
        a.tree_add(range(40, 48))
        a('v_or_b32 v32, v2, v48\nv_and_or_b32 v33, v40, s46, v2\nv_mov_b32 v34, v32\nv_mov_b32 v35, v33\ns_mov_b64 exec, 0xf')
        a.store_mode('buffer_store_dwordx4 v[32:35], v14, s[8:11], s63 offen')
    a('s_mov_b64 exec, -1')
    if cwo and not a.o.get('ve'): a('s_barrier')
    if not cwo: a('s_waitcnt vmcnt(1)')
    A_comm_tail(a)

def A_comm_tail(a):
    a.stamp(2)
    if a.o.get('cwo') is None: a('s_barrier')
    if a.o.get('hc'):
        a('s_barrier')
        if a.o.get('ax4'):
            for w in range(8):
                a(f'ds_read_b128 v[{32+4*w}:{35+4*w}], v26 offset:{256*w}')
            for k, (x, y) in enumerate(((32, 36), (40, 44), (48, 52), (56, 60))):
                a(f's_waitcnt lgkmcnt({6-2*k})\nv_pk_add_f32 v[{x}:{x+1}], v[{x}:{x+1}], v[{y}:{y+1}]\nv_pk_add_f32 v[{x+2}:{x+3}], v[{x+2}:{x+3}], v[{y+2}:{y+3}]')
                if k & 1: a(f'v_pk_add_f32 v[{x-8}:{x-7}], v[{x-8}:{x-7}], v[{x}:{x+1}]\nv_pk_add_f32 v[{x-6}:{x-5}], v[{x-6}:{x-5}], v[{x+2}:{x+3}]')
            a('v_pk_add_f32 v[32:33], v[32:33], v[48:49]\nv_pk_add_f32 v[34:35], v[34:35], v[50:51]\ns_mov_b64 exec, 0xffff')
            a.stamp(5)
            for i in range(4): a(f'v_and_or_b32 v{32+i}, v{32+i}, s46, v2')
            a.store2('buffer_store_dwordx4 v[32:35], v15, s[8:11], s{s} offen', 55, 42)
            a.stamp(6)
            a.exit()
            return
        for i in range(4): a(f'ds_read2st64_b32 v[{32+2*i}:{33+2*i}], v17 offset0:{2*i} offset1:{2*i+1}'.replace('v17', 'v19'))
        a('s_waitcnt lgkmcnt(0)')
        a.stamp(5)
        a.tree8(32)
        a('v_and_or_b32 v32, v32, s46, v2')
        A_comm_end(a)
        return
    a.combine(15, 9, 41, 40)
    a('s_mov_b32 exec_lo, 0x00010001\ns_mov_b32 exec_hi, 0x00010001\nds_write_b128 v16, v[32:35]\ns_mov_b64 exec, -1\ns_waitcnt lgkmcnt(0)\ns_barrier')
    a.stamp(4)
    a.poll([f'buffer_load_dword v{32+i}, v17, s[8:11], s54 offen offset:{256*i} sc1' for i in range(8)], range(32, 40), 30)
    a.stamp(5)
    a.tree_add(range(32, 40))
    a.swap_op(32, 'v_add_f32', 32, 33)
    a('v_and_or_b32 v32, v32, s46, v2\ns_mov_b32 exec_hi, 0')
    A_comm_end(a)

def A_comm_end(a):
    a.store2('buffer_store_dword v32, v17, s[8:11], s{s} offen', 55, 42)
    if a.o.get('axgate'):
        a(f's_lshl_b32 s42, s4, 4\ns_add_u32 s42, s42, s5\ns_lshl_b32 s42, s42, 4\ns_add_u32 s42, s42, {AL}\ns_mov_b64 exec, 0xf')
        a.store_mode('buffer_store_dword v32, v17, s[8:11], s42 offen')
    a.stamp(6)
    if a.o.get('wb') == 'A': a('s_cmp_lg_u32 s5, 0\ns_cbranch_scc1 L_A_nowb\ns_waitcnt vmcnt(0)\nbuffer_wbl2 sc1\ns_waitcnt vmcnt(0)\nL_A_nowb:')
    a.exit()

def FM_issue(a):
    a.role = 'F'
    for s, k in ((12, 'wmod'), (20, 'c'), (16, 'wq')): a.karg(s, k)
    for s, n in ((12, 0x300000), (20, 1024), (16, 0x400000)): a.srd(s, n)
    a('v_lshlrev_b32 v7, 1, v1\nv_lshlrev_b32 v9, 4, v4\nv_lshlrev_b32 v17, 2, v1')
    a(f's_mov_b32 s57, {LOG2E:#x}\ns_and_b32 s58, s5, 7')
    p16 = a.o.get('p16')
    if not p16: a('s_cmp_ge_u32 s5, 24\ns_cbranch_scc1 L_M')
    a('v_mul_u32_u24 v5, 49152, v4\nv_lshl_add_u32 v5, v3, 2, v5\ns_lshl_b32 s40, s4, 7\ns_mul_i32 s56, s4, 393216')
    fl = a.o.get('fl')
    if fl: a('v_lshl_add_u32 v5, v3, 2, v5\ns_lshl_b32 s59, s58, 1\ns_add_u32 s59, s59, s3\ns_lshl_b32 s59, s59, 1\ns_lshl_b32 s42, s59, 6\ns_add_u32 s41, s56, s42')
    else: a('s_lshl_b32 s59, s58, 2\ns_add_u32 s59, s59, s3\ns_lshl_b32 s42, s59, 6\ns_add_u32 s41, s56, s42')
    a('s_waitcnt lgkmcnt(0)')
    a.stamp(0)
    a('buffer_load_ushort v8, v7, s[20:23], s40 offen')
    a.get_tag()
    a('s_cmp_ge_u32 s3, 4\ns_cbranch_scc1 L_F_wq')
    if p16: a('s_cmp_ge_u32 s5, 24\ns_cbranch_scc1 L_F_j')
    if fl:
        a('s_cmp_ge_u32 s3, 2\ns_cbranch_scc1 L_F_idle')
        for r in range(16):
            a(f'buffer_load_dwordx2 v[{32+2*r}:{33+2*r}], v5, s[12:15], s41 offen FPOL')
            if r < 15: a(f's_add_u32 s41, s41, {6144 if r != 7 else 6144*25}')
    else: a.mod_loads()

def F_early(a):
    a.role = 'F'
    a.modp_base(55, 59)
    if a.o.get('pw_h'): a('s_lshl_b32 s42, s4, 8\ns_add_u32 s42, s42, s55\nv_mov_b32 v28, 0\nbuffer_store_dword v28, v17, s[8:11], s42 offen sc1')
    a.fin_tag()
    a.silu_frag(17 if a.o.get('pw_h') else 16)
    if a.o.get('fl'):
        a('v_lshrrev_b32 v15, 3, v3\nv_lshlrev_b32 v15, 17, v15\nv_and_b32 v16, 7, v3\nv_lshl_add_u32 v15, v16, 5, v15\ns_lshl_b32 s42, s4, 8\ns_add_u32 s42, s42, s55')
        for r in (97, 99, 101, 103): a(f'v_mov_b32 v{r}, s45')
        a('s_waitcnt vmcnt(8)')
        a.perm_x2(32, 64)
        a('s_waitcnt vmcnt(0) lgkmcnt(0)')
        a.stamp(1)
        for jj in range(4): a(f'v_mfma_f32_16x16x32_bf16 v[{104+4*jj}:{107+4*jj}], v[20:23], v[{64+4*jj}:{67+4*jj}], 0')
        a.perm_x2(48, 80)
        a('s_nop 0')
        for jj in range(4): a(f'v_mfma_f32_16x16x32_bf16 v[{104+4*jj}:{107+4*jj}], v[24:27], v[{80+4*jj}:{83+4*jj}], v[{104+4*jj}:{107+4*jj}]')
        a('s_mov_b64 exec, 0xffff\ns_nop 3')
        for jj in range(4): a(f'v_mov_b32 v{96+2*jj}, v{104+4*jj}')
        a('buffer_store_dwordx4 v[96:99], v15, s[8:11], s42 offen sc1\nbuffer_store_dwordx4 v[100:103], v15, s[8:11], s42 offen offset:16 sc1\ns_mov_b64 exec, -1')
    else:
        a('s_waitcnt vmcnt(0)')
        a.stamp(1)
        a.mod_partial()
    a.stamp(2)
    if a.o.get('tlb_f'): a(f's_mov_b32 s42, {QP}\ns_mov_b64 exec, 1\nbuffer_load_dword v116, v7, s[8:11], s42 offen sc1\ns_mov_b64 exec, -1')
    a('s_branch L_F_j')
    if a.o.get('fl'):
        a('L_F_idle:')
        a.fin_tag()
        a.silu_frag(0)
        a('s_branch L_F_j')
    a('L_F_wq:')
    if a.o.get('p16'):
        a('s_and_b32 s42, s3, 1\ns_lshl_b32 s42, s42, 3\nv_xor_b32 v6, s42, v1')
        for r in range(4): a(f'v_xor_b32 v{64+r}, {2*r}, v6\nv_lshlrev_b32 v{64+r}, 4, v{64+r}')
        a('s_and_b32 s42, s3, 3\ns_lshl_b32 s44, s42, 13\ns_lshl_b32 s42, s42, 16\ns_and_b32 s62, s5, 15\ns_lshl_b32 s62, s62, 18\ns_add_u32 s62, s62, s42\ns_lshl_b32 s42, s4, 10\ns_add_u32 s62, s62, s42')
        if a.o.get('f_tagw'): a.fin_tag()
        for b in range(2):
            a(f's_add_u32 m0, s44, {WQL + 4096*b}')
            for r in range(4):
                if b or r: a(f's_add_u32 s62, s62, {7168 if r else 11264}')
                else: a('s_nop 0')
                a(f'buffer_load_dwordx4 v{64 + r}, s[16:19], s62 offen offset:{1024*r} FPOL lds')
        return
    for k in range(8): a(f'v_xor_b32 v{64+k}, {2*k}, v1\nv_lshlrev_b32 v{64+k}, 4, v{64+k}')
    a('s_and_b32 s42, s3, 3\ns_lshl_b32 s44, s42, 14\ns_lshl_b32 s42, s42, 17\ns_lshl_b32 s62, s58, 19\ns_add_u32 s62, s62, s42\ns_lshl_b32 s42, s4, 10\ns_add_u32 s62, s62, s42')
    if a.o.get('f_tagw'): a.fin_tag()
    for b in range(4):
        a(f's_add_u32 m0, s44, {WQL + 4096*b}')
        for r in range(4):
            if b or r: a(f's_add_u32 s62, s62, {7168 if r else 11264}')
            else: a('s_nop 0')
            a(f'buffer_load_dwordx4 v{64 + r + 4*((b>>1)&1)}, s[16:19], s62 offen offset:{1024*r} FPOL lds')

def F_body(a):
    a.role = 'F'
    a('L_F_j:')
    if a.o.get('p16'): return P_body(a)
    a.karg(36, 'wd'); a.srd(36, 0x1C0000)
    a('s_cmp_lt_u32 s3, 4\ns_cbranch_scc1 L_F_j2')
    if not a.o.get('f_tagw'): a.fin_tag()
    a.silu_frag(16)
    a('L_F_j2:')
    a('v_lshrrev_b32 v5, 2, v3')
    a(f'v_mov_b32 v28, 0\nv_add_u32 v29, {WZ}, v7\nds_write_b16 v29, v28')
    a.tr_addr(WQL, 96); a.mask_addr(WH, WZ, 100)
    a(f'v_mov_b32 v11, {WMODE}\nv_lshlrev_b32 v18, 3, v1\nv_mov_b32 v31, s45')
    a(f's_lshl_b32 s54, s4, 3\ns_add_u32 s54, s54, s3\ns_lshl_b32 s54, s54, 3\ns_add_u32 s54, s54, s58\ns_lshl_b32 s54, s54, 9\ns_add_u32 s54, s54, {QP}')
    a('s_cmp_lt_u32 s3, 4\ns_cbranch_scc1 L_F_k\ns_waitcnt vmcnt(0)\nL_F_k:\ns_waitcnt lgkmcnt(0)')
    a.stamp(3)
    a('s_barrier')
    for t2 in range(2):
        for jj in range(4):
            b = 32 + 16*t2 + 4*jj
            a(f'ds_read_b64_tr_b16 v[{b}:{b+1}], v{96+jj} offset:{32768*t2}\nds_read_b64_tr_b16 v[{b+2}:{b+3}], v{96+jj} offset:{32768*t2+4096}')
    a('s_waitcnt lgkmcnt(0)\ns_barrier')
    a('ds_read_b64 v[28:29], v11')
    for t2 in range(2):
        for jj in range(4): a(f'ds_read_b128 v[{64+16*t2+4*jj}:{67+16*t2+4*jj}], v{100+jj} offset:{64*t2}')
    for k in range(8):
        a(f's_waitcnt lgkmcnt({7-k})')
        c = '0' if k < 2 else f'v[{108+4*(k&1)}:{111+4*(k&1)}]'
        a(f'v_mfma_f32_16x16x32_bf16 v[{108+4*(k&1)}:{111+4*(k&1)}], v[{64+4*k}:{67+4*k}], v[{32+4*k}:{35+4*k}], {c}')
        if k == 0: a('v_readfirstlane_b32 s7, v28\nv_readfirstlane_b32 s76, v29')
    a('s_nop 7')
    a('v_add_f32 v30, v108, v112')
    a.store_mode('buffer_store_dwordx2 v[30:31], v18, s[8:11], s54 offen')
    a.stamp(4)
    F_rest(a)

def P_body(a):
    for s, k in ((24, 'x'), (28, 'wg'), (32, 'wu'), (36, 'wd')): a.karg(s, k)
    a.srd(24, 1024)
    for s in (28, 32, 36): a.srd(s, 0x1C0000)
    a('s_cmp_lt_u32 s3, 4\ns_cselect_b32 s42, 1, 0\ns_cmp_lt_u32 s5, 24\ns_cselect_b32 s43, 1, 0\ns_and_b32 s42, s42, s43\ns_cbranch_scc1 L_F_j2')
    a('s_cmp_lt_u32 s3, 4\ns_cbranch_scc1 L_F_j1')
    if not a.o.get('f_tagw'): a.fin_tag()
    a.silu_frag(8)
    a('s_branch L_F_j2\nL_F_j1:')
    a.fin_tag()
    a('L_F_j2:')
    a('v_lshrrev_b32 v5, 2, v3')
    a(f'v_mov_b32 v28, 0\nv_add_u32 v29, {WZ}, v7\nds_write_b16 v29, v28')
    a.tr_addr(WQL, 96); a.mask_addr(WH, WZ, 100)
    a(f'v_mov_b32 v11, {WMODE}\nv_lshlrev_b32 v18, 3, v1\nv_mov_b32 v31, s45')
    a(f's_lshl_b32 s54, s4, 3\ns_add_u32 s54, s54, s3\ns_lshl_b32 s54, s54, 4\ns_and_b32 s42, s5, 15\ns_add_u32 s54, s54, s42\ns_lshl_b32 s54, s54, 9\ns_add_u32 s54, s54, {QP}')
    a('s_cmp_lt_u32 s3, 4\ns_cbranch_scc1 L_F_k\ns_waitcnt vmcnt(0)\nL_F_k:\ns_waitcnt lgkmcnt(0)')
    a.stamp(3)
    a('s_barrier')
    for jj in range(4): a(f'ds_read_b64_tr_b16 v[{32+4*jj}:{33+4*jj}], v{96+jj}\nds_read_b64_tr_b16 v[{34+4*jj}:{35+4*jj}], v{96+jj} offset:4096')
    a('s_waitcnt lgkmcnt(0)\ns_barrier')
    a('ds_read_b64 v[28:29], v11')
    for jj in range(4): a(f'ds_read_b128 v[{64+4*jj}:{67+4*jj}], v{100+jj}')
    for k in range(4):
        a(f's_waitcnt lgkmcnt({3-k})')
        a(f'v_mfma_f32_16x16x32_bf16 v[108:111], v[{64+4*k}:{67+4*k}], v[{32+4*k}:{35+4*k}], {"0" if k == 0 else "v[108:111]"}')
        if k == 0: a('v_readfirstlane_b32 s7, v28\nv_readfirstlane_b32 s76, v29')
    a('s_nop 7')
    a('v_mov_b32 v30, v108')
    a.store_mode('buffer_store_dwordx2 v[30:31], v18, s[8:11], s54 offen')
    a.stamp(4)
    a('s_cmp_ge_u32 s5, 24\ns_cbranch_scc1 L_M2')
    F_rest(a)

def F_rest(a):
    a('v_mul_u32_u24 v5, 49152, v4\nv_lshl_add_u32 v5, v3, 2, v5')
    a('s_lshl_b32 s59, s58, 3\ns_add_u32 s59, s59, s3\ns_add_u32 s59, s59, 32\ns_lshl_b32 s42, s59, 6\ns_add_u32 s41, s56, s42')
    a.modp_base(55, 59)
    a('v_lshlrev_b32 v6, 7, v1\ns_mul_i32 s40, s4, 229376\ns_mul_i32 s42, s58, 28672\ns_add_u32 s40, s40, s42\ns_lshl_b32 s42, s3, 13\ns_add_u32 s40, s40, s42')
    if not a.o.get('rq'): a('s_barrier')
    if a.o.get('rq') == 2: a('s_waitcnt vmcnt(0)\ns_barrier')
    a.mod_loads('RPOL')
    if a.o.get('dpf') == 3:
        a('s_cmp_ge_u32 s3, 4\ns_cbranch_scc1 L_F_nopf\nbuffer_load_dword v117, v6, s[36:39], s40 offen MPOL\ns_waitcnt vmcnt(1)\ns_branch L_F_pf\nL_F_nopf:\ns_waitcnt vmcnt(0)\nL_F_pf:')
    else: a('s_waitcnt vmcnt(0)')
    a.stamp(5)
    if a.o.get('dpf') == 5: a('s_cmp_ge_u32 s3, 4\ns_cbranch_scc1 L_F_nopf\nbuffer_load_dword v117, v6, s[36:39], s40 offen MPOL\nL_F_nopf:')
    if a.o.get('fp2'): a('ds_read_b32 v29, v11 offset:4\ns_waitcnt lgkmcnt(0)\nv_readfirstlane_b32 s76, v29')
    a.mod_partial(two=a.o.get('fp2'))
    if a.o.get('gbx'): a('s_sub_u32 s42, s59, 80\ns_cbranch_scc1 L_F_all\ns_lshr_b32 s42, s42, 1\ns_cmp_lg_u32 s42, s4\ns_cbranch_scc1 L_F_end\nL_F_all:')
    if a.o.get('fgate'): a('s_waitcnt vmcnt(0)')
    if a.o.get('dpf') == 1: a('s_cmp_ge_u32 s3, 4\ns_cbranch_scc1 L_F_nopf\nbuffer_load_dword v8, v6, s[36:39], s40 offen MPOL\nL_F_nopf:')
    a('s_add_u32 s55, s55, s76')
    a.poll8([f'buffer_load_dwordx2 v[{32+2*i}:{33+2*i}], v18, s[8:11], s55 offen offset:{512*i} sc1' for i in range(4)], range(33, 40, 2), 30)
    a.tree_add(range(32, 40, 2))
    a.swap_op(32, 'v_add_f32', 32, 33)
    a.rbf(32, 32)
    a(f's_mul_i32 s42, s4, 12288\ns_lshl_b32 s43, s59, 7\ns_add_u32 s42, s42, s43\ns_add_u32 s42, s42, {MODV}')
    a('v_or_b32 v33, v2, v32\ns_mov_b32 exec_hi, 0')
    a.store_mode('buffer_store_dword v33, v17, s[8:11], s42 offen')
    a.stamp(6)
    if a.o.get('gbx'): a('L_F_end:')
    if a.o.get('wb') == 'F': a('s_lshl_b32 s42, s58, 3\ns_or_b32 s42, s42, s3\ns_cbranch_scc1 L_F_nowb\ns_waitcnt vmcnt(0)\nbuffer_wbl2 sc1\ns_waitcnt vmcnt(0)\nL_F_nowb:')
    if a.o.get('dpf') == 4: a('s_mov_b64 exec, -1\ns_cmp_ge_u32 s3, 4\ns_cbranch_scc1 L_F_nopf\nbuffer_load_dword v117, v6, s[36:39], s40 offen MPOL\ns_waitcnt vmcnt(0)\nL_F_nopf:')
    a.exit()

def F_comm(a):
    a.role = 'Fc'
    a('L_F_comm:')
    a.karg(24, 'x'); a.srd(24, 1024)
    p16 = a.o.get('p16')
    if p16: a('s_and_b32 s58, s5, 7\nv_lshlrev_b32 v9, 4, v1\nv_and_b32 v11, 31, v1\nv_lshlrev_b32 v11, 1, v11\ns_and_b32 s40, s5, 15\ns_lshl_b32 s40, s40, 6')
    else: a('s_and_b32 s58, s5, 7\nv_lshlrev_b32 v9, 4, v1\nv_lshlrev_b32 v11, 1, v1\ns_lshl_b32 s40, s58, 7')
    a('s_waitcnt lgkmcnt(0)')
    a.stamp(0)
    a('buffer_load_dwordx4 v[32:35], v9, s[24:27], 0 offen\nbuffer_load_ushort v36, v11, s[24:27], s40 offen')
    a.get_tag(); a.fin_tag()
    a.xid_publish()
    if a.o.get('fprobe'): a.probe(a.o['fprobe'])
    else: a('s_mov_b32 s76, 0')
    a('s_waitcnt vmcnt(1)')
    for d in range(4): a(f'v_lshlrev_b32 v{40+2*d}, 16, v{32+d}\nv_and_b32 v{41+2*d}, 0xffff0000, v{32+d}')
    a('v_add_f32 v32, v40, v41\nv_add_f32 v33, v42, v43\nv_add_f32 v34, v44, v45\nv_add_f32 v35, v46, v47')
    a.tree_add(range(32, 36))
    a.wave_reduce('v_add_f32', [32], 33)
    a('v_mul_f32 v32, 0x3b000000, v32')
    for i in range(8): a(f'v_sub_f32 v{40+i}, v{40+i}, v32')
    for i in range(8): a(f'v_mul_f32 v{40+i}, v{40+i}, v{40+i}')
    a.tree_add(range(40, 48))
    a.wave_reduce('v_add_f32', [40], 33)
    a('v_mul_f32 v40, 0x3b000000, v40')
    a.rbf(32, 32); a.rbf(40, 40)
    a(f'v_add_f32 v40, {EPS:#x}, v40'); a.rbf(40, 40)
    a('v_sqrt_f32 v40, v40\nv_lshlrev_b32 v36, 16, v36'); a.rbf(40, 40)
    a('v_sub_f32 v36, v36, v32'); a.rbf(36, 36)
    a.div(40, 36, 40, 41, 42); a.rbf(28, 40)
    if p16:
        a(f'v_lshrrev_b32 v12, 5, v1\nv_lshlrev_b32 v12, 11, v12\nv_lshl_add_u32 v12, v11, 2, v12\ns_and_b32 s41, s5, 15\ns_lshl_b32 s41, s41, 17\ns_add_u32 s41, s41, {MODP}')
        a(f'v_add_u32 v13, {WH}, v11\nv_mov_b32 v14, {WMODE}\nv_lshlrev_b32 v17, 2, v1\nv_lshlrev_b32 v18, 3, v1')
        a(f's_lshl_b32 s54, s4, 3\ns_add_u32 s54, s54, s58\ns_lshl_b32 s55, s54, 8\ns_add_u32 s55, s55, {QV}\ns_lshl_b32 s54, s54, 13\ns_add_u32 s54, s54, {QP}\ns_add_u32 s56, s54, 4096')
        a.stamp(1)
        a('s_barrier')
        a(a.xid_load(64))
        a.poll8([f'buffer_load_dwordx2 v[{32+2*i}:{33+2*i}], v12, s[8:11], s41 offen offset:{256*i} sc1' for i in range(8)], range(33, 48, 2), 30)
        a.stamp(2)
        a.tree_add(range(32, 48, 2))
        a.rbf(32, 32)
        a('v_mov_b32 v48, v32\ns_nop 1\nv_permlane32_swap_b32 v32, v48')
        a('v_add_f32 v48, 1.0, v48'); a.rbf(48, 48)
        a('v_mul_f32 v48, v28, v48'); a.rbf(48, 48)
        a('v_add_f32 v48, v48, v32'); a.rbf(48, 48)
    else:
        a(f'v_lshrrev_b32 v12, 5, v1\nv_lshlrev_b32 v12, 17, v12\nv_and_b32 v10, 31, v1\nv_lshl_add_u32 v12, v10, 3, v12\ns_lshl_b32 s41, s58, 18\ns_add_u32 s41, s41, {MODP}\ns_add_u32 s41, s41, s76')
        a(f'v_add_u32 v13, {WH}, v11\nv_mov_b32 v14, {WMODE}\nv_lshlrev_b32 v17, 2, v1\nv_lshlrev_b32 v18, 3, v1')
        a(f's_lshl_b32 s54, s4, 3\ns_add_u32 s54, s54, s58\ns_lshl_b32 s55, s54, 8\ns_add_u32 s55, s55, {QV}\ns_lshl_b32 s54, s54, 12\ns_add_u32 s54, s54, {QP}')
        a(f'v_lshlrev_b32 v19, 6, v1\nv_mov_b32 v20, s45\ns_lshl_b32 s56, s4, 12\ns_lshl_b32 s42, s58, 2\ns_add_u32 s56, s56, s42\ns_add_u32 s56, s56, {QF}')
        if a.o.get('pt_q') == 1: a('v_lshlrev_b32 v22, 6, v1\nbuffer_load_dword v108, v22, s[8:11], s54 offen sc1')
        if a.o.get('pt_h'):
            a(f'v_and_b32 v22, 31, v1\nv_lshlrev_b32 v22, 7, v22\nv_lshrrev_b32 v23, 5, v1\nv_lshl_add_u32 v22, v23, 17, v22\nbuffer_load_dword v109, v22, s[8:11], s41 offen {a.o["pt_h"]}')
        a.stamp(1)
        if not a.o.get('mh'): a('s_barrier')
        H1 = [f'buffer_load_dwordx2 v[{32+2*i}:{33+2*i}], v12, s[8:11], s41 offen offset:{256*i} sc1' for i in range(16)]
        if a.o.get('mh'):
            if a.o.get('mown', 1): a.trigger('own')
            H1 = H1 + [a.xid_load(64)]
        else: a(a.xid_load(64))
        if a.o.get('pt_q') == 2: a('v_lshlrev_b32 v22, 6, v1\nbuffer_load_dword v108, v22, s[8:11], s54 offen sc1')
        ps = a.o.get('ps') and not a.o.get('mh')
        if ps: a.poll8_sum(H1, 32, 16, 30, [(0, 8), (8, 8)])
        else: a.poll8(H1, range(33, 64, 2), 30)
        a.stamp(2)
        for k in (() if ps else (1, 2, 4)):
            for b in (48, 32):
                for i in range(0, 8, 2*k): a(f'v_add_f32 v{b+2*i}, v{b+2*i}, v{b+2*(i+k)}')
        a.rbf(48, 48); a.rbf(32, 32)
        a('v_add_f32 v48, 1.0, v48'); a.rbf(48, 48)
        a('v_mul_f32 v48, v28, v48'); a.rbf(48, 48)
        a('v_add_f32 v48, v48, v32'); a.rbf(48, 48)
    if a.o.get('mh'):
        a.xid_mode(64)
        a(f's_lshl_b32 s42, s7, 10\ns_or_b32 s42, s42, s6\nv_or_b32 v48, s42, v48\ns_lshl_b32 s42, s4, 3\ns_add_u32 s42, s42, s58\ns_lshl_b32 s42, s42, 8\ns_add_u32 s42, s42, {HV}')
        a.store_mode('buffer_store_dword v48, v17, s[8:11], s42 offen')
        a.stamp(3)
        a('v_mov_b32 v15, 0\nds_write_b32 v14, v15\ns_branch L_M_comm')
        a('L_F_comm2:')
        a('s_and_b32 s58, s5, 7\ns_waitcnt lgkmcnt(0)')
        a.get_tag(); a.fin_tag()
        a.xid_publish()
        a(f'v_lshlrev_b32 v13, 1, v1\nv_add_u32 v13, {WH}, v13\nv_mov_b32 v14, {WMODE}\nv_lshlrev_b32 v17, 2, v1\nv_lshlrev_b32 v18, 3, v1\ns_mov_b32 s76, 0')
        a(f's_lshl_b32 s54, s4, 3\ns_add_u32 s54, s54, s58\ns_lshl_b32 s55, s54, 8\ns_add_u32 s41, s55, {HV}\ns_add_u32 s55, s55, {QV}\ns_lshl_b32 s54, s54, 12\ns_add_u32 s54, s54, {QP}')
        if a.o['mh'] == 2: a('s_barrier')
        l = a.label('P')
        a(f's_mov_b32 s47, 0\n{l}:\nbuffer_load_dword v48, v17, s[8:11], s41 offen sc1\ns_add_u32 s47, s47, 1\ns_cmp_gt_u32 s47, {LIMIT}\ns_cbranch_scc1 {l}_t\ns_waitcnt vmcnt(0)')
        a(f'v_xor_b32 v48, v2, v48\nv_and_b32 v30, {TMASK}, v48\nv_cmp_ne_u32 vcc, 0, v30\ns_cbranch_vccnz {l}\n{l}_x:')
        a.tails.append(f'{l}_t:\ns_waitcnt vmcnt(0)\ns_branch {l}_x')
        a.stamp(2)
        a('ds_write_b16_d16_hi v13, v48\nv_bfe_u32 v64, v48, 10, 1\nv_mov_b32 v65, 0\nds_write_b64 v14, v[64:65]\nv_readfirstlane_b32 s7, v64')
        if a.o['mh'] == 1: a('s_barrier')
        a('s_waitcnt lgkmcnt(0)\ns_barrier')
        F_comm_tail(a, False)
        return
    a('ds_write_b16_d16_hi v13, v48')
    a.xid_mode(64)
    a('v_mov_b32 v64, s7\nv_mov_b32 v65, s76\nds_write_b64 v14, v[64:65]\ns_waitcnt lgkmcnt(0)\ns_barrier')
    F_comm_tail(a, p16)

def F_comm_tail(a, p16):
    a.stamp(3)
    if p16: a('s_cmp_ge_u32 s5, 24\ns_cbranch_scc1 L_M_comm')
    if a.o.get('rq'):
        if a.o.get('rq') == 2: a('s_barrier')
        if a.o.get('fp2'):
            a.probe(3)
            a('v_mov_b32 v65, s76\nds_write_b32 v14, v65 offset:4\ns_waitcnt lgkmcnt(0)')
        a.exit()
        return
    if a.o.get('qmode'): a('s_lshl_b32 s43, s7, 10\ns_or_b32 s43, s43, s6')
    nq = 16 if p16 else 8
    QL = [f'buffer_load_dwordx2 v[{32+2*i}:{33+2*i}], v18, s[8:11], s{54 if i < 8 else 56} offen offset:{512*(i&7)} sc1' for i in range(nq)]
    if a.o.get('ps'): a.poll8_sum(QL, 32, nq, 30, [(0, nq)])
    else: a.poll8(QL, range(33, 32+2*nq, 2), 30)
    a.stamp(4)
    if not a.o.get('ps'): a.tree_add(range(32, 32+2*nq, 2))
    a.rbf(32, 32)
    if a.o.get('qmode'): a('v_or_b32 v32, s43, v32')
    else: a('v_or_b32 v32, v2, v32')
    a.store_mode('buffer_store_dword v32, v17, s[8:11], s55 offen')
    if a.o.get('sq'): a.store_mode('buffer_store_dword v20, v19, s[8:11], s56 offen')
    a.stamp(5)
    a.trigger(a.o.get('ftrig'))
    if a.o.get('gbl'):
        a('s_cmp_lt_u32 s58, ' + str(a.o.get('gbj', 6)) + '\ns_cbranch_scc1 L_F_gb')
        a.trigger(a.o['gbl'])
        a('L_F_gb:')
    a('s_barrier')
    if a.o.get('fp2'):
        a.probe(3)
        a('v_mov_b32 v65, s76\nds_write_b32 v14, v65 offset:4\ns_waitcnt lgkmcnt(0)')
    a.exit()

def M_early(a):
    a.role = 'M'
    a('L_M:')
    for s, k in ((24, 'x'), (28, 'wg'), (32, 'wu'), (36, 'wd')): a.karg(s, k)
    a.srd(24, 1024)
    for s in (28, 32, 36): a.srd(s, 0x1C0000)
    a('v_bfe_u32 v10, v1, 3, 2\nv_lshlrev_b32 v10, 13, v10\nv_and_b32 v6, 7, v1\nv_lshl_add_u32 v10, v6, 7, v10\nv_lshrrev_b32 v6, 5, v1\nv_lshl_add_u32 v10, v6, 6, v10')
    a('s_lshl_b32 s43, s58, 4\ns_add_u32 s43, s43, s3\ns_add_u32 s43, s43, 8\ns_lshl_b32 s43, s43, 15\ns_lshl_b32 s42, s4, 10\ns_add_u32 s43, s43, s42')
    a('v_and_b32 v11, 31, v1')
    a('s_waitcnt lgkmcnt(0)')
    a.stamp(0)
    a.get_tag()
    if a.o.get('a_tagw'): a.fin_tag()
    if not a.o.get('early_gu') and a.o.get('apf2') != 1 and not a.o.get('nompf'): a('buffer_load_dword v112, v10, s[16:19], s43 offen FPOL')
    if a.o.get('mpf2'): a('s_sub_u32 s43, s43, 131072\nbuffer_load_dword v115, v10, s[16:19], s43 offen FPOL')
    if not a.o.get('a_tagw'): a.fin_tag()
    if a.o.get('vpf'):
        a.karg(68, 'v'); a.srd(68, 0x2000000)
        a(f'v_lshrrev_b32 v12, 5, v1\nv_lshlrev_b32 v12, 13, v12\nv_lshl_add_u32 v12, v11, 7, v12\ns_lshl_b32 s40, s4, 22\ns_lshl_b32 s41, s58, 17\ns_add_u32 s40, s40, s41\ns_lshl_b32 s41, s3, 14\ns_add_u32 s40, s40, s41\ns_add_u32 s40, s40, {(3<<20) + 4096}\ns_waitcnt lgkmcnt(0)')
        if a.o['vpf'] == 2: a('s_barrier')
        a('buffer_load_dword v113, v12, s[68:71], s40 offen UPOL')
    if a.o.get('rpf'):
        a('v_bfe_u32 v13, v1, 2, 3\nv_mul_u32_u24 v13, 6144, v13\nv_and_b32 v14, 3, v1\nv_lshl_add_u32 v13, v14, 7, v13\nv_lshl_add_u32 v13, v6, 6, v13')
        a('s_lshl_b32 s42, s4, 3\ns_add_u32 s42, s42, s3\ns_mul_i32 s42, s42, 49152\ns_lshl_b32 s44, s58, 9\ns_add_u32 s42, s42, s44\ns_add_u32 s42, s42, 2048')
        if a.o.get('rpf') == 2: a('s_waitcnt vmcnt(0)')
        if a.o.get('rpf') != 3: a('buffer_load_dword v22, v13, s[12:15], s42 offen FPOL')
        else: a('s_mov_b32 s62, s42')
    a('s_branch L_M2')

def M_body(a):
    a.role = 'M'
    a('L_M2:')
    if a.o.get('p16'): a('v_and_b32 v11, 31, v1\nv_lshrrev_b32 v6, 5, v1')
    a('s_mul_i32 s59, s4, 7\ns_add_u32 s59, s59, s58')
    a('s_cmp_eq_u32 s58, 7\ns_cbranch_scc1 L_R')
    if a.o.get('mearly'): a('s_mov_b32 s66, s3')
    a('v_mul_u32_u24 v5, 28672, v4\nv_lshl_add_u32 v5, v3, 2, v5')
    a(f's_and_b32 s42, s59, 1\ns_cselect_b32 s44, {39*3584}, 0\ns_cselect_b32 s48, -1, 1\ns_cselect_b32 s63, 78, 0\ns_cselect_b32 s42, 7, 0\ns_xor_b32 s3, s3, s42\ns_mul_i32 s49, s48, {3584*25}\ns_mul_i32 s48, s48, 3584')
    a('s_mul_i32 s41, s3, 229376\ns_lshl_b32 s42, s59, 6\ns_add_u32 s41, s41, s42\ns_add_u32 s41, s41, s44')
    a('s_lshl_b32 s40, s3, 7')
    eg = a.o.get('early_gu')
    def gu():
        for r in range(16):
            a(f'buffer_load_dword v{32+r}, v5, s[28:31], s41 offen MPOL\nbuffer_load_dword v{48+r}, v5, s[32:35], s41 offen MPOL')
            if r < 15: a(f's_add_u32 s41, s41, s{48 if r != 7 else 49}')
    if eg:
        gu()
        a('s_waitcnt vmcnt(0)')
        a.stamp(4)
        a.perm_x1(32, 80); a.perm_x1(40, 88); a.perm_x1(48, 96); a.perm_x1(56, 104)
    if a.o.get('m_pfw') or a.o.get('p16'): a('s_waitcnt vmcnt(0)')
    if a.o.get('tlb_m'):
        a.karg(68, 'wo'); a.srd(68, 0x400000)
        a('s_lshl_b32 s42, s4, 19\ns_mov_b64 exec, 1\nbuffer_load_dword v113, v5, s[28:31], s41 offen nt\nbuffer_load_dword v114, v5, s[32:35], s41 offen nt\nbuffer_load_dword v115, v5, s[36:39], 0 offen nt\nbuffer_load_dword v116, v5, s[24:27], 0 offen')
        a(f's_mov_b32 s44, {MODV}\nbuffer_load_dword v117, v5, s[8:11], s44 offen sc1\ns_waitcnt lgkmcnt(0)\nbuffer_load_dword v118, v5, s[68:71], s42 offen nt\ns_mov_b64 exec, -1')
    if a.o.get('dfirst'):
        a('v_lshlrev_b32 v6, 13, v4\nv_lshl_add_u32 v6, v3, 3, v6\ns_lshl_b32 s43, s59, 15\ns_add_u32 s43, s43, s40\ns_add_u32 s42, s43, 4096')
        if a.o['dfirst'] != 'none': a('s_barrier')
        for i in range(8): a(f'buffer_load_dwordx2 v[{64+2*i}:{65+2*i}], v6, s[36:39], s{43 if i<4 else 42} offen offset:{1024*(i&3)} MPOL')
    a.stamp(1)
    if a.o.get('mearly'):
        a(f's_cmp_lt_u32 s66, {a.o["mearly"]}\ns_cbranch_scc0 L_M_w')
        gu()
        a('s_barrier\nbuffer_load_ushort v8, v7, s[24:27], s40 offen\ns_branch L_M_x\nL_M_w:')
    a('s_barrier')
    a.stamp(3)
    if a.o.get('rpf') == 3: a('buffer_load_dword v22, v13, s[12:15], s62 offen FPOL')
    a('buffer_load_ushort v8, v7, s[24:27], s40 offen')
    if not eg: gu()
    if a.o.get('mearly'): a('L_M_x:')
    a('v_lshlrev_b32 v6, 13, v4\nv_lshl_add_u32 v6, v3, 3, v6\ns_lshl_b32 s43, s59, 15\ns_add_u32 s43, s43, s40\ns_add_u32 s41, s43, 4096' + ('\ns_mov_b32 s64, s43\ns_mov_b32 s65, s41' if a.o.get('dl') else ''))
    dl = a.o.get('dl')
    MV = ['buffer_load_dword v112, v17, s[8:11], s55 offen sc1', 'buffer_load_dword v113, v17, s[8:11], s55 offen offset:2048 sc1', 'buffer_load_dword v114, v17, s[8:11], s56 offen sc1']
    dt = a.o.get('dt')
    if dt: a('s_mov_b32 s64, s43\ns_mov_b32 s65, s41')
    if not dl and not a.o.get('dfirst') and not dt:
        for i in range(8): a(f'buffer_load_dwordx2 v[{64+2*i}:{65+2*i}], v6, s[36:39], s{43 if i<4 else 41} offen offset:{1024*(i&3)} MPOL')
    a(f's_lshl_b32 s42, s3, 8\ns_lshl_b32 s54, s3, 17\ns_add_u32 s54, s54, {AX}\ns_mul_i32 s55, s4, 12288\ns_add_u32 s55, s55, s42\ns_add_u32 s55, s55, {MODV + 2*2048}\ns_add_u32 s56, s55, 4096')
    if a.o.get('mv') or a.o.get('pt_m'): a('\n'.join(MV))
    a(f'v_add_u32 v13, s42, v17\nv_add_u32 v13, {WX1}, v13')
    a(f's_lshl_b32 s43, s3, 3\ns_add_u32 s43, s43, {WST}\nv_mov_b32 v14, s43\nv_and_b32 v15, 7, v1\nv_lshlrev_b32 v15, 3, v15\nv_add_u32 v15, {WST}, v15')
    a(f's_add_u32 s43, s40, {WH2}\nv_xor_b32 v16, s63, v7\nv_add_u32 v16, s43, v16\nv_add_u32 v18, s43, v9')
    a(f's_add_u32 s43, s42, {WGU}\nv_lshlrev_b32 v19, 3, v3\nv_add_u32 v19, s43, v19')
    a(f's_lshl_b32 s43, s3, 6\ns_add_u32 s43, s43, {WHH}\nv_lshlrev_b32 v10, 1, v11\nv_add_u32 v10, s43, v10\nv_add_u32 v11, s43, v9')
    a('v_lshrrev_b32 v12, 3, v3\nv_lshlrev_b32 v12, 9, v12\nv_and_b32 v20, 7, v3\nv_lshl_add_u32 v12, v20, 4, v12')
    a(f's_bfe_u32 s62, s59, 0x40001\ns_lshl_b32 s62, s62, 17\ns_lshr_b32 s42, s59, 5\ns_lshl_b32 s42, s42, 8\ns_add_u32 s62, s62, s42\ns_and_b32 s42, s59, 1\ns_lshl_b32 s42, s42, 7\ns_add_u32 s62, s62, s42\ns_lshl_b32 s42, s3, 10\ns_add_u32 s62, s62, s42\ns_add_u32 s62, s62, {DP}')
    if a.o.get('pw_d'):
        a('v_xor_b32 v28, 1, v2\nv_mov_b32 v29, v28\nv_mov_b32 v30, v28\nv_mov_b32 v31, v28\ns_mov_b64 exec, 0xffff')
        a.store2('buffer_store_dwordx4 v[28:31], v12, s[8:11], s{s} offen', 62, 42)
        a('s_mov_b64 exec, -1')
    a(f'v_mov_b32 v21, {WMODE + (4 if a.o.get("p16") else 0)}')
    if not eg:
        a(f's_waitcnt vmcnt({(0 if dl or dt or a.o.get("dfirst") else 8) + (3 if a.o.get("mv") or a.o.get("pt_m") else 0) + (2 if a.o.get("pw_d") else 0)})')
        a.stamp(4)
        a.perm_x1(32, 80); a.perm_x1(40, 88); a.perm_x1(48, 96); a.perm_x1(56, 104)
    if not dl and not dt:
        a(f's_waitcnt vmcnt({(3 if a.o.get("mv") or a.o.get("pt_m") else 0) + (2 if a.o.get("pw_d") else 0)})')
        a.perm_x2(64, 32)
    if dl == 3:
        a('s_barrier')
        for i in range(8): a(f'buffer_load_dwordx2 v[{32+2*i}:{33+2*i}], v6, s[36:39], s{64 if i<4 else 65} offen offset:{1024*(i&3)} MPOL')
        a('s_waitcnt vmcnt(0)')
    if dt:
        a('s_barrier')
        for i in range(8): a(f'buffer_load_dwordx2 v[{64+2*i}:{65+2*i}], v6, s[36:39], s{64 if i<4 else 65} offen offset:{1024*(i&3)} MPOL')
        a('s_waitcnt vmcnt(0)')
        a.perm_x2(64, 32)
    a('v_lshlrev_b32 v8, 16, v8')
    a.stamp(5)
    a.poll(MV, range(112, 115), 30, first_issued=bool(a.o.get('mv')), sleep=a.o.get('msleep'))
    a('ds_read_b32 v21, v21\nv_add_f32 v114, 1.0, v114'); a.rbf(114, 114)
    a('s_waitcnt lgkmcnt(0)\nv_readfirstlane_b32 s76, v21\ns_mov_b32 s63, 0x42800000\ns_nop 2')
    a(f's_add_u32 s54, s54, s76\ns_add_u32 s40, s54, {8*BLK}')
    if a.o.get('axgate'):
        a(f's_lshl_b32 s41, s4, 8\ns_add_u32 s41, s41, {AL}')
        a.poll(['buffer_load_dword v48, v17, s[8:11], s41 offen sc1', 'buffer_load_dword v49, v17, s[8:11], s41 offen sc1'], [48, 49], 30)
        if a.o['axgate'] > 1: a(f's_sleep {a.o["axgate"]}')
    a.stamp(6)
    if a.o.get('axl'):
        a('s_lshl_b32 s41, s4, 8\ns_add_u32 s43, s41, s40\ns_add_u32 s41, s41, s54')
        a.poll(['buffer_load_dword v48, v17, s[8:11], s41 offen sc1', 'buffer_load_dword v49, v17, s[8:11], s43 offen sc1'], [48, 49], 30, sleep=a.o.get('asleep'))
    R = list(range(48, 56)) + (list(range(60, 68)) if a.o.get('hc') else [])
    LDS_ = [f'buffer_load_dword v{r}, v17, s[8:11], s{40 if i & 1 else 54} offen offset:{256*(i>>1)} sc1' for i, r in enumerate(R)]
    if a.o.get('sel'):
        n = a.o['sel']; ng = len(R) // n
        a(f's_mov_b32 s42, {(1 << ng) - 1}\ns_mov_b32 s47, 0\nL_ax:')
        for g in range(ng):
            a(f's_bitcmp1_b32 s42, {g}\ns_cbranch_scc0 L_ax_i{g}\n' + '\n'.join(LDS_[n*g:n*g+n]) + f'\nL_ax_i{g}:')
        a(f's_add_u32 s47, s47, 1\ns_cmp_gt_u32 s47, {LIMIT}\ns_cselect_b32 s43, 0, -1')
        for g in range(ng):
            rs = R[n*g:n*g+n]
            a(f's_bitcmp1_b32 s42, {g}\ns_cbranch_scc0 L_ax_c{g}' + ('\ns_waitcnt vmcnt(0)'))
            for r in rs: a(f'v_xor_b32 v{r}, v2, v{r}')
            if n == 2: a(f'v_or_b32 v30, v{rs[0]}, v{rs[1]}')
            else: a(f'v_or3_b32 v30, v{rs[0]}, v{rs[1]}, v{rs[2]}\nv_or_b32 v30, v30, v{rs[3]}')
            a(f'v_and_b32 v30, {TMASK}, v30\nv_cmp_ne_u32 vcc, 0, v30\ns_cbranch_vccnz L_ax_c{g}\ns_bitset0_b32 s42, {g}\nL_ax_c{g}:')
        a('s_and_b32 s42, s42, s43\ns_cbranch_scc1 L_ax')
    elif a.o.get('ps'): a.poll_sum(LDS_, R, 30, 68)
    else: a.poll(LDS_, R, 30, sleep=(None if a.o.get('axl') else a.o.get('asleep')))
    a.stamp(7)
    def dn_loads():
        for i in range(8): a(f'buffer_load_dwordx2 v[{32+2*i}:{33+2*i}], v6, s[36:39], s{64 if i<4 else 65} offen offset:{1024*(i&3)} MPOL')
    if dl == 1: dn_loads()
    if a.o.get('ps'): a('v_add_f32 v48, v68, v69')
    elif a.o.get('pk'):
        for x, y in ((48, 60), (50, 62), (52, 64), (54, 66), (48, 52), (50, 54), (48, 50)): a(f'v_pk_add_f32 v[{x}:{x+1}], v[{x}:{x+1}], v[{y}:{y+1}]')
        a('v_add_f32 v48, v48, v49')
    else: a.tree_add(R)
    a.rbf(48, 48)
    a('v_mul_f32 v48, v112, v48'); a.rbf(48, 48)
    a('v_add_f32 v48, v8, v48'); a.rbf(48, 48)
    a('ds_write_b32 v13, v48\nv_readfirstlane_b32 s40, v48\ns_nop 1')
    a('v_subrev_f32 v49, s40, v48\nv_mul_f32 v50, v49, v49\ns_nop 0')
    for m in ('row_shr:1', 'row_shr:2', 'row_shr:4', 'row_shr:8'):
        a(f'v_add_f32_dpp v49, v49, v49 {m} {DPP} bound_ctrl:0\nv_add_f32_dpp v50, v50, v50 {m} {DPP} bound_ctrl:0\ns_nop 0')
    for m, rm in (('row_bcast:15', '0xa'), ('row_bcast:31', '0xc')):
        a(f'v_add_f32_dpp v49, v49, v49 {m} row_mask:{rm} bank_mask:0xf\nv_add_f32_dpp v50, v50, v50 {m} row_mask:{rm} bank_mask:0xf' + ('\ns_nop 0' if rm == '0xa' else ''))
    a('v_mul_f32 v51, 0x3c800000, v49\ns_mov_b32 exec_lo, 0\nv_fma_f32 v53, -v51, v49, v50\nv_add_f32 v52, s40, v51\ns_mov_b32 exec_hi, 0x80000000')
    a('ds_write_b64 v14, v[52:53]\ns_mov_b64 exec, -1\ns_waitcnt lgkmcnt(0)\ns_barrier')
    a('ds_read_b64 v[60:61], v15')
    if dl == 2: dn_loads()
    a('s_waitcnt lgkmcnt(0)')
    a(f'v_add_f32_dpp v49, v60, v60 row_ror:4 {DPP}')
    for k in (2, 1): a(f's_nop 1\nv_add_f32_dpp v49, v49, v49 row_ror:{k} {DPP}')
    a('v_mul_f32 v49, 0x3e000000, v49\nv_sub_f32 v60, v60, v49\nv_mul_f32 v60, v60, v60\nv_fma_f32 v61, v60, s63, v61')
    a.rbf(49, 49)
    a('v_sub_f32 v48, v48, v49')
    a(f'v_add_f32_dpp v61, v61, v61 row_ror:4 {DPP}'); a.rbf(48, 48); a('s_nop 0')
    a(f'v_add_f32_dpp v61, v61, v61 row_ror:2 {DPP}\ns_nop 1\nv_add_f32_dpp v61, v61, v61 row_ror:1 {DPP}')
    a('v_mul_f32 v61, 0x3b000000, v61'); a.rbf(61, 61)
    a(f'v_add_f32 v61, {EPS:#x}, v61'); a.rbf(61, 61)
    a('v_sqrt_f32 v61, v61\ns_nop 0'); a.rbf(61, 61)
    a.div(61, 48, 61, 62, 63); a.rbf(48, 61)
    a('v_mul_f32 v48, v48, v114'); a.rbf(48, 48)
    a('v_add_f32 v48, v48, v113'); a.rbf(48, 48)
    a('ds_write_b16_d16_hi v16, v48\nds_read_b128 v[20:23], v18\nds_read_b128 v[24:27], v18 offset:64')
    for t in range(2):
        a(f's_waitcnt lgkmcnt({1-t})')
        for m in range(4):
            b = 80 + 16*(m >> 1) + 8*t + 4*(m & 1)
            c = '0' if t == 0 else f'v[{48+4*m}:{51+4*m}]'
            a(f'v_mfma_f32_16x16x32_bf16 v[{48+4*m}:{51+4*m}], v[{20+4*t}:{23+4*t}], v[{b}:{b+3}], {c}')
    a('s_mov_b64 exec, 0xffff\ns_nop 4\nds_write2_b32 v19, v48, v52 offset1:1\ns_nop 0\nds_write2_b32 v19, v56, v60 offset0:32 offset1:33\ns_mov_b64 exec, -1\ns_waitcnt lgkmcnt(0)\ns_barrier')
    a.stamp(8)
    for i in range(4): a(f'ds_read2st64_b32 v[{48+2*i}:{49+2*i}], v17 offset0:{(WGU+512*i)//256} offset1:{(WGU+512*i+256)//256}')
    if dl:
        a('s_waitcnt vmcnt(0)')
        a.perm_x2(32, 64)
    a('s_waitcnt lgkmcnt(0)')
    a.tree8(48)
    a.rbf(48, 48)
    a('v_mov_b32 v49, v48\ns_nop 1\nv_permlane32_swap_b32 v48, v49')
    a('v_mul_f32 v48, s57, v48\nv_max_f32 v48, 0xc2fc0000, v48\nv_exp_f32 v48, -v48\ns_nop 0\nv_add_f32 v48, 1.0, v48\nv_rcp_f32 v50, v48\ns_nop 0\nv_fma_f32 v48, -v48, v50, 1.0\nv_fma_f32 v48, v48, v50, v50')
    a.rbf(48, 48)
    a('v_mul_f32 v48, v48, v49'); a.rbf(48, 48)
    a('ds_write_b16_d16_hi v10, v48\nds_read_b128 v[20:23], v11\ns_waitcnt lgkmcnt(0)')
    for jj in range(4): a(f'v_mfma_f32_16x16x32_bf16 v[{48+4*jj}:{51+4*jj}], v[20:23], v[{(64 if dl else 32)+4*jj}:{(67 if dl else 35)+4*jj}], 0')
    a('s_mov_b64 exec, 0xffff\ns_nop 3')
    for jj in range(4): a(f'v_and_or_b32 v{28+jj}, v{48+4*jj}, s46, v2')
    a.store2('buffer_store_dwordx4 v[28:31], v12, s[8:11], s{s} offen', 62, 42)
    a.stamp(9)
    if a.o.get('dpgate'): a(f's_waitcnt vmcnt({a.o["dpgate"]-1})\ns_barrier')
    a.exit()
    a('L_R:')
    if a.o.get('rq'):
        a(f'v_lshlrev_b32 v18, 3, v1\ns_lshl_b32 s54, s4, 3\ns_add_u32 s54, s54, s3\ns_lshl_b32 s55, s54, 8\ns_add_u32 s55, s55, {QV}\ns_lshl_b32 s54, s54, 12\ns_add_u32 s54, s54, {QP}\nv_mov_b32 v21, {WMODE}')
        a('s_barrier\nds_read_b32 v21, v21 offset:4\ns_waitcnt lgkmcnt(0)\nv_readfirstlane_b32 s7, v21')
        a.poll8([f'buffer_load_dwordx2 v[{32+2*i}:{33+2*i}], v18, s[8:11], s54 offen offset:{512*i} sc1' for i in range(8)], range(33, 48, 2), 30)
        a.stamp(11)
        a.tree_add(range(32, 48, 2))
        a.rbf(32, 32)
        a('v_or_b32 v32, v2, v32')
        a.store_mode('buffer_store_dword v32, v17, s[8:11], s55 offen')
        a.stamp(12)
        a.exit()
        return
    a('s_and_b32 s42, s4, 1\ns_cselect_b32 s40, 7, 1\ns_cselect_b32 s41, 0, 256\ns_sub_u32 s40, s59, s40\ns_lshl_b32 s40, s40, 6\ns_and_b32 s40, s40, 0xffffff80')
    a('s_and_b32 s42, s3, 3\ns_lshl_b32 s42, s42, 6\ns_add_u32 s41, s41, s42\ns_mul_i32 s41, s41, 3584\ns_add_u32 s40, s40, s41')
    a('v_mul_u32_u24 v5, 3584, v1')
    if a.o.get('p16'): a('s_waitcnt vmcnt(0)')
    if a.o.get('dfirst') not in (None, 'none'): a('s_barrier')
    if not a.o.get('early_gu'): a('s_barrier')
    if a.o.get('rpf') == 3: a('buffer_load_dword v22, v13, s[12:15], s62 offen FPOL')
    a('s_cmp_ge_u32 s3, 4\ns_cbranch_scc1 L_R_up\nbuffer_load_dword v8, v5, s[28:31], s40 offen MPOL\ns_branch L_R_done\nL_R_up:\nbuffer_load_dword v8, v5, s[32:35], s40 offen MPOL\nL_R_done:\ns_waitcnt vmcnt(0)')
    a.exit()

def M_comm(a):
    a.role = 'Mc'
    a('L_M_comm:')
    a.karg(64, 'out'); a.srd(64, 1024)
    if a.o.get('p16') or a.o.get('mh'):
        a('s_waitcnt lgkmcnt(0)')
        a.trigger(a.o.get('trig2'))
    else:
        a(f's_and_b32 s58, s5, 7\nv_mov_b32 v14, {WMODE}\nv_mov_b32 v15, 0\nds_write_b32 v14, v15\ns_waitcnt lgkmcnt(0)')
        a.stamp(0)
        a.mark('karg')
        a.get_tag(); a.fin_tag()
        a.mark('tag')
        a.xid_publish()
        if a.o.get('pt_q') == 3: a(f'v_lshlrev_b32 v22, 6, v1\ns_lshl_b32 s42, s4, 3\ns_add_u32 s42, s42, s58\ns_lshl_b32 s42, s42, 12\ns_add_u32 s42, s42, {QP}\nbuffer_load_dword v108, v22, s[8:11], s42 offen sc1')
        if a.o.get('sq'): a(f'v_lshlrev_b32 v22, 6, v1\ns_lshl_b32 s42, s4, 12\ns_add_u32 s42, s42, {QF}\nbuffer_load_dword v113, v22, s[8:11], s42 offen sc1')
        if a.o.get('pt_a'):
            a(f's_lshl_b32 s42, s4, 3\ns_add_u32 s42, s42, s58\ns_and_b32 s43, s42, 15\ns_lshl_b32 s43, s43, 17\ns_bfe_u32 s40, s42, 0x10004\ns_lshl_b32 s40, s40, 13\ns_add_u32 s43, s43, s40\ns_lshr_b32 s40, s42, 5\ns_lshl_b32 s40, s40, 10\ns_add_u32 s43, s43, s40\ns_add_u32 s43, s43, {AX}')
            a(f'v_and_b32 v22, 7, v1\nv_lshlrev_b32 v22, 7, v22\nbuffer_load_dword v110, v22, s[8:11], s43 offen {a.o["pt_a"]}'.replace(' plain', ''))
        if a.o.get('pt_p'):
            a(f's_lshl_b32 s42, s4, 3\ns_add_u32 s42, s42, s58\ns_and_b32 s43, s42, 15\ns_lshl_b32 s43, s43, 17\ns_lshr_b32 s40, s42, 4\ns_lshl_b32 s40, s40, 13\ns_add_u32 s43, s43, s40\ns_add_u32 s43, s43, {MODP}')
            a(f'v_lshlrev_b32 v22, 7, v1\nbuffer_load_dword v111, v22, s[8:11], s43 offen {a.o["pt_p"]}'.replace(' plain', ''))
        if a.o.get('pt_dd'):
            a(f's_lshl_b32 s42, s4, 3\ns_add_u32 s42, s42, s58\ns_and_b32 s43, s42, 15\ns_lshl_b32 s43, s43, 17\ns_lshr_b32 s40, s42, 4\ns_lshl_b32 s40, s40, 12\ns_add_u32 s43, s43, s40\ns_add_u32 s43, s43, {DP}')
            a(f'v_and_b32 v22, 31, v1\nv_lshlrev_b32 v22, 7, v22\nbuffer_load_dword v112, v22, s[8:11], s43 offen')
        if a.o.get('vd'):
            a('s_cmp_lg_u32 s58, 7\ns_cbranch_scc1 L_M_c0')
            a(a.xid_load(44))
            a.poll([a.xid_load(40, True)], range(40, 44), 30, sleep=2)
            for i in range(4): a(f'v_xor_b32 v{40+i}, v2, v{40+i}')
            a.xid_mode(40, True)
            a('s_lshl_b32 s42, s7, 10\ns_or_b32 s42, s42, s6\nv_mov_b32 v40, s42\nv_mov_b32 v41, s42\nv_mov_b32 v42, s42\nv_mov_b32 v43, s42\ns_mov_b64 exec, 1')
            a.store_mode('buffer_store_dwordx4 v[40:43], off, s[8:11], s49')
            a('s_mov_b64 exec, -1\nL_M_c0:')
        if a.o.get('vpf') == 2:
            a.trigger(a.o.get('vtrig', 'own')); a('s_barrier')
        if a.o.get('dfirst') not in (None, 'none'):
            a.trigger(a.o['dfirst']); a('s_barrier')
        a.trigger(a.o.get('trig'))
    a.mark('trig')
    if a.o.get('rq'):
        a('s_cmp_lg_u32 s58, 7\ns_cbranch_scc1 L_M_c1')
        a.poll([a.xid_load(40)], range(40, 44), 30, sleep=4)
        for i in range(4): a(f'v_xor_b32 v{40+i}, v2, v{40+i}')
        a.xid_mode(40)
        a('v_mov_b32 v15, s7\nds_write_b32 v14, v15 offset:4\ns_waitcnt lgkmcnt(0)\nL_M_c1:')
    a('s_barrier')
    a.stamp(1)
    if a.o.get('cpf2'): a('global_load_dword v23, v21, s[52:53]\nglobal_load_dword v24, v22, s[52:53]')
    if a.o.get('tlb_out'): a('v_mov_b32 v108, 0\ns_mov_b64 exec, 1\nbuffer_load_dword v109, v108, s[64:67], 0 offen\ns_mov_b64 exec, -1')
    a('s_cmp_eq_u32 s58, 7\ns_cbranch_scc1 L_M_cdone')
    a.probe(4)
    a('v_mov_b32 v15, s76\nds_write_b32 v14, v15' + (' offset:4' if a.o.get('p16') else ''))
    if a.o.get('dt'):
        a.trigger(a.o['dt']); a('s_barrier')
    a('s_cmp_ge_u32 s58, 2\ns_cbranch_scc1 L_M_cdone')
    a('s_lshl_b32 s59, s4, 1\ns_add_u32 s59, s59, s58\nv_and_b32 v10, 31, v1\nv_lshlrev_b32 v11, 1, v10\nv_lshlrev_b32 v12, 2, v10\nv_lshlrev_b32 v17, 2, v1')
    a(f's_lshl_b32 s40, s59, 6\ns_lshl_b32 s42, s59, 7\nv_add_u32 v13, s42, v12\ns_lshl_b32 s54, s59, 9\ns_add_u32 s54, s54, {DP}\ns_add_u32 s54, s54, s76')
    a(f's_mul_i32 s41, s4, 12288\ns_add_u32 s41, s41, s42\ns_add_u32 s41, s41, {MODV + 5*2048}')
    for i in range(1, 16): a(f'v_add_u32 v{64+i}, {i*BLK}, v17')
    a('v_mov_b32 v64, v17')
    if a.o.get('pt_out'): a('buffer_load_ushort v110, v11, s[64:67], s40 offen sc1')
    if a.o.get('pt_d'):
        for i in range(28): a(f'buffer_load_dword v{32+i}, v{64+(i&15)}, s[8:11], s54 offen offset:{256*(i>>4)} {a.o["pt_d"]}')
    if a.o.get('dl') == 3: a('s_barrier')
    a('s_barrier')
    a.mark('mb1')
    a(f'ds_read_b32 v28, v13 offset:{WX1}')
    GBP = lambda: a.poll(['buffer_load_dword v29, v12, s[8:11], s41 offen sc1', 'buffer_load_dword v31, v12, s[8:11], s41 offen sc1'], [29, 31], 30)
    if not a.o.get('gb2'): GBP()
    a('s_waitcnt lgkmcnt(0)\ns_barrier')
    if a.o.get('gb2'): GBP()
    a.stamp(2)
    if a.o.get('dpdelay'): a(f's_sleep {a.o["dpdelay"]}')
    if a.o.get('dpgate'): a('s_barrier')
    DPL = [f'buffer_load_dword v{32+i}, v{64+(i&15)}, s[8:11], s54 offen offset:{256*(i>>4)} sc1' for i in range(28)]
    if a.o.get('ps'): a.poll_sum(DPL, list(range(32, 60)), 30, 60)
    else: a.poll(DPL, range(32, 60), 30)
    a.stamp(3)
    if a.o.get('ps'): a('v_add_f32 v32, v60, v61')
    elif a.o.get('pk'):
        regs = list(range(32, 60, 2))
        while len(regs) > 1:
            nxt = []
            for i in range(0, len(regs) - 1, 2):
                a(f'v_pk_add_f32 v[{regs[i]}:{regs[i]+1}], v[{regs[i]}:{regs[i]+1}], v[{regs[i+1]}:{regs[i+1]+1}]'); nxt.append(regs[i])
            if len(regs) % 2: nxt.append(regs[-1])
            regs = nxt
        a('v_add_f32 v32, v32, v33')
    else: a.tree_add(range(32, 60))
    a.swap_op(32, 'v_add_f32', 32, 33)
    a.rbf(32, 32)
    a('v_mul_f32 v32, v29, v32'); a.rbf(32, 32)
    a('v_add_f32 v32, v28, v32'); a.rbf(32, 32)
    a.mark('end'); a.hold()
    a('s_mov_b32 exec_hi, 0\nbuffer_store_short_d16_hi v32, v11, s[64:67], s40 offen' + (' sc1' if a.o.get('out_wt') else ''))
    a(f's_cmp_lg_u32 s59, 0\ns_cbranch_scc1 L_M_noep\ns_mov_b64 exec, 1\nv_mov_b32 v33, s45\nv_mov_b32 v34, {EPOCH}\nbuffer_store_dword v33, v34, s[8:11], 0 offen' + ('' if a.o.get('epl') else ' sc1') + '\nL_M_noep:')
    a.stamp(4)
    if a.o.get('amp'):
        a('s_waitcnt vmcnt(0)\ns_memrealtime s[98:99]\ns_waitcnt lgkmcnt(0)\ns_sub_u32 s97, s98, s96\ns_mul_i32 s97, s97, 11')
        a('L_amp:\ns_memrealtime s[98:99]\ns_waitcnt lgkmcnt(0)\ns_sub_u32 s98, s98, s96\ns_cmp_lt_u32 s98, s97\ns_cbranch_scc1 L_amp')
    a('L_M_cdone:')
    a.exit()

DOC = '; ---------------------------------------------------------------------------------------------------------------\n; One persistent launch: 256 workgroups (one per CU) x 9 waves (8 work waves + 1 communication wave).\n; group g = wg & 7 owns kv head g; idx = wg >> 3 picks the role:\n;   idx 24..30  M: LN2, 32 columns of gate/up, sigmoid(g)*u, 32 rows of w_down; slots 0,1 also reduce the output\n; Hand-offs go through d_ws; every word (or 8-byte granule) carries the launch tag = (word at d_ws[0] on entry) + 1,\n; which the last reducer writes back.  Readers poll with sc1 loads until all tags match.  Hand-offs inside a group use\n; plain stores only when all 32 workgroups of the group reported the same XCC id, else write-through (sc1) stores.\n; Cross-group hand-offs are written twice (address bit 13 clear/set); a reader picks the copy that answers faster.\n; All intermediate values are rounded to bf16 where the reference rounds them.\n; ---------------------------------------------------------------------------------------------------------------\n'
HEADER = open('adaLN_cond__sliding_block_cached__glu_gated_glu__decode.s.ref').read().split('; Override launch')[0]
def emit(fn, prof=False, opts=None):
    a = gen_all(prof, opts)
    body = a.text()
    for p in ('MPOL', 'FPOL', 'OPOL', 'KPOL', 'VPOL', 'WPOL', 'RPOL', 'UPOL'): body = body.replace(' ' + p, (' ' + a.o.get(p, 'nt')).rstrip())
    errs = lint(body)
    if errs: print('\n'.join(errs)); raise SystemExit('lint errors')
    vg = 128
    txt = f'''{HEADER}; @launch grid=(256,1,1) block=(576,1,1) lds={LDS_TOTAL}
{DOC}.amdgcn_target "amdgcn-amd-amdhsa--gfx950"
.text
.globl {NAME}
.p2align 8
.type {NAME},@function
{NAME}:
{body}.section .rodata,"a"
.p2align 6
.amdhsa_kernel {NAME}
  .amdhsa_next_free_vgpr {vg}
  .amdhsa_next_free_sgpr 100
  .amdhsa_accum_offset {vg}
  .amdhsa_group_segment_fixed_size 0
  .amdhsa_kernarg_size 112
  .amdhsa_user_sgpr_count 2
  .amdhsa_user_sgpr_kernarg_segment_ptr 1
  .amdhsa_system_sgpr_workgroup_id_x 1
.end_amdhsa_kernel
'''
    open(fn, 'w').write(txt)
BEST = dict(out_wt=1, gbx=1, gb2=1, gbl='os', qa=1, ve=1, ps=1, pk=1, psame=1, pt_m=1, pt_o=1, pw_d=1, pt_q=3, RPOL='', FPOL='', MPOL='', OPOL='', kvt0=1, apf2=1, a_pfw=1, trig='h1', q1=1, split=1, kv_bar=1, dpgate=1, cwo=0, fp2=1, fgate=1, hc=1)
if __name__ == '__main__':
    emit('best.s', opts=BEST); emit('bestp.s', prof=True, opts=BEST); emit('best_amp.s', opts=dict(BEST, amp=1)); emit('best_slow.s', opts=dict(BEST, force_slow=1))
```

```python
from kgen import *
V = {'base': {}, 'cq': dict(cq=1), 'wbA': dict(wb='A'), 'wbF': dict(wb='F'), 'epl': dict(epl=1), 'nowt': dict(out_wt=0), 'base2': {}}
for k, o in V.items(): emit(f'x_{k}.s', opts=dict(BEST, **o))
print(' '.join(f'x_{k}.s' for k in V)); print(', '.join(f'"work/x_{k}.s"' for k in V))
```

```python
import sys
from asmlib import Asm, KOFF, NAME
from lint import lint

BLK = 131072
EPOCH = 0; XID = 0x400; AX = 0x1000; DP = 0x4000; MODP = 0x8000; PROBE = 0x10000; COPY = 8192
QV = 0x200000; MODV = 0x204000; OS = 0x21C000; QF = 0x220000; AL = 0x230000; HV = 0x238000; VD = 0x23C000; QP = 0x240000; OP = 0x2C0000; AP = 0x300000; STAMP = 0x400000
TMASK = 0x3FF; LIMIT = 1000000
LK = 0; LV = 65536; LQ = 131072; LMX = LQ + 1152; LLS = LMX + 128; LP = LLS + 2048; LOF = LP + 2048; LZ = LOF + 64; LMODE_A = LZ + 64; LRED = (LMODE_A + 64 + 255) // 256 * 256; LDS_TOTAL = LRED + 2048
WCS = 0; WH = 1024; WMODE = 1152; WZ = 1280; WX1 = 2048; WST = 4096; WH2 = 4224; WGU = 5376; WHH = 7424; WQL = 8192
SCALE = 0x3DB504F3; LOG2E = 0x3FB8AA3B; EPS = 0x3727C5AC
DPP = 'row_mask:0xf bank_mask:0xf'

class G(Asm):
    def __init__(self, prof=False, opts=None):
        super().__init__(); self.prof = prof; self.o = opts or {}
    role = ''
    def stamp(self, slot):
        if self.o.get('hs') == (self.role, slot): self('s_memrealtime s[94:95]\ns_waitcnt lgkmcnt(0)')
        if self.prof: self(f's_memrealtime s[60:61]\ns_waitcnt lgkmcnt(0)\nv_writelane_b32 v127, s60, {slot}')
    def exit(self):
        if self.o.get('hs') and self.o['hs'][0] == self.role:
            l = self.label('H')
            self('s_waitcnt lgkmcnt(0)\ns_sub_u32 s97, s94, s96\ns_mul_i32 s97, s97, 10\ns_add_u32 s97, s97, 1500')
            self(f'{l}:\ns_memrealtime s[98:99]\ns_waitcnt lgkmcnt(0)\ns_sub_u32 s98, s98, s96\ns_cmp_lt_u32 s98, s97\ns_cbranch_scc1 {l}')
        if self.prof:
            self('v_writelane_b32 v127, s96, 13')
            self(f's_mov_b64 exec, 0xffff\ns_lshl_b32 s60, s5, 3\ns_add_u32 s60, s60, s4\ns_mul_i32 s60, s60, 9\ns_add_u32 s60, s60, s3\ns_lshl_b32 s60, s60, 6\ns_add_u32 s60, s60, {STAMP}')
            self('v_lshlrev_b32 v126, 2, v1\nbuffer_store_dword v127, v126, s[8:11], s60 offen')
        self('s_endpgm')
    def srd(self, s, nbytes): self(f's_mov_b32 s{s+2}, {nbytes:#x}\ns_mov_b32 s{s+3}, 0x20000')
    def karg(self, s, k): self(f's_load_dwordx2 s[{s}:{s+1}], s[0:1], {KOFF[k]}')
    def rbf(self, d, s): self(f'v_cvt_pk_bf16_f32 v{d}, 0, v{s}')
    def get_tag(self):
        self(f's_load_dword s45, s[8:9], {EPOCH}\ns_mov_b32 s46, {0xFFFFFFFF ^ TMASK:#x}\ns_mov_b32 s50, 0x05040100\ns_mov_b32 s51, 0x07060302')
    def fin_tag(self):
        self(f's_waitcnt lgkmcnt(0)\ns_add_u32 s45, s45, 1\ns_and_b32 s6, s45, {TMASK}\nv_mov_b32 v2, s6')
    def _loop(self, loads, check, sleep, first_issued=False):
        l = self.label('P')
        self('s_mov_b32 s47, 0')
        if first_issued: self(f's_branch {l}_w')
        self(f'{l}:')
        for x in loads: self(x)
        if first_issued: self(f'{l}_w:')
        self(f's_add_u32 s47, s47, 1\ns_cmp_gt_u32 s47, {LIMIT}\ns_cbranch_scc1 {l}_t')
        self('s_waitcnt vmcnt(0)')
        check()
        if sleep: self(f's_cbranch_vccz {l}_x\ns_sleep {sleep}\ns_branch {l}')
        else: self(f's_cbranch_vccnz {l}')
        self.tails.append(f'{l}_t:\ns_waitcnt vmcnt(0)\ns_branch {l}_x')
        self(f'{l}_x:')
    tails = None
    def poll(self, loads, regs, acc, sleep=None, first_issued=False):
        def check():
            for r in regs: self(f'v_xor_b32 v{r}, v2, v{r}')
            rs = list(regs)
            self(f'v_or_b32 v{acc}, v{rs[0]}, v{rs[1]}'); rs = rs[2:]
            while len(rs) >= 2: self(f'v_or3_b32 v{acc}, v{acc}, v{rs[0]}, v{rs[1]}'); rs = rs[2:]
            if rs: self(f'v_or_b32 v{acc}, v{acc}, v{rs[0]}')
            self(f'v_and_b32 v{acc}, {TMASK}, v{acc}\nv_cmp_ne_u32 vcc, 0, v{acc}')
        self._loop(loads, check, sleep, first_issued)
    def poll_sum(self, loads, regs, acc, out):
        l = self.label('P'); n = len(regs)
        self(f's_mov_b32 s47, 0\n{l}:')
        for x in loads: self(x)
        self(f's_add_u32 s47, s47, 1\ns_cmp_gt_u32 s47, {LIMIT}\ns_cbranch_scc1 {l}_t')
        for k in range(0, n, 4):
            r = regs[k:k+4]
            self(f's_waitcnt vmcnt({n - k - 4})')
            for x in r: self(f'v_xor_b32 v{x}, v2, v{x}')
            if k == 0: self(f'v_or_b32 v{acc}, v{r[0]}, v{r[1]}\nv_pk_add_f32 v[{out}:{out+1}], v[{r[0]}:{r[1]}], v[{r[2]}:{r[3]}]\nv_or3_b32 v{acc}, v{acc}, v{r[2]}, v{r[3]}')
            else:
                self(f'v_or3_b32 v{acc}, v{acc}, v{r[0]}, v{r[1]}\nv_or3_b32 v{acc}, v{acc}, v{r[2]}, v{r[3]}')
                if k == n - 4: self(f'v_and_b32 v{acc}, {TMASK}, v{acc}\nv_cmp_ne_u32 vcc, 0, v{acc}')
                self(f'v_pk_add_f32 v[{r[0]}:{r[1]}], v[{r[0]}:{r[1]}], v[{r[2]}:{r[3]}]\nv_pk_add_f32 v[{out}:{out+1}], v[{out}:{out+1}], v[{r[0]}:{r[1]}]')
        self(f's_cbranch_vccnz {l}')
        self.tails.append(f'{l}_t:\ns_waitcnt vmcnt(0)\ns_branch {l}_x')
        self(f'{l}_x:')
    def poll8_sum(self, loads, base, n, acc, groups):
        l = self.label('P')
        self(f's_mov_b32 s47, 0\n{l}:')
        for x in loads: self(x)
        self(f's_add_u32 s47, s47, 1\ns_cmp_gt_u32 s47, {LIMIT}\ns_cbranch_scc1 {l}_t')
        first = {i: f for f, c in groups for i in range(f, f + c)}
        for k in range(0, n, 2):
            self(f's_waitcnt vmcnt({n - k - 2})')
            if k == 0: self(f'v_xor_b32 v{acc}, s45, v{base+1}')
            else: self(f'v_bitop3_b32 v{acc}, v{acc}, v{base+2*k+1}, s45 bitop3:0xf6')
            self(f'v_bitop3_b32 v{acc}, v{acc}, v{base+2*k+3}, s45 bitop3:0xf6')
            if k == n - 2: self(f'v_cmp_ne_u32 vcc, 0, v{acc}')
            self(f'v_add_f32 v{base+2*k}, v{base+2*k}, v{base+2*k+2}')
            if first[k] != k: self(f'v_add_f32 v{base+2*first[k]}, v{base+2*first[k]}, v{base+2*k}')
        self(f's_cbranch_vccnz {l}')
        self.tails.append(f'{l}_t:\ns_waitcnt vmcnt(0)\ns_branch {l}_x')
        self(f'{l}_x:')
    def poll8(self, loads, tags, acc, sleep=None):
        def check():
            rs = list(tags)
            self(f'v_xor_b32 v{acc}, s45, v{rs[0]}')
            for r in rs[1:]: self(f'v_bitop3_b32 v{acc}, v{acc}, v{r}, s45 bitop3:0xf6')
            self(f'v_cmp_ne_u32 vcc, 0, v{acc}')
        self._loop(loads, check, sleep)
    def store_mode(self, ins):
        l = self.label('S')
        self(f's_cmp_eq_u32 s7, 1\ns_cbranch_scc0 {l}_s\n{ins}\n{l}_e:')
        self.tails.append(f'{l}_s:\n{ins} sc1\ns_branch {l}_e')
    def store2(self, ins, sreg, tmp):
        self(ins.format(s=sreg) + ' sc1')
        if not self.o.get('onecopy'): self(f's_add_u32 s{tmp}, s{sreg}, {COPY}\n' + ins.format(s=tmp) + ' sc1')
    def tree_add(self, regs):
        regs = list(regs)
        while len(regs) > 1:
            nxt = []
            for i in range(0, len(regs) - 1, 2):
                self(f'v_add_f32 v{regs[i]}, v{regs[i]}, v{regs[i+1]}'); nxt.append(regs[i])
            if len(regs) % 2: nxt.append(regs[-1])
            regs = nxt
    def tree8(self, b):
        if self.o.get('pk'):
            self(f'v_pk_add_f32 v[{b}:{b+1}], v[{b}:{b+1}], v[{b+2}:{b+3}]\nv_pk_add_f32 v[{b+4}:{b+5}], v[{b+4}:{b+5}], v[{b+6}:{b+7}]\nv_pk_add_f32 v[{b}:{b+1}], v[{b}:{b+1}], v[{b+4}:{b+5}]\nv_add_f32 v{b}, v{b}, v{b+1}')
        else: self.tree_add(range(b, b + 8))
    def swap_op(self, which, op, v, t):
        self(f'v_mov_b32 v{t}, v{v}\ns_nop 1\nv_permlane{which}_swap_b32 v{v}, v{t}\n{op} v{v}, v{v}, v{t}')
    def row_reduce(self, op, regs):
        for k in (8, 4, 2, 1):
            if len(regs) < 3: self(f's_nop {2 - len(regs) + (0 if k != 8 else 1)}')
            elif k == 8: self('s_nop 1')
            for r in regs: self(f'{op}_dpp v{r}, v{r}, v{r} row_ror:{k} {DPP}')
    def wave_reduce(self, op, regs, t):
        self.row_reduce(op, regs)
        for w in (16, 32):
            for i, r in enumerate(regs): self(f'v_mov_b32 v{t+i}, v{r}')
            self('s_nop 1')
            for i, r in enumerate(regs): self(f'v_permlane{w}_swap_b32 v{r}, v{t+i}')
            for i, r in enumerate(regs): self(f'{op} v{r}, v{r}, v{t+i}')
    def div(self, q, n, d, r, t):
        self(f'v_rcp_f32 v{r}, v{d}\ns_nop 0\nv_mul_f32 v{t}, v{n}, v{r}\nv_fma_f32 v{q}, -v{t}, v{d}, v{n}\nv_fma_f32 v{q}, v{q}, v{r}, v{t}')
    def xid_publish(self):
        self('s_getreg_b32 s44, hwreg(HW_REG_XCC_ID)\ns_and_b32 s44, s44, 0xffff\ns_lshl_b32 s44, s44, 16\ns_or_b32 s44, s44, s6')
        self('v_mov_b32 v4, s44\nv_mov_b32 v5, s44\nv_mov_b32 v6, s44\nv_mov_b32 v7, s44\nv_mov_b32 v8, 0')
        self(f's_lshl_b32 s48, s4, 8\ns_add_u32 s48, s48, {XID}\ns_and_b32 s49, s5, 15\ns_lshl_b32 s49, s49, 17\ns_add_u32 s49, s49, s48\ns_lshr_b32 s42, s5, 4\ns_lshl_b32 s42, s42, 7\ns_add_u32 s49, s49, s42')
        self('s_mov_b64 exec, 1\nbuffer_store_dwordx4 v[4:7], v8, s[8:11], s49 offen sc1\ns_mov_b64 exec, -1')
        self('v_and_b32 v3, 15, v1\nv_lshlrev_b32 v3, 17, v3\nv_bfe_u32 v8, v1, 4, 1\nv_lshl_add_u32 v3, v8, 7, v3')
        if self.o.get('vd'): self(f's_lshl_b32 s49, s4, 7\ns_add_u32 s49, s49, {VD}')
    def xid_load(self, r, full=False):
        if self.o.get('vd') and not full: return f'buffer_load_dwordx4 v[{r}:{r+3}], off, s[8:11], s49 sc1'
        return f'buffer_load_dwordx4 v[{r}:{r+3}], v3, s[8:11], s48 offen sc1'
    def xid_mode(self, r, full=False):
        if self.o.get('vd') and not full:
            self(f's_or_b32 s44, s6, 0x400')
        for i in range(4): self(f'v_xor_b32 v{r+i}, s44, v{r+i}')
        self(f'v_or3_b32 v{r}, v{r}, v{r+1}, v{r+2}\nv_or_b32 v{r}, v{r}, v{r+3}\nv_cmp_ne_u32 vcc, 0, v{r}\ns_nop 1\ns_cmp_eq_u64 vcc, 0\ns_cselect_b32 s7, 1, 0')
        if self.o.get('force_slow'): self('s_mov_b32 s7, 0')
    def probe(self, rounds):
        if self.o.get('onecopy') or self.o.get('noprobe'):
            self(f's_mov_b32 s76, {COPY if self.o.get("noprobe") == 2 else 0}'); return
        self(f's_and_b32 s42, s5, 15\ns_lshl_b32 s42, s42, 17\ns_lshl_b32 s43, s4, 10\ns_add_u32 s42, s42, s43\ns_add_u32 s42, s42, {PROBE}\ns_add_u32 s78, s8, s42\ns_addc_u32 s79, s9, 0')
        same = self.o.get('psame')
        if same: self(f's_mov_b32 s76, -1\ns_mov_b32 s77, -1\ns_load_dword s42, s[78:79], 0 glc\ns_load_dword s43, s[78:79], {COPY} glc\ns_waitcnt lgkmcnt(0)')
        else: self('s_mov_b32 s76, -1\ns_mov_b32 s77, -1\ns_load_dword s42, s[78:79], 896 glc\ns_waitcnt lgkmcnt(0)')
        for k in range(rounds):
            for side in range(2):
                self(f's_memtime s[72:73]\ns_waitcnt lgkmcnt(0)\ns_load_dword s42, s[78:79], {(0 if same else 128*k) + COPY*side} glc\ns_waitcnt lgkmcnt(0)\ns_memtime s[74:75]\ns_waitcnt lgkmcnt(0)')
                self(f's_sub_u32 s74, s74, s72\ns_min_u32 s{76+side}, s{76+side}, s74')
        if self.prof: self('v_writelane_b32 v127, s76, 14\nv_writelane_b32 v127, s77, 15')
        self(f's_cmp_lt_u32 s77, s76\ns_cselect_b32 s76, {COPY}, 0')
    def prefetch_code(self, r):
        self(f's_getpc_b64 s[52:53]\nL_pc:')
        self(f's_sub_u32 s52, s52, L_pc-{NAME}\ns_subb_u32 s53, s53, 0')
        self(f'v_lshlrev_b32 v{r}, 7, v1')
        for k in range(2):
            self(f'v_add_u32 v{r+1+k}, {k*8192}, v{r}\nv_min_u32 v{r+1+k}, L_code_end-{NAME}-4, v{r+1+k}')
            self(f'global_load_dword v{r+3+k}, v{r+1+k}, s[52:53]')
    def perm_x2(self, src, dst):
        for jj in range(4):
            for d in range(4): self(f'v_perm_b32 v{dst+4*jj+d}, v{src+2*(2*d+1)+(jj>>1)}, v{src+2*(2*d)+(jj>>1)}, s{50+(jj&1)}')
    def perm_x1(self, src, dst):
        for jj in range(2):
            for d in range(4): self(f'v_perm_b32 v{dst+4*jj+d}, v{src+2*d+1}, v{src+2*d}, s{50+jj}')
    def tr_addr(self, base, dst, sh=13):
        self('v_bfe_u32 v18, v1, 1, 1\nv_and_b32 v28, 1, v1\nv_and_b32 v29, 1, v4\nv_lshl_add_u32 v29, v29, 2, v5\nv_lshlrev_b32 v29, 1, v29\nv_xor_b32 v29, v29, v18')
        self('v_lshlrev_b32 v29, 4, v29\nv_lshl_add_u32 v29, v28, 3, v29\nv_lshl_add_u32 v29, v5, 10, v29\n' + f'v_lshl_add_u32 v29, v4, {sh}, v29')
        self('s_lshl_b32 s42, s3, 7\nv_xor_b32 v29, s42, v29')
        if base: self(f'v_add_u32 v29, {base}, v29')
        for jj in range(4): self(f'v_xor_b32 v{dst+jj}, {32*jj}, v29')
    def mask_addr(self, frag, zero, dst):
        self(f'v_lshlrev_b32 v28, 4, v4\nv_add_u32 v28, {frag}, v28\nv_mov_b32 v29, {zero}')
        for jj in range(4): self(f'v_cmp_eq_u32 vcc, {jj}, v5\ns_nop 1\nv_cndmask_b32 v{dst+jj}, v29, v28, vcc')
    def modp_base(self, d, cb):
        self(f's_and_b32 s{d}, s{cb}, 15\ns_lshl_b32 s{d}, s{d}, 17\ns_bfe_u32 s42, s{cb}, 0x20004\ns_lshl_b32 s42, s42, 11\ns_add_u32 s{d}, s{d}, s42\ns_lshr_b32 s42, s{cb}, 6\ns_lshl_b32 s42, s42, 14\ns_add_u32 s{d}, s{d}, s42\ns_add_u32 s{d}, s{d}, {MODP}')
    def silu_frag(self, nvm):
        self('s_lshl_b32 s42, s3, 7\nv_add_u32 v13, s42, v7\nv_add_u32 v14, s42, v9')
        self(f's_waitcnt vmcnt({nvm})')
        self('v_lshlrev_b32 v8, 16, v8\nv_mul_f32 v15, s57, v8\nv_max_f32 v15, 0xc2fc0000, v15\nv_exp_f32 v15, -v15\ns_nop 0\nv_add_f32 v15, 1.0, v15')
        self.div(15, 8, 15, 16, 18)
        self.rbf(15, 15)
        self('ds_write_b16_d16_hi v13, v15\nds_read_b128 v[20:23], v14\nds_read_b128 v[24:27], v14 offset:64')
    def mod_loads(self, pol='FPOL'):
        for r in range(16):
            self(f'buffer_load_dword v{32+r}, v5, s[12:15], s41 offen {pol}')
            if r < 15: self(f's_add_u32 s41, s41, {6144 if r != 7 else 6144*25}')
    def mod_partial(self, two=False):
        self.perm_x1(32, 48); self.perm_x1(40, 56)
        self('s_waitcnt lgkmcnt(0)')
        for t in range(2):
            for jj in range(2):
                c = '0' if t == 0 else f'v[{32+4*jj}:{35+4*jj}]'
                self(f'v_mfma_f32_16x16x32_bf16 v[{32+4*jj}:{35+4*jj}], v[{20+4*t}:{23+4*t}], v[{48+8*t+4*jj}:{51+8*t+4*jj}], {c}')
        self('v_lshlrev_b32 v15, 4, v3\ns_lshl_b32 s42, s4, 8\ns_add_u32 s42, s42, s55\nv_mov_b32 v29, s45\nv_mov_b32 v31, s45\ns_mov_b64 exec, 0xffff\ns_nop 0')
        self('v_mov_b32 v28, v32\nv_mov_b32 v30, v36')
        if self.o.get('fprobe') or two: self.store2('buffer_store_dwordx4 v[28:31], v15, s[8:11], s{s} offen', 42, 43)
        else: self('buffer_store_dwordx4 v[28:31], v15, s[8:11], s42 offen sc1')
        self('s_mov_b64 exec, -1')
    def trigger(self, kind):
        if kind == 'os':
            self(f'v_lshlrev_b32 v9, 4, v1\ns_lshl_b32 s40, s4, 10\ns_add_u32 s40, s40, {OS}')
            self.poll(['buffer_load_dwordx4 v[32:35], v9, s[8:11], s40 offen sc1'], range(32, 36), 30, sleep=2)
        elif kind == 'h1':
            self(f'v_and_b32 v9, 7, v1\nv_lshlrev_b32 v9, 8, v9\ns_lshl_b32 s40, s58, 18\ns_add_u32 s40, s40, {MODP}')
            self.poll8(['buffer_load_dwordx2 v[32:33], v9, s[8:11], s40 offen sc1'], [33], 30, sleep=2)
        elif kind == 'os1':
            self(f'v_mov_b32 v9, 0\ns_lshl_b32 s40, s4, 10\ns_lshl_b32 s42, s58, 4\ns_add_u32 s40, s40, s42\ns_add_u32 s40, s40, {OS}')
            self.poll(['buffer_load_dwordx4 v[32:35], v9, s[8:11], s40 offen sc1'], range(32, 36), 30, sleep=2)
        elif kind == 'qp':
            self(f'v_and_b32 v9, 7, v1\nv_lshlrev_b32 v9, 9, v9\ns_lshl_b32 s40, s4, 3\ns_add_u32 s40, s40, s58\ns_lshl_b32 s40, s40, 12\ns_add_u32 s40, s40, {QP}')
            self.poll8(['buffer_load_dwordx2 v[32:33], v9, s[8:11], s40 offen sc1'], [33], 30, sleep=2)
        elif kind == 'own':
            self(f'v_mov_b32 v9, 0\ns_lshl_b32 s40, s58, 18\ns_lshl_b32 s42, s4, 8\ns_add_u32 s40, s40, s42\ns_add_u32 s40, s40, {MODP}')
            self.poll8(['buffer_load_dwordx2 v[32:33], v9, s[8:11], s40 offen sc1'], [33], 30, sleep=2)
        elif kind == 'q':
            self(f'v_lshlrev_b32 v9, 4, v1\ns_lshl_b32 s40, s4, 11\ns_add_u32 s40, s40, {QV}')
            self.poll(['buffer_load_dwordx4 v[32:35], v9, s[8:11], s40 offen sc1', 'buffer_load_dwordx4 v[36:39], v9, s[8:11], s40 offen offset:1024 sc1'], range(32, 40), 30, sleep=2)
    def mark(self, name):
        if self.o.get('hold') == name: self('s_memrealtime s[96:97]\ns_waitcnt lgkmcnt(0)')
    def hold(self):
        if self.o.get('hold'): self('L_hold:\ns_memrealtime s[98:99]\ns_waitcnt lgkmcnt(0)\ns_sub_u32 s98, s98, s96\ns_cmp_lt_u32 s98, 2000\ns_cbranch_scc1 L_hold')
    def wo_row(self, r):
        if self.o.get('hc'):
            self(f'buffer_load_dwordx4 v{108+(r&1)}, s[20:23], s58 offen offset:{1024*r} OPOL lds' + ('\ns_add_u32 s58, s58, 7168' if r < 3 else ''))
        else: self(f'buffer_load_dwordx4 v{108+r}, s[20:23], s58 offen offset:{1024*r} OPOL lds')
    def combine(self, vs, vd, ss, sd, pre=None):
        D = [f'buffer_load_dwordx4 v[48:51], v{vd}, s[8:11], s{sd} offen sc1', f'buffer_load_dwordx4 v[52:55], v{vd}, s[8:11], s{sd} offen offset:1024 sc1']
        S = f'buffer_load_dwordx4 v[56:59], v{vs}, s[8:11], s{ss} offen sc1'
        if self.o.get('se'):
            l = self.label('P')
            self(f's_mov_b32 s47, 0\n{l}:\n{S}\n' + '\n'.join(D) + f'\ns_add_u32 s47, s47, 1\ns_cmp_gt_u32 s47, {LIMIT}\ns_cbranch_scc1 {l}_x\ns_waitcnt vmcnt(2)')
            for r in range(56, 60): self(f'v_xor_b32 v{r}, v2, v{r}')
            self(f'v_or3_b32 v30, v56, v57, v58\nv_or_b32 v30, v30, v59\nv_and_b32 v30, {TMASK}, v30\nv_cmp_ne_u32 vcc, 0, v30\ns_cbranch_vccnz {l}\n{l}_x:')
        else:
            self.poll([S], range(56, 60), 30, sleep=self.o.get('ssleep'))
            self('\n'.join(D))
        if pre: pre()
        self(f'v_max_f32_dpp v58, v56, v56 row_ror:8 {DPP}')
        for k in (4, 2, 1): self(f's_nop 1\nv_max_f32_dpp v58, v58, v58 row_ror:{k} {DPP}')
        self('v_sub_f32 v56, v56, v58\nv_mul_f32 v56, s57, v56\nv_exp_f32 v56, v56\ns_nop 0\nv_mul_f32 v57, v56, v57')
        for k in (8, 4, 2, 1): self(f's_nop 1\nv_add_f32_dpp v57, v57, v57 row_ror:{k} {DPP}')
        self('v_rcp_f32 v57, v57\ns_nop 0\nv_mul_f32 v56, v56, v57')
        self.poll(D, range(48, 56), 30, first_issued=True)
        self.stamp(3 if self.role == 'Ac' else 6)
        for r in range(48, 56, 2): self(f'v_pk_mul_f32 v[{r}:{r+1}], v[{r}:{r+1}], v[56:57] op_sel_hi:[1,0]')
        for k in (8, 4, 2, 1):
            for r in range(48, 56): self(f'v_add_f32_dpp v{r}, v{r}, v{r} row_ror:{k} {DPP}')
        for d in range(4): self(f'v_cvt_pk_bf16_f32 v{32+d}, v{48+2*d}, v{49+2*d}')
    def flush_tails(self):
        for t in self.tails: self(t)
        self.tails = []

def gen_all(prof=False, opts=None):
    a = G(prof, opts); a.tails = []
    a('s_cmp_ge_u32 s2, 256\ns_cbranch_scc1 L_exit')
    a.mark('entry')
    if a.o.get('hs') or a.o.get('amp'): a('s_memrealtime s[96:97]\ns_memrealtime s[94:95]')
    if prof: a('s_memrealtime s[96:97]')
    a.karg(8, 'ws')
    if not a.o.get('nokt'): a('s_load_dword s62, s[0:1], 0')
    a('s_and_b32 s4, s2, 7\ns_lshr_b32 s5, s2, 3\nv_lshrrev_b32 v2, 6, v0\nv_and_b32 v1, 63, v0')
    if a.o.get('ffirst'): a('s_add_u32 s7, s5, 16\ns_sub_u32 s42, s5, 8\ns_cmp_lt_u32 s5, 8\ns_cselect_b32 s42, s7, s42\ns_cmp_lt_u32 s5, 24\ns_cselect_b32 s5, s42, s5')
    a('s_mov_b32 s7, 0\nv_readfirstlane_b32 s3, v2')
    a.srd(8, 0x10000000)
    if prof: a('v_mov_b32 v127, 0')
    a('v_and_b32 v3, 15, v1\nv_lshrrev_b32 v4, 4, v1')
    a('s_cmp_lg_u32 s3, 8\ns_cbranch_scc1 L_work')
    if a.o.get('tlb0'):
        a('s_load_dwordx4 s[24:27], s[0:1], 24\ns_load_dwordx8 s[28:35], s[0:1], 48\ns_load_dwordx4 s[36:39], s[0:1], 80')
    if not a.o.get('nocpf'): a.prefetch_code(20)
    a('s_setprio 3')
    if a.o.get('tlb0'):
        a('s_lshl_b32 s42, s4, 19\nv_mov_b32 v26, 0\nv_mov_b32 v27, 0x200000\nv_mov_b32 v28, s42\ns_mov_b64 exec, 1\ns_waitcnt lgkmcnt(0)')
        for i, (p, v) in enumerate(((8, 26), (8, 27), (26, 28), (28, 26), (30, 26), (32, 26), (38, 26), (24, 26), (24, 27))):
            a(f'global_load_dword v{108+i}, v{v}, s[{p}:{p+1}]')
        a('s_mov_b64 exec, -1')
    if a.o.get('mh'): a('s_cmp_lt_u32 s5, 16\ns_cbranch_scc1 L_A_comm\ns_cmp_lt_u32 s5, 24\ns_cbranch_scc1 L_F_comm2')
    elif not a.o.get('p16'): a('s_cmp_ge_u32 s5, 24\ns_cbranch_scc1 L_M_comm')
    if not a.o.get('mh'): a('s_cmp_lt_u32 s5, 16\ns_cbranch_scc1 L_A_comm')
    a('s_branch L_F_comm')
    a('L_work:')
    a('s_cmp_lt_u32 s5, 16\ns_cbranch_scc1 L_Ai')
    FM_issue(a)
    F_early(a)
    a('s_branch L_F_j')
    a('L_Ai:')
    A_issue(a)
    a('s_branch L_A')
    if not a.o.get('p16'): M_early(a)
    for f in (F_body, F_comm, A_comm, A_body, M_body, M_comm):
        f(a); a.flush_tails()
    a('L_exit:\ns_endpgm\nL_code_end:')
    return a

def A_issue(a):
    a.role = 'A'
    a.karg(20, 'wq'); a.karg(12, 'k'); a.karg(16, 'v')
    a.srd(12, 0x2000000); a.srd(16, 0x2000000); a.srd(20, 0x400000)
    a('v_bfe_u32 v14, v1, 3, 1\nv_lshlrev_b32 v14, 13, v14\nv_and_b32 v6, 7, v1\nv_lshl_add_u32 v14, v6, 7, v14\nv_lshl_add_u32 v14, v4, 5, v14')
    a('s_lshr_b32 s44, s5, 1\ns_lshl_b32 s44, s44, 5\ns_and_b32 s41, s5, 1\ns_lshl_b32 s41, s41, 3\ns_add_u32 s44, s44, s41\ns_add_u32 s44, s44, s3\ns_lshl_b32 s44, s44, 14\ns_lshl_b32 s41, s4, 10\ns_add_u32 s44, s44, s41')
    a('v_lshlrev_b32 v5, 8, v4')
    for i in range(4): a(f'v_add_u32 v6, {4*i}, v4\nv_xor_b32 v6, v6, v3\nv_lshl_add_u32 v{8+i}, v6, 4, v5')
    for i in range(2): a(f'v_add_u32 v6, {4*i}, v4\nv_lshlrev_b32 v6, 1, v6\nv_xor_b32 v6, v6, v3\nv_lshl_add_u32 v{12+i}, v6, 4, v5')
    a(f's_lshl_b32 s40, s4, 22\ns_lshl_b32 s41, s5, 16\ns_add_u32 s40, s40, s41\ns_lshl_b32 s41, s3, 13\ns_add_u32 s40, s40, s41\ns_add_u32 s40, s40, {3<<20}\ns_add_u32 s43, s40, 4096\ns_mov_b32 m0, s41')
    a('s_waitcnt lgkmcnt(0)')
    a.stamp(0)
    a.get_tag()
    if a.o.get('kvt0'): a('s_mov_b64 exec, 1\nbuffer_load_dword v105, v8, s[12:15], s40 offen KPOL\nbuffer_load_dword v106, v8, s[16:19], s40 offen KPOL\nbuffer_load_dword v107, v14, s[20:23], s44 offen FPOL\ns_mov_b64 exec, -1')
    if a.o.get('a_tagw'): a.fin_tag()
    if a.o.get('a_tw'): a('s_waitcnt vmcnt(0)')
    if a.o.get('early'):
        a(f's_lshr_b32 s42, {a.o["early"]}, s3\ns_and_b32 s42, s42, 1\ns_cbranch_scc1 L_A_early')
    if not a.o.get('noapf'): a('buffer_load_dword v104, v14, s[20:23], s44 offen FPOL')
    if a.o.get('early_gu') or a.o.get('apf2'): a('s_add_u32 s44, s44, 262144\nbuffer_load_dword v120, v14, s[20:23], s44 offen FPOL')
    if a.o.get('kvt'): a('s_mov_b64 exec, 1\nbuffer_load_dword v105, v8, s[12:15], s40 offen KPOL\nbuffer_load_dword v106, v8, s[16:19], s40 offen KPOL\ns_mov_b64 exec, -1')
    if a.o.get('a_pfw'): a(f's_waitcnt vmcnt({2 if a.o.get("kvt") == 2 else 0})')
    for k in range(a.o.get('a_dly', 0)): a('s_mov_b64 exec, 1\nbuffer_load_dword v104, v14, s[20:23], s44 offen sc1\ns_mov_b64 exec, -1\ns_waitcnt vmcnt(0)')
    if a.o.get('early'):
        a('s_branch L_A_go\nL_A_early:\nbuffer_load_dword v104, v14, s[20:23], s44 offen FPOL\nL_A_go:')
    a.stamp(8)
    for kv in range(2):
        if kv == 1 and a.o.get('kv_bar'): a('s_barrier')
        for i in range(8):
            if i == 4 or (kv == 1 and i == 0): a(f's_add_u32 m0, s41, {LV*kv + 4096*(i>>2)}\ns_nop 0')
            vo = 8 + (i & 3) if kv == 0 else 12 + (i & 1)
            a(f'buffer_load_dwordx4 v{vo}, s[{12+4*kv}:{15+4*kv}], s{40 if i < 4 else 43} offen offset:{1024*(i&3)} {"KPOL" if kv == 0 else ("VPOL" if i < 4 else "WPOL")} lds')

def A_body(a):
    a.role = 'A'
    a('L_A:')
    a.stamp(10)
    a('v_xor_b32 v6, v4, v3\nv_lshlrev_b32 v6, 4, v6\nv_lshl_add_u32 v6, v3, 8, v6\nv_add_u32 v6, s41, v6')
    for jj in range(4): a(f'v_xor_b32 v{8+jj}, {64*jj}, v6')
    a(f'v_and_b32 v7, 3, v1\nv_mul_u32_u24 v12, 272, v7\nv_lshl_add_u32 v12, v4, 4, v12\nv_add_u32 v12, {LQ}, v12')
    a(f'v_lshlrev_b32 v13, 5, v7\nv_add_u32 v13, {LMX}, v13\ns_lshl_b32 s42, s3, 2\nv_add_u32 v14, s42, v13')
    a(f'v_lshlrev_b32 v16, 6, v4\nv_add_u32 v16, {LP}, v16\nv_lshl_add_u32 v15, v3, 4, v16\ns_lshl_b32 s42, s3, 8\nv_add_u32 v15, s42, v15')
    a('v_lshrrev_b32 v5, 2, v3\nv_lshl_add_u32 v16, v5, 4, v16')
    a('v_lshrrev_b32 v6, 2, v1\nv_and_b32 v17, 7, v6\nv_lshlrev_b32 v17, 1, v17\nv_bfe_u32 v18, v1, 1, 1\ns_lshl_b32 s42, s3, 1\nv_add_u32 v21, s42, v18\nv_xor_b32 v17, v17, v21')
    a(f'v_lshlrev_b32 v17, 4, v17\nv_lshl_add_u32 v17, v6, 8, v17\nv_and_b32 v21, 1, v1\nv_lshl_add_u32 v17, v21, 3, v17\nv_add_u32 v17, {LV}, v17')
    hc = a.o.get('hc')
    if hc:
        a('v_bfe_u32 v18, v1, 1, 1\nv_bfe_u32 v28, v1, 3, 1\nv_and_b32 v29, 1, v4\nv_lshl_add_u32 v28, v29, 1, v28\nv_lshlrev_b32 v28, 1, v28\nv_xor_b32 v28, v28, v18\nv_lshlrev_b32 v28, 4, v28')
        a('v_and_b32 v29, 1, v1\nv_lshl_add_u32 v28, v29, 3, v28\nv_lshl_add_u32 v28, v5, 7, v28\nv_lshl_add_u32 v28, v4, 10, v28\nv_add_u32 v28, s41, v28')
        for jj in range(4): a(f'v_xor_b32 v{96+jj}, {32*jj}, v28')
        a(f'v_lshlrev_b32 v100, 4, v1\nv_lshlrev_b32 v101, 4, v3\nv_lshlrev_b32 v102, 2, v3\ns_lshl_b32 s42, s3, 8\ns_add_u32 s42, s42, {LRED}\nv_add_u32 v102, s42, v102')
        a(f's_and_b32 s42, s5, 1\ns_lshl_b32 s42, s42, 3\ns_add_u32 s42, s42, s3\ns_lshl_b32 s48, s4, 4\ns_add_u32 s48, s48, s42\ns_lshl_b32 s48, s48, 11\ns_add_u32 s48, s48, {OP}')
        a(f's_lshr_b32 s42, s42, 2\ns_lshl_b32 s49, s4, 2\ns_add_u32 s49, s49, s42\ns_lshl_b32 s49, s49, 8\ns_add_u32 s49, s49, {OS}')
    else:
        a.tr_addr(LK, 96, 14 if a.o.get('cwo') is not None else 13); a.mask_addr(LOF, LZ, 100)
    a('s_and_b32 s42, s3, 1\ns_lshl_b32 s42, s42, 9\nv_bfe_u32 v6, v3, 2, 1\nv_lshlrev_b32 v19, 10, v6\nv_lshrrev_b32 v6, 3, v3\nv_lshl_add_u32 v19, v6, 8, v19')
    a('v_lshl_add_u32 v19, v7, 2, v19\nv_lshl_add_u32 v19, v4, 13, v19\nv_add_u32 v19, s42, v19')
    a(f's_lshl_b32 s54, s4, 4\ns_lshr_b32 s42, s3, 1\ns_add_u32 s54, s54, s42\ns_lshl_b32 s54, s54, 11\ns_lshl_b32 s42, s5, 4\ns_add_u32 s54, s54, s42\ns_add_u32 s54, s54, {OP}')
    a('v_lshrrev_b32 v6, 5, v1\nv_and_b32 v20, 31, v1\nv_lshlrev_b32 v20, 2, v20\nv_lshl_add_u32 v20, v6, 11, v20')
    a(f's_lshl_b32 s55, s4, 3\ns_add_u32 s55, s55, s3\ns_lshl_b32 s55, s55, 12\ns_lshl_b32 s42, s5, 7\ns_add_u32 s55, s55, s42\ns_add_u32 s55, s55, {AP}')
    a(f'v_mov_b32 v22, {LMODE_A}\nv_lshlrev_b32 v21, 5, v4\nv_add_u32 v21, {LMX}, v21')
    if a.o.get('cwo') is not None:
        a.karg(20, 'wo')
    if hc:
        a('v_and_b32 v6, 7, v1\nv_bfe_u32 v28, v1, 4, 1\nv_lshlrev_b32 v28, 1, v28\nv_xor_b32 v6, v6, v28\nv_lshlrev_b32 v6, 4, v6\nv_lshrrev_b32 v28, 3, v1\nv_lshl_add_u32 v108, v28, 10, v6\nv_xor_b32 v109, 64, v108')
        a('s_lshl_b32 s58, s4, 1\ns_and_b32 s42, s5, 1\ns_add_u32 s58, s58, s42\ns_lshl_b32 s58, s58, 3\ns_add_u32 s58, s58, s3\ns_lshl_b32 s58, s58, 15\ns_lshr_b32 s42, s5, 1\ns_lshl_b32 s42, s42, 7\ns_add_u32 s58, s58, s42\ns_mov_b32 s59, s41\ns_waitcnt lgkmcnt(0)')
    elif a.o.get('cwo') is not None:
        a('s_and_b32 s42, s3, 2\ns_lshl_b32 s42, s42, 2\nv_xor_b32 v6, s42, v1')
        for r in range(4): a(f'v_xor_b32 v{108+r}, {2*r}, v6\nv_lshlrev_b32 v{108+r}, 4, v{108+r}')
        a('s_lshl_b32 s58, s4, 19\ns_lshl_b32 s42, s5, 15\ns_add_u32 s58, s58, s42\ns_lshl_b32 s59, s3, 12\ns_add_u32 s58, s58, s59\ns_lshl_b32 s59, s3, 13\ns_waitcnt lgkmcnt(0)')
    qa = a.o.get('qa')
    if qa:
        a(f'v_mul_u32_u24 v12, 272, v5\nv_lshl_add_u32 v12, v4, 4, v12\nv_add_u32 v12, {LQ}, v12')
        a(f's_lshl_b32 s42, s3, 2\nv_add_u32 v14, s42, v21')
        a(f'v_lshlrev_b32 v15, 6, v5\nv_lshl_add_u32 v15, v4, 4, v15\nv_lshl_add_u32 v15, v7, 1, v15\ns_lshl_b32 s42, s3, 8\ns_add_u32 s43, s42, {LP}\nv_add_u32 v15, s43, v15')
        a(f'v_lshlrev_b32 v110, 2, v1\ns_add_u32 s43, s42, {LLS}\nv_add_u32 v110, s43, v110')
    else: a(f'v_lshlrev_b32 v110, 7, v7\nv_lshl_add_u32 v110, v4, 2, v110\ns_lshl_b32 s42, s3, 4\ns_add_u32 s42, s42, {LLS}\nv_add_u32 v110, s42, v110')
    a(f's_mov_b32 s56, {SCALE:#x}\ns_mov_b32 s57, {LOG2E:#x}')
    if not a.o.get('a_tagw'): a.fin_tag()
    if a.o.get('sq'):
        a(f's_lshl_b32 s62, s4, 11\ns_lshl_b32 s63, s3, 8\ns_add_u32 s62, s62, s63\ns_add_u32 s62, s62, {QV}\ns_add_u32 s62, s8, s62\ns_addc_u32 s63, s9, 0')
        a(f's_lshr_b32 s42, s3, 1\ns_mul_i32 s42, s42, 272\ns_and_b32 s43, s3, 1\ns_lshl_b32 s43, s43, 7\ns_add_u32 s42, s42, s43\ns_add_u32 s42, s42, {LQ}\nv_lshlrev_b32 v105, 1, v1\nv_add_u32 v105, s42, v105')
        QR = (24, 64, 80)
        a('s_barrier\ns_barrier')
        LD = lambda g: '\n'.join([f's_load_dwordx16 s[{r}:{r+15}], s[62:63], {64*i}{g}' for i, r in enumerate(QR)] + [f's_load_dwordx8 s[12:19], s[62:63], 192{g}', f's_load_dwordx4 s[40:43], s[62:63], 224{g}', f's_load_dwordx2 s[52:53], s[62:63], 240{g}', f's_load_dwordx2 s[50:51], s[62:63], 248{g}'])
        REGS = [r + k for r in QR for k in range(16)] + list(range(12, 20)) + [40, 41, 42, 43, 52, 53, 50, 51]
        a(LD(''))
        a('s_mov_b32 s47, 0\nL_q:\ns_waitcnt lgkmcnt(0)')
        for i, r in enumerate(REGS): a(f'v_writelane_b32 v106, s{r}, {i}')
        a(f'v_xor_b32 v106, v2, v106\nv_and_b32 v107, {TMASK}, v106\nv_cmp_ne_u32 vcc, 0, v107\ns_cbranch_vccnz L_q_retry\nL_q_ok:')
        a.tails.append(f'L_q_retry:\ns_add_u32 s47, s47, 1\ns_cmp_gt_u32 s47, {LIMIT}\ns_cbranch_scc1 L_q_ok\n' + LD(' glc') + '\ns_branch L_q')
        a('ds_write_b16_d16_hi v105, v106')
        a.stamp(11)
    a('s_waitcnt vmcnt(8)')
    a.stamp(1)
    for t in range(2):
        for jj in range(4): a(f'ds_read_b128 v[{32+16*t+4*jj}:{35+16*t+4*jj}], v{8+jj} offset:{4096*t}')
    if a.o.get('vstamp'): a('s_waitcnt vmcnt(0)'); a.stamp(9)
    ne = a.o.get('wo_early', 0)
    a('s_waitcnt lgkmcnt(0)')
    if ne:
        a('s_mov_b32 m0, s59\ns_nop 0')
        for r in range(ne): a.wo_row(r)
    ve = a.o.get('ve')
    if ve: a(f's_waitcnt vmcnt({ne})'); a.stamp(4)
    a('s_barrier')
    a.stamp(2)
    def wo_dma(pos):
        if a.o.get('cwo') == pos:
            a('s_mov_b32 m0, s59\ns_nop 0')
            for r in range(ne, 4): a.wo_row(r)
    for jj in range(4): a(f'ds_read_b128 v[{64+4*jj}:{67+4*jj}], v12 offset:{64*jj}')
    wo_dma(0)
    for jj in range(4):
        a(f's_waitcnt lgkmcnt({3-jj})')
        for t in range(2):
            c = '0' if jj == 0 else f'v[{24+4*t}:{27+4*t}]'
            kf = f'v[{32+16*t+4*jj}:{35+16*t+4*jj}]'; qf = f'v[{64+4*jj}:{67+4*jj}]'
            a(f'v_mfma_f32_16x16x32_bf16 v[{24+4*t}:{27+4*t}], {qf if qa else kf}, {kf if qa else qf}, {c}')
    wo_dma(1)
    if ve:
        for kk in range(8):
            a(f'ds_read_b64_tr_b16 v[{64+4*kk}:{65+4*kk}], v17 offset:{8192*kk}\nds_read_b64_tr_b16 v[{66+4*kk}:{67+4*kk}], v17 offset:{8192*kk+4096}')
    else: a('s_nop 6' if a.o.get('cwo') != 1 else 's_nop 0')
    if qa:
        if a.o.get('fine'): a.stamp(11)
        a.rbf(24, 24); a.rbf(25, 28)
        a('v_pk_mul_f32 v[24:25], v[24:25], s[56:57] op_sel_hi:[1,0]')
        a.rbf(24, 24); a.rbf(25, 25)
        a('v_max_f32 v32, v24, v25')
        for k in (8, 4, 2, 1): a(f's_nop 1\nv_max_f32_dpp v32, v32, v32 row_ror:{k} {DPP}')
        if a.o.get('fine'): a.stamp(12)
        a('s_mov_b32 exec_lo, 0x00010001\ns_mov_b32 exec_hi, 0x00010001\nds_write_b32 v14, v32\ns_mov_b64 exec, -1\ns_waitcnt lgkmcnt(0)\ns_barrier')
        if a.o.get('fine'): a.stamp(9)
        a('ds_read_b128 v[32:35], v21\nds_read_b128 v[36:39], v21 offset:16\ns_waitcnt lgkmcnt(0)')
        a('v_max3_f32 v32, v32, v33, v34\nv_max3_f32 v36, v36, v37, v38\nv_max3_f32 v32, v32, v35, v39\nv_max_f32 v32, v32, v36')
        a('v_pk_add_f32 v[24:25], v[24:25], v[32:33] op_sel_hi:[1,0] neg_lo:[0,1] neg_hi:[0,1]\nv_pk_mul_f32 v[24:25], v[24:25], s[56:57] op_sel:[0,1] op_sel_hi:[1,1]')
        a('v_exp_f32 v24, v24\nv_exp_f32 v25, v25\ns_nop 0\nv_cvt_pk_bf16_f32 v36, v24, v25\nv_add_f32 v24, v24, v25')
        a('ds_write_b16 v15, v36\nds_write_b16_d16_hi v15, v36 offset:8\nds_write_b32 v110, v24')
        wmax = False
    else:
        if a.o.get('fine'): a.stamp(11)
        for i in range(8): a.rbf(24 + i, 24 + i)
        for i in range(0, 8, 2): a(f'v_pk_mul_f32 v[{24+i}:{25+i}], v[{24+i}:{25+i}], s[56:57] op_sel_hi:[1,0]')
        for i in range(8): a.rbf(24 + i, 24 + i)
        a('v_max3_f32 v32, v24, v25, v26\nv_max3_f32 v33, v27, v28, v29\nv_max3_f32 v32, v32, v30, v31\nv_max_f32 v32, v32, v33')
        a.swap_op(16, 'v_max_f32', 32, 33); a.swap_op(32, 'v_max_f32', 32, 33)
        wmax = a.o.get('wmax')
        if a.o.get('fine'): a.stamp(12)
        if not wmax:
            a('s_mov_b64 exec, 0xf\nds_write_b32 v14, v32\ns_mov_b64 exec, -1\ns_waitcnt lgkmcnt(0)\ns_barrier')
            if a.o.get('fine'): a.stamp(9)
            a('ds_read_b128 v[32:35], v13\nds_read_b128 v[36:39], v13 offset:16\ns_waitcnt lgkmcnt(0)')
            a('v_max3_f32 v32, v32, v33, v34\nv_max3_f32 v36, v36, v37, v38\nv_max3_f32 v32, v32, v35, v39\nv_max_f32 v32, v32, v36')
        for i in range(0, 8, 2): a(f'v_pk_add_f32 v[{24+i}:{25+i}], v[{24+i}:{25+i}], v[32:33] op_sel_hi:[1,0] neg_lo:[0,1] neg_hi:[0,1]')
        for i in range(0, 8, 2): a(f'v_pk_mul_f32 v[{24+i}:{25+i}], v[{24+i}:{25+i}], s[56:57] op_sel:[0,1] op_sel_hi:[1,1]')
        for i in range(8): a(f'v_exp_f32 v{24+i}, v{24+i}')
        a('s_nop 0')
        for d in range(4): a(f'v_cvt_pk_bf16_f32 v{36+d}, v{24+2*d}, v{25+2*d}')
        a('s_mov_b32 exec_lo, 0x000f000f\ns_mov_b32 exec_hi, 0x000f000f\nds_write_b128 v15, v[36:39]')
        if wmax: a('ds_write_b32 v14, v32')
        a('v_pk_add_f32 v[24:25], v[24:25], v[26:27]\nv_pk_add_f32 v[28:29], v[28:29], v[30:31]\nv_pk_add_f32 v[24:25], v[24:25], v[28:29]\nv_add_f32 v24, v24, v25')
        a('ds_write_b32 v110, v24\ns_mov_b64 exec, -1')
    wo_dma(2)
    a.stamp(3)
    if ve:
        a('s_waitcnt lgkmcnt(0)\ns_barrier')
        if wmax: a('ds_read_b128 v[112:115], v21\nds_read_b128 v[116:119], v21 offset:16')
        a('ds_read_b32 v23, v22')
        for kk in range(8): a(f'ds_read_b128 v[{32+4*kk}:{35+4*kk}], v16 offset:{256*kk}')
        if wmax:
            a('s_waitcnt lgkmcnt(8)\nv_max3_f32 v120, v112, v113, v114\nv_max3_f32 v121, v115, v116, v117\nv_max3_f32 v120, v120, v118, v119\nv_max_f32 v120, v120, v121')
            for i in range(0, 8, 2): a(f'v_pk_add_f32 v[{112+i}:{113+i}], v[{112+i}:{113+i}], v[120:121] op_sel_hi:[1,0] neg_lo:[0,1] neg_hi:[0,1]')
            for i in range(0, 8, 2): a(f'v_pk_mul_f32 v[{112+i}:{113+i}], v[{112+i}:{113+i}], s[56:57] op_sel:[0,1] op_sel_hi:[1,1]')
        for kk in range(8):
            a(f's_waitcnt lgkmcnt({7-kk})')
            if kk == 1: a('v_readfirstlane_b32 s7, v23')
            if wmax: a(f'v_mfma_f32_16x16x32_bf16 v[{32+4*kk}:{35+4*kk}], v[{32+4*kk}:{35+4*kk}], v[{64+4*kk}:{67+4*kk}], 0\nv_exp_f32 v{112+kk}, v{112+kk}')
            else: a(f'v_mfma_f32_16x16x32_bf16 v[{24+4*(kk&1)}:{27+4*(kk&1)}], v[{32+4*kk}:{35+4*kk}], v[{64+4*kk}:{67+4*kk}], {"0" if kk < 2 else f"v[{24+4*(kk&1)}:{27+4*(kk&1)}]"}')
        if wmax:
            a('v_mul_f32 v24, v112, v32\nv_mul_f32 v25, v113, v36')
            for kk in range(2, 8):
                if kk == 6: a('s_nop 0')
                if kk == 7: a('s_nop 0')
                a(f'v_fmac_f32 v{24+(kk&1)}, v{112+kk}, v{32+4*kk}')
            a('v_add_f32 v24, v24, v25')
        else: a('s_nop 7\nv_add_f32 v24, v24, v28')
    elif a.o.get('sq') or a.o.get('split'):
        a('s_waitcnt lgkmcnt(0)\ns_barrier')
        for kk in range(8): a(f'ds_read_b128 v[{32+4*kk}:{35+4*kk}], v16 offset:{256*kk}')
        a(f's_waitcnt vmcnt({4 if a.o.get("cwo") is not None else 0}) lgkmcnt(0)')
        a.stamp(4)
        a('s_barrier')
        a('ds_read_b32 v23, v22')
        for kk in range(8):
            a(f'ds_read_b64_tr_b16 v[{64+4*kk}:{65+4*kk}], v17 offset:{8192*kk}\nds_read_b64_tr_b16 v[{66+4*kk}:{67+4*kk}], v17 offset:{8192*kk+4096}')
        for kk in range(8):
            a(f's_waitcnt lgkmcnt({2*(7-kk)})')
            if kk == 1: a('v_readfirstlane_b32 s7, v23')
            a(f'v_mfma_f32_16x16x32_bf16 v[24:27], v[{32+4*kk}:{35+4*kk}], v[{64+4*kk}:{67+4*kk}], {"0" if kk == 0 else "v[24:27]"}')
        a('s_nop 7')
    else: PV_old(a, wmax)
    a('v_and_or_b32 v28, v24, s46, v2')
    a.store_mode('buffer_store_dword v28, v19, s[8:11], s54 offen')
    A_tail(a)

def PV_old(a, wmax):
    a('s_waitcnt vmcnt(0) lgkmcnt(0)')
    a.stamp(4)
    a('s_barrier')
    if wmax: a('ds_read_b128 v[108:111], v21\nds_read_b128 v[112:115], v21 offset:16')
    a('ds_read_b32 v23, v22')
    order = []
    for kk in range(8):
        a(f'ds_read_b128 v[{32+4*kk}:{35+4*kk}], v16 offset:{256*kk}')
        a(f'ds_read_b64_tr_b16 v[{64+4*kk}:{65+4*kk}], v17 offset:{8192*kk}')
        a(f'ds_read_b64_tr_b16 v[{66+4*kk}:{67+4*kk}], v17 offset:{8192*kk+4096}')
        if kk == 4:
            a('s_waitcnt lgkmcnt(15)\nv_readfirstlane_b32 s7, v23')
            if wmax:
                a('v_max3_f32 v116, v108, v109, v110\nv_max3_f32 v117, v111, v112, v113\nv_max3_f32 v116, v116, v114, v115\nv_max_f32 v116, v116, v117')
                for i in range(8): a(f'v_sub_f32 v{108+i}, v{108+i}, v116')
                for i in range(8): a(f'v_mul_f32 v{108+i}, s57, v{108+i}')
                for i in range(8): a(f'v_exp_f32 v{108+i}, v{108+i}')
    for kk in range(8):
        a(f's_waitcnt lgkmcnt({min(15, 3*(7-kk))})')
        if wmax: a(f'v_mfma_f32_16x16x32_bf16 v[{32+4*kk}:{35+4*kk}], v[{32+4*kk}:{35+4*kk}], v[{64+4*kk}:{67+4*kk}], 0')
        else: a(f'v_mfma_f32_16x16x32_bf16 v[24:27], v[{32+4*kk}:{35+4*kk}], v[{64+4*kk}:{67+4*kk}], {"0" if kk == 0 else "v[24:27]"}')
    if wmax:
        a('v_mul_f32 v24, v108, v32\nv_mul_f32 v25, v109, v36')
        for kk in range(2, 8):
            if kk >= 5: a('s_nop 1')
            a(f'v_fmac_f32 v{24+(kk&1)}, v{108+kk}, v{32+4*kk}')
        a('v_add_f32 v24, v24, v25')
    else: a('s_nop 7')

def A_tail(a):
    a.stamp(5)
    if a.o.get('hc'):
        def pre():
            for jj in range(4): a(f'ds_read_b64_tr_b16 v[{64+4*jj}:{65+4*jj}], v{96+jj}\nds_read_b64_tr_b16 v[{66+4*jj}:{67+4*jj}], v{96+jj} offset:512')
        a.combine(101, 100, 49, 48, pre)
        a('s_waitcnt lgkmcnt(0)\ns_nop 0')
        for jj in range(4): a(f'v_mfma_f32_16x16x32_bf16 v[{36+4*jj}:{39+4*jj}], v[32:35], v[{64+4*jj}:{67+4*jj}], 0')
        a('s_mov_b64 exec, 0xffff\ns_nop 4\nds_write2_b32 v102, v36, v40 offset1:16\ns_nop 0\nds_write2_b32 v102, v44, v48 offset0:32 offset1:48\ns_waitcnt lgkmcnt(0)')
        a.stamp(7)
        a('s_barrier')
        a.exit()
        return
    if a.o.get('cwo') is not None: a('s_waitcnt vmcnt(1)')
    cwo = a.o.get('cwo') is not None
    if not cwo:
        a('s_barrier')
        for jj in range(4):
            a(f'ds_read_b64_tr_b16 v[{64+4*jj}:{65+4*jj}], v{96+jj}\nds_read_b64_tr_b16 v[{66+4*jj}:{67+4*jj}], v{96+jj} offset:4096')
    a.stamp(6)
    a('s_barrier')
    for jj in range(4):
        a(f'ds_read_b128 v[{32+4*jj}:{35+4*jj}], v{100+jj}')
        if cwo: a(f'ds_read_b64_tr_b16 v[{64+4*jj}:{65+4*jj}], v{96+jj}\nds_read_b64_tr_b16 v[{66+4*jj}:{67+4*jj}], v{96+jj} offset:8192')
    for jj in range(4):
        a(f's_waitcnt lgkmcnt({(3-jj)*(3 if cwo else 1)})')
        a(f'v_mfma_f32_16x16x32_bf16 v[24:27], v[{32+4*jj}:{35+4*jj}], v[{64+4*jj}:{67+4*jj}], {"0" if jj == 0 else "v[24:27]"}')
    a('s_nop 7')
    a('v_and_or_b32 v28, v24, s46, v2')
    a.store_mode('buffer_store_dword v28, v20, s[8:11], s55 offen')
    a.stamp(7)
    a.exit()

def A_comm(a):
    a.role = 'Ac'
    a('L_A_comm:')
    a.karg(20, 'wo'); a.srd(20, 0x400000)
    a('s_waitcnt lgkmcnt(0)')
    a.stamp(0)
    a.get_tag()
    a(f'v_mov_b32 v4, 0\nv_mov_b32 v5, 0\nv_mov_b32 v6, 0\nv_mov_b32 v7, 0\nv_mov_b32 v8, {LZ}\nds_write_b128 v8, v[4:7]')
    for k in range(8): a(f'v_xor_b32 v{64+k}, {2*k}, v1\nv_lshlrev_b32 v{64+k}, 4, v{64+k}')
    a.fin_tag()
    a.xid_publish()
    if a.o.get('kv_bar'): a('s_barrier')
    if a.o.get('wot'): a('s_lshl_b32 s42, s4, 19\ns_mov_b64 exec, 1\nbuffer_load_dword v108, v1, s[20:23], s42 offen nt\ns_mov_b64 exec, -1')
    a(f'v_lshlrev_b32 v9, 4, v1\ns_lshl_b32 s40, s4, 11\ns_add_u32 s62, s40, {QV}')
    a(f'v_lshrrev_b32 v10, 5, v1\nv_mul_u32_u24 v10, 272, v10\nv_and_b32 v11, 31, v1\nv_lshl_add_u32 v10, v11, 3, v10\nv_add_u32 v10, {LQ}, v10\nv_mov_b32 v12, {LMODE_A}')
    a('s_lshl_b32 s56, s4, 19\ns_lshl_b32 s42, s5, 15\ns_add_u32 s56, s56, s42')
    a(f'v_and_b32 v14, 3, v1\nv_lshlrev_b32 v13, 5, v14\nv_add_u32 v13, {LMX}, v13\nv_lshlrev_b32 v14, 8, v14')
    a(f's_lshl_b32 s41, s4, 10\ns_lshl_b32 s42, s5, 4\ns_add_u32 s63, s41, s42\ns_add_u32 s63, s63, {OS}')
    a(f's_lshr_b32 s42, s5, 2\ns_lshl_b32 s42, s42, 8\ns_add_u32 s41, s41, s42\ns_add_u32 s41, s41, {OS}')
    a(f's_lshl_b32 s40, s4, 4\ns_add_u32 s40, s40, s5\ns_lshl_b32 s40, s40, 11\ns_add_u32 s54, s40, {AP}\ns_add_u32 s40, s40, {OP}')
    a(f'v_and_b32 v15, 15, v1\nv_lshlrev_b32 v15, 4, v15\nv_lshrrev_b32 v16, 4, v1\nv_lshlrev_b32 v16, 4, v16\nv_add_u32 v16, {LOF}, v16\nv_lshlrev_b32 v17, 2, v1')
    a(f's_lshl_b32 s42, s4, 3\ns_lshr_b32 s55, s5, 1\ns_add_u32 s42, s42, s55\ns_and_b32 s55, s42, 15\ns_lshl_b32 s55, s55, 17\ns_lshr_b32 s42, s42, 4\ns_lshl_b32 s42, s42, 8\ns_add_u32 s55, s55, s42')
    a(f's_and_b32 s42, s5, 1\ns_lshl_b32 s42, s42, 7\ns_add_u32 s55, s55, s42\ns_add_u32 s55, s55, {AX}\ns_mov_b32 s57, {LOG2E:#x}')
    if a.o.get('hc'):
        a(f's_and_b32 s55, s5, 1\ns_lshl_b32 s55, s55, 3\ns_lshr_b32 s42, s5, 1\ns_add_u32 s55, s55, s42\ns_lshl_b32 s55, s55, 17\ns_lshl_b32 s42, s4, 8\ns_add_u32 s55, s55, s42\ns_add_u32 s55, s55, {AX}\nv_add_u32 v19, {LRED}, v17\nv_add_u32 v26, {LRED}, v15')
    if a.o.get('pt_o'): a('v_lshlrev_b32 v22, 5, v1\nbuffer_load_dword v108, v22, s[8:11], s40 offen sc1\nbuffer_load_dword v109, v15, s[8:11], s41 offen sc1')
    if a.o.get('pw_a'):
        a('v_xor_b32 v22, 1, v2'); a.store2('buffer_store_dword v22, v17, s[8:11], s{s} offen', 55, 42)
    if a.o.get('sq'):
        a('s_waitcnt lgkmcnt(0)\ns_barrier')
        a(a.xid_load(40))
        a(f's_lshl_b32 s58, s4, 12\ns_add_u32 s58, s58, {QF}\ns_add_u32 s58, s8, s58\ns_addc_u32 s59, s9, 0\ns_mov_b32 s47, 0')
        a('L_qd:\ns_load_dwordx8 s[64:71], s[58:59], s47\ns_add_u32 s47, s47, 64\ns_waitcnt lgkmcnt(0)')
        a('s_xor_b32 s64, s64, s45')
        for k in range(65, 72): a(f's_xor_b32 s{k}, s{k}, s45\ns_or_b32 s64, s64, s{k}')
        a(f's_cbranch_scc0 L_qe\ns_sleep {a.o.get("qsleep", 3)}\ns_cmp_lt_u32 s47, 4096\ns_cbranch_scc1 L_qd')
        a.poll(['buffer_load_dwordx4 v[32:35], v9, s[8:11], s62 offen sc1', 'buffer_load_dwordx4 v[36:39], v9, s[8:11], s62 offen offset:1024 sc1'], range(32, 40), 30)
        a('L_qe:')
        a.stamp(1)
        a('s_barrier\ns_barrier')
    else:
        Q = lambda r: [f'buffer_load_dwordx4 v[{r}:{r+3}], v9, s[8:11], s62 offen sc1', f'buffer_load_dwordx4 v[{r+4}:{r+7}], v9, s[8:11], s62 offen offset:1024 sc1']
        if not a.o.get('q1'):
            a('v_and_b32 v18, 7, v1\nv_lshlrev_b32 v18, 4, v18\ns_mov_b64 exec, 0xff')
            a.poll(['buffer_load_dwordx4 v[32:35], v18, s[8:11], s62 offen sc1'], range(32, 36), 30)
            a('s_mov_b64 exec, -1')
        if a.o.get('q1') == 2:
            def chk(r):
                for k in range(r, r+8): a(f'v_xor_b32 v{k}, v2, v{k}')
                a(f'v_or3_b32 v30, v{r}, v{r+1}, v{r+2}\nv_or3_b32 v30, v30, v{r+3}, v{r+4}\nv_or3_b32 v30, v30, v{r+5}, v{r+6}\nv_or_b32 v30, v30, v{r+7}\nv_and_b32 v30, {TMASK}, v30\nv_cmp_ne_u32 vcc, 0, v30')
            a('\n'.join(Q(48)) + f'\ns_sleep {a.o.get("qgap", 16)}\ns_mov_b32 s47, 0\nL_q2:\n' + '\n'.join(Q(32)) + '\ns_waitcnt vmcnt(2)')
            chk(48)
            a('s_cbranch_vccz L_q2b\n' + '\n'.join(Q(48)) + '\ns_waitcnt vmcnt(2)')
            chk(32)
            a(f's_cbranch_vccz L_q2a\ns_add_u32 s47, s47, 1\ns_cmp_lt_u32 s47, {LIMIT}\ns_cbranch_scc1 L_q2\ns_branch L_q2a')
            a('L_q2b:')
            for k in range(8): a(f'v_mov_b32 v{80+k}, v{48+k}')
            a('s_branch L_q2c\nL_q2a:')
            for k in range(8): a(f'v_mov_b32 v{80+k}, v{32+k}')
            a('L_q2c:')
        else:
            if a.o.get('xe'): a('\n'.join(Q(32)) + '\ns_waitcnt vmcnt(0)\n' + a.xid_load(40))
            a.poll(Q(32), range(32, 40), 30)
        a.stamp(1)
        for i in range(2):
            qb = 80 if a.o.get('q1') == 2 else 32
            a(f'v_perm_b32 v{44+2*i}, v{qb+1+4*i}, v{qb+4*i}, s51\nv_perm_b32 v{45+2*i}, v{qb+3+4*i}, v{qb+2+4*i}, s51')
            a(f'ds_write_b64 v10, v[{44+2*i}:{45+2*i}] offset:{544*i}')
        if a.o.get('qmode'): a('v_bfe_u32 v18, v32, 10, 1\nds_write_b32 v12, v18\nv_readfirstlane_b32 s7, v18')
        elif a.o.get('cwo') is not None and not a.o.get('xe'): a(a.xid_load(40))
        a('s_waitcnt lgkmcnt(0)\ns_barrier')
    if a.o.get('sq'): A_comm_sq2(a); return
    if a.o.get('split'): A_comm_split(a); return
    a(a.xid_load(40))
    for b in range(8):
        a(f's_mov_b32 m0, {LK + 4096*b}' + ('\ns_add_u32 s56, s56, 4096' if b else '\ns_nop 0'))
        for r in range(4): a(f'buffer_load_dwordx4 v{64 + r + 4*((b>>1)&1)}, s[20:23], s56 offen offset:{1024*r} OPOL lds')
    a('s_waitcnt vmcnt(32)')
    a.xid_mode(40)
    a('v_mov_b32 v18, s7\nds_write_b32 v12, v18\ns_waitcnt lgkmcnt(0)')
    if not a.o.get('wmax') and not a.o.get('sq'): a('s_barrier')
    if not a.o.get('sq'): a('s_barrier')
    a(f'ds_read_b128 v[32:35], v13\nds_read_b128 v[36:39], v13 offset:16\nds_read_b128 v[40:43], v13 offset:{LLS-LMX}\nds_read_b128 v[44:47], v13 offset:{LLS-LMX+16}\ns_waitcnt lgkmcnt(2)')
    a('v_max3_f32 v48, v32, v33, v34\nv_max3_f32 v49, v36, v37, v38\nv_max3_f32 v48, v48, v35, v39\nv_max_f32 v48, v48, v49')
    if a.o.get('wmax'):
        for i in range(8): a(f'v_sub_f32 v{32+i}, v{32+i}, v48')
        for i in range(8): a(f'v_mul_f32 v{32+i}, s57, v{32+i}')
        for i in range(8): a(f'v_exp_f32 v{32+i}, v{32+i}')
        a('s_waitcnt lgkmcnt(0)')
        for i in range(8): a(f'v_mul_f32 v{40+i}, v{32+i}, v{40+i}')
    a('s_waitcnt lgkmcnt(0)')
    a.tree_add(range(40, 48))
    a('v_or_b32 v32, v2, v48\nv_and_or_b32 v33, v40, s46, v2\nv_mov_b32 v34, v32\nv_mov_b32 v35, v33\ns_mov_b64 exec, 0xf')
    a.store_mode('buffer_store_dwordx4 v[32:35], v14, s[8:11], s63 offen')
    a('s_mov_b64 exec, -1')
    a('s_waitcnt vmcnt(1)')
    A_comm_tail(a)

def A_comm_sq(a):
    for b in range(8):
        a(f's_mov_b32 m0, {LK + 4096*b}' + ('\ns_add_u32 s56, s56, 4096' if b else '\ns_nop 0'))
        for r in range(4): a(f'buffer_load_dwordx4 v{64 + r + 4*((b>>1)&1)}, s[20:23], s56 offen offset:{1024*r} OPOL lds')
        if b == 0: a('s_barrier')
        if b == a.o.get('wo_b2', 1): a('s_barrier')
    a('s_barrier')
    a(f'ds_read_b128 v[32:35], v13\nds_read_b128 v[36:39], v13 offset:16\nds_read_b128 v[40:43], v13 offset:{LLS-LMX}\nds_read_b128 v[44:47], v13 offset:{LLS-LMX+16}\ns_waitcnt lgkmcnt(0)')
    a('v_max3_f32 v48, v32, v33, v34\nv_max3_f32 v49, v36, v37, v38\nv_max3_f32 v48, v48, v35, v39\nv_max_f32 v48, v48, v49')
    a.tree_add(range(40, 48))
    a('v_or_b32 v32, v2, v48\nv_and_or_b32 v33, v40, s46, v2\nv_mov_b32 v34, v32\nv_mov_b32 v35, v33\ns_mov_b64 exec, 0xf')
    a.store_mode('buffer_store_dwordx4 v[32:35], v14, s[8:11], s63 offen')
    a('s_mov_b64 exec, -1')
    a('s_waitcnt vmcnt(1)')
    A_comm_tail(a)

def A_comm_sq2(a):
    a(f'v_lshrrev_b32 v20, 1, v14\nv_add_u32 v20, {LLS}, v20\ns_barrier\ns_barrier')
    a('ds_read_b128 v[32:35], v13\nds_read_b128 v[36:39], v13 offset:16')
    for w in range(8): a(f'ds_read_b128 v[{72+4*w}:{75+4*w}], v20 offset:{16*w}')
    a('s_waitcnt lgkmcnt(8)')
    a('v_max3_f32 v48, v32, v33, v34\nv_max3_f32 v49, v36, v37, v38\nv_max3_f32 v48, v48, v35, v39\nv_max_f32 v48, v48, v49')
    a('s_waitcnt lgkmcnt(0)')
    for w in range(8): a(f'v_pk_add_f32 v[{72+4*w}:{73+4*w}], v[{72+4*w}:{73+4*w}], v[{74+4*w}:{75+4*w}]')
    for w in range(8): a(f'v_add_f32 v{56+w}, v{72+4*w}, v{73+4*w}')
    a.tree_add(range(56, 64))
    a('v_or_b32 v32, v2, v48\nv_and_or_b32 v33, v56, s46, v2\nv_mov_b32 v34, v32\nv_mov_b32 v35, v33\ns_waitcnt vmcnt(0)')
    a.xid_mode(40)
    if a.prof: a('v_writelane_b32 v127, s7, 12')
    a('v_mov_b32 v18, s7\nds_write_b32 v12, v18\ns_mov_b64 exec, 0xf')
    a.store_mode('buffer_store_dwordx4 v[32:35], v14, s[8:11], s63 offen')
    a('s_mov_b64 exec, -1\ns_waitcnt lgkmcnt(0)\ns_barrier')
    A_comm_tail(a)

def A_comm_split(a):
    cwo = a.o.get('cwo') is not None
    if not cwo:
        a(a.xid_load(40))
        for b in range(8):
            a(f's_mov_b32 m0, {LK + 4096*b}' + ('\ns_add_u32 s56, s56, 4096' if b else '\ns_nop 0'))
            for r in range(4): a(f'buffer_load_dwordx4 v{64 + r + 4*((b>>1)&1)}, s[20:23], s56 offen offset:{1024*r} OPOL lds')
            if b == a.o.get('wo_b1', 3): a('s_barrier')
            if b == a.o.get('wo_b2', 5): a('s_barrier')
        a('s_waitcnt vmcnt(32)')
    else: a(('' if a.o.get('wmax') else 's_barrier\n') + 's_waitcnt vmcnt(0)')
    if not a.o.get('qmode'): a.xid_mode(40)
    if a.prof: a('v_writelane_b32 v127, s7, 12')
    a(f'v_mov_b32 v18, s7\nds_write_b32 v12, v18\nv_lshrrev_b32 v20, 1, v14\nv_add_u32 v20, {LLS}, v20')
    if a.o.get('qa'): a(f'v_add_u32 v20, {LLS}, v17\nv_lshrrev_b32 v22, 4, v1\nv_lshlrev_b32 v21, 5, v22\nv_add_u32 v21, {LMX}, v21\nv_lshlrev_b32 v22, 8, v22')
    a('s_waitcnt lgkmcnt(0)')
    a('s_barrier')
    if a.o.get('qa'):
        a('ds_read_b128 v[32:35], v21\nds_read_b128 v[36:39], v21 offset:16')
        for i in range(4): a(f'ds_read2st64_b32 v[{40+2*i}:{41+2*i}], v20 offset0:{2*i} offset1:{2*i+1}')
        a('s_waitcnt lgkmcnt(4)')
        a('v_max3_f32 v48, v32, v33, v34\nv_max3_f32 v49, v36, v37, v38\nv_max3_f32 v48, v48, v35, v39\nv_max_f32 v48, v48, v49\ns_waitcnt lgkmcnt(0)')
        a.tree8(40)
        for k in (8, 4, 2, 1): a(f's_nop 1\nv_add_f32_dpp v40, v40, v40 row_ror:{k} {DPP}')
        a('v_or_b32 v32, v2, v48\nv_and_or_b32 v33, v40, s46, v2\nv_mov_b32 v34, v32\nv_mov_b32 v35, v33\ns_mov_b32 exec_lo, 0x00010001\ns_mov_b32 exec_hi, 0x00010001')
        a.store_mode('buffer_store_dwordx4 v[32:35], v22, s[8:11], s63 offen')
    else:
        a('ds_read_b128 v[32:35], v13\nds_read_b128 v[36:39], v13 offset:16')
        for w in range(8): a(f'ds_read_b128 v[{72+4*w}:{75+4*w}], v20 offset:{16*w}')
        a('s_waitcnt lgkmcnt(8)')
        a('v_max3_f32 v48, v32, v33, v34\nv_max3_f32 v49, v36, v37, v38\nv_max3_f32 v48, v48, v35, v39\nv_max_f32 v48, v48, v49')
        if a.o.get('wmax'):
            for i in range(8): a(f'v_sub_f32 v{32+i}, v{32+i}, v48')
            for i in range(8): a(f'v_mul_f32 v{32+i}, s57, v{32+i}')
            for i in range(8): a(f'v_exp_f32 v{32+i}, v{32+i}')
        a('s_waitcnt lgkmcnt(0)')
        for w in range(8): a(f'v_pk_add_f32 v[{72+4*w}:{73+4*w}], v[{72+4*w}:{73+4*w}], v[{74+4*w}:{75+4*w}]')
        for w in range(8): a(f'v_add_f32 v{40+w}, v{72+4*w}, v{73+4*w}')
        if a.o.get('wmax'):
            for i in range(8): a(f'v_mul_f32 v{40+i}, v{32+i}, v{40+i}')
        a.tree_add(range(40, 48))
        a('v_or_b32 v32, v2, v48\nv_and_or_b32 v33, v40, s46, v2\nv_mov_b32 v34, v32\nv_mov_b32 v35, v33\ns_mov_b64 exec, 0xf')
        a.store_mode('buffer_store_dwordx4 v[32:35], v14, s[8:11], s63 offen')
    a('s_mov_b64 exec, -1')
    if cwo and not a.o.get('ve'): a('s_barrier')
    if not cwo: a('s_waitcnt vmcnt(1)')
    A_comm_tail(a)

def A_comm_tail(a):
    a.stamp(2)
    if a.o.get('cwo') is None: a('s_barrier')
    if a.o.get('hc'):
        a('s_barrier')
        if a.o.get('ax4'):
            for w in range(8):
                a(f'ds_read_b128 v[{32+4*w}:{35+4*w}], v26 offset:{256*w}')
            for k, (x, y) in enumerate(((32, 36), (40, 44), (48, 52), (56, 60))):
                a(f's_waitcnt lgkmcnt({6-2*k})\nv_pk_add_f32 v[{x}:{x+1}], v[{x}:{x+1}], v[{y}:{y+1}]\nv_pk_add_f32 v[{x+2}:{x+3}], v[{x+2}:{x+3}], v[{y+2}:{y+3}]')
                if k & 1: a(f'v_pk_add_f32 v[{x-8}:{x-7}], v[{x-8}:{x-7}], v[{x}:{x+1}]\nv_pk_add_f32 v[{x-6}:{x-5}], v[{x-6}:{x-5}], v[{x+2}:{x+3}]')
            a('v_pk_add_f32 v[32:33], v[32:33], v[48:49]\nv_pk_add_f32 v[34:35], v[34:35], v[50:51]\ns_mov_b64 exec, 0xffff')
            a.stamp(5)
            for i in range(4): a(f'v_and_or_b32 v{32+i}, v{32+i}, s46, v2')
            a.store2('buffer_store_dwordx4 v[32:35], v15, s[8:11], s{s} offen', 55, 42)
            a.stamp(6)
            a.exit()
            return
        for i in range(4): a(f'ds_read2st64_b32 v[{32+2*i}:{33+2*i}], v17 offset0:{2*i} offset1:{2*i+1}'.replace('v17', 'v19'))
        a('s_waitcnt lgkmcnt(0)')
        a.stamp(5)
        a.tree8(32)
        a('v_and_or_b32 v32, v32, s46, v2')
        A_comm_end(a)
        return
    a.combine(15, 9, 41, 40)
    a('s_mov_b32 exec_lo, 0x00010001\ns_mov_b32 exec_hi, 0x00010001\nds_write_b128 v16, v[32:35]\ns_mov_b64 exec, -1\ns_waitcnt lgkmcnt(0)\ns_barrier')
    a.stamp(4)
    a.poll([f'buffer_load_dword v{32+i}, v17, s[8:11], s54 offen offset:{256*i} sc1' for i in range(8)], range(32, 40), 30)
    a.stamp(5)
    a.tree_add(range(32, 40))
    a.swap_op(32, 'v_add_f32', 32, 33)
    a('v_and_or_b32 v32, v32, s46, v2\ns_mov_b32 exec_hi, 0')
    A_comm_end(a)

def A_comm_end(a):
    a.store2('buffer_store_dword v32, v17, s[8:11], s{s} offen', 55, 42)
    if a.o.get('axgate'):
        a(f's_lshl_b32 s42, s4, 4\ns_add_u32 s42, s42, s5\ns_lshl_b32 s42, s42, 4\ns_add_u32 s42, s42, {AL}\ns_mov_b64 exec, 0xf')
        a.store_mode('buffer_store_dword v32, v17, s[8:11], s42 offen')
    a.stamp(6)
    if a.o.get('wb') == 'A': a('s_cmp_lg_u32 s5, 0\ns_cbranch_scc1 L_A_nowb\ns_waitcnt vmcnt(0)\nbuffer_wbl2 sc1\ns_waitcnt vmcnt(0)\nL_A_nowb:')
    a.exit()

def FM_issue(a):
    a.role = 'F'
    for s, k in ((12, 'wmod'), (20, 'c'), (16, 'wq')): a.karg(s, k)
    for s, n in ((12, 0x300000), (20, 1024), (16, 0x400000)): a.srd(s, n)
    a('v_lshlrev_b32 v7, 1, v1\nv_lshlrev_b32 v9, 4, v4\nv_lshlrev_b32 v17, 2, v1')
    a(f's_mov_b32 s57, {LOG2E:#x}\ns_and_b32 s58, s5, 7')
    p16 = a.o.get('p16')
    if not p16: a('s_cmp_ge_u32 s5, 24\ns_cbranch_scc1 L_M')
    a('v_mul_u32_u24 v5, 49152, v4\nv_lshl_add_u32 v5, v3, 2, v5\ns_lshl_b32 s40, s4, 7\ns_mul_i32 s56, s4, 393216')
    fl = a.o.get('fl')
    if fl: a('v_lshl_add_u32 v5, v3, 2, v5\ns_lshl_b32 s59, s58, 1\ns_add_u32 s59, s59, s3\ns_lshl_b32 s59, s59, 1\ns_lshl_b32 s42, s59, 6\ns_add_u32 s41, s56, s42')
    else: a('s_lshl_b32 s59, s58, 2\ns_add_u32 s59, s59, s3\ns_lshl_b32 s42, s59, 6\ns_add_u32 s41, s56, s42')
    a('s_waitcnt lgkmcnt(0)')
    a.stamp(0)
    a('buffer_load_ushort v8, v7, s[20:23], s40 offen')
    a.get_tag()
    a('s_cmp_ge_u32 s3, 4\ns_cbranch_scc1 L_F_wq')
    if p16: a('s_cmp_ge_u32 s5, 24\ns_cbranch_scc1 L_F_j')
    if fl:
        a('s_cmp_ge_u32 s3, 2\ns_cbranch_scc1 L_F_idle')
        for r in range(16):
            a(f'buffer_load_dwordx2 v[{32+2*r}:{33+2*r}], v5, s[12:15], s41 offen FPOL')
            if r < 15: a(f's_add_u32 s41, s41, {6144 if r != 7 else 6144*25}')
    else: a.mod_loads()

def F_early(a):
    a.role = 'F'
    a.modp_base(55, 59)
    if a.o.get('pw_h'): a('s_lshl_b32 s42, s4, 8\ns_add_u32 s42, s42, s55\nv_mov_b32 v28, 0\nbuffer_store_dword v28, v17, s[8:11], s42 offen sc1')
    a.fin_tag()
    a.silu_frag(17 if a.o.get('pw_h') else 16)
    if a.o.get('fl'):
        a('v_lshrrev_b32 v15, 3, v3\nv_lshlrev_b32 v15, 17, v15\nv_and_b32 v16, 7, v3\nv_lshl_add_u32 v15, v16, 5, v15\ns_lshl_b32 s42, s4, 8\ns_add_u32 s42, s42, s55')
        for r in (97, 99, 101, 103): a(f'v_mov_b32 v{r}, s45')
        a('s_waitcnt vmcnt(8)')
        a.perm_x2(32, 64)
        a('s_waitcnt vmcnt(0) lgkmcnt(0)')
        a.stamp(1)
        for jj in range(4): a(f'v_mfma_f32_16x16x32_bf16 v[{104+4*jj}:{107+4*jj}], v[20:23], v[{64+4*jj}:{67+4*jj}], 0')
        a.perm_x2(48, 80)
        a('s_nop 0')
        for jj in range(4): a(f'v_mfma_f32_16x16x32_bf16 v[{104+4*jj}:{107+4*jj}], v[24:27], v[{80+4*jj}:{83+4*jj}], v[{104+4*jj}:{107+4*jj}]')
        a('s_mov_b64 exec, 0xffff\ns_nop 3')
        for jj in range(4): a(f'v_mov_b32 v{96+2*jj}, v{104+4*jj}')
        a('buffer_store_dwordx4 v[96:99], v15, s[8:11], s42 offen sc1\nbuffer_store_dwordx4 v[100:103], v15, s[8:11], s42 offen offset:16 sc1\ns_mov_b64 exec, -1')
    else:
        a('s_waitcnt vmcnt(0)')
        a.stamp(1)
        a.mod_partial()
    a.stamp(2)
    if a.o.get('tlb_f'): a(f's_mov_b32 s42, {QP}\ns_mov_b64 exec, 1\nbuffer_load_dword v116, v7, s[8:11], s42 offen sc1\ns_mov_b64 exec, -1')
    a('s_branch L_F_j')
    if a.o.get('fl'):
        a('L_F_idle:')
        a.fin_tag()
        a.silu_frag(0)
        a('s_branch L_F_j')
    a('L_F_wq:')
    if a.o.get('p16'):
        a('s_and_b32 s42, s3, 1\ns_lshl_b32 s42, s42, 3\nv_xor_b32 v6, s42, v1')
        for r in range(4): a(f'v_xor_b32 v{64+r}, {2*r}, v6\nv_lshlrev_b32 v{64+r}, 4, v{64+r}')
        a('s_and_b32 s42, s3, 3\ns_lshl_b32 s44, s42, 13\ns_lshl_b32 s42, s42, 16\ns_and_b32 s62, s5, 15\ns_lshl_b32 s62, s62, 18\ns_add_u32 s62, s62, s42\ns_lshl_b32 s42, s4, 10\ns_add_u32 s62, s62, s42')
        if a.o.get('f_tagw'): a.fin_tag()
        for b in range(2):
            a(f's_add_u32 m0, s44, {WQL + 4096*b}')
            for r in range(4):
                if b or r: a(f's_add_u32 s62, s62, {7168 if r else 11264}')
                else: a('s_nop 0')
                a(f'buffer_load_dwordx4 v{64 + r}, s[16:19], s62 offen offset:{1024*r} FPOL lds')
        return
    for k in range(8): a(f'v_xor_b32 v{64+k}, {2*k}, v1\nv_lshlrev_b32 v{64+k}, 4, v{64+k}')
    a('s_and_b32 s42, s3, 3\ns_lshl_b32 s44, s42, 14\ns_lshl_b32 s42, s42, 17\ns_lshl_b32 s62, s58, 19\ns_add_u32 s62, s62, s42\ns_lshl_b32 s42, s4, 10\ns_add_u32 s62, s62, s42')
    if a.o.get('f_tagw'): a.fin_tag()
    for b in range(4):
        a(f's_add_u32 m0, s44, {WQL + 4096*b}')
        for r in range(4):
            if b or r: a(f's_add_u32 s62, s62, {7168 if r else 11264}')
            else: a('s_nop 0')
            a(f'buffer_load_dwordx4 v{64 + r + 4*((b>>1)&1)}, s[16:19], s62 offen offset:{1024*r} FPOL lds')

def F_body(a):
    a.role = 'F'
    a('L_F_j:')
    if a.o.get('p16'): return P_body(a)
    a.karg(36, 'wd'); a.srd(36, 0x1C0000)
    a('s_cmp_lt_u32 s3, 4\ns_cbranch_scc1 L_F_j2')
    if not a.o.get('f_tagw'): a.fin_tag()
    a.silu_frag(16)
    a('L_F_j2:')
    a('v_lshrrev_b32 v5, 2, v3')
    a(f'v_mov_b32 v28, 0\nv_add_u32 v29, {WZ}, v7\nds_write_b16 v29, v28')
    a.tr_addr(WQL, 96); a.mask_addr(WH, WZ, 100)
    a(f'v_mov_b32 v11, {WMODE}\nv_lshlrev_b32 v18, 3, v1\nv_mov_b32 v31, s45')
    a(f's_lshl_b32 s54, s4, 3\ns_add_u32 s54, s54, s3\ns_lshl_b32 s54, s54, 3\ns_add_u32 s54, s54, s58\ns_lshl_b32 s54, s54, 9\ns_add_u32 s54, s54, {QP}')
    a('s_cmp_lt_u32 s3, 4\ns_cbranch_scc1 L_F_k\ns_waitcnt vmcnt(0)\nL_F_k:\ns_waitcnt lgkmcnt(0)')
    a.stamp(3)
    a('s_barrier')
    for t2 in range(2):
        for jj in range(4):
            b = 32 + 16*t2 + 4*jj
            a(f'ds_read_b64_tr_b16 v[{b}:{b+1}], v{96+jj} offset:{32768*t2}\nds_read_b64_tr_b16 v[{b+2}:{b+3}], v{96+jj} offset:{32768*t2+4096}')
    a('s_waitcnt lgkmcnt(0)\ns_barrier')
    a('ds_read_b64 v[28:29], v11')
    for t2 in range(2):
        for jj in range(4): a(f'ds_read_b128 v[{64+16*t2+4*jj}:{67+16*t2+4*jj}], v{100+jj} offset:{64*t2}')
    for k in range(8):
        a(f's_waitcnt lgkmcnt({7-k})')
        c = '0' if k < 2 else f'v[{108+4*(k&1)}:{111+4*(k&1)}]'
        a(f'v_mfma_f32_16x16x32_bf16 v[{108+4*(k&1)}:{111+4*(k&1)}], v[{64+4*k}:{67+4*k}], v[{32+4*k}:{35+4*k}], {c}')
        if k == 0: a('v_readfirstlane_b32 s7, v28\nv_readfirstlane_b32 s76, v29')
    a('s_nop 7')
    a('v_add_f32 v30, v108, v112')
    a.store_mode('buffer_store_dwordx2 v[30:31], v18, s[8:11], s54 offen')
    if a.o.get('cq'): a('v_mov_b32 v120, v30\nv_mov_b32 v121, v31')
    a.stamp(4)
    F_rest(a)

def P_body(a):
    for s, k in ((24, 'x'), (28, 'wg'), (32, 'wu'), (36, 'wd')): a.karg(s, k)
    a.srd(24, 1024)
    for s in (28, 32, 36): a.srd(s, 0x1C0000)
    a('s_cmp_lt_u32 s3, 4\ns_cselect_b32 s42, 1, 0\ns_cmp_lt_u32 s5, 24\ns_cselect_b32 s43, 1, 0\ns_and_b32 s42, s42, s43\ns_cbranch_scc1 L_F_j2')
    a('s_cmp_lt_u32 s3, 4\ns_cbranch_scc1 L_F_j1')
    if not a.o.get('f_tagw'): a.fin_tag()
    a.silu_frag(8)
    a('s_branch L_F_j2\nL_F_j1:')
    a.fin_tag()
    a('L_F_j2:')
    a('v_lshrrev_b32 v5, 2, v3')
    a(f'v_mov_b32 v28, 0\nv_add_u32 v29, {WZ}, v7\nds_write_b16 v29, v28')
    a.tr_addr(WQL, 96); a.mask_addr(WH, WZ, 100)
    a(f'v_mov_b32 v11, {WMODE}\nv_lshlrev_b32 v18, 3, v1\nv_mov_b32 v31, s45')
    a(f's_lshl_b32 s54, s4, 3\ns_add_u32 s54, s54, s3\ns_lshl_b32 s54, s54, 4\ns_and_b32 s42, s5, 15\ns_add_u32 s54, s54, s42\ns_lshl_b32 s54, s54, 9\ns_add_u32 s54, s54, {QP}')
    a('s_cmp_lt_u32 s3, 4\ns_cbranch_scc1 L_F_k\ns_waitcnt vmcnt(0)\nL_F_k:\ns_waitcnt lgkmcnt(0)')
    a.stamp(3)
    a('s_barrier')
    for jj in range(4): a(f'ds_read_b64_tr_b16 v[{32+4*jj}:{33+4*jj}], v{96+jj}\nds_read_b64_tr_b16 v[{34+4*jj}:{35+4*jj}], v{96+jj} offset:4096')
    a('s_waitcnt lgkmcnt(0)\ns_barrier')
    a('ds_read_b64 v[28:29], v11')
    for jj in range(4): a(f'ds_read_b128 v[{64+4*jj}:{67+4*jj}], v{100+jj}')
    for k in range(4):
        a(f's_waitcnt lgkmcnt({3-k})')
        a(f'v_mfma_f32_16x16x32_bf16 v[108:111], v[{64+4*k}:{67+4*k}], v[{32+4*k}:{35+4*k}], {"0" if k == 0 else "v[108:111]"}')
        if k == 0: a('v_readfirstlane_b32 s7, v28\nv_readfirstlane_b32 s76, v29')
    a('s_nop 7')
    a('v_mov_b32 v30, v108')
    a.store_mode('buffer_store_dwordx2 v[30:31], v18, s[8:11], s54 offen')
    a.stamp(4)
    a('s_cmp_ge_u32 s5, 24\ns_cbranch_scc1 L_M2')
    F_rest(a)

def F_rest(a):
    a('v_mul_u32_u24 v5, 49152, v4\nv_lshl_add_u32 v5, v3, 2, v5')
    a('s_lshl_b32 s59, s58, 3\ns_add_u32 s59, s59, s3\ns_add_u32 s59, s59, 32\ns_lshl_b32 s42, s59, 6\ns_add_u32 s41, s56, s42')
    a.modp_base(55, 59)
    a('v_lshlrev_b32 v6, 7, v1\ns_mul_i32 s40, s4, 229376\ns_mul_i32 s42, s58, 28672\ns_add_u32 s40, s40, s42\ns_lshl_b32 s42, s3, 13\ns_add_u32 s40, s40, s42')
    if a.o.get('fdn'):
        a('s_cmp_lt_u32 s58, 6\ns_cbranch_scc1 L_F_nd')
        a('s_sub_u32 s42, s58, 6\ns_lshl_b32 s42, s42, 3\ns_add_u32 s42, s42, s3\ns_lshr_b32 s43, s42, 1\ns_mul_i32 s44, s4, 7\ns_add_u32 s44, s44, s43\ns_and_b32 s42, s42, 1\ns_lshl_b32 s42, s42, 14')
        a('s_lshl_b32 s62, s44, 15\ns_add_u32 s62, s62, s42\ns_and_b32 s44, s44, 1\ns_cselect_b32 s44, 0, 512\ns_add_u32 s62, s62, s44')
        a('v_lshrrev_b32 v6, 2, v1\nv_lshlrev_b32 v6, 10, v6\nv_and_b32 v10, 3, v1\nv_lshl_add_u32 v6, v10, 7, v6')
        a('s_barrier\ns_cmp_ge_u32 s43, 7\ns_cbranch_scc1 L_F_nd\nbuffer_load_dword v117, v6, s[36:39], s62 offen MPOL')
        if a.o['fdn'] == 2: a('s_xor_b32 s62, s62, 512\nbuffer_load_dword v118, v6, s[36:39], s62 offen MPOL')
        a('L_F_nd:')
    if not a.o.get('rq'): a('s_barrier')
    if a.o.get('rq') == 2: a('s_waitcnt vmcnt(0)\ns_barrier')
    a.mod_loads('RPOL')
    if a.o.get('dpf') == 3:
        a('s_cmp_ge_u32 s3, 4\ns_cbranch_scc1 L_F_nopf\nbuffer_load_dword v117, v6, s[36:39], s40 offen MPOL\ns_waitcnt vmcnt(1)\ns_branch L_F_pf\nL_F_nopf:\ns_waitcnt vmcnt(0)\nL_F_pf:')
    else: a('s_waitcnt vmcnt(0)')
    a.stamp(5)
    if a.o.get('dpf') == 5: a('s_cmp_ge_u32 s3, 4\ns_cbranch_scc1 L_F_nopf\nbuffer_load_dword v117, v6, s[36:39], s40 offen MPOL\nL_F_nopf:')
    if a.o.get('fp2'): a('ds_read_b32 v29, v11 offset:4\ns_waitcnt lgkmcnt(0)\nv_readfirstlane_b32 s76, v29')
    a.mod_partial(two=a.o.get('fp2'))
    if a.o.get('cq'): a('buffer_store_dwordx2 v[120:121], v18, s[8:11], s54 offen sc1')
    if a.o.get('gbx'): a('s_sub_u32 s42, s59, 80\ns_cbranch_scc1 L_F_all\ns_lshr_b32 s42, s42, 1\ns_cmp_lg_u32 s42, s4\ns_cbranch_scc1 L_F_end\nL_F_all:')
    if a.o.get('fgate'): a('s_waitcnt vmcnt(0)')
    if a.o.get('dpf') == 1: a('s_cmp_ge_u32 s3, 4\ns_cbranch_scc1 L_F_nopf\nbuffer_load_dword v8, v6, s[36:39], s40 offen MPOL\nL_F_nopf:')
    a('s_add_u32 s55, s55, s76')
    a.poll8([f'buffer_load_dwordx2 v[{32+2*i}:{33+2*i}], v18, s[8:11], s55 offen offset:{512*i} sc1' for i in range(4)], range(33, 40, 2), 30)
    a.tree_add(range(32, 40, 2))
    a.swap_op(32, 'v_add_f32', 32, 33)
    a.rbf(32, 32)
    a(f's_mul_i32 s42, s4, 12288\ns_lshl_b32 s43, s59, 7\ns_add_u32 s42, s42, s43\ns_add_u32 s42, s42, {MODV}')
    a('v_or_b32 v33, v2, v32\ns_mov_b32 exec_hi, 0')
    a.store_mode('buffer_store_dword v33, v17, s[8:11], s42 offen')
    a.stamp(6)
    if a.o.get('gbx'): a('L_F_end:')
    if a.o.get('wb') == 'F': a('s_lshl_b32 s42, s58, 3\ns_or_b32 s42, s42, s3\ns_cbranch_scc1 L_F_nowb\ns_waitcnt vmcnt(0)\nbuffer_wbl2 sc1\ns_waitcnt vmcnt(0)\nL_F_nowb:')
    if a.o.get('dpf') == 4: a('s_mov_b64 exec, -1\ns_cmp_ge_u32 s3, 4\ns_cbranch_scc1 L_F_nopf\nbuffer_load_dword v117, v6, s[36:39], s40 offen MPOL\ns_waitcnt vmcnt(0)\nL_F_nopf:')
    a.exit()

def F_comm(a):
    a.role = 'Fc'
    a('L_F_comm:')
    a.karg(24, 'x'); a.srd(24, 1024)
    p16 = a.o.get('p16')
    if p16: a('s_and_b32 s58, s5, 7\nv_lshlrev_b32 v9, 4, v1\nv_and_b32 v11, 31, v1\nv_lshlrev_b32 v11, 1, v11\ns_and_b32 s40, s5, 15\ns_lshl_b32 s40, s40, 6')
    else: a('s_and_b32 s58, s5, 7\nv_lshlrev_b32 v9, 4, v1\nv_lshlrev_b32 v11, 1, v1\ns_lshl_b32 s40, s58, 7')
    a('s_waitcnt lgkmcnt(0)')
    a.stamp(0)
    a('buffer_load_dwordx4 v[32:35], v9, s[24:27], 0 offen\nbuffer_load_ushort v36, v11, s[24:27], s40 offen')
    a.get_tag(); a.fin_tag()
    a.xid_publish()
    if a.o.get('fprobe'): a.probe(a.o['fprobe'])
    else: a('s_mov_b32 s76, 0')
    a('s_waitcnt vmcnt(1)')
    for d in range(4): a(f'v_lshlrev_b32 v{40+2*d}, 16, v{32+d}\nv_and_b32 v{41+2*d}, 0xffff0000, v{32+d}')
    a('v_add_f32 v32, v40, v41\nv_add_f32 v33, v42, v43\nv_add_f32 v34, v44, v45\nv_add_f32 v35, v46, v47')
    a.tree_add(range(32, 36))
    a.wave_reduce('v_add_f32', [32], 33)
    a('v_mul_f32 v32, 0x3b000000, v32')
    for i in range(8): a(f'v_sub_f32 v{40+i}, v{40+i}, v32')
    for i in range(8): a(f'v_mul_f32 v{40+i}, v{40+i}, v{40+i}')
    a.tree_add(range(40, 48))
    a.wave_reduce('v_add_f32', [40], 33)
    a('v_mul_f32 v40, 0x3b000000, v40')
    a.rbf(32, 32); a.rbf(40, 40)
    a(f'v_add_f32 v40, {EPS:#x}, v40'); a.rbf(40, 40)
    a('v_sqrt_f32 v40, v40\nv_lshlrev_b32 v36, 16, v36'); a.rbf(40, 40)
    a('v_sub_f32 v36, v36, v32'); a.rbf(36, 36)
    a.div(40, 36, 40, 41, 42); a.rbf(28, 40)
    if p16:
        a(f'v_lshrrev_b32 v12, 5, v1\nv_lshlrev_b32 v12, 11, v12\nv_lshl_add_u32 v12, v11, 2, v12\ns_and_b32 s41, s5, 15\ns_lshl_b32 s41, s41, 17\ns_add_u32 s41, s41, {MODP}')
        a(f'v_add_u32 v13, {WH}, v11\nv_mov_b32 v14, {WMODE}\nv_lshlrev_b32 v17, 2, v1\nv_lshlrev_b32 v18, 3, v1')
        a(f's_lshl_b32 s54, s4, 3\ns_add_u32 s54, s54, s58\ns_lshl_b32 s55, s54, 8\ns_add_u32 s55, s55, {QV}\ns_lshl_b32 s54, s54, 13\ns_add_u32 s54, s54, {QP}\ns_add_u32 s56, s54, 4096')
        a.stamp(1)
        a('s_barrier')
        a(a.xid_load(64))
        a.poll8([f'buffer_load_dwordx2 v[{32+2*i}:{33+2*i}], v12, s[8:11], s41 offen offset:{256*i} sc1' for i in range(8)], range(33, 48, 2), 30)
        a.stamp(2)
        a.tree_add(range(32, 48, 2))
        a.rbf(32, 32)
        a('v_mov_b32 v48, v32\ns_nop 1\nv_permlane32_swap_b32 v32, v48')
        a('v_add_f32 v48, 1.0, v48'); a.rbf(48, 48)
        a('v_mul_f32 v48, v28, v48'); a.rbf(48, 48)
        a('v_add_f32 v48, v48, v32'); a.rbf(48, 48)
    else:
        a(f'v_lshrrev_b32 v12, 5, v1\nv_lshlrev_b32 v12, 17, v12\nv_and_b32 v10, 31, v1\nv_lshl_add_u32 v12, v10, 3, v12\ns_lshl_b32 s41, s58, 18\ns_add_u32 s41, s41, {MODP}\ns_add_u32 s41, s41, s76')
        a(f'v_add_u32 v13, {WH}, v11\nv_mov_b32 v14, {WMODE}\nv_lshlrev_b32 v17, 2, v1\nv_lshlrev_b32 v18, 3, v1')
        a(f's_lshl_b32 s54, s4, 3\ns_add_u32 s54, s54, s58\ns_lshl_b32 s55, s54, 8\ns_add_u32 s55, s55, {QV}\ns_lshl_b32 s54, s54, 12\ns_add_u32 s54, s54, {QP}')
        a(f'v_lshlrev_b32 v19, 6, v1\nv_mov_b32 v20, s45\ns_lshl_b32 s56, s4, 12\ns_lshl_b32 s42, s58, 2\ns_add_u32 s56, s56, s42\ns_add_u32 s56, s56, {QF}')
        if a.o.get('pt_q') == 1: a('v_lshlrev_b32 v22, 6, v1\nbuffer_load_dword v108, v22, s[8:11], s54 offen sc1')
        if a.o.get('pt_h'):
            a(f'v_and_b32 v22, 31, v1\nv_lshlrev_b32 v22, 7, v22\nv_lshrrev_b32 v23, 5, v1\nv_lshl_add_u32 v22, v23, 17, v22\nbuffer_load_dword v109, v22, s[8:11], s41 offen {a.o["pt_h"]}')
        a.stamp(1)
        if not a.o.get('mh'): a('s_barrier')
        H1 = [f'buffer_load_dwordx2 v[{32+2*i}:{33+2*i}], v12, s[8:11], s41 offen offset:{256*i} sc1' for i in range(16)]
        if a.o.get('mh'):
            if a.o.get('mown', 1): a.trigger('own')
            H1 = H1 + [a.xid_load(64)]
        else: a(a.xid_load(64))
        if a.o.get('pt_q') == 2: a('v_lshlrev_b32 v22, 6, v1\nbuffer_load_dword v108, v22, s[8:11], s54 offen sc1')
        ps = a.o.get('ps') and not a.o.get('mh')
        if ps: a.poll8_sum(H1, 32, 16, 30, [(0, 8), (8, 8)])
        else: a.poll8(H1, range(33, 64, 2), 30)
        a.stamp(2)
        for k in (() if ps else (1, 2, 4)):
            for b in (48, 32):
                for i in range(0, 8, 2*k): a(f'v_add_f32 v{b+2*i}, v{b+2*i}, v{b+2*(i+k)}')
        a.rbf(48, 48); a.rbf(32, 32)
        a('v_add_f32 v48, 1.0, v48'); a.rbf(48, 48)
        a('v_mul_f32 v48, v28, v48'); a.rbf(48, 48)
        a('v_add_f32 v48, v48, v32'); a.rbf(48, 48)
    if a.o.get('mh'):
        a.xid_mode(64)
        a(f's_lshl_b32 s42, s7, 10\ns_or_b32 s42, s42, s6\nv_or_b32 v48, s42, v48\ns_lshl_b32 s42, s4, 3\ns_add_u32 s42, s42, s58\ns_lshl_b32 s42, s42, 8\ns_add_u32 s42, s42, {HV}')
        a.store_mode('buffer_store_dword v48, v17, s[8:11], s42 offen')
        a.stamp(3)
        a('v_mov_b32 v15, 0\nds_write_b32 v14, v15\ns_branch L_M_comm')
        a('L_F_comm2:')
        a('s_and_b32 s58, s5, 7\ns_waitcnt lgkmcnt(0)')
        a.get_tag(); a.fin_tag()
        a.xid_publish()
        a(f'v_lshlrev_b32 v13, 1, v1\nv_add_u32 v13, {WH}, v13\nv_mov_b32 v14, {WMODE}\nv_lshlrev_b32 v17, 2, v1\nv_lshlrev_b32 v18, 3, v1\ns_mov_b32 s76, 0')
        a(f's_lshl_b32 s54, s4, 3\ns_add_u32 s54, s54, s58\ns_lshl_b32 s55, s54, 8\ns_add_u32 s41, s55, {HV}\ns_add_u32 s55, s55, {QV}\ns_lshl_b32 s54, s54, 12\ns_add_u32 s54, s54, {QP}')
        if a.o['mh'] == 2: a('s_barrier')
        l = a.label('P')
        a(f's_mov_b32 s47, 0\n{l}:\nbuffer_load_dword v48, v17, s[8:11], s41 offen sc1\ns_add_u32 s47, s47, 1\ns_cmp_gt_u32 s47, {LIMIT}\ns_cbranch_scc1 {l}_t\ns_waitcnt vmcnt(0)')
        a(f'v_xor_b32 v48, v2, v48\nv_and_b32 v30, {TMASK}, v48\nv_cmp_ne_u32 vcc, 0, v30\ns_cbranch_vccnz {l}\n{l}_x:')
        a.tails.append(f'{l}_t:\ns_waitcnt vmcnt(0)\ns_branch {l}_x')
        a.stamp(2)
        a('ds_write_b16_d16_hi v13, v48\nv_bfe_u32 v64, v48, 10, 1\nv_mov_b32 v65, 0\nds_write_b64 v14, v[64:65]\nv_readfirstlane_b32 s7, v64')
        if a.o['mh'] == 1: a('s_barrier')
        a('s_waitcnt lgkmcnt(0)\ns_barrier')
        F_comm_tail(a, False)
        return
    a('ds_write_b16_d16_hi v13, v48')
    a.xid_mode(64)
    a('v_mov_b32 v64, s7\nv_mov_b32 v65, s76\nds_write_b64 v14, v[64:65]\ns_waitcnt lgkmcnt(0)\ns_barrier')
    F_comm_tail(a, p16)

def F_comm_tail(a, p16):
    a.stamp(3)
    if p16: a('s_cmp_ge_u32 s5, 24\ns_cbranch_scc1 L_M_comm')
    if a.o.get('rq'):
        if a.o.get('rq') == 2: a('s_barrier')
        if a.o.get('fp2'):
            a.probe(3)
            a('v_mov_b32 v65, s76\nds_write_b32 v14, v65 offset:4\ns_waitcnt lgkmcnt(0)')
        a.exit()
        return
    if a.o.get('qmode'): a('s_lshl_b32 s43, s7, 10\ns_or_b32 s43, s43, s6')
    nq = 16 if p16 else 8
    QL = [f'buffer_load_dwordx2 v[{32+2*i}:{33+2*i}], v18, s[8:11], s{54 if i < 8 else 56} offen offset:{512*(i&7)} sc1' for i in range(nq)]
    if a.o.get('ps'): a.poll8_sum(QL, 32, nq, 30, [(0, nq)])
    else: a.poll8(QL, range(33, 32+2*nq, 2), 30)
    a.stamp(4)
    if not a.o.get('ps'): a.tree_add(range(32, 32+2*nq, 2))
    a.rbf(32, 32)
    if a.o.get('qmode'): a('v_or_b32 v32, s43, v32')
    else: a('v_or_b32 v32, v2, v32')
    a.store_mode('buffer_store_dword v32, v17, s[8:11], s55 offen')
    if a.o.get('sq'): a.store_mode('buffer_store_dword v20, v19, s[8:11], s56 offen')
    a.stamp(5)
    a.trigger(a.o.get('ftrig'))
    if a.o.get('gbl'):
        a('s_cmp_lt_u32 s58, ' + str(a.o.get('gbj', 6)) + '\ns_cbranch_scc1 L_F_gb')
        if a.o.get('fdn'): a('s_barrier')
        a.trigger(a.o['gbl'])
        a('L_F_gb:')
    a('s_barrier')
    if a.o.get('fp2'):
        a.probe(3)
        a('v_mov_b32 v65, s76\nds_write_b32 v14, v65 offset:4\ns_waitcnt lgkmcnt(0)')
    a.exit()

def M_early(a):
    a.role = 'M'
    a('L_M:')
    for s, k in ((24, 'x'), (28, 'wg'), (32, 'wu'), (36, 'wd')): a.karg(s, k)
    a.srd(24, 1024)
    for s in (28, 32, 36): a.srd(s, 0x1C0000)
    a('v_bfe_u32 v10, v1, 3, 2\nv_lshlrev_b32 v10, 13, v10\nv_and_b32 v6, 7, v1\nv_lshl_add_u32 v10, v6, 7, v10\nv_lshrrev_b32 v6, 5, v1\nv_lshl_add_u32 v10, v6, 6, v10')
    a('s_lshl_b32 s43, s58, 4\ns_add_u32 s43, s43, s3\ns_add_u32 s43, s43, 8\ns_lshl_b32 s43, s43, 15\ns_lshl_b32 s42, s4, 10\ns_add_u32 s43, s43, s42')
    a('v_and_b32 v11, 31, v1')
    a('s_waitcnt lgkmcnt(0)')
    a.stamp(0)
    a.get_tag()
    if a.o.get('a_tagw'): a.fin_tag()
    if not a.o.get('early_gu') and a.o.get('apf2') != 1 and not a.o.get('nompf'): a('buffer_load_dword v112, v10, s[16:19], s43 offen FPOL')
    if a.o.get('mpf2'): a('s_sub_u32 s43, s43, 131072\nbuffer_load_dword v115, v10, s[16:19], s43 offen FPOL')
    if not a.o.get('a_tagw'): a.fin_tag()
    if a.o.get('vpf'):
        a.karg(68, 'v'); a.srd(68, 0x2000000)
        a(f'v_lshrrev_b32 v12, 5, v1\nv_lshlrev_b32 v12, 13, v12\nv_lshl_add_u32 v12, v11, 7, v12\ns_lshl_b32 s40, s4, 22\ns_lshl_b32 s41, s58, 17\ns_add_u32 s40, s40, s41\ns_lshl_b32 s41, s3, 14\ns_add_u32 s40, s40, s41\ns_add_u32 s40, s40, {(3<<20) + 4096}\ns_waitcnt lgkmcnt(0)')
        if a.o['vpf'] == 2: a('s_barrier')
        a('buffer_load_dword v113, v12, s[68:71], s40 offen UPOL')
    if a.o.get('rpf'):
        a('v_bfe_u32 v13, v1, 2, 3\nv_mul_u32_u24 v13, 6144, v13\nv_and_b32 v14, 3, v1\nv_lshl_add_u32 v13, v14, 7, v13\nv_lshl_add_u32 v13, v6, 6, v13')
        a('s_lshl_b32 s42, s4, 3\ns_add_u32 s42, s42, s3\ns_mul_i32 s42, s42, 49152\ns_lshl_b32 s44, s58, 9\ns_add_u32 s42, s42, s44\ns_add_u32 s42, s42, 2048')
        if a.o.get('rpf') == 2: a('s_waitcnt vmcnt(0)')
        if a.o.get('rpf') != 3: a('buffer_load_dword v22, v13, s[12:15], s42 offen FPOL')
        else: a('s_mov_b32 s62, s42')
    a('s_branch L_M2')

def M_body(a):
    a.role = 'M'
    a('L_M2:')
    if a.o.get('p16'): a('v_and_b32 v11, 31, v1\nv_lshrrev_b32 v6, 5, v1')
    a('s_mul_i32 s59, s4, 7\ns_add_u32 s59, s59, s58')
    a('s_cmp_eq_u32 s58, 7\ns_cbranch_scc1 L_R')
    if a.o.get('mearly'): a('s_mov_b32 s66, s3')
    a('v_mul_u32_u24 v5, 28672, v4\nv_lshl_add_u32 v5, v3, 2, v5')
    a(f's_and_b32 s42, s59, 1\ns_cselect_b32 s44, {39*3584}, 0\ns_cselect_b32 s48, -1, 1\ns_cselect_b32 s63, 78, 0\ns_cselect_b32 s42, 7, 0\ns_xor_b32 s3, s3, s42\ns_mul_i32 s49, s48, {3584*25}\ns_mul_i32 s48, s48, 3584')
    a('s_mul_i32 s41, s3, 229376\ns_lshl_b32 s42, s59, 6\ns_add_u32 s41, s41, s42\ns_add_u32 s41, s41, s44')
    a('s_lshl_b32 s40, s3, 7')
    eg = a.o.get('early_gu')
    def gu():
        for r in range(16):
            a(f'buffer_load_dword v{32+r}, v5, s[28:31], s41 offen MPOL\nbuffer_load_dword v{48+r}, v5, s[32:35], s41 offen MPOL')
            if r < 15: a(f's_add_u32 s41, s41, s{48 if r != 7 else 49}')
    if eg:
        gu()
        a('s_waitcnt vmcnt(0)')
        a.stamp(4)
        a.perm_x1(32, 80); a.perm_x1(40, 88); a.perm_x1(48, 96); a.perm_x1(56, 104)
    if a.o.get('m_pfw') or a.o.get('p16'): a('s_waitcnt vmcnt(0)')
    if a.o.get('tlb_m'):
        a.karg(68, 'wo'); a.srd(68, 0x400000)
        a('s_lshl_b32 s42, s4, 19\ns_mov_b64 exec, 1\nbuffer_load_dword v113, v5, s[28:31], s41 offen nt\nbuffer_load_dword v114, v5, s[32:35], s41 offen nt\nbuffer_load_dword v115, v5, s[36:39], 0 offen nt\nbuffer_load_dword v116, v5, s[24:27], 0 offen')
        a(f's_mov_b32 s44, {MODV}\nbuffer_load_dword v117, v5, s[8:11], s44 offen sc1\ns_waitcnt lgkmcnt(0)\nbuffer_load_dword v118, v5, s[68:71], s42 offen nt\ns_mov_b64 exec, -1')
    if a.o.get('dfirst'):
        a('v_lshlrev_b32 v6, 13, v4\nv_lshl_add_u32 v6, v3, 3, v6\ns_lshl_b32 s43, s59, 15\ns_add_u32 s43, s43, s40\ns_add_u32 s42, s43, 4096')
        if a.o['dfirst'] != 'none': a('s_barrier')
        for i in range(8): a(f'buffer_load_dwordx2 v[{64+2*i}:{65+2*i}], v6, s[36:39], s{43 if i<4 else 42} offen offset:{1024*(i&3)} MPOL')
    a.stamp(1)
    if a.o.get('mearly'):
        a(f's_cmp_lt_u32 s66, {a.o["mearly"]}\ns_cbranch_scc0 L_M_w')
        gu()
        a('s_barrier\nbuffer_load_ushort v8, v7, s[24:27], s40 offen\ns_branch L_M_x\nL_M_w:')
    a('s_barrier')
    a.stamp(3)
    if a.o.get('rpf') == 3: a('buffer_load_dword v22, v13, s[12:15], s62 offen FPOL')
    a('buffer_load_ushort v8, v7, s[24:27], s40 offen')
    if not eg: gu()
    if a.o.get('mearly'): a('L_M_x:')
    a('v_lshlrev_b32 v6, 13, v4\nv_lshl_add_u32 v6, v3, 3, v6\ns_lshl_b32 s43, s59, 15\ns_add_u32 s43, s43, s40\ns_add_u32 s41, s43, 4096' + ('\ns_mov_b32 s64, s43\ns_mov_b32 s65, s41' if a.o.get('dl') else ''))
    dl = a.o.get('dl')
    MV = ['buffer_load_dword v112, v17, s[8:11], s55 offen sc1', 'buffer_load_dword v113, v17, s[8:11], s55 offen offset:2048 sc1', 'buffer_load_dword v114, v17, s[8:11], s56 offen sc1']
    dt = a.o.get('dt')
    if dt: a('s_mov_b32 s64, s43\ns_mov_b32 s65, s41')
    if not dl and not a.o.get('dfirst') and not dt:
        for i in range(8): a(f'buffer_load_dwordx2 v[{64+2*i}:{65+2*i}], v6, s[36:39], s{43 if i<4 else 41} offen offset:{1024*(i&3)} MPOL')
    a(f's_lshl_b32 s42, s3, 8\ns_lshl_b32 s54, s3, 17\ns_add_u32 s54, s54, {AX}\ns_mul_i32 s55, s4, 12288\ns_add_u32 s55, s55, s42\ns_add_u32 s55, s55, {MODV + 2*2048}\ns_add_u32 s56, s55, 4096')
    if a.o.get('mv') or a.o.get('pt_m'): a('\n'.join(MV))
    a(f'v_add_u32 v13, s42, v17\nv_add_u32 v13, {WX1}, v13')
    a(f's_lshl_b32 s43, s3, 3\ns_add_u32 s43, s43, {WST}\nv_mov_b32 v14, s43\nv_and_b32 v15, 7, v1\nv_lshlrev_b32 v15, 3, v15\nv_add_u32 v15, {WST}, v15')
    if a.o.get('st2'): a(f'v_lshlrev_b32 v15, 5, v1\nv_add_u32 v15, {WX1}, v15')
    a(f's_add_u32 s43, s40, {WH2}\nv_xor_b32 v16, s63, v7\nv_add_u32 v16, s43, v16\nv_add_u32 v18, s43, v9')
    a(f's_add_u32 s43, s42, {WGU}\nv_lshlrev_b32 v19, 3, v3\nv_add_u32 v19, s43, v19')
    a(f's_lshl_b32 s43, s3, 6\ns_add_u32 s43, s43, {WHH}\nv_lshlrev_b32 v10, 1, v11\nv_add_u32 v10, s43, v10\nv_add_u32 v11, s43, v9')
    a('v_lshrrev_b32 v12, 3, v3\nv_lshlrev_b32 v12, 9, v12\nv_and_b32 v20, 7, v3\nv_lshl_add_u32 v12, v20, 4, v12')
    a(f's_bfe_u32 s62, s59, 0x40001\ns_lshl_b32 s62, s62, 17\ns_lshr_b32 s42, s59, 5\ns_lshl_b32 s42, s42, 8\ns_add_u32 s62, s62, s42\ns_and_b32 s42, s59, 1\ns_lshl_b32 s42, s42, 7\ns_add_u32 s62, s62, s42\ns_lshl_b32 s42, s3, 10\ns_add_u32 s62, s62, s42\ns_add_u32 s62, s62, {DP}')
    if a.o.get('pw_d'):
        a('v_xor_b32 v28, 1, v2\nv_mov_b32 v29, v28\nv_mov_b32 v30, v28\nv_mov_b32 v31, v28\ns_mov_b64 exec, 0xffff')
        a.store2('buffer_store_dwordx4 v[28:31], v12, s[8:11], s{s} offen', 62, 42)
        a('s_mov_b64 exec, -1')
    a(f'v_mov_b32 v21, {WMODE + (4 if a.o.get("p16") else 0)}')
    if not eg:
        a(f's_waitcnt vmcnt({(0 if dl or dt or a.o.get("dfirst") else 8) + (3 if a.o.get("mv") or a.o.get("pt_m") else 0) + (2 if a.o.get("pw_d") else 0)})')
        a.stamp(4)
        a.perm_x1(32, 80); a.perm_x1(40, 88); a.perm_x1(48, 96); a.perm_x1(56, 104)
    if not dl and not dt:
        a(f's_waitcnt vmcnt({(3 if a.o.get("mv") or a.o.get("pt_m") else 0) + (2 if a.o.get("pw_d") else 0)})')
        a.perm_x2(64, 32)
    if dl == 3:
        a('s_barrier')
        for i in range(8): a(f'buffer_load_dwordx2 v[{32+2*i}:{33+2*i}], v6, s[36:39], s{64 if i<4 else 65} offen offset:{1024*(i&3)} MPOL')
        a('s_waitcnt vmcnt(0)')
    if dt:
        a('s_barrier')
        for i in range(8): a(f'buffer_load_dwordx2 v[{64+2*i}:{65+2*i}], v6, s[36:39], s{64 if i<4 else 65} offen offset:{1024*(i&3)} MPOL')
        a('s_waitcnt vmcnt(0)')
        a.perm_x2(64, 32)
    a('v_lshlrev_b32 v8, 16, v8')
    a.stamp(5)
    a.poll(MV, range(112, 115), 30, first_issued=bool(a.o.get('mv')), sleep=a.o.get('msleep'))
    a('ds_read_b32 v21, v21\nv_add_f32 v114, 1.0, v114'); a.rbf(114, 114)
    a('s_waitcnt lgkmcnt(0)\nv_readfirstlane_b32 s76, v21\ns_mov_b32 s63, 0x42800000\ns_nop 2')
    a(f's_add_u32 s54, s54, s76\ns_add_u32 s40, s54, {8*BLK}')
    if a.o.get('axgate'):
        a(f's_lshl_b32 s41, s4, 8\ns_add_u32 s41, s41, {AL}')
        a.poll(['buffer_load_dword v48, v17, s[8:11], s41 offen sc1', 'buffer_load_dword v49, v17, s[8:11], s41 offen sc1'], [48, 49], 30)
        if a.o['axgate'] > 1: a(f's_sleep {a.o["axgate"]}')
    a.stamp(6)
    if a.o.get('axl'):
        a('s_lshl_b32 s41, s4, 8\ns_add_u32 s43, s41, s40\ns_add_u32 s41, s41, s54')
        a.poll(['buffer_load_dword v48, v17, s[8:11], s41 offen sc1', 'buffer_load_dword v49, v17, s[8:11], s43 offen sc1'], [48, 49], 30, sleep=a.o.get('asleep'))
    R = list(range(48, 56)) + (list(range(60, 68)) if a.o.get('hc') else [])
    LDS_ = [f'buffer_load_dword v{r}, v17, s[8:11], s{40 if i & 1 else 54} offen offset:{256*(i>>1)} sc1' for i, r in enumerate(R)]
    if a.o.get('sel'):
        n = a.o['sel']; ng = len(R) // n
        a(f's_mov_b32 s42, {(1 << ng) - 1}\ns_mov_b32 s47, 0\nL_ax:')
        for g in range(ng):
            a(f's_bitcmp1_b32 s42, {g}\ns_cbranch_scc0 L_ax_i{g}\n' + '\n'.join(LDS_[n*g:n*g+n]) + f'\nL_ax_i{g}:')
        a(f's_add_u32 s47, s47, 1\ns_cmp_gt_u32 s47, {LIMIT}\ns_cselect_b32 s43, 0, -1')
        for g in range(ng):
            rs = R[n*g:n*g+n]
            a(f's_bitcmp1_b32 s42, {g}\ns_cbranch_scc0 L_ax_c{g}' + ('\ns_waitcnt vmcnt(0)'))
            for r in rs: a(f'v_xor_b32 v{r}, v2, v{r}')
            if n == 2: a(f'v_or_b32 v30, v{rs[0]}, v{rs[1]}')
            else: a(f'v_or3_b32 v30, v{rs[0]}, v{rs[1]}, v{rs[2]}\nv_or_b32 v30, v30, v{rs[3]}')
            a(f'v_and_b32 v30, {TMASK}, v30\nv_cmp_ne_u32 vcc, 0, v30\ns_cbranch_vccnz L_ax_c{g}\ns_bitset0_b32 s42, {g}\nL_ax_c{g}:')
        a('s_and_b32 s42, s42, s43\ns_cbranch_scc1 L_ax')
    elif a.o.get('ps'): a.poll_sum(LDS_, R, 30, 68)
    else: a.poll(LDS_, R, 30, sleep=(None if a.o.get('axl') else a.o.get('asleep')))
    a.stamp(7)
    def dn_loads():
        for i in range(8): a(f'buffer_load_dwordx2 v[{32+2*i}:{33+2*i}], v6, s[36:39], s{64 if i<4 else 65} offen offset:{1024*(i&3)} MPOL')
    if dl == 1: dn_loads()
    if a.o.get('ps'): a('v_add_f32 v48, v68, v69')
    elif a.o.get('pk'):
        for x, y in ((48, 60), (50, 62), (52, 64), (54, 66), (48, 52), (50, 54), (48, 50)): a(f'v_pk_add_f32 v[{x}:{x+1}], v[{x}:{x+1}], v[{y}:{y+1}]')
        a('v_add_f32 v48, v48, v49')
    else: a.tree_add(R)
    a.rbf(48, 48)
    a('v_mul_f32 v48, v112, v48'); a.rbf(48, 48)
    a('v_add_f32 v48, v8, v48'); a.rbf(48, 48)
    if a.o.get('st2'):
        a('ds_write_b32 v13, v48\ns_waitcnt lgkmcnt(0)\ns_barrier')
        a('ds_read_b128 v[52:55], v15\nds_read_b128 v[56:59], v15 offset:16\ns_waitcnt lgkmcnt(1)\nv_readfirstlane_b32 s40, v52\ns_nop 1')
        a('v_pk_add_f32 v[52:53], v[52:53], s[40:41] op_sel_hi:[1,0] neg_lo:[0,1] neg_hi:[0,1]\nv_pk_add_f32 v[54:55], v[54:55], s[40:41] op_sel_hi:[1,0] neg_lo:[0,1] neg_hi:[0,1]\ns_waitcnt lgkmcnt(0)')
        a('v_pk_add_f32 v[56:57], v[56:57], s[40:41] op_sel_hi:[1,0] neg_lo:[0,1] neg_hi:[0,1]\nv_pk_add_f32 v[58:59], v[58:59], s[40:41] op_sel_hi:[1,0] neg_lo:[0,1] neg_hi:[0,1]')
        a('v_pk_mul_f32 v[60:61], v[52:53], v[52:53]\nv_pk_add_f32 v[52:53], v[52:53], v[54:55]\nv_pk_fma_f32 v[60:61], v[54:55], v[54:55], v[60:61]\nv_pk_add_f32 v[62:63], v[56:57], v[58:59]')
        a('v_pk_fma_f32 v[60:61], v[56:57], v[56:57], v[60:61]\nv_pk_add_f32 v[52:53], v[52:53], v[62:63]\nv_pk_fma_f32 v[60:61], v[58:59], v[58:59], v[60:61]\nv_add_f32 v49, v52, v53\nv_add_f32 v50, v60, v61\ns_nop 0')
        for m in ('row_shr:1', 'row_shr:2', 'row_shr:4', 'row_shr:8'):
            a(f'v_add_f32_dpp v49, v49, v49 {m} {DPP} bound_ctrl:0\nv_add_f32_dpp v50, v50, v50 {m} {DPP} bound_ctrl:0\ns_nop 0')
        for m, rm in (('row_bcast:15', '0xa'), ('row_bcast:31', '0xc')):
            a(f'v_add_f32_dpp v49, v49, v49 {m} row_mask:{rm} bank_mask:0xf\nv_add_f32_dpp v50, v50, v50 {m} row_mask:{rm} bank_mask:0xf' + ('\ns_nop 0' if rm == '0xa' else ''))
        a('v_mul_f32 v49, 0x3b000000, v49\nv_mul_f32 v50, 0x3b000000, v50\nv_fma_f32 v50, -v49, v49, v50\nv_add_f32 v49, s40, v49')
        a.rbf(50, 50); a.rbf(49, 49)
        a('v_readlane_b32 s43, v50, 63\nv_readlane_b32 s42, v49, 63\ns_nop 0\nv_mov_b32 v61, s43\nv_subrev_f32 v48, s42, v48')
        a.rbf(48, 48)
    else:
        a('ds_write_b32 v13, v48\nv_readfirstlane_b32 s40, v48\ns_nop 1')
        a('v_subrev_f32 v49, s40, v48\nv_mul_f32 v50, v49, v49\ns_nop 0')
        for m in ('row_shr:1', 'row_shr:2', 'row_shr:4', 'row_shr:8'):
            a(f'v_add_f32_dpp v49, v49, v49 {m} {DPP} bound_ctrl:0\nv_add_f32_dpp v50, v50, v50 {m} {DPP} bound_ctrl:0\ns_nop 0')
        for m, rm in (('row_bcast:15', '0xa'), ('row_bcast:31', '0xc')):
            a(f'v_add_f32_dpp v49, v49, v49 {m} row_mask:{rm} bank_mask:0xf\nv_add_f32_dpp v50, v50, v50 {m} row_mask:{rm} bank_mask:0xf' + ('\ns_nop 0' if rm == '0xa' else ''))
        a('v_mul_f32 v51, 0x3c800000, v49\ns_mov_b32 exec_lo, 0\nv_fma_f32 v53, -v51, v49, v50\nv_add_f32 v52, s40, v51\ns_mov_b32 exec_hi, 0x80000000')
        a('ds_write_b64 v14, v[52:53]\ns_mov_b64 exec, -1\ns_waitcnt lgkmcnt(0)\ns_barrier')
        a('ds_read_b64 v[60:61], v15')
        if dl == 2: dn_loads()
        a('s_waitcnt lgkmcnt(0)')
        a(f'v_add_f32_dpp v49, v60, v60 row_ror:4 {DPP}')
        for k in (2, 1): a(f's_nop 1\nv_add_f32_dpp v49, v49, v49 row_ror:{k} {DPP}')
        a('v_mul_f32 v49, 0x3e000000, v49\nv_sub_f32 v60, v60, v49\nv_mul_f32 v60, v60, v60\nv_fma_f32 v61, v60, s63, v61')
        a.rbf(49, 49)
        a('v_sub_f32 v48, v48, v49')
        a(f'v_add_f32_dpp v61, v61, v61 row_ror:4 {DPP}'); a.rbf(48, 48); a('s_nop 0')
        a(f'v_add_f32_dpp v61, v61, v61 row_ror:2 {DPP}\ns_nop 1\nv_add_f32_dpp v61, v61, v61 row_ror:1 {DPP}')
        a('v_mul_f32 v61, 0x3b000000, v61'); a.rbf(61, 61)
    a(f'v_add_f32 v61, {EPS:#x}, v61'); a.rbf(61, 61)
    a('v_sqrt_f32 v61, v61\ns_nop 0'); a.rbf(61, 61)
    a.div(61, 48, 61, 62, 63); a.rbf(48, 61)
    a('v_mul_f32 v48, v48, v114'); a.rbf(48, 48)
    a('v_add_f32 v48, v48, v113'); a.rbf(48, 48)
    a('ds_write_b16_d16_hi v16, v48\nds_read_b128 v[20:23], v18\nds_read_b128 v[24:27], v18 offset:64')
    for t in range(2):
        a(f's_waitcnt lgkmcnt({1-t})')
        for m in range(4):
            b = 80 + 16*(m >> 1) + 8*t + 4*(m & 1)
            c = '0' if t == 0 else f'v[{48+4*m}:{51+4*m}]'
            a(f'v_mfma_f32_16x16x32_bf16 v[{48+4*m}:{51+4*m}], v[{20+4*t}:{23+4*t}], v[{b}:{b+3}], {c}')
    a('s_mov_b64 exec, 0xffff\ns_nop 4\nds_write2_b32 v19, v48, v52 offset1:1\ns_nop 0\nds_write2_b32 v19, v56, v60 offset0:32 offset1:33\ns_mov_b64 exec, -1\ns_waitcnt lgkmcnt(0)\ns_barrier')
    a.stamp(8)
    for i in range(4): a(f'ds_read2st64_b32 v[{48+2*i}:{49+2*i}], v17 offset0:{(WGU+512*i)//256} offset1:{(WGU+512*i+256)//256}')
    if dl:
        a('s_waitcnt vmcnt(0)')
        a.perm_x2(32, 64)
    a('s_waitcnt lgkmcnt(0)')
    a.tree8(48)
    a.rbf(48, 48)
    a('v_mov_b32 v49, v48\ns_nop 1\nv_permlane32_swap_b32 v48, v49')
    a('v_mul_f32 v48, s57, v48\nv_max_f32 v48, 0xc2fc0000, v48\nv_exp_f32 v48, -v48\ns_nop 0\nv_add_f32 v48, 1.0, v48\nv_rcp_f32 v50, v48\ns_nop 0\nv_fma_f32 v48, -v48, v50, 1.0\nv_fma_f32 v48, v48, v50, v50')
    a.rbf(48, 48)
    a('v_mul_f32 v48, v48, v49'); a.rbf(48, 48)
    a('ds_write_b16_d16_hi v10, v48\nds_read_b128 v[20:23], v11\ns_waitcnt lgkmcnt(0)')
    for jj in range(4): a(f'v_mfma_f32_16x16x32_bf16 v[{48+4*jj}:{51+4*jj}], v[20:23], v[{(64 if dl else 32)+4*jj}:{(67 if dl else 35)+4*jj}], 0')
    a('s_mov_b64 exec, 0xffff\ns_nop 3')
    for jj in range(4): a(f'v_and_or_b32 v{28+jj}, v{48+4*jj}, s46, v2')
    a.store2('buffer_store_dwordx4 v[28:31], v12, s[8:11], s{s} offen', 62, 42)
    a.stamp(9)
    if a.o.get('dpgate'): a(f's_waitcnt vmcnt({a.o["dpgate"]-1})\ns_barrier')
    a.exit()
    a('L_R:')
    if a.o.get('rq'):
        a(f'v_lshlrev_b32 v18, 3, v1\ns_lshl_b32 s54, s4, 3\ns_add_u32 s54, s54, s3\ns_lshl_b32 s55, s54, 8\ns_add_u32 s55, s55, {QV}\ns_lshl_b32 s54, s54, 12\ns_add_u32 s54, s54, {QP}\nv_mov_b32 v21, {WMODE}')
        a('s_barrier\nds_read_b32 v21, v21 offset:4\ns_waitcnt lgkmcnt(0)\nv_readfirstlane_b32 s7, v21')
        a.poll8([f'buffer_load_dwordx2 v[{32+2*i}:{33+2*i}], v18, s[8:11], s54 offen offset:{512*i} sc1' for i in range(8)], range(33, 48, 2), 30)
        a.stamp(11)
        a.tree_add(range(32, 48, 2))
        a.rbf(32, 32)
        a('v_or_b32 v32, v2, v32')
        a.store_mode('buffer_store_dword v32, v17, s[8:11], s55 offen')
        a.stamp(12)
        a.exit()
        return
    a('s_and_b32 s42, s4, 1\ns_cselect_b32 s40, 7, 1\ns_cselect_b32 s41, 0, 256\ns_sub_u32 s40, s59, s40\ns_lshl_b32 s40, s40, 6\ns_and_b32 s40, s40, 0xffffff80')
    a('s_and_b32 s42, s3, 3\ns_lshl_b32 s42, s42, 6\ns_add_u32 s41, s41, s42\ns_mul_i32 s41, s41, 3584\ns_add_u32 s40, s40, s41')
    a('v_mul_u32_u24 v5, 3584, v1')
    if a.o.get('p16'): a('s_waitcnt vmcnt(0)')
    if a.o.get('dfirst') not in (None, 'none'): a('s_barrier')
    if not a.o.get('early_gu'): a('s_barrier')
    if a.o.get('rpf') == 3: a('buffer_load_dword v22, v13, s[12:15], s62 offen FPOL')
    a('s_cmp_ge_u32 s3, 4\ns_cbranch_scc1 L_R_up\nbuffer_load_dword v8, v5, s[28:31], s40 offen MPOL\ns_branch L_R_done\nL_R_up:\nbuffer_load_dword v8, v5, s[32:35], s40 offen MPOL\nL_R_done:\ns_waitcnt vmcnt(0)')
    a.exit()

def M_comm(a):
    a.role = 'Mc'
    a('L_M_comm:')
    a.karg(64, 'out'); a.srd(64, 1024)
    if a.o.get('p16') or a.o.get('mh'):
        a('s_waitcnt lgkmcnt(0)')
        a.trigger(a.o.get('trig2'))
    else:
        a(f's_and_b32 s58, s5, 7\nv_mov_b32 v14, {WMODE}\nv_mov_b32 v15, 0\nds_write_b32 v14, v15\ns_waitcnt lgkmcnt(0)')
        a.stamp(0)
        a.mark('karg')
        a.get_tag(); a.fin_tag()
        a.mark('tag')
        a.xid_publish()
        if a.o.get('pt_q') == 3: a(f'v_lshlrev_b32 v22, 6, v1\ns_lshl_b32 s42, s4, 3\ns_add_u32 s42, s42, s58\ns_lshl_b32 s42, s42, 12\ns_add_u32 s42, s42, {QP}\nbuffer_load_dword v108, v22, s[8:11], s42 offen sc1')
        if a.o.get('sq'): a(f'v_lshlrev_b32 v22, 6, v1\ns_lshl_b32 s42, s4, 12\ns_add_u32 s42, s42, {QF}\nbuffer_load_dword v113, v22, s[8:11], s42 offen sc1')
        if a.o.get('pt_a'):
            a(f's_lshl_b32 s42, s4, 3\ns_add_u32 s42, s42, s58\ns_and_b32 s43, s42, 15\ns_lshl_b32 s43, s43, 17\ns_bfe_u32 s40, s42, 0x10004\ns_lshl_b32 s40, s40, 13\ns_add_u32 s43, s43, s40\ns_lshr_b32 s40, s42, 5\ns_lshl_b32 s40, s40, 10\ns_add_u32 s43, s43, s40\ns_add_u32 s43, s43, {AX}')
            a(f'v_and_b32 v22, 7, v1\nv_lshlrev_b32 v22, 7, v22\nbuffer_load_dword v110, v22, s[8:11], s43 offen {a.o["pt_a"]}'.replace(' plain', ''))
        if a.o.get('pt_p'):
            a(f's_lshl_b32 s42, s4, 3\ns_add_u32 s42, s42, s58\ns_and_b32 s43, s42, 15\ns_lshl_b32 s43, s43, 17\ns_lshr_b32 s40, s42, 4\ns_lshl_b32 s40, s40, 13\ns_add_u32 s43, s43, s40\ns_add_u32 s43, s43, {MODP}')
            a(f'v_lshlrev_b32 v22, 7, v1\nbuffer_load_dword v111, v22, s[8:11], s43 offen {a.o["pt_p"]}'.replace(' plain', ''))
        if a.o.get('pt_dd'):
            a(f's_lshl_b32 s42, s4, 3\ns_add_u32 s42, s42, s58\ns_and_b32 s43, s42, 15\ns_lshl_b32 s43, s43, 17\ns_lshr_b32 s40, s42, 4\ns_lshl_b32 s40, s40, 12\ns_add_u32 s43, s43, s40\ns_add_u32 s43, s43, {DP}')
            a(f'v_and_b32 v22, 31, v1\nv_lshlrev_b32 v22, 7, v22\nbuffer_load_dword v112, v22, s[8:11], s43 offen')
        if a.o.get('vd'):
            a('s_cmp_lg_u32 s58, 7\ns_cbranch_scc1 L_M_c0')
            a(a.xid_load(44))
            a.poll([a.xid_load(40, True)], range(40, 44), 30, sleep=2)
            for i in range(4): a(f'v_xor_b32 v{40+i}, v2, v{40+i}')
            a.xid_mode(40, True)
            a('s_lshl_b32 s42, s7, 10\ns_or_b32 s42, s42, s6\nv_mov_b32 v40, s42\nv_mov_b32 v41, s42\nv_mov_b32 v42, s42\nv_mov_b32 v43, s42\ns_mov_b64 exec, 1')
            a.store_mode('buffer_store_dwordx4 v[40:43], off, s[8:11], s49')
            a('s_mov_b64 exec, -1\nL_M_c0:')
        if a.o.get('vpf') == 2:
            a.trigger(a.o.get('vtrig', 'own')); a('s_barrier')
        if a.o.get('dfirst') not in (None, 'none'):
            a.trigger(a.o['dfirst']); a('s_barrier')
        a.trigger(a.o.get('trig'))
    a.mark('trig')
    if a.o.get('rq'):
        a('s_cmp_lg_u32 s58, 7\ns_cbranch_scc1 L_M_c1')
        a.poll([a.xid_load(40)], range(40, 44), 30, sleep=4)
        for i in range(4): a(f'v_xor_b32 v{40+i}, v2, v{40+i}')
        a.xid_mode(40)
        a('v_mov_b32 v15, s7\nds_write_b32 v14, v15 offset:4\ns_waitcnt lgkmcnt(0)\nL_M_c1:')
    a('s_barrier')
    a.stamp(1)
    if a.o.get('cpf2'): a('global_load_dword v23, v21, s[52:53]\nglobal_load_dword v24, v22, s[52:53]')
    if a.o.get('tlb_out'): a('v_mov_b32 v108, 0\ns_mov_b64 exec, 1\nbuffer_load_dword v109, v108, s[64:67], 0 offen\ns_mov_b64 exec, -1')
    a('s_cmp_eq_u32 s58, 7\ns_cbranch_scc1 L_M_cdone')
    a.probe(4)
    a('v_mov_b32 v15, s76\nds_write_b32 v14, v15' + (' offset:4' if a.o.get('p16') else ''))
    if a.o.get('dt'):
        a.trigger(a.o['dt']); a('s_barrier')
    a('s_cmp_ge_u32 s58, 2\ns_cbranch_scc1 L_M_cdone')
    a('s_lshl_b32 s59, s4, 1\ns_add_u32 s59, s59, s58\nv_and_b32 v10, 31, v1\nv_lshlrev_b32 v11, 1, v10\nv_lshlrev_b32 v12, 2, v10\nv_lshlrev_b32 v17, 2, v1')
    a(f's_lshl_b32 s40, s59, 6\ns_lshl_b32 s42, s59, 7\nv_add_u32 v13, s42, v12\ns_lshl_b32 s54, s59, 9\ns_add_u32 s54, s54, {DP}\ns_add_u32 s54, s54, s76')
    a(f's_mul_i32 s41, s4, 12288\ns_add_u32 s41, s41, s42\ns_add_u32 s41, s41, {MODV + 5*2048}')
    for i in range(1, 16): a(f'v_add_u32 v{64+i}, {i*BLK}, v17')
    a('v_mov_b32 v64, v17')
    if a.o.get('pt_out'): a('buffer_load_ushort v110, v11, s[64:67], s40 offen sc1')
    if a.o.get('pt_d'):
        for i in range(28): a(f'buffer_load_dword v{32+i}, v{64+(i&15)}, s[8:11], s54 offen offset:{256*(i>>4)} {a.o["pt_d"]}')
    if a.o.get('dl') == 3: a('s_barrier')
    a('s_barrier')
    a.mark('mb1')
    a(f'ds_read_b32 v28, v13 offset:{WX1}')
    GBP = lambda: a.poll(['buffer_load_dword v29, v12, s[8:11], s41 offen sc1', 'buffer_load_dword v31, v12, s[8:11], s41 offen sc1'], [29, 31], 30)
    if not a.o.get('gb2'): GBP()
    a('s_waitcnt lgkmcnt(0)\ns_barrier')
    if a.o.get('gb2'): GBP()
    a.stamp(2)
    if a.o.get('dpdelay'): a(f's_sleep {a.o["dpdelay"]}')
    if a.o.get('dpgate'): a('s_barrier')
    DPL = [f'buffer_load_dword v{32+i}, v{64+(i&15)}, s[8:11], s54 offen offset:{256*(i>>4)} sc1' for i in range(28)]
    if a.o.get('ps'): a.poll_sum(DPL, list(range(32, 60)), 30, 60)
    else: a.poll(DPL, range(32, 60), 30)
    a.stamp(3)
    if a.o.get('ps'): a('v_add_f32 v32, v60, v61')
    elif a.o.get('pk'):
        regs = list(range(32, 60, 2))
        while len(regs) > 1:
            nxt = []
            for i in range(0, len(regs) - 1, 2):
                a(f'v_pk_add_f32 v[{regs[i]}:{regs[i]+1}], v[{regs[i]}:{regs[i]+1}], v[{regs[i+1]}:{regs[i+1]+1}]'); nxt.append(regs[i])
            if len(regs) % 2: nxt.append(regs[-1])
            regs = nxt
        a('v_add_f32 v32, v32, v33')
    else: a.tree_add(range(32, 60))
    a.swap_op(32, 'v_add_f32', 32, 33)
    a.rbf(32, 32)
    a('v_mul_f32 v32, v29, v32'); a.rbf(32, 32)
    a('v_add_f32 v32, v28, v32'); a.rbf(32, 32)
    a.mark('end'); a.hold()
    a('s_mov_b32 exec_hi, 0\nbuffer_store_short_d16_hi v32, v11, s[64:67], s40 offen' + (' sc1' if a.o.get('out_wt') else ''))
    a(f's_cmp_lg_u32 s59, 0\ns_cbranch_scc1 L_M_noep\ns_mov_b64 exec, 1\nv_mov_b32 v33, s45\nv_mov_b32 v34, {EPOCH}\nbuffer_store_dword v33, v34, s[8:11], 0 offen' + ('' if a.o.get('epl') else ' sc1') + '\nL_M_noep:')
    a.stamp(4)
    if a.o.get('amp'):
        a('s_waitcnt vmcnt(0)\ns_memrealtime s[98:99]\ns_waitcnt lgkmcnt(0)\ns_sub_u32 s97, s98, s96\ns_mul_i32 s97, s97, 11')
        a('L_amp:\ns_memrealtime s[98:99]\ns_waitcnt lgkmcnt(0)\ns_sub_u32 s98, s98, s96\ns_cmp_lt_u32 s98, s97\ns_cbranch_scc1 L_amp')
    a('L_M_cdone:')
    a.exit()

DOC = '; ---------------------------------------------------------------------------------------------------------------\n; One persistent launch: 256 workgroups (one per CU) x 9 waves (8 work waves + 1 communication wave).\n; group g = wg & 7 owns kv head g; idx picks the role (wg >> 3 = 0..7 -> idx 16..23, 8..23 -> idx 0..15, 24..31 unchanged):\n;   idx 24..30  M: LN2, 32 columns of gate/up, sigmoid(g)*u, 32 rows of w_down; slots 0,1 also reduce the output\n; Hand-offs go through d_ws; every word (or 8-byte granule) carries the launch tag = (word at d_ws[0] on entry) + 1,\n; which the last reducer writes back.  Readers poll with sc1 loads until all tags match.  Hand-offs inside a group use\n; plain stores only when all 32 workgroups of the group reported the same XCC id, else write-through (sc1) stores.\n; Cross-group hand-offs are written twice (address bit 13 clear/set); a reader picks the copy that answers faster.\n; All intermediate values are rounded to bf16 where the reference rounds them.\n; ---------------------------------------------------------------------------------------------------------------\n'
HEADER = open('adaLN_cond__sliding_block_cached__glu_gated_glu__decode.s.ref').read().split('; Override launch')[0]
def emit(fn, prof=False, opts=None):
    a = gen_all(prof, opts)
    body = a.text()
    for p in ('MPOL', 'FPOL', 'OPOL', 'KPOL', 'VPOL', 'WPOL', 'RPOL', 'UPOL'): body = body.replace(' ' + p, (' ' + a.o.get(p, 'nt')).rstrip())
    errs = lint(body)
    if errs: print('\n'.join(errs)); raise SystemExit('lint errors')
    vg = 128
    txt = f'''{HEADER}; @launch grid=(256,1,1) block=(576,1,1) lds={LDS_TOTAL}
{DOC}.amdgcn_target "amdgcn-amd-amdhsa--gfx950"
.text
.globl {NAME}
.p2align 8
.type {NAME},@function
{NAME}:
{body}.section .rodata,"a"
.p2align 6
.amdhsa_kernel {NAME}
  .amdhsa_next_free_vgpr {vg}
  .amdhsa_next_free_sgpr 100
  .amdhsa_accum_offset {vg}
  .amdhsa_group_segment_fixed_size 0
  .amdhsa_kernarg_size 112
  .amdhsa_user_sgpr_count 2
  .amdhsa_user_sgpr_kernarg_segment_ptr 1
  .amdhsa_system_sgpr_workgroup_id_x 1
.end_amdhsa_kernel
'''
    open(fn, 'w').write(txt)
BEST = dict(out_wt=1, gbx=1, gb2=1, gbl='os', qa=1, ve=1, ps=1, pk=1, psame=1, mv=1, pt_o=1, pt_q=3, RPOL='', FPOL='', MPOL='', OPOL='', ffirst=1, xe=1, a_pfw=1, trig='h1', q1=1, split=1, kv_bar=1, dpgate=1, cwo=0, fp2=1, fgate=1, hc=1)
if __name__ == '__main__':
    emit('best.s', opts=BEST); emit('bestp.s', prof=True, opts=BEST); emit('best_amp.s', opts=dict(BEST, amp=1)); emit('best_slow.s', opts=dict(BEST, force_slow=1))
```
